```python
import torch

def _softmax(x, axis=-1):
    return torch.softmax(x, dim=axis)
def _gelu(x):
    return torch.nn.functional.gelu(x, approximate="tanh")
def _silu(x):
    return torch.nn.functional.silu(x)
def _sigmoid(x):
    return torch.sigmoid(x)
def _layernorm(x, axis=-1, eps=1e-5):
    m = x.mean(dim=axis, keepdim=True)
    v = x.var(dim=axis, keepdim=True, unbiased=False)
    return (x - m) / torch.sqrt(v + eps)
def _scatter_add(tgt, idx, src, axis=0):
    return tgt.clone().index_add_(axis, idx, src)
def _segment_sum(src, seg, n):
    out = torch.zeros((n,) + src.shape[1:], dtype=src.dtype)
    return out.index_add_(0, seg, src)
def _pad(x, pw):
    flat = tuple(v for pair in reversed(pw) for v in pair)
    return torch.nn.functional.pad(x, flat)

kernel_name = 'recurrent_scan__compressed_kv_cla__dense_activation_silu__decode'

def setup_inputs():

    _w = (lambda a: (lambda t: t.to(torch.bfloat16) if t.is_floating_point() else t)(torch.as_tensor(a)))
    def _A_setup():
        B, H, Sq, Sk, D, M = 2, 32, 1, 4096, 128, 640
        Dc = 4 * D
        return {
            "x": _w((lambda *s: torch.randn(*s, dtype=torch.bfloat16) * 0.1)(B, Sq, M)),
            "c_kv": _w((lambda *s: torch.randn(*s, dtype=torch.bfloat16) * 3.2)(B, Sk, Dc)),
            "w_q": _w((lambda *s: torch.randn(*s, dtype=torch.bfloat16) * 0.8)(M, H, D) * (M ** -0.5)),
            "w_uk": _w((lambda *s: torch.randn(*s, dtype=torch.bfloat16) * 0.8)(Dc, H, D) * (Dc ** -0.5)),
            "w_uv": _w((lambda *s: torch.randn(*s, dtype=torch.bfloat16) * 3.2)(Dc, H, D) * (Dc ** -0.5)),
            "w_o": _w((lambda *s: torch.randn(*s, dtype=torch.bfloat16) * 3.2)(H, D, M) * ((H * D) ** -0.5)),
        }
    _A_in = _A_setup()

    def _B_setup():
        B, S, D, F = 2, 1, 640, 1728
        return {
            "x": _w((lambda *s: torch.randn(*s, dtype=torch.bfloat16) * 0.1)(B, S, D)),
            "w1": _w((lambda *s: torch.randn(*s, dtype=torch.bfloat16) * 3.2)(D, F) * (D ** -0.5)),
            "w2": _w((lambda *s: torch.randn(*s, dtype=torch.bfloat16) * 3.2)(F, D) * (F ** -0.5)),
        }
    _B_in = _B_setup()

    return {
        "A_x": _A_in["x"],
        "A_c_kv": _A_in["c_kv"],
        "A_w_q": _A_in["w_q"],
        "A_w_uk": _A_in["w_uk"],
        "A_w_uv": _A_in["w_uv"],
        "A_w_o": _A_in["w_o"],
        "B_x": _B_in["x"],
        "B_w1": _B_in["w1"],
        "B_w2": _B_in["w2"],
    }

def reference(A_x, A_c_kv, A_w_q, A_w_uk, A_w_uv, A_w_o, B_x, B_w1, B_w2):
    def _A_ref(x, c_kv, w_q, w_uk, w_uv, w_o):
        B, Sq, M = x.shape[0], x.shape[1], x.shape[2]
        Sk = c_kv.shape[1]
        H, D = w_q.shape[1], w_q.shape[2]
        q = torch.einsum("bqm,mhd->bhqd", x, w_q)
        k = torch.einsum("bkc,chd->bhkd", c_kv, w_uk)
        v = torch.einsum("bkc,chd->bhkd", c_kv, w_uv)
        scores = torch.einsum("bhqd,bhkd->bhqk", q, k) * (D ** -0.5)
        off = Sk - Sq
        qi = torch.arange(Sq)[:, None]
        kj = torch.arange(Sk)[None, :]
        cmask = kj <= (qi + off)
        scores = torch.where(cmask[None, None], scores, -1e9)
        p = _softmax(scores, axis=-1)
        ctx = torch.einsum("bhqk,bhkd->bhqd", p, v)
        return torch.einsum("bhqd,hdm->bqm", ctx, w_o)

    def _B_ref(x, w1, w2):
        h = torch.einsum("bsd,df->bsf", x, w1)
        h = _silu(h)
        out = torch.einsum("bsf,fd->bsd", h, w2)
        return out

    x = A_x
    xn = _layernorm(x, axis=-1)
    s = _A_ref(xn, A_c_kv, A_w_q, A_w_uk, A_w_uv, A_w_o)
    g = _silu(_B_ref(xn, B_w1, B_w2))
    return x + s * g
```

```python
import sys

NAME = "recurrent_scan__compressed_kv_cla__dense_activation_silu__decode_kernel"

WS_EPOCH = 0
WS_QP = 0x1000
WS_QA = 0x41000
WS_ST = 0x51000
WS_CP = 0x55000
WS_SP = 0x65000
WS_FP = 0x8D000
WS_AO = 0x100000
WS_SIZE = 0x300000
WS_STAMP = 0x300000
NF = 54
ZBASE = 88

L_WUV = 0
L_WO = 32768
L_AOB = 73728
L_RED = 90112
L_CTX = 95232
L_XNP = 95744
L_CKV = 0
RS = 1056
L_QB = 128 * RS
L_XN = L_QB + 16 * RS
L_MX = L_XN + 2560
L_PB = L_MX + 1024
L_END = L_PB + 4096
L_W1 = 0
L_W2 = 40960
L_FRED = 81920
L_HB = 82944
LDS_BYTES = 163840

SPIN_LIMIT = 100000

S_X, S_CKV, S_WQ, S_WUK, S_WUV, S_WO, S_W1, S_W2, S_OUT, S_DBG, S_WSP = 4, 6, 8, 10, 12, 14, 18, 20, 22, 24, 26
R_X, R_WQ, R_WS, R_A, R_B, R_C, R_OUT = 28, 32, 36, 40, 44, 48, 52
S_WAVE, S_H, S_J, S_T0, S_T1 = 56, 57, 58, 59, 60
S_TMP = 61
S_PUB = 69
S_OFF = 70
S_CNT = 71
S_M = 72
S_STAMP = 80


class K:
    def __init__(self, stamps=False):
        self.lines = []
        self.nl = 0
        self.stamps = stamps
        self.nstamp = 0

    def __call__(self, s):
        for l in s.split("\n"):
            self.lines.append("    " + l.strip() if l.strip() and not l.strip().endswith(":") else l.strip())

    def label(self, stem):
        self.nl += 1
        return f"L_{stem}_{self.nl}"

    def nop(self, n):
        while n > 0:
            k = min(n, 16)
            self(f"s_nop {k-1}")
            n -= k

    def stamp(self, idx):
        if self.stamps:
            self(f"s_memrealtime s[{S_STAMP+2*idx}:{S_STAMP+2*idx+1}]")
            self("s_waitcnt lgkmcnt(0)")

    def srd(self, d, base, nbytes):
        self(f"s_mov_b32 s{d}, s{base}")
        self(f"s_and_b32 s{d+1}, s{base+1}, 0xffff")
        self(f"s_mov_b32 s{d+2}, {nbytes}")
        self(f"s_mov_b32 s{d+3}, 0x00020000")

    def text(self):
        return "\n".join(self.lines) + "\n"


def srd(d):
    return f"s[{d}:{d+3}]"


def vr(a, n=1):
    return f"v{a}" if n == 1 else f"v[{a}:{a+n-1}]"


def ar(a, n=1):
    return f"a{a}" if n == 1 else f"a[{a}:{a+n-1}]"


V_TID, V_LANE, V_L15, V_SLAB = 0, 1, 2, 3
V_T = 4
V_ONES = 242
V_NEG1 = 244


def spin_begin(k, cnt=S_CNT):
    k(f"s_mov_b32 s{cnt}, 0")


def spin_retry(k, top, cnt=S_CNT):
    k(f"s_add_u32 s{cnt}, s{cnt}, 1")
    k(f"s_cmp_lt_u32 s{cnt}, {SPIN_LIMIT}")
    k(f"s_cbranch_scc1 {top}")


def prologue(k):
    k(f"s_cmp_ge_u32 s2, 256")
    k(f"s_cbranch_scc1 L_exit")
    k.stamp(0)
    k(f"s_load_dwordx16 s[4:19], s[0:1], 0")
    k(f"s_load_dwordx8 s[20:27], s[0:1], 64")
    k(f"v_and_b32 v{V_LANE}, 63, v0")
    k(f"v_lshrrev_b32 v{V_T}, 6, v0")
    k(f"v_and_b32 v{V_L15}, 15, v0")
    k(f"v_bfe_u32 v{V_SLAB}, v0, 4, 2")
    k(f"v_readfirstlane_b32 s{S_WAVE}, v{V_T}")
    k(f"s_and_b32 s{S_H}, s2, 31")
    k(f"s_lshr_b32 s{S_J}, s2, 5")
    for i in range(4):
        k(f"v_mov_b32 v{V_NEG1+i}, -1")
    k(f"s_waitcnt lgkmcnt(0)")
    k.srd(R_X, S_X, 2560)
    k.srd(R_WQ, S_WQ, 640 * 4096 * 2)
    k.srd(R_WS, S_WSP, WS_SIZE + (0x100000 if k.stamps else 0))
    k.srd(R_OUT, S_OUT, 2560)


VX = 10
VW = 20
VA = 100
VSEL = 180
VD1 = 188
VXR = 192
VE = 202
VS1 = 204
VWUK = 210


def stage1_issue(k):
    k(f"v_lshrrev_b32 v{V_T}, 5, v{V_LANE}")
    k(f"v_and_b32 v{V_T+1}, 31, v{V_LANE}")
    k(f"v_mul_u32_u24 v{V_T}, 1280, v{V_T}")
    k(f"v_mul_u32_u24 v{V_T+1}, 40, v{V_T+1}")
    k(f"v_add_u32 v{V_T}, v{V_T}, v{V_T+1}")
    k(f"v_mov_b32 v{V_T+2}, 0")
    k(f"buffer_load_dwordx4 {vr(VX,4)}, v{V_T}, {srd(R_X)}, 0 offen")
    k(f"buffer_load_dwordx4 {vr(VX+4,4)}, v{V_T}, {srd(R_X)}, 0 offen offset:16")
    k(f"buffer_load_dwordx2 {vr(VX+8,2)}, v{V_T}, {srd(R_X)}, 0 offen offset:32")
    k(f"buffer_load_dword v{VE}, v{V_T+2}, {srd(R_WS)}, 0 offen offset:{WS_EPOCH} sc1")
    k(f"s_mul_i32 s{S_TMP}, s{S_J}, {80*8192}")
    k(f"s_lshl_b32 s{S_TMP+1}, s{S_H}, 8")
    k(f"s_add_u32 s{S_TMP}, s{S_TMP}, s{S_TMP+1}")
    k(f"v_mul_u32_u24 v{V_T+3}, {20*8192}, v{V_SLAB}")
    k(f"v_lshl_add_u32 v{V_T+3}, v{V_L15}, 4, v{V_T+3}")
    k(f"v_add_u32 v{V_T+3}, s{S_TMP}, v{V_T+3}")
    for t in range(20):
        k(f"s_mov_b32 s{S_OFF}, {t*8192}")
        k(f"buffer_load_dwordx4 {vr(VW+4*t,4)}, v{V_T+3}, {srd(R_WQ)}, s{S_OFF} offen")


def epoch_tags(k, ve):
    k(f"v_readfirstlane_b32 s{S_T0}, v{ve}")
    k.nop(4)
    k(f"s_add_u32 s{S_T0}, s{S_T0}, 1")
    k(f"s_mul_i32 s{S_T1}, s{S_T0}, 0x9e3779b1")
    k(f"s_xor_b32 s{S_T1}, s{S_T1}, 0x5bd1e995")


def stage1_selectors(k):
    t = VS1
    k(f"v_and_b32 v{t}, 1, v{V_LANE}")
    k(f"v_bfe_u32 v{t+1}, v{V_LANE}, 1, 2")
    k(f"v_cmp_eq_u32 vcc, 1, v{t}")
    k(f"v_mov_b32 v{t+2}, 0x0c0c0504")
    k(f"v_mov_b32 v{t+3}, 0x05040c0c")
    k(f"v_cndmask_b32 v{t+4}, v{t+2}, v{t+3}, vcc")
    k(f"v_mov_b32 v{t+2}, 0x0c0c0706")
    k(f"v_mov_b32 v{t+3}, 0x07060c0c")
    k(f"v_cndmask_b32 v{t+5}, v{t+2}, v{t+3}, vcc")
    k(f"v_mov_b32 v{t+2}, 0x0c0c0c0c")
    for r in range(4):
        k(f"v_cmp_eq_u32 vcc, {r}, v{t+1}")
        k.nop(2)
        k(f"v_cndmask_b32 v{VSEL+2*r}, v{t+2}, v{t+4}, vcc")
        k(f"v_cndmask_b32 v{VSEL+2*r+1}, v{t+2}, v{t+5}, vcc")


def layernorm(k, nafter):
    t = VS1
    k(f"s_mov_b32 s{S_TMP}, 0x3f803f80")
    k(f"v_mov_b32 v{t}, 0")
    k(f"v_mov_b32 v{t+1}, 0")
    k(f"v_mov_b32 v{t+2}, 0")
    k(f"v_mov_b32 v{t+3}, 0")
    k(f"s_waitcnt vmcnt({nafter})")
    k.stamp(1)
    for i in range(10):
        a = t + (i & 1)
        q = t + 2 + (i & 1)
        k(f"v_dot2_f32_bf16 v{a}, v{VX+i}, s{S_TMP}, v{a}")
        k(f"v_dot2_f32_bf16 v{q}, v{VX+i}, v{VX+i}, v{q}")
    k.nop(3)
    k(f"v_add_f32 v{t}, v{t}, v{t+1}")
    k(f"v_add_f32 v{t+2}, v{t+2}, v{t+3}")
    k.nop(1)
    for rot in (8, 4, 2, 1):
        k(f"v_add_f32_dpp v{t}, v{t}, v{t} row_ror:{rot} row_mask:0xf bank_mask:0xf")
        k(f"v_add_f32_dpp v{t+2}, v{t+2}, v{t+2} row_ror:{rot} row_mask:0xf bank_mask:0xf")
        k.nop(1)
    k.nop(1)
    k(f"v_permlane16_swap_b32 v{t}, v{t+2}")
    k.nop(1)
    k(f"v_add_f32 v{t}, v{t}, v{t+2}")
    k.nop(1)
    k(f"v_mov_b32 v{t+2}, v{t}")
    k.nop(2)
    k(f"v_permlane16_swap_b32 v{t}, v{t+2}")
    k.nop(1)
    k(f"v_mul_f32 v{t}, 0x3acccccd, v{t}")
    k(f"v_mul_f32 v{t+2}, 0x3acccccd, v{t+2}")
    k(f"v_fma_f32 v{t+2}, -v{t}, v{t}, v{t+2}")
    k(f"v_max_f32 v{t+2}, 0, v{t+2}")
    k(f"v_cvt_pk_bf16_f32 v{t+1}, v{t}, v{t+2}")
    k(f"v_lshlrev_b32 v{t}, 16, v{t+1}")
    k(f"v_and_b32 v{t+2}, 0xffff0000, v{t+1}")
    k(f"v_add_f32 v{t+2}, 0x3727c5ac, v{t+2}")
    k(f"v_cvt_pk_bf16_f32 v{t+2}, v{t+2}, v{t+2}")
    k(f"v_and_b32 v{t+2}, 0xffff0000, v{t+2}")
    k(f"v_sqrt_f32 v{t+2}, v{t+2}")
    k.nop(1)
    k(f"v_cvt_pk_bf16_f32 v{t+2}, v{t+2}, v{t+2}")
    k(f"v_and_b32 v{t+2}, 0xffff0000, v{t+2}")
    k(f"v_rcp_f32 v{t+2}, v{t+2}")
    k.nop(1)
    k(f"v_mul_f32 v{t}, v{t}, v{t+2}")
    k(f"v_sub_f32 v{t}, 0, v{t}")
    for i in range(10):
        k(f"v_lshlrev_b32 v{t+3}, 16, v{VX+i}")
        k(f"v_and_b32 v{t+4}, 0xffff0000, v{VX+i}")
        k(f"v_fma_f32 v{t+3}, v{t+3}, v{t+2}, v{t}")
        k(f"v_fma_f32 v{t+4}, v{t+4}, v{t+2}, v{t}")
        k(f"v_cvt_pk_bf16_f32 v{VX+i}, v{t+3}, v{t+4}")
    k(f"v_add_u32 v{t+3}, {L_XN}, v{V_T}")
    for i in range(5):
        k(f"ds_write_b64 v{t+3}, {vr(VX+2*i,2)} offset:{8*i}")
    k(f"v_bfe_u32 v{t}, v{V_LANE}, 3, 1")
    k(f"v_mul_u32_u24 v{t}, 1280, v{t}")
    k(f"v_mul_u32_u24 v{t+1}, 40, v{V_SLAB}")
    k(f"s_mul_i32 s{S_TMP}, s{S_J}, 160")
    k(f"s_add_u32 s{S_TMP}, s{S_TMP}, {L_XN}")
    k(f"v_add3_u32 v{t}, v{t}, v{t+1}, s{S_TMP}")
    k(f"s_waitcnt lgkmcnt(0)")
    for i in range(5):
        k(f"ds_read_b64 {vr(VXR+2*i,2)}, v{t} offset:{8*i}")
    k(f"s_waitcnt lgkmcnt(0)")
    for st in range(20):
        for r in range(4):
            k(f"v_perm_b32 v{VA+4*st+r}, v{VXR+(st>>1)}, v{VXR+(st>>1)}, v{VSEL+2*r+(st&1)}")


def stage1_mfma(k, nafter):
    for st in range(20):
        k(f"s_waitcnt vmcnt({19-st+nafter})")
        c = "0" if st == 0 else vr(VD1, 4)
        k(f"v_mfma_f32_16x16x32_bf16 {vr(VD1,4)}, {vr(VA+4*st,4)}, {vr(VW+4*st,4)}, {c}")


VPUB = 206


def stage1_publish_addr(k):
    t = VS1 + 4
    k(f"v_lshrrev_b32 v{t}, 1, v{V_SLAB}")
    k(f"v_and_b32 v{t+1}, 1, v{V_SLAB}")
    k(f"v_lshlrev_b32 v{t}, 5, v{t}")
    k(f"v_lshl_add_u32 v{t}, v{V_L15}, 1, v{t}")
    k(f"v_add_u32 v{t}, v{t}, v{t+1}")
    k(f"v_lshlrev_b32 v{VPUB}, 4, v{t}")
    k(f"s_lshl_b32 s{S_PUB}, s{S_H}, 3")
    k(f"s_add_u32 s{S_PUB}, s{S_PUB}, s{S_J}")
    k(f"s_lshl_b32 s{S_PUB}, s{S_PUB}, 10")
    k(f"s_add_u32 s{S_PUB}, s{S_PUB}, {WS_QP}")
    k(f"v_mov_b32 v{VD1+6}, s{S_T0}")
    k(f"v_mov_b32 v{VD1+7}, s{S_T1}")


def stage1_publish(k, nkeep):
    k.nop(8)
    k(f"v_cvt_pk_bf16_f32 v{VD1+4}, v{VD1}, v{VD1+1}")
    k(f"v_cvt_pk_bf16_f32 v{VD1+5}, v{VD1+2}, v{VD1+3}")
    k(f"s_waitcnt vmcnt({nkeep})")
    k(f"buffer_store_dwordx4 {vr(VD1+4,4)}, v{VPUB}, {srd(R_WS)}, s{S_PUB} offen sc1")
    k.stamp(3)


def gather_check_loop(k, name, loads, regs, stampidx=None):
    top = k.label(name)
    done = k.label(name + "d")
    t = V_T
    spin_begin(k)
    k(f"s_mov_b64 s[{S_M}:{S_M+1}], exec")
    k(f"{top}:")
    for l in loads:
        k(l)
    k("s_waitcnt vmcnt(0)")
    rs = list(regs)
    if len(rs) == 1:
        k(f"v_cmp_eq_u32 vcc, -1, v{rs[0]}")
    else:
        if len(rs) == 2:
            k(f"v_max_u32 v{t}, v{rs[0]}, v{rs[1]}")
            rs = []
        else:
            k(f"v_max3_u32 v{t}, v{rs[0]}, v{rs[1]}, v{rs[2]}")
            rs = rs[3:]
        while len(rs) >= 2:
            k(f"v_max3_u32 v{t}, v{t}, v{rs[0]}, v{rs[1]}")
            rs = rs[2:]
        if rs:
            k(f"v_max_u32 v{t}, v{t}, v{rs[0]}")
        k(f"v_cmp_eq_u32 vcc, -1, v{t}")
    k(f"s_and_b64 exec, exec, vcc")
    k(f"s_cbranch_execz {done}")
    spin_retry(k, top)
    k(f"{done}:")
    k(f"s_mov_b64 exec, s[{S_M}:{S_M+1}]")
    if stampidx is not None:
        k.stamp(stampidx)


def clears_P(k):
    t = V_T + 4
    n = 0
    neg = vr(V_NEG1, 4)
    k(f"s_lshl_b32 s{S_TMP}, s{S_H}, 2")
    k(f"s_add_u32 s{S_TMP}, s{S_TMP}, s{S_J}")
    k(f"s_lshl_b32 s{S_TMP+1}, s{S_TMP}, 14")
    k(f"s_add_u32 s{S_TMP+1}, s{S_TMP+1}, {WS_AO}")
    k(f"v_lshlrev_b32 v{t}, 4, v{V_LANE}")
    for i in range(16):
        if i % 4 == 0 and i:
            k(f"s_add_u32 s{S_TMP+1}, s{S_TMP+1}, 4096")
        k(f"buffer_store_dwordx4 {neg}, v{t}, {srd(R_WS)}, s{S_TMP+1} offen offset:{(i%4)*1024} sc1")
        n += 1
    k(f"s_mul_i32 s{S_TMP+1}, s{S_H}, 5120")
    k(f"s_mul_i32 s{S_TMP+2}, s{S_J}, 1280")
    k(f"s_add_u32 s{S_TMP+1}, s{S_TMP+1}, s{S_TMP+2}")
    k(f"s_add_u32 s{S_TMP+1}, s{S_TMP+1}, {WS_SP}")
    k(f"buffer_store_dwordx4 {neg}, v{t}, {srd(R_WS)}, s{S_TMP+1} offen sc1")
    k(f"v_lshlrev_b32 v{t+1}, 4, v{V_L15}")
    k(f"buffer_store_dwordx4 {neg}, v{t+1}, {srd(R_WS)}, s{S_TMP+1} offen offset:1024 sc1")
    n += 2
    k(f"v_and_b32 v{t+1}, 31, v{V_LANE}")
    k(f"v_lshlrev_b32 v{t+1}, 4, v{t+1}")
    k(f"s_lshl_b32 s{S_TMP+1}, s{S_TMP}, 9")
    k(f"s_add_u32 s{S_TMP+1}, s{S_TMP+1}, {WS_CP}")
    k(f"buffer_store_dwordx4 {neg}, v{t+1}, {srd(R_WS)}, s{S_TMP+1} offen sc1")
    k(f"s_lshl_b32 s{S_TMP+1}, s{S_H}, 9")
    k(f"s_add_u32 s{S_TMP+1}, s{S_TMP+1}, {WS_ST}")
    k(f"buffer_store_dwordx4 {neg}, v{t+1}, {srd(R_WS)}, s{S_TMP+1} offen sc1")
    n += 2
    k(f"v_and_b32 v{t+1}, 1, v{V_SLAB}")
    k(f"v_lshlrev_b32 v{t+1}, 15, v{t+1}")
    k(f"v_lshl_add_u32 v{t+1}, v{V_L15}, 4, v{t+1}")
    k(f"s_lshl_b32 s{S_TMP+1}, s{S_H}, 10")
    k(f"s_lshl_b32 s{S_TMP+2}, s{S_J}, 8")
    k(f"s_add_u32 s{S_TMP+1}, s{S_TMP+1}, s{S_TMP+2}")
    k(f"s_add_u32 s{S_TMP+1}, s{S_TMP+1}, {WS_QA}")
    k(f"buffer_store_dwordx4 {neg}, v{t+1}, {srd(R_WS)}, s{S_TMP+1} offen sc1")
    n += 1
    return n


def wuk_issue(k):
    t = V_T + 4
    k(f"s_mul_i32 s{S_TMP}, s{S_J}, {128*8192}")
    k(f"s_lshl_b32 s{S_TMP+1}, s{S_H}, 8")
    k(f"s_add_u32 s{S_TMP}, s{S_TMP}, s{S_TMP+1}")
    k(f"s_lshl_b32 s{S_TMP+1}, s{S_WAVE}, 6")
    k(f"s_add_u32 s{S_TMP}, s{S_TMP}, s{S_TMP+1}")
    k(f"v_lshlrev_b32 v{t}, 13, v{V_L15}")
    k(f"v_lshl_add_u32 v{t}, v{V_SLAB}, 4, v{t}")
    for i in range(8):
        k(f"buffer_load_dwordx4 {vr(VWUK+4*i,4)}, v{t}, {srd(R_A)}, s{S_TMP} offen")
        if i < 7:
            k(f"s_add_u32 s{S_TMP}, s{S_TMP}, {16*8192}")


PG = 10
PD = 28
PY = 68
PWV = 76
PWO = 108
PA = 148
PADR = 164
PM = 180
PT = 188


def stage2(k):
    t = PT
    k(f"v_and_b32 v{t}, 7, v{V_L15}")
    k(f"v_lshlrev_b32 v{t}, 10, v{t}")
    k(f"v_lshrrev_b32 v{t+1}, 3, v{V_L15}")
    k(f"v_lshl_add_u32 v{t}, v{t+1}, 9, v{t}")
    k(f"v_lshl_add_u32 v{PADR}, v{V_SLAB}, 5, v{t}")
    k(f"s_lshl_b32 s{S_TMP}, s{S_H}, 13")
    k(f"s_lshl_b32 s{S_TMP+1}, s{S_WAVE}, 7")
    k(f"s_add_u32 s{S_TMP}, s{S_TMP}, s{S_TMP+1}")
    k(f"s_add_u32 s{S_TMP}, s{S_TMP}, {WS_QP}")
    k(f"v_lshrrev_b32 v{t}, 1, v{V_SLAB}")
    k(f"v_lshlrev_b32 v{t}, 15, v{t}")
    k(f"v_and_b32 v{t+1}, 1, v{V_SLAB}")
    k(f"v_lshl_add_u32 v{t}, v{t+1}, 5, v{t}")
    k(f"v_lshl_add_u32 v{PADR+1}, v{V_L15}, 1, v{t}")
    k(f"s_lshl_b32 s{S_TMP+2}, s{S_H}, 10")
    k(f"s_lshl_b32 s{S_TMP+3}, s{S_J}, 8")
    k(f"s_add_u32 s{S_TMP+2}, s{S_TMP+2}, s{S_TMP+3}")
    k(f"s_lshl_b32 s{S_TMP+3}, s{S_WAVE}, 6")
    k(f"s_add_u32 s{S_TMP+2}, s{S_TMP+2}, s{S_TMP+3}")
    k(f"s_add_u32 s{S_TMP+2}, s{S_TMP+2}, {WS_QA}")
    k(f"v_lshlrev_b32 v{PADR+2}, 2, v{V_LANE}")
    k(f"s_lshl_b32 s{S_TMP+3}, s{S_WAVE}, 10")
    k(f"s_add_u32 s{S_TMP+3}, s{S_TMP+3}, {L_RED}")
    k(f"v_add_u32 v{PADR+3}, s{S_TMP+3}, v{PADR+2}")
    k(f"s_lshl_b32 s{S_TMP+3}, s{S_WAVE}, 8")
    k(f"s_add_u32 s{S_TMP+3}, s{S_TMP+3}, {L_RED}")
    k(f"v_add_u32 v{PADR+2}, s{S_TMP+3}, v{PADR+2}")
    k(f"s_mov_b32 s{S_M+2}, 0x55555555")
    k(f"s_mov_b32 s{S_M+3}, 0x55555555")
    top = k.label("qp")
    done = k.label("qpd")
    spin_begin(k)
    k(f"s_mov_b64 s[{S_M}:{S_M+1}], exec")
    k(f"{top}:")
    k(f"buffer_load_dwordx4 {vr(PG,4)}, v{PADR}, {srd(R_WS)}, s{S_TMP} offen sc1")
    k(f"buffer_load_dwordx4 {vr(PG+4,4)}, v{PADR}, {srd(R_WS)}, s{S_TMP} offen offset:16 sc1")
    k("s_waitcnt vmcnt(0)")
    k(f"v_xor_b32 v{t}, s{S_T0}, v{PG+2}")
    k(f"v_xor_b32 v{t+1}, s{S_T1}, v{PG+3}")
    k(f"v_xor_b32 v{t+2}, s{S_T0}, v{PG+6}")
    k(f"v_xor_b32 v{t+3}, s{S_T1}, v{PG+7}")
    k(f"v_or3_b32 v{t}, v{t}, v{t+1}, v{t+2}")
    k(f"v_or_b32 v{t}, v{t}, v{t+3}")
    k(f"v_cmp_ne_u32 vcc, 0, v{t}")
    k(f"s_and_b64 exec, exec, vcc")
    k(f"s_cbranch_execz {done}")
    spin_retry(k, top)
    k(f"{done}:")
    k(f"s_mov_b64 exec, s[{S_M}:{S_M+1}]")
    k.stamp(4)
    k(f"v_mov_b32 v{PG+2}, v{PG+4}")
    k(f"v_mov_b32 v{PG+3}, v{PG+5}")
    k.nop(2)
    for i in range(8):
        k(f"v_mfma_f32_16x16x32_bf16 {vr(PD+4*i,4)}, {vr(PG,4)}, {vr(VWUK+4*i,4)}, 0")
    k.nop(1)
    for i in range(8):
        if i == 7:
            pass
        k(f"v_add_f32 v{PD+4*i}, v{PD+4*i}, v{PD+4*i+1}")
        k(f"v_add_f32 v{PD+4*i+2}, v{PD+4*i+2}, v{PD+4*i+3}")
        k(f"v_add_f32 v{PD+4*i}, v{PD+4*i}, v{PD+4*i+2}")
    k.nop(2)
    for u in range(4):
        k(f"v_permlane16_swap_b32 v{PD+8*u}, v{PD+8*u+4}")
    k.nop(1)
    for u in range(4):
        k(f"v_add_f32 v{PY+u}, v{PD+8*u}, v{PD+8*u+4}")
    k(f"ds_write2st64_b32 v{PADR+3}, v{PY}, v{PY+1} offset0:0 offset1:1")
    k(f"ds_write2st64_b32 v{PADR+3}, v{PY+2}, v{PY+3} offset0:2 offset1:3")
    k("s_waitcnt lgkmcnt(0)")
    k("s_barrier")
    k(f"ds_read2st64_b32 {vr(t,2)}, v{PADR+2} offset0:0 offset1:4")
    k(f"ds_read2st64_b32 {vr(t+2,2)}, v{PADR+2} offset0:8 offset1:12")
    k("s_waitcnt lgkmcnt(0)")
    k(f"v_add_f32 v{t}, v{t}, v{t+1}")
    k(f"v_add_f32 v{t+2}, v{t+2}, v{t+3}")
    k(f"v_add_f32 v{t}, v{t}, v{t+2}")
    k(f"v_mul_f32 v{t}, 0x3e0293ee, v{t}")
    k.nop(2)
    k(f"v_mov_b32_dpp v{t+1}, v{t} quad_perm:[1,0,3,2] row_mask:0xf bank_mask:0xf")
    k(f"v_cvt_pk_bf16_f32 v{t}, v{t}, v{t+1}")
    k(f"s_mov_b64 exec, s[{S_M+2}:{S_M+3}]")
    k(f"buffer_store_dword v{t}, v{PADR+1}, {srd(R_WS)}, s{S_TMP+2} offen sc1")
    k(f"s_mov_b64 exec, -1")
    k.stamp(5)


def p_weights_issue(k):
    t = PT
    for par in range(2):
        k(f"v_add_u32 v{t}, {4*par}, v{V_SLAB}")
        k(f"v_lshlrev_b32 v{t}, 1, v{t}")
        k(f"v_xor_b32 v{t}, v{t}, v{V_L15}")
        k(f"v_lshlrev_b32 v{t}, 4, v{t}")
        k(f"v_lshl_add_u32 v{PADR+4+par}, v{V_SLAB}, 13, v{t}")
    k(f"s_mul_i32 s{S_TMP}, s{S_J}, {128*8192}")
    k(f"s_lshl_b32 s{S_TMP+1}, s{S_H}, 8")
    k(f"s_add_u32 s{S_TMP}, s{S_TMP}, s{S_TMP+1}")
    k(f"s_lshl_b32 s{S_TMP+1}, s{S_WAVE}, 18")
    k(f"s_add_u32 s{S_TMP}, s{S_TMP}, s{S_TMP+1}")
    k(f"s_lshl_b32 s{S_TMP+1}, s{S_WAVE}, 13")
    k(f"s_add_u32 s{S_TMP+1}, s{S_TMP+1}, {L_WUV}")
    for ii in range(8):
        k(f"s_mov_b32 m0, s{S_TMP+1}")
        k(f"s_add_u32 s{S_TMP+1}, s{S_TMP+1}, 1024")
        k(f"buffer_load_dwordx4 v{PADR+4+(ii&1)}, {srd(R_B)}, s{S_TMP} offen lds")
        k(f"s_add_u32 s{S_TMP}, s{S_TMP}, {4*8192}")
    k(f"s_mul_i32 s{S_TMP}, s{S_H}, {128*1280}")
    k(f"s_mul_i32 s{S_TMP+1}, s{S_J}, 320")
    k(f"s_add_u32 s{S_TMP}, s{S_TMP}, s{S_TMP+1}")
    k(f"s_mul_i32 s{S_TMP+1}, s{S_WAVE}, 640")
    k(f"v_add_u32 v{t}, s{S_TMP+1}, v{V_LANE}")
    k(f"s_mul_i32 s{S_TMP+1}, s{S_WAVE}, 10240")
    k(f"s_add_u32 s{S_TMP+1}, s{S_TMP+1}, {L_WO}")
    k(f"s_movk_i32 s{S_TMP+2}, 3277")
    k(f"s_movk_i32 s{S_TMP+3}, 960")
    for ii in range(10):
        k(f"v_mul_u32_u24 v{t+1}, s{S_TMP+2}, v{t}")
        k(f"v_lshrrev_b32 v{t+1}, 16, v{t+1}")
        k(f"v_mul_u32_u24 v{t+1}, s{S_TMP+3}, v{t+1}")
        k(f"v_lshl_add_u32 v{t+2+(ii&1)}, v{t}, 4, v{t+1}")
        k(f"s_mov_b32 m0, s{S_TMP+1}")
        k(f"s_add_u32 s{S_TMP+1}, s{S_TMP+1}, 1024")
        k(f"buffer_load_dwordx4 v{t+2+(ii&1)}, {srd(R_C)}, s{S_TMP} offen lds")
        k(f"v_add_u32 v{t}, 64, v{t}")


def p_weights_preread(k):
    t = PT
    k(f"v_lshrrev_b32 v{t}, 2, v{V_L15}")
    k(f"v_and_b32 v{t+1}, 3, v{V_L15}")
    k(f"v_lshl_add_u32 v{t+2}, v{V_SLAB}, 2, v{t}")
    k(f"v_and_b32 v{t+3}, 7, v{t+2}")
    k(f"v_lshlrev_b32 v{t+3}, 1, v{t+3}")
    k(f"v_lshrrev_b32 v{t+4}, 1, v{t+1}")
    k(f"v_and_b32 v{t+5}, 1, v{t+1}")
    k(f"s_lshl_b32 s{S_TMP}, s{S_WAVE}, 2")
    for d in range(2):
        k(f"v_add_u32 v{t+6}, s{S_TMP}, v{t+4}")
        if d:
            k(f"v_add_u32 v{t+6}, 2, v{t+6}")
        k(f"v_xor_b32 v{t+6}, v{t+6}, v{t+3}")
        k(f"v_lshlrev_b32 v{t+6}, 4, v{t+6}")
        k(f"v_lshl_add_u32 v{t+6}, v{t+5}, 3, v{t+6}")
        k(f"v_lshl_add_u32 v{PADR+6+d}, v{t+2}, 8, v{t+6}")
    for d in range(2):
        for kk in range(4):
            r = PWV + (d * 4 + kk) * 4
            k(f"ds_read_b64_tr_b16 {vr(r,2)}, v{PADR+6+d} offset:{L_WUV+kk*8192}")
            k(f"ds_read_b64_tr_b16 {vr(r+2,2)}, v{PADR+6+d} offset:{L_WUV+kk*8192+4096}")
    k(f"s_lshl_b32 s{S_TMP}, s{S_WAVE}, 5")
    k(f"v_add_u32 v{t+6}, s{S_TMP}, v{t+2}")
    k(f"v_mul_u32_u24 v{t+6}, 320, v{t+6}")
    k(f"v_lshl_add_u32 v{PADR+8}, v{t+1}, 3, v{t+6}")
    for ct in range(10):
        r = PWO + 4 * ct
        k(f"ds_read_b64_tr_b16 {vr(r,2)}, v{PADR+8} offset:{L_WO+32*ct}")
        k(f"ds_read_b64_tr_b16 {vr(r+2,2)}, v{PADR+8} offset:{L_WO+32*ct+5120}")


def reduce_bits(k, op, v, tmp):
    for mod in ("quad_perm:[1,0,3,2]", "quad_perm:[2,3,0,1]", "row_half_mirror"):
        k.nop(2)
        k(f"{op}_dpp v{v}, v{v}, v{v} {mod} row_mask:0xf bank_mask:0xf")
    for sw in ("v_permlane16_swap_b32", "v_permlane32_swap_b32"):
        k(f"v_mov_b32 v{tmp}, v{v}")
        k.nop(2)
        k(f"{sw} v{v}, v{tmp}")
        k.nop(1)
        k(f"{op} v{v}, v{v}, v{tmp}")


def stage4_setup(k):
    t = PT
    k(f"v_bfe_u32 v{t}, v{V_LANE}, 3, 1")
    k(f"v_bfe_u32 v{t+1}, v{V_LANE}, 2, 1")
    k(f"v_and_b32 v{t+2}, 3, v{V_LANE}")
    k(f"v_lshlrev_b32 v{t+1}, 4, v{t+1}")
    k(f"v_lshl_add_u32 v{t+1}, v{V_SLAB}, 2, v{t+1}")
    k(f"v_add_u32 v{t+1}, v{t+1}, v{t+2}")
    k(f"v_lshl_add_u32 v{t+1}, v{t}, 5, v{t+1}")
    k(f"v_lshlrev_b32 v{PADR+9}, 3, v{t+1}")
    k(f"v_and_b32 v{t+1}, 1, v{V_LANE}")
    k(f"v_cmp_eq_u32 vcc, 1, v{t+1}")
    k(f"v_mov_b32 v{t+2}, 0xffff")
    k(f"v_mov_b32 v{t+3}, 0xffff0000")
    k(f"v_cndmask_b32 v{t+2}, v{t+2}, v{t+3}, vcc")
    k(f"v_bfe_u32 v{t+1}, v{V_LANE}, 1, 2")
    k(f"v_lshl_add_u32 v{t+1}, v{t}, 2, v{t+1}")
    for i in range(8):
        k(f"v_cmp_eq_u32 vcc, {i}, v{t+1}")
        k.nop(2)
        k(f"v_cndmask_b32 v{PM+i}, 0, v{t+2}, vcc")
    k(f"v_lshlrev_b32 v{PADR+10}, 4, v0")
    k(f"v_lshrrev_b32 v{t}, 4, v0")
    k(f"v_and_b32 v{t+1}, 7, v{t}")
    k(f"v_lshlrev_b32 v{t+1}, 1, v{t+1}")
    k(f"v_xor_b32 v{t+1}, v{t+1}, v{V_L15}")
    k(f"v_lshlrev_b32 v{t+1}, 4, v{t+1}")
    k(f"v_lshl_add_u32 v{t+1}, v{t}, 8, v{t+1}")
    k(f"v_add_u32 v{PADR+11}, {L_AOB}, v{t+1}")
    k(f"v_lshrrev_b32 v{t}, 2, v{V_L15}")
    k(f"v_lshl_add_u32 v{t}, v{V_SLAB}, 2, v{t}")
    k(f"v_and_b32 v{t+1}, 7, v{t}")
    k(f"v_lshlrev_b32 v{t+1}, 1, v{t+1}")
    k(f"v_bfe_u32 v{t+2}, v{V_L15}, 1, 1")
    k(f"v_and_b32 v{t+3}, 1, v{V_L15}")
    k(f"s_lshl_b32 s{S_TMP}, s{S_WAVE}, 2")
    for d in range(2):
        k(f"v_add_u32 v{t+4}, s{S_TMP}, v{t+2}")
        if d:
            k(f"v_add_u32 v{t+4}, 2, v{t+4}")
        k(f"v_xor_b32 v{t+4}, v{t+4}, v{t+1}")
        k(f"v_lshlrev_b32 v{t+4}, 4, v{t+4}")
        k(f"v_lshl_add_u32 v{t+4}, v{t+3}, 3, v{t+4}")
        k(f"v_lshl_add_u32 v{t+4}, v{t}, 8, v{t+4}")
        k(f"v_add_u32 v{PADR+12+d}, {L_AOB}, v{t+4}")
    k(f"v_lshrrev_b32 v{t}, 1, v{V_SLAB}")
    k(f"v_and_b32 v{t+1}, 1, v{V_SLAB}")
    k(f"v_lshlrev_b32 v{t}, 7, v{t}")
    k(f"v_lshl_add_u32 v{t}, v{t+1}, 4, v{t}")
    k(f"v_add_u32 v{t}, v{t}, v{V_L15}")
    k(f"s_lshl_b32 s{S_TMP}, s{S_WAVE}, 5")
    k(f"v_add_u32 v{t}, s{S_TMP}, v{t}")
    k(f"v_lshlrev_b32 v{t}, 1, v{t}")
    k(f"v_add_u32 v{PADR+14}, {L_CTX}, v{t}")
    k(f"v_and_b32 v{t}, 1, v{V_LANE}")
    k(f"v_lshlrev_b32 v{t}, 8, v{t}")
    k(f"v_lshl_add_u32 v{t}, v{V_SLAB}, 4, v{t}")
    k(f"v_add_u32 v{PADR+15}, {L_CTX}, v{t}")


def stage4(k):
    t = PT
    G = PG
    ST = 26
    k(f"s_lshl_b32 s{S_TMP}, s{S_H}, 9")
    k(f"s_add_u32 s{S_TMP}, s{S_TMP}, {WS_ST}")
    k(f"s_lshl_b32 s{S_TMP+1}, s{S_H}, 2")
    k(f"s_add_u32 s{S_TMP+1}, s{S_TMP+1}, s{S_J}")
    k(f"s_lshl_b32 s{S_TMP+2}, s{S_TMP+1}, 14")
    k(f"s_add_u32 s{S_TMP+2}, s{S_TMP+2}, {WS_AO}")
    for n in range(1, 4):
        k(f"s_add_u32 s{S_TMP+2+n}, s{S_TMP+2}, {4096*n}")
    loads = [f"buffer_load_dwordx2 {vr(ST,2)}, v{PADR+9}, {srd(R_WS)}, s{S_TMP} offen sc1"]
    for n in range(4):
        loads.append(f"buffer_load_dwordx4 {vr(G+4*n,4)}, v{PADR+10}, {srd(R_WS)}, s{S_TMP+2+n} offen sc1")
    gather_check_loop(k, "ao", loads, [ST, ST + 1] + list(range(G, G + 16)), 7)
    for n in range(4):
        k(f"ds_write_b128 v{PADR+11}, {vr(G+4*n,4)} offset:{4096*n}")
    M = t + 8
    k(f"v_mov_b32 v{M}, v{ST}")
    reduce_bits(k, "v_max_f32", M, t + 9)
    k(f"v_sub_f32 v{t}, v{ST}, v{M}")
    k(f"v_exp_f32 v{t}, v{t}")
    k.nop(1)
    k(f"v_cvt_pk_bf16_f32 v{t}, v{t}, v{t}")
    for i in range(8):
        k(f"v_and_b32 v{PA+i}, v{t}, v{PM+i}")
    k(f"v_and_b32 v{t+1}, 0xffff0000, v{t}")
    k(f"v_mul_f32 v{t+1}, v{t+1}, v{ST+1}")
    k("s_waitcnt lgkmcnt(0)")
    k("s_barrier")
    B = PD + 8
    for d in range(2):
        for bb in range(2):
            r = B + (d * 2 + bb) * 4
            k(f"ds_read_b64_tr_b16 {vr(r,2)}, v{PADR+12+d} offset:{bb*8192}")
            k(f"ds_read_b64_tr_b16 {vr(r+2,2)}, v{PADR+12+d} offset:{bb*8192+4096}")
    reduce_bits(k, "v_add_f32", t + 1, t + 9)
    k(f"v_rcp_f32 v{t+1}, v{t+1}")
    k.nop(1)
    k(f"v_readlane_b32 s{S_TMP}, v{t+1}, 0")
    k(f"v_readlane_b32 s{S_TMP+1}, v{t+1}, 8")
    for d in range(2):
        k(f"s_waitcnt lgkmcnt({4-4*d})")
        k(f"v_mfma_f32_16x16x32_bf16 {vr(PD+4*d,4)}, {vr(PA,4)}, {vr(B+(d*2)*4,4)}, 0")
        k(f"v_mfma_f32_16x16x32_bf16 {vr(PD+4*d,4)}, {vr(PA+4,4)}, {vr(B+(d*2+1)*4,4)}, {vr(PD+4*d,4)}")
    k(f"v_mov_b32 v{t+2}, s{S_TMP}")
    k(f"v_mov_b32 v{t+3}, s{S_TMP+1}")
    k(f"v_cmp_le_u32 vcc, 32, v{V_LANE}")
    k.nop(2)
    k(f"v_cndmask_b32 v{t+2}, v{t+2}, v{t+3}, vcc")
    k.nop(4)
    for d in range(2):
        k(f"v_add_f32 v{PD+4*d}, v{PD+4*d}, v{PD+4*d+1}")
        k(f"v_add_f32 v{PD+4*d+2}, v{PD+4*d+2}, v{PD+4*d+3}")
    for d in range(2):
        k(f"v_add_f32 v{PD+4*d}, v{PD+4*d}, v{PD+4*d+2}")
    k.nop(2)
    k(f"v_permlane16_swap_b32 v{PD}, v{PD+4}")
    k.nop(1)
    k(f"v_add_f32 v{PD}, v{PD}, v{PD+4}")
    k(f"v_mul_f32 v{PD}, v{PD}, v{t+2}")
    k(f"v_cvt_pk_bf16_f32 v{PD}, v{PD}, v{PD}")
    k(f"ds_write_b16 v{PADR+14}, v{PD}")
    k("s_waitcnt lgkmcnt(0)")
    k("s_barrier")
    for kk in range(4):
        k(f"ds_read_b128 {vr(PA+4*kk,4)}, v{PADR+15} offset:{64*kk}")
    k(f"v_lshrrev_b32 v{t}, 2, v{V_L15}")
    k(f"v_lshlrev_b32 v{t}, 3, v{t}")
    k(f"v_and_b32 v{t+1}, 1, v{V_SLAB}")
    k(f"v_lshl_add_u32 v{t}, v{t+1}, 2, v{t}")
    k(f"v_and_b32 v{t+1}, 2, v{V_L15}")
    k(f"v_add_u32 v{t}, v{t}, v{t+1}")
    k(f"v_lshrrev_b32 v{t+1}, 1, v{V_SLAB}")
    k(f"v_lshl_add_u32 v{t}, v{t+1}, 7, v{t}")
    k(f"v_lshlrev_b32 v{t}, 1, v{t}")
    k(f"s_lshl_b32 s{S_TMP}, s{S_H}, 2")
    k(f"s_add_u32 s{S_TMP}, s{S_TMP}, s{S_J}")
    k(f"s_lshl_b32 s{S_TMP}, s{S_TMP}, 9")
    k(f"s_lshl_b32 s{S_TMP+1}, s{S_WAVE}, 6")
    k(f"s_add_u32 s{S_TMP}, s{S_TMP}, s{S_TMP+1}")
    k(f"s_add_u32 s{S_TMP}, s{S_TMP}, {WS_CP}")
    k(f"s_mov_b32 s{S_M+2}, 0xffff0000")
    k(f"s_mov_b32 s{S_M+3}, 0xffff0000")
    k(f"s_mov_b32 s{S_M+4}, 0")
    k(f"s_mov_b32 s{S_M+5}, -1")
    k(f"s_mov_b32 s{S_M+6}, 0x55555555")
    k(f"s_mov_b32 s{S_M+7}, 0x55555555")
    for kk in range(4):
        k(f"s_waitcnt lgkmcnt({3-kk})")
        for d in range(2):
            c = "0" if kk == 0 else vr(PD + 4 * d, 4)
            k(f"v_mfma_f32_16x16x32_bf16 {vr(PD+4*d,4)}, {vr(PA+4*kk,4)}, {vr(PWV+(d*4+kk)*4,4)}, {c}")
    k.nop(8)
    k(f"v_cndmask_b32 v{t+2}, v{PD}, v{PD+4}, s[{S_M+2}:{S_M+3}]")
    k(f"v_cndmask_b32 v{t+3}, v{PD+1}, v{PD+5}, s[{S_M+2}:{S_M+3}]")
    k(f"v_cndmask_b32 v{t+2}, v{t+2}, v{t+3}, s[{S_M+4}:{S_M+5}]")
    k.nop(2)
    k(f"v_mov_b32_dpp v{t+3}, v{t+2} quad_perm:[1,0,3,2] row_mask:0xf bank_mask:0xf")
    k(f"v_cvt_pk_bf16_f32 v{t+2}, v{t+2}, v{t+3}")
    k(f"s_mov_b64 exec, s[{S_M+6}:{S_M+7}]")
    k(f"buffer_store_dword v{t+2}, v{t}, {srd(R_WS)}, s{S_TMP} offen sc1")
    k(f"s_mov_b64 exec, -1")
    k.stamp(8)


def stage5(k):
    t = PT
    k(f"v_and_b32 v{t}, 3, v{V_L15}")
    k(f"v_lshlrev_b32 v{t}, 9, v{t}")
    k(f"v_bfe_u32 v{t+1}, v{V_L15}, 2, 1")
    k(f"v_lshl_add_u32 v{t}, v{t+1}, 8, v{t}")
    k(f"v_lshl_add_u32 v{PADR}, v{V_SLAB}, 4, v{t}")
    k(f"s_lshl_b32 s{S_TMP}, s{S_H}, 11")
    k(f"s_lshl_b32 s{S_TMP+1}, s{S_WAVE}, 6")
    k(f"s_add_u32 s{S_TMP}, s{S_TMP}, s{S_TMP+1}")
    k(f"s_add_u32 s{S_TMP}, s{S_TMP}, {WS_CP}")
    k(f"v_lshrrev_b32 v{t}, 1, v{V_SLAB}")
    k(f"v_lshlrev_b32 v{t}, 4, v{t}")
    k(f"v_add_u32 v{t}, v{t}, v{V_L15}")
    k(f"v_lshlrev_b32 v{t}, 3, v{t}")
    k(f"v_and_b32 v{t+1}, 1, v{V_SLAB}")
    k(f"v_lshl_add_u32 v{PADR+1}, v{t+1}, 2, v{t}")
    k(f"s_mul_i32 s{S_TMP+1}, s{S_H}, 5120")
    k(f"s_mul_i32 s{S_TMP+2}, s{S_J}, 1280")
    k(f"s_add_u32 s{S_TMP+1}, s{S_TMP+1}, s{S_TMP+2}")
    k(f"s_add_u32 s{S_TMP+1}, s{S_TMP+1}, {WS_SP}")
    k(f"s_lshl_b32 s{S_TMP+2}, s{S_WAVE}, 8")
    k(f"s_add_u32 s{S_TMP+2}, s{S_TMP+2}, s{S_TMP+1}")
    k(f"s_add_u32 s{S_TMP+1}, s{S_TMP+1}, 1024")
    k(f"v_lshlrev_b32 v{t}, 2, v{V_LANE}")
    k(f"s_mul_i32 s{S_TMP+3}, s{S_WAVE}, 1280")
    k(f"s_add_u32 s{S_TMP+3}, s{S_TMP+3}, {L_RED}")
    k(f"v_add_u32 v{PADR+3}, s{S_TMP+3}, v{t}")
    k(f"s_lshl_b32 s{S_TMP+3}, s{S_WAVE}, 8")
    k(f"s_add_u32 s{S_TMP+3}, s{S_TMP+3}, {L_RED}")
    k(f"v_add_u32 v{PADR+2}, s{S_TMP+3}, v{t}")
    k(f"v_add_u32 v{PADR+4}, {L_RED+1024}, v{t}")
    k(f"s_mov_b32 s{S_M+4}, 0")
    k(f"s_mov_b32 s{S_M+5}, -1")
    loads = [f"buffer_load_dwordx4 {vr(PG,4)}, v{PADR}, {srd(R_WS)}, s{S_TMP} offen sc1"]
    gather_check_loop(k, "cp", loads, [PG, PG + 1, PG + 2, PG + 3], 9)
    for ct in range(10):
        k(f"v_mfma_f32_16x16x32_bf16 {vr(PD+4*ct,4)}, {vr(PG,4)}, {vr(PWO+4*ct,4)}, 0")
    for ct in range(10):
        k(f"v_add_f32 v{PD+4*ct}, v{PD+4*ct}, v{PD+4*ct+1}")
        k(f"v_add_f32 v{PD+4*ct+2}, v{PD+4*ct+2}, v{PD+4*ct+3}")
        k(f"v_add_f32 v{PD+4*ct}, v{PD+4*ct}, v{PD+4*ct+2}")
    for u in range(5):
        k(f"v_cndmask_b32 v{PY+u}, v{PD+8*u}, v{PD+8*u+4}, s[{S_M+4}:{S_M+5}]")
    k(f"ds_write2st64_b32 v{PADR+3}, v{PY}, v{PY+1} offset0:0 offset1:1")
    k(f"ds_write2st64_b32 v{PADR+3}, v{PY+2}, v{PY+3} offset0:2 offset1:3")
    k(f"ds_write_b32 v{PADR+3}, v{PY+4} offset:1024")
    k("s_waitcnt lgkmcnt(0)")
    k("s_barrier")
    k(f"ds_read2st64_b32 {vr(t,2)}, v{PADR+2} offset0:0 offset1:5")
    k(f"ds_read2st64_b32 {vr(t+2,2)}, v{PADR+2} offset0:10 offset1:15")
    k(f"ds_read2st64_b32 {vr(t+4,2)}, v{PADR+4} offset0:0 offset1:5")
    k(f"ds_read2st64_b32 {vr(t+6,2)}, v{PADR+4} offset0:10 offset1:15")
    k("s_waitcnt lgkmcnt(2)")
    k(f"v_add_f32 v{t}, v{t}, v{t+1}")
    k(f"v_add_f32 v{t+2}, v{t+2}, v{t+3}")
    k(f"v_add_f32 v{t}, v{t}, v{t+2}")
    k(f"buffer_store_dword v{t}, v{PADR+1}, {srd(R_WS)}, s{S_TMP+2} offen sc1")
    skip = k.label("s5skip")
    k(f"s_cmp_eq_u32 s{S_WAVE}, 0")
    k(f"s_cbranch_scc0 {skip}")
    k("s_waitcnt lgkmcnt(0)")
    k(f"v_add_f32 v{t+4}, v{t+4}, v{t+5}")
    k(f"v_add_f32 v{t+6}, v{t+6}, v{t+7}")
    k(f"v_add_f32 v{t+4}, v{t+4}, v{t+6}")
    k(f"buffer_store_dword v{t+4}, v{PADR+1}, {srd(R_WS)}, s{S_TMP+1} offen sc1")
    k(f"{skip}:")
    k.stamp(9)


S_U = 73 + 7
BQ = 10
BG = 74
BD = 90
BS = 122
BP = 130
BL = 146
BADR = 150
BT = 166
BONE = 186
S_B, S_G, S_UU = 66, 67, 68


def b_roles(k):
    k(f"s_sub_u32 s{S_TMP}, s{S_J}, 4")
    k(f"s_and_b32 s{S_G}, s{S_TMP}, 1")
    k(f"s_lshr_b32 s{S_B}, s{S_TMP}, 1")
    k(f"s_lshl_b32 s{S_UU}, s{S_TMP}, 5")
    k(f"s_add_u32 s{S_UU}, s{S_UU}, s{S_H}")


def clears_B(k):
    t = V_T + 4
    k(f"s_mul_i32 s{S_TMP}, s{S_UU}, 5120")
    k(f"s_add_u32 s{S_TMP}, s{S_TMP}, {WS_FP}")
    k(f"s_cmp_lt_u32 s{S_UU}, {NF}")
    k(f"s_cselect_b32 s{S_TMP}, s{S_TMP}, 0x7f000000")
    k(f"v_lshlrev_b32 v{t}, 4, v{V_LANE}")
    for i in range(5):
        off = i * 1024
        if i == 4:
            k(f"s_add_u32 s{S_TMP}, s{S_TMP}, 4096")
            off = 0
        k(f"buffer_store_dwordx4 {vr(V_NEG1,4)}, v{t}, {srd(R_WS)}, s{S_TMP} offen offset:{off} sc1")
    return 5


def ckv_issue(k):
    t = V_T + 4
    k(f"s_lshl_b32 s{S_TMP}, s{S_B}, 12")
    k(f"s_lshl_b32 s{S_TMP+1}, s{S_H}, 7")
    k(f"s_add_u32 s{S_TMP}, s{S_TMP}, s{S_TMP+1}")
    k(f"s_lshl_b32 s{S_TMP+1}, s{S_WAVE}, 5")
    k(f"s_add_u32 s{S_TMP}, s{S_TMP}, s{S_TMP+1}")
    k(f"s_lshl_b32 s{S_TMP}, s{S_TMP}, 10")
    k(f"s_mul_i32 s{S_TMP+1}, s{S_WAVE}, {32*RS}")
    k(f"s_add_u32 s{S_TMP+1}, s{S_TMP+1}, {L_CKV}")
    k(f"v_lshlrev_b32 v{t}, 4, v{V_LANE}")
    for r in range(32):
        k(f"s_mov_b32 m0, s{S_TMP+1}")
        k(f"s_add_u32 s{S_TMP+1}, s{S_TMP+1}, {RS}")
        k(f"buffer_load_dwordx4 v{t}, {srd(R_A)}, s{S_TMP} offen lds")
        k(f"s_add_u32 s{S_TMP}, s{S_TMP}, 1024")


def flags_poll(k):
    t = BT
    k(f"s_lshl_b32 s{S_TMP}, s{S_WAVE}, 16")
    k(f"s_add_u32 s{S_TMP}, s{S_TMP}, {WS_QP}")
    k(f"v_lshlrev_b32 v{BADR}, 10, v{V_LANE}")
    top = k.label("fl")
    done = k.label("fld")
    spin_begin(k)
    k(f"s_mov_b64 s[{S_M}:{S_M+1}], exec")
    k(f"{top}:")
    k(f"buffer_load_dwordx4 {vr(BG,4)}, v{BADR}, {srd(R_WS)}, s{S_TMP} offen sc1")
    k("s_waitcnt vmcnt(0)")
    k(f"v_xor_b32 v{t}, s{S_T0}, v{BG+2}")
    k(f"v_xor_b32 v{t+1}, s{S_T1}, v{BG+3}")
    k(f"v_or_b32 v{t}, v{t}, v{t+1}")
    k(f"v_cmp_ne_u32 vcc, 0, v{t}")
    k(f"s_and_b64 exec, exec, vcc")
    k(f"s_cbranch_execz {done}")
    spin_retry(k, top)
    k(f"{done}:")
    k(f"s_mov_b64 exec, s[{S_M}:{S_M+1}]")


def attention(k):
    t = BT
    k(f"s_lshl_b32 s{S_TMP}, s{S_WAVE}, 5")
    k(f"v_add_u32 v{t}, s{S_TMP}, v{V_L15}")
    k(f"v_mul_u32_u24 v{t}, {RS}, v{t}")
    k(f"v_lshl_add_u32 v{t}, v{V_SLAB}, 8, v{t}")
    k(f"v_and_b32 v{t+1}, 1, v{V_SLAB}")
    k(f"v_lshlrev_b32 v{t+1}, 4, v{t+1}")
    k(f"v_add_u32 v{BADR}, v{t}, v{t+1}")
    k(f"v_sub_u32 v{BADR+1}, v{t}, v{t+1}")
    k(f"v_mul_u32_u24 v{t}, {RS}, v{V_L15}")
    k(f"v_lshl_add_u32 v{t}, v{V_SLAB}, 8, v{t}")
    k(f"v_add_u32 v{t}, {L_QB}, v{t}")
    k(f"v_add_u32 v{BADR+2}, v{t}, v{t+1}")
    k(f"v_sub_u32 v{BADR+3}, v{t}, v{t+1}")
    k(f"v_lshrrev_b32 v{t}, 2, v{V_L15}")
    k(f"v_lshl_add_u32 v{t}, v{V_SLAB}, 2, v{t}")
    k(f"v_mul_u32_u24 v{t}, {RS}, v{t}")
    k(f"v_and_b32 v{t+1}, 3, v{V_L15}")
    k(f"v_lshl_add_u32 v{t}, v{t+1}, 3, v{t}")
    k(f"s_lshl_b32 s{S_TMP}, s{S_WAVE}, 8")
    k(f"v_add_u32 v{BADR+4}, s{S_TMP}, v{t}")
    k(f"v_add_u32 v{BADR+5}, {64*RS}, v{BADR+4}")
    k(f"v_lshlrev_b32 v{BADR+6}, 4, v0")
    k(f"s_mul_i32 s{S_TMP}, s{S_WAVE}, {RS}")
    k(f"s_add_u32 s{S_TMP}, s{S_TMP}, {L_QB}")
    k(f"v_lshlrev_b32 v{t}, 4, v{V_LANE}")
    k(f"v_add_u32 v{BADR+7}, s{S_TMP}, v{t}")
    k(f"v_lshlrev_b32 v{t+1}, 2, v{V_LANE}")
    k(f"s_lshl_b32 s{S_TMP}, s{S_WAVE}, 8")
    k(f"s_add_u32 s{S_TMP}, s{S_TMP}, {L_MX}")
    k(f"v_add_u32 v{BADR+8}, s{S_TMP}, v{t+1}")
    k(f"v_add_u32 v{BADR+9}, {L_MX}, v{t+1}")
    k(f"s_lshl_b32 s{S_TMP}, s{S_WAVE}, 10")
    k(f"s_add_u32 s{S_TMP}, s{S_TMP}, {L_PB}")
    k(f"v_add_u32 v{BADR+10}, s{S_TMP}, v{t}")
    k(f"v_add_u32 v{BADR+11}, {L_PB}, v{t}")
    k(f"v_lshlrev_b32 v{t}, 16, v{V_L15}")
    k(f"v_lshl_add_u32 v{BADR+12}, v{V_SLAB}, 4, v{t}")
    k(f"v_lshlrev_b32 v{BADR+13}, 9, v{V_L15}")
    for i in range(4):
        k(f"v_mov_b32 v{BONE+i}, 0x3f803f80")
    for p in range(2):
        for i in range(16):
            k(f"ds_read_b128 {ar((p*16+i)*4,4)}, v{BADR+(i&1)} offset:{L_CKV+p*16*RS+i*16}")
    k("s_barrier")
    k.stamp(4)
    k(f"s_lshl_b32 s{S_TMP}, s{S_B}, 15")
    k(f"s_lshl_b32 s{S_TMP+1}, s{S_G}, 14")
    k(f"s_add_u32 s{S_TMP}, s{S_TMP}, s{S_TMP+1}")
    k(f"s_add_u32 s{S_TMP}, s{S_TMP}, {WS_QA}")
    for n in range(1, 4):
        k(f"s_add_u32 s{S_TMP+n}, s{S_TMP}, {4096*n}")
    for tt in range(8):
        for u in range(4):
            r = 128 + (tt * 4 + u) * 4
            base = BADR + 4 + (u >> 1)
            off = (u & 1) * 32 * RS + 32 * tt
            k(f"ds_read_b64_tr_b16 {ar(r,2)}, v{base} offset:{L_CKV+off}")
            k(f"ds_read_b64_tr_b16 {ar(r+2,2)}, v{base} offset:{L_CKV+off+16*RS}")
    loads = [f"buffer_load_dwordx4 {vr(BG+4*n,4)}, v{BADR+6}, {srd(R_WS)}, s{S_TMP+n} offen sc1" for n in range(4)]
    gather_check_loop(k, "qa", loads, list(range(BG, BG + 16)), 5)
    for n in range(4):
        k(f"ds_write_b128 v{BADR+7}, {vr(BG+4*n,4)} offset:{4*n*RS}")
    k("s_waitcnt lgkmcnt(0)")
    k("s_barrier")
    for i in range(16):
        k(f"ds_read_b128 {vr(BQ+4*i,4)}, v{BADR+2+(i&1)} offset:{i*16}")
    for i in range(16):
        k(f"s_waitcnt lgkmcnt({15-i})")
        for p in range(2):
            c = "0" if i == 0 else vr(BS + 4 * p, 4)
            k(f"v_mfma_f32_16x16x32_bf16 {vr(BS+4*p,4)}, {ar((p*16+i)*4,4)}, {vr(BQ+4*i,4)}, {c}")
    k.nop(8)
    k(f"v_max3_f32 v{t}, v{BS}, v{BS+1}, v{BS+2}")
    k(f"v_max3_f32 v{t+1}, v{BS+3}, v{BS+4}, v{BS+5}")
    k(f"v_max3_f32 v{t}, v{t}, v{BS+6}, v{BS+7}")
    k(f"v_max_f32 v{t}, v{t}, v{t+1}")
    for sw in ("v_permlane16_swap_b32", "v_permlane32_swap_b32"):
        k(f"v_mov_b32 v{t+1}, v{t}")
        k.nop(2)
        k(f"{sw} v{t}, v{t+1}")
        k.nop(1)
        k(f"v_max_f32 v{t}, v{t}, v{t+1}")
    k(f"ds_write_b32 v{BADR+8}, v{t}")
    k("s_waitcnt lgkmcnt(0)")
    k("s_barrier")
    k(f"ds_read2st64_b32 {vr(t,2)}, v{BADR+9} offset0:0 offset1:1")
    k(f"ds_read2st64_b32 {vr(t+2,2)}, v{BADR+9} offset0:2 offset1:3")
    k("s_waitcnt lgkmcnt(0)")
    k(f"v_max3_f32 v{t}, v{t}, v{t+1}, v{t+2}")
    k(f"v_max_f32 v{t+4}, v{t}, v{t+3}")
    for i in range(8):
        k(f"v_sub_f32 v{BS+i}, v{BS+i}, v{t+4}")
    for i in range(8):
        k(f"v_exp_f32 v{BS+i}, v{BS+i}")
    k.nop(1)
    for i in range(4):
        k(f"v_cvt_pk_bf16_f32 v{t+i}, v{BS+2*i}, v{BS+2*i+1}")
    k(f"ds_write_b128 v{BADR+10}, {vr(t,4)}")
    k("s_waitcnt lgkmcnt(0)")
    k("s_barrier")
    for u in range(4):
        k(f"ds_read_b128 {vr(BP+4*u,4)}, v{BADR+11} offset:{1024*u}")
    k(f"s_lshl_b32 s{S_TMP}, s{S_G}, 20")
    k(f"s_lshl_b32 s{S_TMP+1}, s{S_WAVE}, 14")
    k(f"s_add_u32 s{S_TMP}, s{S_TMP}, s{S_TMP+1}")
    k(f"s_lshl_b32 s{S_TMP+1}, s{S_B}, 5")
    k(f"s_add_u32 s{S_TMP+1}, s{S_TMP+1}, s{S_H}")
    k(f"s_lshl_b32 s{S_TMP+2}, s{S_TMP+1}, 8")
    k(f"s_add_u32 s{S_TMP}, s{S_TMP}, s{S_TMP+2}")
    k(f"s_add_u32 s{S_TMP}, s{S_TMP}, {WS_AO}")
    k(f"s_lshl_b32 s{S_TMP+1}, s{S_TMP+1}, 3")
    k(f"s_lshl_b32 s{S_TMP+2}, s{S_G}, 13")
    k(f"s_add_u32 s{S_TMP+1}, s{S_TMP+1}, s{S_TMP+2}")
    k(f"s_add_u32 s{S_TMP+1}, s{S_TMP+1}, {WS_ST}")
    for u in range(4):
        k(f"s_waitcnt lgkmcnt({3-u})")
        c = "0" if u == 0 else vr(BL, 4)
        k(f"v_mfma_f32_16x16x32_bf16 {vr(BL,4)}, {vr(BONE,4)}, {vr(BP+4*u,4)}, {c}")
        for tt in range(8):
            c = "0" if u == 0 else vr(BD + 4 * tt, 4)
            k(f"v_mfma_f32_16x16x32_bf16 {vr(BD+4*tt,4)}, {ar(128+(tt*4+u)*4,4)}, {vr(BP+4*u,4)}, {c}")
    k.nop(1)
    k(f"v_mov_b32 v{t+5}, v{BL}")
    for up in range(4):
        r = BQ + 4 * up
        k(f"v_cvt_pk_bf16_f32 v{r}, v{BD+8*up}, v{BD+8*up+1}")
        k(f"v_cvt_pk_bf16_f32 v{r+1}, v{BD+8*up+2}, v{BD+8*up+3}")
        k(f"v_cvt_pk_bf16_f32 v{r+2}, v{BD+8*up+4}, v{BD+8*up+5}")
        k(f"v_cvt_pk_bf16_f32 v{r+3}, v{BD+8*up+6}, v{BD+8*up+7}")
        k(f"buffer_store_dwordx4 {vr(r,4)}, v{BADR+12}, {srd(R_WS)}, s{S_TMP} offen offset:{64*up} sc1")
    skip = k.label("stskip")
    k(f"s_cmp_eq_u32 s{S_WAVE}, 0")
    k(f"s_cbranch_scc0 {skip}")
    k(f"s_mov_b64 exec, 0xffff")
    k(f"buffer_store_dwordx2 {vr(t+4,2)}, v{BADR+13}, {srd(R_WS)}, s{S_TMP+1} offen sc1")
    k(f"s_mov_b64 exec, -1")
    k(f"{skip}:")
    k.stamp(6)


def silu(k, v, t):
    k(f"v_mul_f32 v{t}, 0xbfb8aa3b, v{v}")
    k(f"v_exp_f32 v{t}, v{t}")
    k.nop(1)
    k(f"v_add_f32 v{t}, 1.0, v{t}")
    k(f"v_rcp_f32 v{t}, v{t}")
    k.nop(1)
    k(f"v_mul_f32 v{v}, v{v}, v{t}")


def round_bf16(k, v):
    k(f"v_cvt_pk_bf16_f32 v{v}, v{v}, v{v}")
    k(f"v_and_b32 v{v}, 0xffff0000, v{v}")


FW1 = 10
FW2 = 50
FX = 90
FD = 110
FH = 150
FADR = 154
FT = 166


def ffn(k):
    t = FT
    k("s_barrier")
    k(f"v_lshrrev_b32 v{t}, 2, v{V_LANE}")
    k(f"v_mul_u32_u24 v{t}, 3456, v{t}")
    k(f"v_and_b32 v{t+1}, 3, v{V_LANE}")
    k(f"v_lshl_add_u32 v{t}, v{t+1}, 4, v{t}")
    k(f"s_mul_i32 s{S_TMP}, s{S_WAVE}, {160*3456}")
    k(f"s_lshl_b32 s{S_TMP+1}, s{S_UU}, 6")
    k(f"s_add_u32 s{S_TMP}, s{S_TMP}, s{S_TMP+1}")
    k(f"s_mul_i32 s{S_TMP+1}, s{S_WAVE}, 10240")
    k(f"s_add_u32 s{S_TMP+1}, s{S_TMP+1}, {L_W1}")
    for i in range(10):
        k(f"s_mov_b32 m0, s{S_TMP+1}")
        k(f"s_add_u32 s{S_TMP+1}, s{S_TMP+1}, 1024")
        k(f"buffer_load_dwordx4 v{t}, {srd(R_B)}, s{S_TMP} offen lds")
        k(f"s_add_u32 s{S_TMP}, s{S_TMP}, {16*3456}")
    k(f"v_lshlrev_b32 v{t+1}, 4, v{V_LANE}")
    k(f"s_mul_i32 s{S_TMP}, s{S_UU}, 40960")
    k(f"s_mul_i32 s{S_TMP+1}, s{S_WAVE}, 10240")
    k(f"s_add_u32 s{S_TMP}, s{S_TMP}, s{S_TMP+1}")
    k(f"s_add_u32 s{S_TMP+1}, s{S_TMP+1}, {L_W2}")
    for i in range(10):
        k(f"s_mov_b32 m0, s{S_TMP+1}")
        k(f"s_add_u32 s{S_TMP+1}, s{S_TMP+1}, 1024")
        k(f"buffer_load_dwordx4 v{t+1}, {srd(R_C)}, s{S_TMP} offen lds")
        k(f"s_add_u32 s{S_TMP}, s{S_TMP}, 1024")
    k(f"v_and_b32 v{t}, 1, v{V_LANE}")
    k(f"v_mul_u32_u24 v{t}, 1280, v{t}")
    k(f"v_lshl_add_u32 v{t}, v{V_SLAB}, 3, v{t}")
    k(f"s_mul_i32 s{S_TMP}, s{S_WAVE}, 320")
    k(f"s_add_u32 s{S_TMP}, s{S_TMP}, {L_XN}")
    k(f"v_add_u32 v{FADR}, s{S_TMP}, v{t}")
    for i in range(5):
        k(f"ds_read_b64 {vr(FX+4*i,2)}, v{FADR} offset:{64*i}")
        k(f"ds_read_b64 {vr(FX+4*i+2,2)}, v{FADR} offset:{64*i+32}")
    k(f"v_lshrrev_b32 v{t}, 2, v{V_L15}")
    k(f"v_lshl_add_u32 v{t}, v{V_SLAB}, 2, v{t}")
    k(f"v_and_b32 v{t+1}, 3, v{V_L15}")
    k(f"v_lshlrev_b32 v{t+2}, 6, v{t}")
    k(f"v_lshl_add_u32 v{t+2}, v{t+1}, 3, v{t+2}")
    k(f"s_mul_i32 s{S_TMP}, s{S_WAVE}, 10240")
    k(f"s_add_u32 s{S_TMP}, s{S_TMP}, {L_W1}")
    k(f"v_add_u32 v{FADR+1}, s{S_TMP}, v{t+2}")
    k(f"v_mul_u32_u24 v{t+2}, 1280, v{t}")
    k(f"v_lshl_add_u32 v{t+2}, v{t+1}, 3, v{t+2}")
    k(f"s_mul_i32 s{S_TMP}, s{S_WAVE}, 320")
    k(f"s_add_u32 s{S_TMP}, s{S_TMP}, {L_W2}")
    k(f"v_add_u32 v{FADR+2}, s{S_TMP}, v{t+2}")
    k(f"v_lshlrev_b32 v{t+2}, 2, v{V_LANE}")
    k(f"s_lshl_b32 s{S_TMP}, s{S_WAVE}, 8")
    k(f"s_add_u32 s{S_TMP}, s{S_TMP}, {L_FRED}")
    k(f"v_add_u32 v{FADR+3}, s{S_TMP}, v{t+2}")
    k(f"v_add_u32 v{FADR+4}, {L_FRED}, v{t+2}")
    k(f"v_lshrrev_b32 v{t+2}, 2, v{V_L15}")
    k(f"v_lshlrev_b32 v{t+2}, 3, v{t+2}")
    k(f"v_lshrrev_b32 v{t+3}, 1, v{V_SLAB}")
    k(f"v_lshl_add_u32 v{t+2}, v{t+3}, 2, v{t+2}")
    k(f"v_add_u32 v{t+2}, v{t+2}, v{t+1}")
    k(f"v_and_b32 v{t+3}, 1, v{V_SLAB}")
    k(f"v_lshl_add_u32 v{t+2}, v{t+3}, 5, v{t+2}")
    k(f"v_lshlrev_b32 v{t+2}, 1, v{t+2}")
    k(f"s_lshl_b32 s{S_TMP}, s{S_WAVE}, 7")
    k(f"s_add_u32 s{S_TMP}, s{S_TMP}, {L_HB}")
    k(f"v_add_u32 v{FADR+5}, s{S_TMP}, v{t+2}")
    k(f"v_and_b32 v{t+2}, 1, v{V_LANE}")
    k(f"v_lshlrev_b32 v{t+2}, 6, v{t+2}")
    k(f"v_lshl_add_u32 v{t+2}, v{V_SLAB}, 4, v{t+2}")
    k(f"v_add_u32 v{FADR+6}, s{S_TMP}, v{t+2}")
    k(f"v_lshlrev_b32 v{FADR+7}, 3, v{V_LANE}")
    k(f"s_mul_i32 s{S_TMP+2}, s{S_UU}, 5120")
    k(f"s_mul_i32 s{S_TMP+3}, s{S_WAVE}, 1280")
    k(f"s_add_u32 s{S_TMP+2}, s{S_TMP+2}, s{S_TMP+3}")
    k(f"s_add_u32 s{S_TMP+2}, s{S_TMP+2}, {WS_FP}")
    k(f"s_mov_b32 s{S_M+2}, 0xffff0000")
    k(f"s_mov_b32 s{S_M+3}, 0xffff0000")
    k(f"s_mov_b32 s{S_M+4}, 0")
    k(f"s_mov_b32 s{S_M+5}, -1")
    k("s_waitcnt vmcnt(10)")
    for i in range(5):
        for ct in range(2):
            r = FW1 + (i * 2 + ct) * 4
            k(f"ds_read_b64_tr_b16 {vr(r,2)}, v{FADR+1} offset:{i*2048+32*ct}")
            k(f"ds_read_b64_tr_b16 {vr(r+2,2)}, v{FADR+1} offset:{i*2048+32*ct+1024}")
    k("s_waitcnt lgkmcnt(0)")
    for i in range(5):
        for ct in range(2):
            c = "0" if i == 0 else vr(FD + 4 * ct, 4)
            k(f"v_mfma_f32_16x16x32_bf16 {vr(FD+4*ct,4)}, {vr(FX+4*i,4)}, {vr(FW1+(i*2+ct)*4,4)}, {c}")
    k.nop(8)
    k(f"v_cndmask_b32 v{t}, v{FD}, v{FD+1}, s[{S_M+2}:{S_M+3}]")
    k(f"v_cndmask_b32 v{t+1}, v{FD+4}, v{FD+5}, s[{S_M+2}:{S_M+3}]")
    k(f"v_cndmask_b32 v{t}, v{t}, v{t+1}, s[{S_M+4}:{S_M+5}]")
    k(f"ds_write_b32 v{FADR+3}, v{t}")
    k("s_waitcnt vmcnt(0) lgkmcnt(0)")
    k("s_barrier")
    k(f"ds_read2st64_b32 {vr(t,2)}, v{FADR+4} offset0:0 offset1:1")
    k(f"ds_read2st64_b32 {vr(t+2,2)}, v{FADR+4} offset0:2 offset1:3")
    for ct in range(10):
        r = FW2 + 4 * ct
        k(f"ds_read_b64_tr_b16 {vr(r,2)}, v{FADR+2} offset:{32*ct}")
        k(f"ds_read_b64_tr_b16 {vr(r+2,2)}, v{FADR+2} offset:{32*ct+20480}")
    k("s_waitcnt lgkmcnt(0)")
    k(f"v_add_f32 v{t}, v{t}, v{t+1}")
    k(f"v_add_f32 v{t+2}, v{t+2}, v{t+3}")
    k(f"v_add_f32 v{t}, v{t}, v{t+2}")
    round_bf16(k, t)
    silu(k, t, t + 1)
    k(f"v_cvt_pk_bf16_f32 v{t}, v{t}, v{t}")
    k(f"ds_write_b16 v{FADR+5}, v{t}")
    k("s_waitcnt lgkmcnt(0)")
    k(f"ds_read_b128 {vr(FH+2,4)}, v{FADR+6}")
    k("s_waitcnt lgkmcnt(0)")
    for ct in range(10):
        k(f"v_mfma_f32_16x16x32_bf16 {vr(FD+4*ct,4)}, {vr(FH+2,4)}, {vr(FW2+4*ct,4)}, 0")
    k.nop(8)
    for q in range(3):
        for bb in range(2):
            a0, a1 = FD + 16 * q + bb, FD + 16 * q + 4 + bb
            k(f"v_cndmask_b32 v{t+2*q+bb}, v{a0}, v{a1}, s[{S_M+2}:{S_M+3}]")
            if q < 2:
                a2, a3 = FD + 16 * q + 8 + bb, FD + 16 * q + 12 + bb
                k(f"v_cndmask_b32 v{t+8}, v{a2}, v{a3}, s[{S_M+2}:{S_M+3}]")
                k(f"v_cndmask_b32 v{t+2*q+bb}, v{t+2*q+bb}, v{t+8}, s[{S_M+4}:{S_M+5}]")
    k(f"buffer_store_dwordx2 {vr(t,2)}, v{FADR+7}, {srd(R_WS)}, s{S_TMP+2} offen sc1")
    k(f"buffer_store_dwordx2 {vr(t+2,2)}, v{FADR+7}, {srd(R_WS)}, s{S_TMP+2} offen offset:512 sc1")
    k(f"s_mov_b32 exec_hi, 0")
    k(f"buffer_store_dwordx2 {vr(t+4,2)}, v{FADR+7}, {srd(R_WS)}, s{S_TMP+2} offen offset:1024 sc1")
    k(f"s_mov_b64 exec, -1")
    k.stamp(8)


ZG = 10
ZT = 44


def tree_reduce4(k, g, t):
    k.nop(2)
    k(f"v_permlane32_swap_b32 v{g}, v{g+2}")
    k(f"v_permlane32_swap_b32 v{g+1}, v{g+3}")
    k.nop(1)
    k(f"v_add_f32 v{g}, v{g}, v{g+2}")
    k(f"v_add_f32 v{g+1}, v{g+1}, v{g+3}")
    k.nop(2)
    k(f"v_permlane16_swap_b32 v{g}, v{g+1}")
    k.nop(1)
    k(f"v_add_f32 v{t}, v{g}, v{g+1}")
    k.nop(2)
    k(f"v_add_f32_dpp v{t}, v{t}, v{t} row_ror:8 row_mask:0xf bank_mask:0xf")


def final(k):
    t = ZT
    k(f"s_sub_u32 s{S_TMP}, s{S_UU}, {ZBASE}")
    k(f"v_and_b32 v{t}, 7, v{V_LANE}")
    k(f"v_lshrrev_b32 v{t+1}, 1, v{V_SLAB}")
    k(f"v_lshl_add_u32 v{t}, v{t}, 1, v{t+1}")
    k(f"v_and_b32 v{t+1}, 1, v{V_SLAB}")
    k(f"v_mul_u32_u24 v{t+1}, 640, v{t+1}")
    k(f"v_add_u32 v{t}, v{t}, v{t+1}")
    k(f"v_lshlrev_b32 v{t}, 1, v{t}")
    k(f"s_lshl_b32 s{S_TMP+1}, s{S_TMP}, 5")
    k(f"buffer_load_ushort v{t+2}, v{t}, {srd(R_X)}, s{S_TMP+1} offen")
    k(f"v_and_b32 v{t+3}, 7, v{V_LANE}")
    k(f"v_lshlrev_b32 v{t+3}, 2, v{t+3}")
    k(f"v_and_b32 v{t+4}, 1, v{V_SLAB}")
    k(f"v_mul_u32_u24 v{t+4}, 1280, v{t+4}")
    k(f"v_add_u32 v{t+3}, v{t+3}, v{t+4}")
    k(f"v_lshrrev_b32 v{t+4}, 3, v{V_LANE}")
    k(f"v_mul_u32_u24 v{t+4}, 5120, v{t+4}")
    k(f"v_and_b32 v{t+5}, 7, v{V_LANE}")
    k(f"v_lshl_add_u32 v{t+4}, v{t+5}, 4, v{t+4}")
    k(f"s_lshl_b32 s{S_TMP+2}, s{S_TMP}, 7")
    k(f"s_add_u32 s{S_TMP+3}, s{S_TMP+2}, {WS_FP}")
    k(f"v_add_u32 v{t+5}, s{S_TMP+3}, v{t+4}")
    k(f"v_add_u32 v{t+6}, {48*5120}, v{t+5}")
    k(f"v_cmp_gt_u32 vcc, 48, v{V_LANE}")
    k(f"s_mov_b64 s[{S_M+2}:{S_M+3}], vcc")
    k.nop(2)
    k(f"v_cndmask_b32 v{t+6}, v{t+5}, v{t+6}, vcc")
    loads = []
    for i in range(6):
        k(f"s_mov_b32 s{4+i}, {i*8*5120}")
        loads.append(f"buffer_load_dwordx4 {vr(ZG+4*i,4)}, v{t+5}, {srd(R_WS)}, s{4+i} offen sc1")
    loads.append(f"buffer_load_dwordx4 {vr(ZG+24,4)}, v{t+6}, {srd(R_WS)}, 0 offen sc1")
    gather_check_loop(k, "fp", loads, list(range(ZG, ZG + 28)), 7)
    for c in range(4):
        k(f"v_cndmask_b32 v{ZG+24+c}, 0, v{ZG+24+c}, s[{S_M+2}:{S_M+3}]")
    for c in range(4):
        k(f"v_add_f32 v{ZG+c}, v{ZG+c}, v{ZG+4+c}")
        k(f"v_add_f32 v{ZG+8+c}, v{ZG+8+c}, v{ZG+12+c}")
        k(f"v_add_f32 v{ZG+16+c}, v{ZG+16+c}, v{ZG+20+c}")
    for c in range(4):
        k(f"v_add_f32 v{ZG+c}, v{ZG+c}, v{ZG+8+c}")
        k(f"v_add_f32 v{ZG+16+c}, v{ZG+16+c}, v{ZG+24+c}")
    for c in range(4):
        k(f"v_add_f32 v{ZG+c}, v{ZG+c}, v{ZG+16+c}")
    tree_reduce4(k, ZG, t + 8)
    round_bf16(k, t + 8)
    silu(k, t + 8, t + 9)
    round_bf16(k, t + 8)
    k(f"v_lshlrev_b32 v{t+2}, 16, v{t+2}")
    k(f"s_add_u32 s{S_TMP+3}, s{S_TMP+2}, {WS_SP}")
    k(f"v_add_u32 v{t+5}, s{S_TMP+3}, v{t+4}")
    loads = []
    for i in range(4):
        loads.append(f"buffer_load_dwordx4 {vr(ZG+4*i,4)}, v{t+5}, {srd(R_WS)}, s{4+i} offen sc1")
    gather_check_loop(k, "sp", loads, list(range(ZG, ZG + 16)), 8)
    for c in range(4):
        k(f"v_add_f32 v{ZG+c}, v{ZG+c}, v{ZG+4+c}")
        k(f"v_add_f32 v{ZG+8+c}, v{ZG+8+c}, v{ZG+12+c}")
    for c in range(4):
        k(f"v_add_f32 v{ZG+c}, v{ZG+c}, v{ZG+8+c}")
    tree_reduce4(k, ZG, t + 9)
    round_bf16(k, t + 9)
    k(f"v_mul_f32 v{t+9}, v{t+9}, v{t+8}")
    round_bf16(k, t + 9)
    k(f"v_add_f32 v{t+9}, v{t+9}, v{t+2}")
    k(f"v_cvt_pk_bf16_f32 v{t+9}, v{t+9}, v{t+9}")
    k(f"v_mov_b32 v{t+10}, v{t+9}")
    k.nop(2)
    k(f"v_permlane32_swap_b32 v{t+9}, v{t+10}")
    k.nop(1)
    k(f"v_and_b32 v{t+9}, 0xffff, v{t+9}")
    k(f"v_lshl_or_b32 v{t+9}, v{t+10}, 16, v{t+9}")
    k(f"s_mov_b32 exec_lo, 0x00ff00ff")
    k(f"s_mov_b32 exec_hi, 0")
    k(f"s_lshl_b32 s{S_TMP+1}, s{S_TMP}, 5")
    k(f"buffer_store_dword v{t+9}, v{t+3}, {srd(R_OUT)}, s{S_TMP+1} offen")
    k(f"s_mov_b64 exec, -1")
    k.stamp(9)
    skip = k.label("ep")
    k(f"s_cmp_eq_u32 s{S_TMP}, 0")
    k(f"s_cbranch_scc0 {skip}")
    k(f"v_mov_b32 v{t}, 0")
    k(f"v_mov_b32 v{t+1}, s{S_T0}")
    k(f"s_mov_b64 exec, 1")
    k(f"buffer_store_dword v{t+1}, v{t}, {srd(R_WS)}, 0 offen offset:{WS_EPOCH} sc1")
    k(f"s_mov_b64 exec, -1")
    k(f"{skip}:")


def dump_stamps(k):
    if not k.stamps:
        return
    k("s_waitcnt vmcnt(0) lgkmcnt(0)")
    k(f"s_memrealtime s[98:99]")
    k("s_waitcnt lgkmcnt(0)")
    k(f"s_lshl_b32 s{S_TMP}, s2, 2")
    k(f"s_add_u32 s{S_TMP}, s{S_TMP}, s{S_WAVE}")
    k(f"s_lshl_b32 s{S_TMP}, s{S_TMP}, 6")
    k(f"s_add_u32 s{S_TMP}, s{S_TMP}, {WS_STAMP}")
    for i in range(10):
        k(f"v_mov_b32 v{10+i}, s{S_STAMP+2*i}")
    k(f"s_getreg_b32 s{S_TMP+1}, hwreg(HW_REG_XCC_ID)")
    k(f"v_mov_b32 v20, s{S_TMP+1}")
    k(f"v_mov_b32 v21, s{S_CNT}")
    k(f"v_mov_b32 v4, 0")
    k(f"s_mov_b64 exec, 1")
    for i in range(3):
        k(f"buffer_store_dwordx4 {vr(10+4*i,4)}, v4, {srd(R_WS)}, s{S_TMP} offen offset:{16*i}")
    k(f"s_mov_b64 exec, -1")


def build(stamps=False):
    k = K(stamps)
    hdr = open("recurrent_scan__compressed_kv_cla__dense_activation_silu__decode.s.ref").read()
    comments = [l for l in hdr.split("\n") if l.startswith(";") and "@launch" not in l and "Override" not in l and "grid=ceil" not in l]
    out = "\n".join(comments) + "\n"
    out += f"; @launch grid=(256,1,1) block=(256,1,1) lds={LDS_BYTES}\n"
    out += f""".amdgcn_target "amdgcn-amd-amdhsa--gfx950"
.text
.globl {NAME}
.p2align 8
.type {NAME},@function
{NAME}:
"""
    if stamps:
        for i in range(10):
            k(f"s_mov_b32 s{S_STAMP+2*i}, 0")
    prologue(k)
    k(f"s_cmp_ge_u32 s{S_J}, 4")
    k(f"s_cbranch_scc1 L_B")
    k.srd(R_A, S_WUK, 512 * 4096 * 2)
    k.srd(R_B, S_WUV, 512 * 4096 * 2)
    k.srd(R_C, S_WO, 4096 * 640 * 2)
    k(f"s_cmp_eq_u32 s{S_WAVE}, 0")
    k(f"s_cbranch_scc0 L_P_w123")
    stage1_issue(k)
    k("s_barrier")
    nc = clears_P(k)
    stage1_selectors(k)
    layernorm(k, 1 + 20 + nc)
    k(f"s_waitcnt vmcnt({20+nc})")
    epoch_tags(k, VE)
    wuk_issue(k)
    stage1_publish_addr(k)
    k.stamp(2)
    stage1_mfma(k, nc + 8)
    stage1_publish(k, 8)
    k("s_branch L_P_join")
    k("L_P_w123:")
    k(f"v_mov_b32 v{V_T}, 0")
    k(f"buffer_load_dword v{VE}, v{V_T}, {srd(R_WS)}, 0 offen offset:{WS_EPOCH} sc1")
    k("s_barrier")
    wuk_issue(k)
    k("s_waitcnt vmcnt(8)")
    epoch_tags(k, VE)
    k("L_P_join:")
    stage2(k)
    p_weights_issue(k)
    stage4_setup(k)
    k("s_waitcnt vmcnt(0)")
    k("s_barrier")
    k.stamp(6)
    p_weights_preread(k)
    stage4(k)
    stage5(k)
    k("s_branch L_done")
    k("L_B:")
    b_roles(k)
    k.srd(R_A, S_CKV, 2 * 4096 * 512 * 2)
    k.srd(R_B, S_W1, 640 * 1728 * 2)
    k.srd(R_C, S_W2, 1728 * 640 * 2)
    k(f"s_cmp_eq_u32 s{S_WAVE}, 0")
    k(f"s_cbranch_scc0 L_B_w123")
    stage1_issue(k)
    k("s_barrier")
    nc = clears_B(k)
    stage1_selectors(k)
    layernorm(k, 1 + 20 + nc)
    k(f"s_waitcnt vmcnt({20+nc})")
    epoch_tags(k, VE)
    stage1_publish_addr(k)
    k.stamp(2)
    stage1_mfma(k, nc)
    stage1_publish(k, 0)
    ckv_issue(k)
    k("s_branch L_B_join")
    k("L_B_w123:")
    k(f"v_mov_b32 v{V_T}, 0")
    k(f"buffer_load_dword v{VE}, v{V_T}, {srd(R_WS)}, 0 offen offset:{WS_EPOCH} sc1")
    k("s_barrier")
    ckv_issue(k)
    k("s_waitcnt vmcnt(32)")
    epoch_tags(k, VE)
    k("L_B_join:")
    flags_poll(k)
    attention(k)
    k(f"s_cmp_lt_u32 s{S_UU}, {NF}")
    k(f"s_cbranch_scc0 L_B_nof")
    ffn(k)
    k("s_branch L_done")
    k("L_B_nof:")
    k(f"s_cmp_ge_u32 s{S_UU}, {ZBASE}")
    k(f"s_cbranch_scc0 L_done")
    k(f"s_cmp_eq_u32 s{S_WAVE}, 0")
    k(f"s_cbranch_scc0 L_done")
    final(k)
    k("L_done:")
    dump_stamps(k)
    k("L_exit:")
    k("s_endpgm")
    out += k.text()
    out += f""".section .rodata,"a"
.p2align 6
.amdhsa_kernel {NAME}
  .amdhsa_next_free_vgpr 512
  .amdhsa_next_free_sgpr 102
  .amdhsa_accum_offset 256
  .amdhsa_group_segment_fixed_size 0
  .amdhsa_kernarg_size 96
  .amdhsa_user_sgpr_count 2
  .amdhsa_user_sgpr_kernarg_segment_ptr 1
  .amdhsa_system_sgpr_workgroup_id_x 1
.end_amdhsa_kernel
"""
    return out


if __name__ == "__main__":
    stamps = "--stamps" in sys.argv
    outp = [a for a in sys.argv[1:] if not a.startswith("--")]
    open(outp[0] if outp else "k.s", "w").write(build(stamps))
```

```python
import kgen, sys
from kgen import *
def aux_kernel(kind):
    name = f"{kind}_kernel"
    k = K(False)
    if kind == "empty":
        k("s_endpgm")
    elif kind == "stream":
        k("s_cmp_ge_u32 s2, 256")
        k("s_cbranch_scc1 L_sx")
        k("s_load_dwordx16 s[4:19], s[0:1], 0")
        k("s_load_dwordx8 s[20:27], s[0:1], 64")
        k("v_lshlrev_b32 v4, 4, v0")
        k("s_waitcnt lgkmcnt(0)")
        bufs = [(8, 640*4096*2), (10, 512*4096*2), (6, 2*4096*512*2), (12, 512*4096*2), (14, 4096*640*2), (18, 640*1728*2), (20, 1728*640*2)]
        n = 0
        for reg, size in bufs:
            k.srd(32, reg, size)
            per = size // 256
            nl = (per + 4095) // 4096
            k(f"s_mul_i32 s30, s2, {per}")
            for i in range(nl):
                r = 16 + 4 * (n % 48)
                k(f"buffer_load_dwordx4 v[{r}:{r+3}], v4, s[32:35], s30 offen")
                k("s_add_u32 s30, s30, 4096")
                n += 1
        k("s_waitcnt vmcnt(0)")
        k("L_sx:")
        k("s_endpgm")
    txt = f".globl {name}\n.p2align 8\n.type {name},@function\n{name}:\n" + k.text()
    desc = f""".amdhsa_kernel {name}
  .amdhsa_next_free_vgpr 256
  .amdhsa_next_free_sgpr 102
  .amdhsa_accum_offset 256
  .amdhsa_group_segment_fixed_size 0
  .amdhsa_kernarg_size 96
  .amdhsa_user_sgpr_count 2
  .amdhsa_user_sgpr_kernarg_segment_ptr 1
  .amdhsa_system_sgpr_workgroup_id_x 1
.end_amdhsa_kernel
"""
    return name, txt, desc
def make(kinds, src):
    s = open(src).read()
    launch = f"; @launch grid=(256,1,1) block=(256,1,1) lds={LDS_BYTES}\n"
    assert launch in s
    lines = ""; body = ""; descs = ""
    seen = set()
    for kind in kinds:
        name, txt, desc = aux_kernel(kind)
        lines += f"; @launch kernel={name} grid=(256,1,1) block=(256,1,1) lds=0\n"
        if name not in seen:
            body += txt; descs += ".p2align 6\n" + desc
        seen.add(name)
    lines += f"; @launch kernel={NAME} grid=(256,1,1) block=(256,1,1) lds={LDS_BYTES}\n"
    s = s.replace(launch, lines)
    s = s.replace('.section .rodata,"a"\n', body + '.section .rodata,"a"\n')
    s += descs
    return s
if __name__ == "__main__":
    open("kl_main.s", "w").write(make([], "k.s"))
    open("kl_empty.s", "w").write(make(["empty"], "k.s"))
    open("kl_empty2.s", "w").write(make(["empty", "empty"], "k.s"))
    open("kl_stream.s", "w").write(make(["stream"], "k.s"))
```

```python
import sys

NAME = "recurrent_scan__compressed_kv_cla__dense_activation_silu__decode_kernel"

WS_EPOCH = 0
WS_QP = 0x1000
WS_QA = 0x41000
WS_ST = 0x51000
WS_CP = 0x55000
WS_SP = 0x65000
WS_FP = 0x8D000
WS_AO = 0x100000
WS_SIZE = 0x300000
WS_STAMP = 0x300000
NF = 54
ZBASE = 88

L_WUV = 0
L_WO = 32768
L_AOB = 73728
L_RED = 90112
L_CTX = 95232
L_XNP = 95744
L_CKV = 0
RS = 1056
L_QB = 128 * RS
L_XN = L_QB + 16 * RS
L_MX = L_XN + 2560
L_PB = L_MX + 1024
L_END = L_PB + 4096
L_W1 = 0
L_W2 = 40960
L_FRED = 81920
L_HB = 82944
LDS_BYTES = 163840

SPIN_LIMIT = 100000

S_X, S_CKV, S_WQ, S_WUK, S_WUV, S_WO, S_W1, S_W2, S_OUT, S_DBG, S_WSP = 4, 6, 8, 10, 12, 14, 18, 20, 22, 24, 26
R_X, R_WQ, R_WS, R_A, R_B, R_C, R_OUT = 28, 32, 36, 40, 44, 48, 52
S_WAVE, S_H, S_J, S_T0, S_T1 = 56, 57, 58, 59, 60
S_TMP = 61
S_PUB = 69
S_OFF = 70
S_CNT = 71
S_M = 72
S_STAMP = 80


class K:
    opt = {}
    def __init__(self, stamps=False):
        self.lines = []
        self.nl = 0
        self.stamps = stamps
        self.nstamp = 0

    def __call__(self, s):
        for l in s.split("\n"):
            self.lines.append("    " + l.strip() if l.strip() and not l.strip().endswith(":") else l.strip())

    def label(self, stem):
        self.nl += 1
        return f"L_{stem}_{self.nl}"

    def nop(self, n):
        while n > 0:
            k = min(n, 16)
            self(f"s_nop {k-1}")
            n -= k

    def stamp(self, idx):
        if self.stamps:
            self(f"s_memrealtime s[{S_STAMP+2*idx}:{S_STAMP+2*idx+1}]")
            self("s_waitcnt lgkmcnt(0)")

    def srd(self, d, base, nbytes):
        self(f"s_mov_b32 s{d}, s{base}")
        self(f"s_and_b32 s{d+1}, s{base+1}, 0xffff")
        self(f"s_mov_b32 s{d+2}, {nbytes}")
        self(f"s_mov_b32 s{d+3}, 0x00020000")

    def text(self):
        return "\n".join(self.lines) + "\n"


def srd(d):
    return f"s[{d}:{d+3}]"


def vr(a, n=1):
    return f"v{a}" if n == 1 else f"v[{a}:{a+n-1}]"


def ar(a, n=1):
    return f"a{a}" if n == 1 else f"a[{a}:{a+n-1}]"


V_TID, V_LANE, V_L15, V_SLAB = 0, 1, 2, 3
V_T = 4
V_ONES = 242
V_NEG1 = 244


def spin_begin(k, cnt=S_CNT):
    k(f"s_mov_b32 s{cnt}, 0")


def spin_retry(k, top, cnt=S_CNT):
    k(f"s_add_u32 s{cnt}, s{cnt}, 1")
    k(f"s_cmp_lt_u32 s{cnt}, {SPIN_LIMIT}")
    k(f"s_cbranch_scc1 {top}")


def prologue(k):
    k(f"s_cmp_ge_u32 s2, 256")
    k(f"s_cbranch_scc1 L_exit")
    k.stamp(0)
    k(f"s_load_dwordx16 s[4:19], s[0:1], 0")
    k(f"s_load_dwordx8 s[20:27], s[0:1], 64")
    k(f"v_and_b32 v{V_LANE}, 63, v0")
    k(f"v_lshrrev_b32 v{V_T}, 6, v0")
    k(f"v_and_b32 v{V_L15}, 15, v0")
    k(f"v_bfe_u32 v{V_SLAB}, v0, 4, 2")
    k(f"v_readfirstlane_b32 s{S_WAVE}, v{V_T}")
    k(f"s_and_b32 s{S_H}, s2, 31")
    k(f"s_lshr_b32 s{S_J}, s2, 5")
    for i in range(4):
        k(f"v_mov_b32 v{V_NEG1+i}, -1")
    k(f"s_waitcnt lgkmcnt(0)")
    k.srd(R_X, S_X, 2560)
    k.srd(R_WQ, S_WQ, 640 * 4096 * 2)
    k.srd(R_WS, S_WSP, WS_SIZE + (0x100000 if k.stamps else 0))
    k.srd(R_OUT, S_OUT, 2560)


VX = 10
VW = 20
VA = 100
VSEL = 180
VD1 = 188
VXR = 192
VE = 202
VS1 = 204
VWUK = 210


def stage1_issue(k):
    k(f"v_lshrrev_b32 v{V_T}, 5, v{V_LANE}")
    k(f"v_and_b32 v{V_T+1}, 31, v{V_LANE}")
    k(f"v_mul_u32_u24 v{V_T}, 1280, v{V_T}")
    k(f"v_mul_u32_u24 v{V_T+1}, 40, v{V_T+1}")
    k(f"v_add_u32 v{V_T}, v{V_T}, v{V_T+1}")
    k(f"v_mov_b32 v{V_T+2}, 0")
    k(f"buffer_load_dwordx4 {vr(VX,4)}, v{V_T}, {srd(R_X)}, 0 offen")
    k(f"buffer_load_dwordx4 {vr(VX+4,4)}, v{V_T}, {srd(R_X)}, 0 offen offset:16")
    k(f"buffer_load_dwordx2 {vr(VX+8,2)}, v{V_T}, {srd(R_X)}, 0 offen offset:32")
    k(f"buffer_load_dword v{VE}, v{V_T+2}, {srd(R_WS)}, 0 offen offset:{WS_EPOCH} sc1")
    k(f"s_mul_i32 s{S_TMP}, s{S_J}, {80*8192}")
    k(f"s_lshl_b32 s{S_TMP+1}, s{S_H}, 8")
    k(f"s_add_u32 s{S_TMP}, s{S_TMP}, s{S_TMP+1}")
    k(f"v_mul_u32_u24 v{V_T+3}, {20*8192}, v{V_SLAB}")
    k(f"v_lshl_add_u32 v{V_T+3}, v{V_L15}, 4, v{V_T+3}")
    k(f"v_add_u32 v{V_T+3}, s{S_TMP}, v{V_T+3}")
    for t in range(20):
        k(f"s_mov_b32 s{S_OFF}, {t*8192}")
        k(f"buffer_load_dwordx4 {vr(VW+4*t,4)}, v{V_T+3}, {srd(R_WQ)}, s{S_OFF} offen")


def epoch_tags(k, ve):
    k(f"v_readfirstlane_b32 s{S_T0}, v{ve}")
    k.nop(4)
    k(f"s_add_u32 s{S_T0}, s{S_T0}, 1")
    k(f"s_mul_i32 s{S_T1}, s{S_T0}, 0x9e3779b1")
    k(f"s_xor_b32 s{S_T1}, s{S_T1}, 0x5bd1e995")


def stage1_selectors(k):
    t = VS1
    k(f"v_and_b32 v{t}, 1, v{V_LANE}")
    k(f"v_bfe_u32 v{t+1}, v{V_LANE}, 1, 2")
    k(f"v_cmp_eq_u32 vcc, 1, v{t}")
    k(f"v_mov_b32 v{t+2}, 0x0c0c0504")
    k(f"v_mov_b32 v{t+3}, 0x05040c0c")
    k(f"v_cndmask_b32 v{t+4}, v{t+2}, v{t+3}, vcc")
    k(f"v_mov_b32 v{t+2}, 0x0c0c0706")
    k(f"v_mov_b32 v{t+3}, 0x07060c0c")
    k(f"v_cndmask_b32 v{t+5}, v{t+2}, v{t+3}, vcc")
    k(f"v_mov_b32 v{t+2}, 0x0c0c0c0c")
    for r in range(4):
        k(f"v_cmp_eq_u32 vcc, {r}, v{t+1}")
        k.nop(2)
        k(f"v_cndmask_b32 v{VSEL+2*r}, v{t+2}, v{t+4}, vcc")
        k(f"v_cndmask_b32 v{VSEL+2*r+1}, v{t+2}, v{t+5}, vcc")


def layernorm(k, nafter):
    t = VS1
    k(f"s_mov_b32 s{S_TMP}, 0x3f803f80")
    k(f"v_mov_b32 v{t}, 0")
    k(f"v_mov_b32 v{t+1}, 0")
    k(f"v_mov_b32 v{t+2}, 0")
    k(f"v_mov_b32 v{t+3}, 0")
    k(f"s_waitcnt vmcnt({nafter})")
    k.stamp(1)
    for i in range(10):
        a = t + (i & 1)
        q = t + 2 + (i & 1)
        k(f"v_dot2_f32_bf16 v{a}, v{VX+i}, s{S_TMP}, v{a}")
        k(f"v_dot2_f32_bf16 v{q}, v{VX+i}, v{VX+i}, v{q}")
    k.nop(3)
    k(f"v_add_f32 v{t}, v{t}, v{t+1}")
    k(f"v_add_f32 v{t+2}, v{t+2}, v{t+3}")
    k.nop(1)
    for rot in (8, 4, 2, 1):
        k(f"v_add_f32_dpp v{t}, v{t}, v{t} row_ror:{rot} row_mask:0xf bank_mask:0xf")
        k(f"v_add_f32_dpp v{t+2}, v{t+2}, v{t+2} row_ror:{rot} row_mask:0xf bank_mask:0xf")
        k.nop(1)
    k.nop(1)
    k(f"v_permlane16_swap_b32 v{t}, v{t+2}")
    k.nop(1)
    k(f"v_add_f32 v{t}, v{t}, v{t+2}")
    k.nop(1)
    k(f"v_mov_b32 v{t+2}, v{t}")
    k.nop(2)
    k(f"v_permlane16_swap_b32 v{t}, v{t+2}")
    k.nop(1)
    k(f"v_mul_f32 v{t}, 0x3acccccd, v{t}")
    k(f"v_mul_f32 v{t+2}, 0x3acccccd, v{t+2}")
    k(f"v_fma_f32 v{t+2}, -v{t}, v{t}, v{t+2}")
    k(f"v_max_f32 v{t+2}, 0, v{t+2}")
    k(f"v_cvt_pk_bf16_f32 v{t+1}, v{t}, v{t+2}")
    k(f"v_lshlrev_b32 v{t}, 16, v{t+1}")
    k(f"v_and_b32 v{t+2}, 0xffff0000, v{t+1}")
    k(f"v_add_f32 v{t+2}, 0x3727c5ac, v{t+2}")
    k(f"v_cvt_pk_bf16_f32 v{t+2}, v{t+2}, v{t+2}")
    k(f"v_and_b32 v{t+2}, 0xffff0000, v{t+2}")
    k(f"v_sqrt_f32 v{t+2}, v{t+2}")
    k.nop(1)
    k(f"v_cvt_pk_bf16_f32 v{t+2}, v{t+2}, v{t+2}")
    k(f"v_and_b32 v{t+2}, 0xffff0000, v{t+2}")
    k(f"v_rcp_f32 v{t+2}, v{t+2}")
    k.nop(1)
    k(f"v_mul_f32 v{t}, v{t}, v{t+2}")
    k(f"v_sub_f32 v{t}, 0, v{t}")
    for i in range(10):
        k(f"v_lshlrev_b32 v{t+3}, 16, v{VX+i}")
        k(f"v_and_b32 v{t+4}, 0xffff0000, v{VX+i}")
        k(f"v_fma_f32 v{t+3}, v{t+3}, v{t+2}, v{t}")
        k(f"v_fma_f32 v{t+4}, v{t+4}, v{t+2}, v{t}")
        k(f"v_cvt_pk_bf16_f32 v{VX+i}, v{t+3}, v{t+4}")
    k(f"v_add_u32 v{t+3}, {L_XN}, v{V_T}")
    for i in range(5):
        k(f"ds_write_b64 v{t+3}, {vr(VX+2*i,2)} offset:{8*i}")
    k(f"v_bfe_u32 v{t}, v{V_LANE}, 3, 1")
    k(f"v_mul_u32_u24 v{t}, 1280, v{t}")
    k(f"v_mul_u32_u24 v{t+1}, 40, v{V_SLAB}")
    k(f"s_mul_i32 s{S_TMP}, s{S_J}, 160")
    k(f"s_add_u32 s{S_TMP}, s{S_TMP}, {L_XN}")
    k(f"v_add3_u32 v{t}, v{t}, v{t+1}, s{S_TMP}")
    k(f"s_waitcnt lgkmcnt(0)")
    for i in range(5):
        k(f"ds_read_b64 {vr(VXR+2*i,2)}, v{t} offset:{8*i}")
    k(f"s_waitcnt lgkmcnt(0)")
    for st in range(20):
        for r in range(4):
            k(f"v_perm_b32 v{VA+4*st+r}, v{VXR+(st>>1)}, v{VXR+(st>>1)}, v{VSEL+2*r+(st&1)}")


def stage1_mfma(k, nafter):
    for st in range(20):
        k(f"s_waitcnt vmcnt({19-st+nafter})")
        c = "0" if st == 0 else vr(VD1, 4)
        k(f"v_mfma_f32_16x16x32_bf16 {vr(VD1,4)}, {vr(VA+4*st,4)}, {vr(VW+4*st,4)}, {c}")


VPUB = 206


def stage1_publish_addr(k):
    t = VS1 + 4
    k(f"v_lshrrev_b32 v{t}, 1, v{V_SLAB}")
    k(f"v_and_b32 v{t+1}, 1, v{V_SLAB}")
    k(f"v_lshlrev_b32 v{t}, 5, v{t}")
    k(f"v_lshl_add_u32 v{t}, v{V_L15}, 1, v{t}")
    k(f"v_add_u32 v{t}, v{t}, v{t+1}")
    k(f"v_lshlrev_b32 v{VPUB}, 4, v{t}")
    k(f"s_lshl_b32 s{S_PUB}, s{S_H}, 3")
    k(f"s_add_u32 s{S_PUB}, s{S_PUB}, s{S_J}")
    k(f"s_lshl_b32 s{S_PUB}, s{S_PUB}, 10")
    k(f"s_add_u32 s{S_PUB}, s{S_PUB}, {WS_QP}")
    k(f"v_mov_b32 v{VD1+6}, s{S_T0}")
    k(f"v_mov_b32 v{VD1+7}, s{S_T1}")


def stage1_publish(k, nkeep):
    k.nop(8)
    k(f"v_cvt_pk_bf16_f32 v{VD1+4}, v{VD1}, v{VD1+1}")
    k(f"v_cvt_pk_bf16_f32 v{VD1+5}, v{VD1+2}, v{VD1+3}")
    k(f"s_waitcnt vmcnt({nkeep})")
    k(f"buffer_store_dwordx4 {vr(VD1+4,4)}, v{VPUB}, {srd(R_WS)}, s{S_PUB} offen sc1")
    k.stamp(3)


def gather_check_loop(k, name, loads, regs, stampidx=None):
    top = k.label(name)
    done = k.label(name + "d")
    t = V_T
    spin_begin(k)
    k(f"s_mov_b64 s[{S_M}:{S_M+1}], exec")
    k(f"{top}:")
    for l in loads:
        k(l)
    k("s_waitcnt vmcnt(0)")
    rs = list(regs)
    if len(rs) == 1:
        k(f"v_cmp_eq_u32 vcc, -1, v{rs[0]}")
    else:
        if len(rs) == 2:
            k(f"v_max_u32 v{t}, v{rs[0]}, v{rs[1]}")
            rs = []
        else:
            k(f"v_max3_u32 v{t}, v{rs[0]}, v{rs[1]}, v{rs[2]}")
            rs = rs[3:]
        while len(rs) >= 2:
            k(f"v_max3_u32 v{t}, v{t}, v{rs[0]}, v{rs[1]}")
            rs = rs[2:]
        if rs:
            k(f"v_max_u32 v{t}, v{t}, v{rs[0]}")
        k(f"v_cmp_eq_u32 vcc, -1, v{t}")
    k(f"s_and_b64 exec, exec, vcc")
    k(f"s_cbranch_execz {done}")
    spin_retry(k, top)
    k(f"{done}:")
    k(f"s_mov_b64 exec, s[{S_M}:{S_M+1}]")
    if stampidx is not None:
        k.stamp(stampidx)


def clears_P(k):
    t = V_T + 4
    n = 0
    neg = vr(V_NEG1, 4)
    k(f"s_lshl_b32 s{S_TMP}, s{S_H}, 2")
    k(f"s_add_u32 s{S_TMP}, s{S_TMP}, s{S_J}")
    k(f"s_lshl_b32 s{S_TMP+1}, s{S_TMP}, 14")
    k(f"s_add_u32 s{S_TMP+1}, s{S_TMP+1}, {WS_AO}")
    k(f"v_lshlrev_b32 v{t}, 4, v{V_LANE}")
    for i in range(16):
        if i % 4 == 0 and i:
            k(f"s_add_u32 s{S_TMP+1}, s{S_TMP+1}, 4096")
        k(f"buffer_store_dwordx4 {neg}, v{t}, {srd(R_WS)}, s{S_TMP+1} offen offset:{(i%4)*1024} sc1")
        n += 1
    k(f"s_mul_i32 s{S_TMP+1}, s{S_H}, 5120")
    k(f"s_mul_i32 s{S_TMP+2}, s{S_J}, 1280")
    k(f"s_add_u32 s{S_TMP+1}, s{S_TMP+1}, s{S_TMP+2}")
    k(f"s_add_u32 s{S_TMP+1}, s{S_TMP+1}, {WS_SP}")
    k(f"buffer_store_dwordx4 {neg}, v{t}, {srd(R_WS)}, s{S_TMP+1} offen sc1")
    k(f"v_lshlrev_b32 v{t+1}, 4, v{V_L15}")
    k(f"buffer_store_dwordx4 {neg}, v{t+1}, {srd(R_WS)}, s{S_TMP+1} offen offset:1024 sc1")
    n += 2
    k(f"v_and_b32 v{t+1}, 31, v{V_LANE}")
    k(f"v_lshlrev_b32 v{t+1}, 4, v{t+1}")
    k(f"s_lshl_b32 s{S_TMP+1}, s{S_TMP}, 9")
    k(f"s_add_u32 s{S_TMP+1}, s{S_TMP+1}, {WS_CP}")
    k(f"buffer_store_dwordx4 {neg}, v{t+1}, {srd(R_WS)}, s{S_TMP+1} offen sc1")
    k(f"s_lshl_b32 s{S_TMP+1}, s{S_H}, 9")
    k(f"s_add_u32 s{S_TMP+1}, s{S_TMP+1}, {WS_ST}")
    k(f"buffer_store_dwordx4 {neg}, v{t+1}, {srd(R_WS)}, s{S_TMP+1} offen sc1")
    n += 2
    k(f"v_and_b32 v{t+1}, 1, v{V_SLAB}")
    k(f"v_lshlrev_b32 v{t+1}, 15, v{t+1}")
    k(f"v_lshl_add_u32 v{t+1}, v{V_L15}, 4, v{t+1}")
    k(f"s_lshl_b32 s{S_TMP+1}, s{S_H}, 10")
    k(f"s_lshl_b32 s{S_TMP+2}, s{S_J}, 8")
    k(f"s_add_u32 s{S_TMP+1}, s{S_TMP+1}, s{S_TMP+2}")
    k(f"s_add_u32 s{S_TMP+1}, s{S_TMP+1}, {WS_QA}")
    k(f"buffer_store_dwordx4 {neg}, v{t+1}, {srd(R_WS)}, s{S_TMP+1} offen sc1")
    n += 1
    return n


def wuk_issue(k):
    t = V_T + 4
    k(f"s_mul_i32 s{S_TMP}, s{S_J}, {128*8192}")
    k(f"s_lshl_b32 s{S_TMP+1}, s{S_H}, 8")
    k(f"s_add_u32 s{S_TMP}, s{S_TMP}, s{S_TMP+1}")
    k(f"s_lshl_b32 s{S_TMP+1}, s{S_WAVE}, 6")
    k(f"s_add_u32 s{S_TMP}, s{S_TMP}, s{S_TMP+1}")
    k(f"v_lshlrev_b32 v{t}, 13, v{V_L15}")
    k(f"v_lshl_add_u32 v{t}, v{V_SLAB}, 4, v{t}")
    for i in range(8):
        k(f"buffer_load_dwordx4 {vr(VWUK+4*i,4)}, v{t}, {srd(R_A)}, s{S_TMP} offen")
        if i < 7:
            k(f"s_add_u32 s{S_TMP}, s{S_TMP}, {16*8192}")


PG = 10
PD = 28
PY = 68
PWV = 76
PWO = 108
PA = 148
PADR = 164
PM = 180
PT = 188


def stage2(k):
    t = PT
    k(f"v_and_b32 v{t}, 7, v{V_L15}")
    k(f"v_lshlrev_b32 v{t}, 10, v{t}")
    k(f"v_lshrrev_b32 v{t+1}, 3, v{V_L15}")
    k(f"v_lshl_add_u32 v{t}, v{t+1}, 9, v{t}")
    k(f"v_lshl_add_u32 v{PADR}, v{V_SLAB}, 5, v{t}")
    k(f"s_lshl_b32 s{S_TMP}, s{S_H}, 13")
    k(f"s_lshl_b32 s{S_TMP+1}, s{S_WAVE}, 7")
    k(f"s_add_u32 s{S_TMP}, s{S_TMP}, s{S_TMP+1}")
    k(f"s_add_u32 s{S_TMP}, s{S_TMP}, {WS_QP}")
    k(f"v_lshrrev_b32 v{t}, 1, v{V_SLAB}")
    k(f"v_lshlrev_b32 v{t}, 15, v{t}")
    k(f"v_and_b32 v{t+1}, 1, v{V_SLAB}")
    k(f"v_lshl_add_u32 v{t}, v{t+1}, 5, v{t}")
    k(f"v_lshl_add_u32 v{PADR+1}, v{V_L15}, 1, v{t}")
    k(f"s_lshl_b32 s{S_TMP+2}, s{S_H}, 10")
    k(f"s_lshl_b32 s{S_TMP+3}, s{S_J}, 8")
    k(f"s_add_u32 s{S_TMP+2}, s{S_TMP+2}, s{S_TMP+3}")
    k(f"s_lshl_b32 s{S_TMP+3}, s{S_WAVE}, 6")
    k(f"s_add_u32 s{S_TMP+2}, s{S_TMP+2}, s{S_TMP+3}")
    k(f"s_add_u32 s{S_TMP+2}, s{S_TMP+2}, {WS_QA}")
    k(f"v_lshlrev_b32 v{PADR+2}, 2, v{V_LANE}")
    k(f"s_lshl_b32 s{S_TMP+3}, s{S_WAVE}, 10")
    k(f"s_add_u32 s{S_TMP+3}, s{S_TMP+3}, {L_RED}")
    k(f"v_add_u32 v{PADR+3}, s{S_TMP+3}, v{PADR+2}")
    k(f"s_lshl_b32 s{S_TMP+3}, s{S_WAVE}, 8")
    k(f"s_add_u32 s{S_TMP+3}, s{S_TMP+3}, {L_RED}")
    k(f"v_add_u32 v{PADR+2}, s{S_TMP+3}, v{PADR+2}")
    k(f"s_mov_b32 s{S_M+2}, 0x55555555")
    k(f"s_mov_b32 s{S_M+3}, 0x55555555")
    top = k.label("qp")
    done = k.label("qpd")
    spin_begin(k)
    k(f"s_mov_b64 s[{S_M}:{S_M+1}], exec")
    k(f"{top}:")
    k(f"buffer_load_dwordx4 {vr(PG,4)}, v{PADR}, {srd(R_WS)}, s{S_TMP} offen sc1")
    k(f"buffer_load_dwordx4 {vr(PG+4,4)}, v{PADR}, {srd(R_WS)}, s{S_TMP} offen offset:16 sc1")
    k("s_waitcnt vmcnt(0)")
    k(f"v_xor_b32 v{t}, s{S_T0}, v{PG+2}")
    k(f"v_xor_b32 v{t+1}, s{S_T1}, v{PG+3}")
    k(f"v_xor_b32 v{t+2}, s{S_T0}, v{PG+6}")
    k(f"v_xor_b32 v{t+3}, s{S_T1}, v{PG+7}")
    k(f"v_or3_b32 v{t}, v{t}, v{t+1}, v{t+2}")
    k(f"v_or_b32 v{t}, v{t}, v{t+3}")
    k(f"v_cmp_ne_u32 vcc, 0, v{t}")
    k(f"s_and_b64 exec, exec, vcc")
    k(f"s_cbranch_execz {done}")
    spin_retry(k, top)
    k(f"{done}:")
    k(f"s_mov_b64 exec, s[{S_M}:{S_M+1}]")
    k.stamp(4)
    k(f"v_mov_b32 v{PG+2}, v{PG+4}")
    k(f"v_mov_b32 v{PG+3}, v{PG+5}")
    k.nop(2)
    for i in range(8):
        k(f"v_mfma_f32_16x16x32_bf16 {vr(PD+4*i,4)}, {vr(PG,4)}, {vr(VWUK+4*i,4)}, 0")
    k.nop(1)
    for i in range(8):
        if i == 7:
            pass
        k(f"v_add_f32 v{PD+4*i}, v{PD+4*i}, v{PD+4*i+1}")
        k(f"v_add_f32 v{PD+4*i+2}, v{PD+4*i+2}, v{PD+4*i+3}")
        k(f"v_add_f32 v{PD+4*i}, v{PD+4*i}, v{PD+4*i+2}")
    k.nop(2)
    for u in range(4):
        k(f"v_permlane16_swap_b32 v{PD+8*u}, v{PD+8*u+4}")
    k.nop(1)
    for u in range(4):
        k(f"v_add_f32 v{PY+u}, v{PD+8*u}, v{PD+8*u+4}")
    k(f"ds_write2st64_b32 v{PADR+3}, v{PY}, v{PY+1} offset0:0 offset1:1")
    k(f"ds_write2st64_b32 v{PADR+3}, v{PY+2}, v{PY+3} offset0:2 offset1:3")
    k("s_waitcnt lgkmcnt(0)")
    k("s_barrier")
    k(f"ds_read2st64_b32 {vr(t,2)}, v{PADR+2} offset0:0 offset1:4")
    k(f"ds_read2st64_b32 {vr(t+2,2)}, v{PADR+2} offset0:8 offset1:12")
    k("s_waitcnt lgkmcnt(0)")
    k(f"v_add_f32 v{t}, v{t}, v{t+1}")
    k(f"v_add_f32 v{t+2}, v{t+2}, v{t+3}")
    k(f"v_add_f32 v{t}, v{t}, v{t+2}")
    k(f"v_mul_f32 v{t}, 0x3e0293ee, v{t}")
    k.nop(2)
    k(f"v_mov_b32_dpp v{t+1}, v{t} quad_perm:[1,0,3,2] row_mask:0xf bank_mask:0xf")
    k(f"v_cvt_pk_bf16_f32 v{t}, v{t}, v{t+1}")
    k(f"s_mov_b64 exec, s[{S_M+2}:{S_M+3}]")
    k(f"buffer_store_dword v{t}, v{PADR+1}, {srd(R_WS)}, s{S_TMP+2} offen sc1")
    k(f"s_mov_b64 exec, -1")
    k.stamp(5)


def p_weights_issue(k):
    t = PT
    for par in range(2):
        k(f"v_add_u32 v{t}, {4*par}, v{V_SLAB}")
        k(f"v_lshlrev_b32 v{t}, 1, v{t}")
        k(f"v_xor_b32 v{t}, v{t}, v{V_L15}")
        k(f"v_lshlrev_b32 v{t}, 4, v{t}")
        k(f"v_lshl_add_u32 v{PADR+4+par}, v{V_SLAB}, 13, v{t}")
    k(f"s_mul_i32 s{S_TMP}, s{S_J}, {128*8192}")
    k(f"s_lshl_b32 s{S_TMP+1}, s{S_H}, 8")
    k(f"s_add_u32 s{S_TMP}, s{S_TMP}, s{S_TMP+1}")
    k(f"s_lshl_b32 s{S_TMP+1}, s{S_WAVE}, 18")
    k(f"s_add_u32 s{S_TMP}, s{S_TMP}, s{S_TMP+1}")
    k(f"s_lshl_b32 s{S_TMP+1}, s{S_WAVE}, 13")
    k(f"s_add_u32 s{S_TMP+1}, s{S_TMP+1}, {L_WUV}")
    for ii in range(8):
        k(f"s_mov_b32 m0, s{S_TMP+1}")
        k(f"s_add_u32 s{S_TMP+1}, s{S_TMP+1}, 1024")
        k(f"buffer_load_dwordx4 v{PADR+4+(ii&1)}, {srd(R_B)}, s{S_TMP} offen lds")
        k(f"s_add_u32 s{S_TMP}, s{S_TMP}, {4*8192}")
    k(f"s_mul_i32 s{S_TMP}, s{S_H}, {128*1280}")
    k(f"s_mul_i32 s{S_TMP+1}, s{S_J}, 320")
    k(f"s_add_u32 s{S_TMP}, s{S_TMP}, s{S_TMP+1}")
    k(f"s_mul_i32 s{S_TMP+1}, s{S_WAVE}, 640")
    k(f"v_add_u32 v{t}, s{S_TMP+1}, v{V_LANE}")
    k(f"s_mul_i32 s{S_TMP+1}, s{S_WAVE}, 10240")
    k(f"s_add_u32 s{S_TMP+1}, s{S_TMP+1}, {L_WO}")
    k(f"s_movk_i32 s{S_TMP+2}, 3277")
    k(f"s_movk_i32 s{S_TMP+3}, 960")
    for ii in range(10):
        k(f"v_mul_u32_u24 v{t+1}, s{S_TMP+2}, v{t}")
        k(f"v_lshrrev_b32 v{t+1}, 16, v{t+1}")
        k(f"v_mul_u32_u24 v{t+1}, s{S_TMP+3}, v{t+1}")
        k(f"v_lshl_add_u32 v{t+2+(ii&1)}, v{t}, 4, v{t+1}")
        k(f"s_mov_b32 m0, s{S_TMP+1}")
        k(f"s_add_u32 s{S_TMP+1}, s{S_TMP+1}, 1024")
        k(f"buffer_load_dwordx4 v{t+2+(ii&1)}, {srd(R_C)}, s{S_TMP} offen lds")
        k(f"v_add_u32 v{t}, 64, v{t}")


def p_weights_preread(k):
    t = PT
    k(f"v_lshrrev_b32 v{t}, 2, v{V_L15}")
    k(f"v_and_b32 v{t+1}, 3, v{V_L15}")
    k(f"v_lshl_add_u32 v{t+2}, v{V_SLAB}, 2, v{t}")
    k(f"v_and_b32 v{t+3}, 7, v{t+2}")
    k(f"v_lshlrev_b32 v{t+3}, 1, v{t+3}")
    k(f"v_lshrrev_b32 v{t+4}, 1, v{t+1}")
    k(f"v_and_b32 v{t+5}, 1, v{t+1}")
    k(f"s_lshl_b32 s{S_TMP}, s{S_WAVE}, 2")
    for d in range(2):
        k(f"v_add_u32 v{t+6}, s{S_TMP}, v{t+4}")
        if d:
            k(f"v_add_u32 v{t+6}, 2, v{t+6}")
        k(f"v_xor_b32 v{t+6}, v{t+6}, v{t+3}")
        k(f"v_lshlrev_b32 v{t+6}, 4, v{t+6}")
        k(f"v_lshl_add_u32 v{t+6}, v{t+5}, 3, v{t+6}")
        k(f"v_lshl_add_u32 v{PADR+6+d}, v{t+2}, 8, v{t+6}")
    for d in range(2):
        for kk in range(4):
            r = PWV + (d * 4 + kk) * 4
            k(f"ds_read_b64_tr_b16 {vr(r,2)}, v{PADR+6+d} offset:{L_WUV+kk*8192}")
            k(f"ds_read_b64_tr_b16 {vr(r+2,2)}, v{PADR+6+d} offset:{L_WUV+kk*8192+4096}")
    k(f"s_lshl_b32 s{S_TMP}, s{S_WAVE}, 5")
    k(f"v_add_u32 v{t+6}, s{S_TMP}, v{t+2}")
    k(f"v_mul_u32_u24 v{t+6}, 320, v{t+6}")
    k(f"v_lshl_add_u32 v{PADR+8}, v{t+1}, 3, v{t+6}")
    for ct in range(10):
        r = PWO + 4 * ct
        k(f"ds_read_b64_tr_b16 {vr(r,2)}, v{PADR+8} offset:{L_WO+32*ct}")
        k(f"ds_read_b64_tr_b16 {vr(r+2,2)}, v{PADR+8} offset:{L_WO+32*ct+5120}")


def reduce_bits(k, op, v, tmp):
    for mod in ("quad_perm:[1,0,3,2]", "quad_perm:[2,3,0,1]", "row_half_mirror"):
        k.nop(2)
        k(f"{op}_dpp v{v}, v{v}, v{v} {mod} row_mask:0xf bank_mask:0xf")
    for sw in ("v_permlane16_swap_b32", "v_permlane32_swap_b32"):
        k(f"v_mov_b32 v{tmp}, v{v}")
        k.nop(2)
        k(f"{sw} v{v}, v{tmp}")
        k.nop(1)
        k(f"{op} v{v}, v{v}, v{tmp}")


def stage4_setup(k):
    t = PT
    k(f"v_bfe_u32 v{t}, v{V_LANE}, 3, 1")
    k(f"v_bfe_u32 v{t+1}, v{V_LANE}, 2, 1")
    k(f"v_and_b32 v{t+2}, 3, v{V_LANE}")
    k(f"v_lshlrev_b32 v{t+1}, 4, v{t+1}")
    k(f"v_lshl_add_u32 v{t+1}, v{V_SLAB}, 2, v{t+1}")
    k(f"v_add_u32 v{t+1}, v{t+1}, v{t+2}")
    k(f"v_lshl_add_u32 v{t+1}, v{t}, 5, v{t+1}")
    k(f"v_lshlrev_b32 v{PADR+9}, 3, v{t+1}")
    k(f"v_and_b32 v{t+1}, 1, v{V_LANE}")
    k(f"v_cmp_eq_u32 vcc, 1, v{t+1}")
    k(f"v_mov_b32 v{t+2}, 0xffff")
    k(f"v_mov_b32 v{t+3}, 0xffff0000")
    k(f"v_cndmask_b32 v{t+2}, v{t+2}, v{t+3}, vcc")
    k(f"v_bfe_u32 v{t+1}, v{V_LANE}, 1, 2")
    k(f"v_lshl_add_u32 v{t+1}, v{t}, 2, v{t+1}")
    for i in range(8):
        k(f"v_cmp_eq_u32 vcc, {i}, v{t+1}")
        k.nop(2)
        k(f"v_cndmask_b32 v{PM+i}, 0, v{t+2}, vcc")
    k(f"v_lshlrev_b32 v{PADR+10}, 4, v0")
    k(f"v_lshrrev_b32 v{t}, 4, v0")
    k(f"v_and_b32 v{t+1}, 7, v{t}")
    k(f"v_lshlrev_b32 v{t+1}, 1, v{t+1}")
    k(f"v_xor_b32 v{t+1}, v{t+1}, v{V_L15}")
    k(f"v_lshlrev_b32 v{t+1}, 4, v{t+1}")
    k(f"v_lshl_add_u32 v{t+1}, v{t}, 8, v{t+1}")
    k(f"v_add_u32 v{PADR+11}, {L_AOB}, v{t+1}")
    k(f"v_lshrrev_b32 v{t}, 2, v{V_L15}")
    k(f"v_lshl_add_u32 v{t}, v{V_SLAB}, 2, v{t}")
    k(f"v_and_b32 v{t+1}, 7, v{t}")
    k(f"v_lshlrev_b32 v{t+1}, 1, v{t+1}")
    k(f"v_bfe_u32 v{t+2}, v{V_L15}, 1, 1")
    k(f"v_and_b32 v{t+3}, 1, v{V_L15}")
    k(f"s_lshl_b32 s{S_TMP}, s{S_WAVE}, 2")
    for d in range(2):
        k(f"v_add_u32 v{t+4}, s{S_TMP}, v{t+2}")
        if d:
            k(f"v_add_u32 v{t+4}, 2, v{t+4}")
        k(f"v_xor_b32 v{t+4}, v{t+4}, v{t+1}")
        k(f"v_lshlrev_b32 v{t+4}, 4, v{t+4}")
        k(f"v_lshl_add_u32 v{t+4}, v{t+3}, 3, v{t+4}")
        k(f"v_lshl_add_u32 v{t+4}, v{t}, 8, v{t+4}")
        k(f"v_add_u32 v{PADR+12+d}, {L_AOB}, v{t+4}")
    k(f"v_lshrrev_b32 v{t}, 1, v{V_SLAB}")
    k(f"v_and_b32 v{t+1}, 1, v{V_SLAB}")
    k(f"v_lshlrev_b32 v{t}, 7, v{t}")
    k(f"v_lshl_add_u32 v{t}, v{t+1}, 4, v{t}")
    k(f"v_add_u32 v{t}, v{t}, v{V_L15}")
    k(f"s_lshl_b32 s{S_TMP}, s{S_WAVE}, 5")
    k(f"v_add_u32 v{t}, s{S_TMP}, v{t}")
    k(f"v_lshlrev_b32 v{t}, 1, v{t}")
    k(f"v_add_u32 v{PADR+14}, {L_CTX}, v{t}")
    k(f"v_and_b32 v{t}, 1, v{V_LANE}")
    k(f"v_lshlrev_b32 v{t}, 8, v{t}")
    k(f"v_lshl_add_u32 v{t}, v{V_SLAB}, 4, v{t}")
    k(f"v_add_u32 v{PADR+15}, {L_CTX}, v{t}")


def stage4(k):
    t = PT
    G = PG
    ST = 26
    k(f"s_lshl_b32 s{S_TMP}, s{S_H}, 9")
    k(f"s_add_u32 s{S_TMP}, s{S_TMP}, {WS_ST}")
    k(f"s_lshl_b32 s{S_TMP+1}, s{S_H}, 2")
    k(f"s_add_u32 s{S_TMP+1}, s{S_TMP+1}, s{S_J}")
    k(f"s_lshl_b32 s{S_TMP+2}, s{S_TMP+1}, 14")
    k(f"s_add_u32 s{S_TMP+2}, s{S_TMP+2}, {WS_AO}")
    for n in range(1, 4):
        k(f"s_add_u32 s{S_TMP+2+n}, s{S_TMP+2}, {4096*n}")
    loads = [f"buffer_load_dwordx2 {vr(ST,2)}, v{PADR+9}, {srd(R_WS)}, s{S_TMP} offen sc1"]
    for n in range(4):
        loads.append(f"buffer_load_dwordx4 {vr(G+4*n,4)}, v{PADR+10}, {srd(R_WS)}, s{S_TMP+2+n} offen sc1")
    gather_check_loop(k, "ao", loads, [ST, ST + 1] + list(range(G, G + 16)), 7)
    for n in range(4):
        k(f"ds_write_b128 v{PADR+11}, {vr(G+4*n,4)} offset:{4096*n}")
    M = t + 8
    k(f"v_mov_b32 v{M}, v{ST}")
    reduce_bits(k, "v_max_f32", M, t + 9)
    k(f"v_sub_f32 v{t}, v{ST}, v{M}")
    k(f"v_exp_f32 v{t}, v{t}")
    k.nop(1)
    k(f"v_cvt_pk_bf16_f32 v{t}, v{t}, v{t}")
    for i in range(8):
        k(f"v_and_b32 v{PA+i}, v{t}, v{PM+i}")
    k(f"v_and_b32 v{t+1}, 0xffff0000, v{t}")
    k(f"v_mul_f32 v{t+1}, v{t+1}, v{ST+1}")
    k("s_waitcnt lgkmcnt(0)")
    k("s_barrier")
    B = PD + 8
    for d in range(2):
        for bb in range(2):
            r = B + (d * 2 + bb) * 4
            k(f"ds_read_b64_tr_b16 {vr(r,2)}, v{PADR+12+d} offset:{bb*8192}")
            k(f"ds_read_b64_tr_b16 {vr(r+2,2)}, v{PADR+12+d} offset:{bb*8192+4096}")
    reduce_bits(k, "v_add_f32", t + 1, t + 9)
    k(f"v_rcp_f32 v{t+1}, v{t+1}")
    k.nop(1)
    k(f"v_readlane_b32 s{S_TMP}, v{t+1}, 0")
    k(f"v_readlane_b32 s{S_TMP+1}, v{t+1}, 8")
    for d in range(2):
        k(f"s_waitcnt lgkmcnt({4-4*d})")
        k(f"v_mfma_f32_16x16x32_bf16 {vr(PD+4*d,4)}, {vr(PA,4)}, {vr(B+(d*2)*4,4)}, 0")
        k(f"v_mfma_f32_16x16x32_bf16 {vr(PD+4*d,4)}, {vr(PA+4,4)}, {vr(B+(d*2+1)*4,4)}, {vr(PD+4*d,4)}")
    k(f"v_mov_b32 v{t+2}, s{S_TMP}")
    k(f"v_mov_b32 v{t+3}, s{S_TMP+1}")
    k(f"v_cmp_le_u32 vcc, 32, v{V_LANE}")
    k.nop(2)
    k(f"v_cndmask_b32 v{t+2}, v{t+2}, v{t+3}, vcc")
    k.nop(4)
    for d in range(2):
        k(f"v_add_f32 v{PD+4*d}, v{PD+4*d}, v{PD+4*d+1}")
        k(f"v_add_f32 v{PD+4*d+2}, v{PD+4*d+2}, v{PD+4*d+3}")
    for d in range(2):
        k(f"v_add_f32 v{PD+4*d}, v{PD+4*d}, v{PD+4*d+2}")
    k.nop(2)
    k(f"v_permlane16_swap_b32 v{PD}, v{PD+4}")
    k.nop(1)
    k(f"v_add_f32 v{PD}, v{PD}, v{PD+4}")
    k(f"v_mul_f32 v{PD}, v{PD}, v{t+2}")
    k(f"v_cvt_pk_bf16_f32 v{PD}, v{PD}, v{PD}")
    k(f"ds_write_b16 v{PADR+14}, v{PD}")
    k("s_waitcnt lgkmcnt(0)")
    k("s_barrier")
    for kk in range(4):
        k(f"ds_read_b128 {vr(PA+4*kk,4)}, v{PADR+15} offset:{64*kk}")
    k(f"v_lshrrev_b32 v{t}, 2, v{V_L15}")
    k(f"v_lshlrev_b32 v{t}, 3, v{t}")
    k(f"v_and_b32 v{t+1}, 1, v{V_SLAB}")
    k(f"v_lshl_add_u32 v{t}, v{t+1}, 2, v{t}")
    k(f"v_and_b32 v{t+1}, 2, v{V_L15}")
    k(f"v_add_u32 v{t}, v{t}, v{t+1}")
    k(f"v_lshrrev_b32 v{t+1}, 1, v{V_SLAB}")
    k(f"v_lshl_add_u32 v{t}, v{t+1}, 7, v{t}")
    k(f"v_lshlrev_b32 v{t}, 1, v{t}")
    k(f"s_lshl_b32 s{S_TMP}, s{S_H}, 2")
    k(f"s_add_u32 s{S_TMP}, s{S_TMP}, s{S_J}")
    k(f"s_lshl_b32 s{S_TMP}, s{S_TMP}, 9")
    k(f"s_lshl_b32 s{S_TMP+1}, s{S_WAVE}, 6")
    k(f"s_add_u32 s{S_TMP}, s{S_TMP}, s{S_TMP+1}")
    k(f"s_add_u32 s{S_TMP}, s{S_TMP}, {WS_CP}")
    k(f"s_mov_b32 s{S_M+2}, 0xffff0000")
    k(f"s_mov_b32 s{S_M+3}, 0xffff0000")
    k(f"s_mov_b32 s{S_M+4}, 0")
    k(f"s_mov_b32 s{S_M+5}, -1")
    k(f"s_mov_b32 s{S_M+6}, 0x55555555")
    k(f"s_mov_b32 s{S_M+7}, 0x55555555")
    for kk in range(4):
        k(f"s_waitcnt lgkmcnt({3-kk})")
        for d in range(2):
            c = "0" if kk == 0 else vr(PD + 4 * d, 4)
            k(f"v_mfma_f32_16x16x32_bf16 {vr(PD+4*d,4)}, {vr(PA+4*kk,4)}, {vr(PWV+(d*4+kk)*4,4)}, {c}")
    k.nop(8)
    k(f"v_cndmask_b32 v{t+2}, v{PD}, v{PD+4}, s[{S_M+2}:{S_M+3}]")
    k(f"v_cndmask_b32 v{t+3}, v{PD+1}, v{PD+5}, s[{S_M+2}:{S_M+3}]")
    k(f"v_cndmask_b32 v{t+2}, v{t+2}, v{t+3}, s[{S_M+4}:{S_M+5}]")
    k.nop(2)
    k(f"v_mov_b32_dpp v{t+3}, v{t+2} quad_perm:[1,0,3,2] row_mask:0xf bank_mask:0xf")
    k(f"v_cvt_pk_bf16_f32 v{t+2}, v{t+2}, v{t+3}")
    k(f"s_mov_b64 exec, s[{S_M+6}:{S_M+7}]")
    k(f"buffer_store_dword v{t+2}, v{t}, {srd(R_WS)}, s{S_TMP} offen sc1")
    k(f"s_mov_b64 exec, -1")
    k.stamp(8)


def stage5(k):
    t = PT
    k(f"v_and_b32 v{t}, 3, v{V_L15}")
    k(f"v_lshlrev_b32 v{t}, 9, v{t}")
    k(f"v_bfe_u32 v{t+1}, v{V_L15}, 2, 1")
    k(f"v_lshl_add_u32 v{t}, v{t+1}, 8, v{t}")
    k(f"v_lshl_add_u32 v{PADR}, v{V_SLAB}, 4, v{t}")
    k(f"s_lshl_b32 s{S_TMP}, s{S_H}, 11")
    k(f"s_lshl_b32 s{S_TMP+1}, s{S_WAVE}, 6")
    k(f"s_add_u32 s{S_TMP}, s{S_TMP}, s{S_TMP+1}")
    k(f"s_add_u32 s{S_TMP}, s{S_TMP}, {WS_CP}")
    k(f"v_lshrrev_b32 v{t}, 1, v{V_SLAB}")
    k(f"v_lshlrev_b32 v{t}, 4, v{t}")
    k(f"v_add_u32 v{t}, v{t}, v{V_L15}")
    k(f"v_lshlrev_b32 v{t}, 3, v{t}")
    k(f"v_and_b32 v{t+1}, 1, v{V_SLAB}")
    k(f"v_lshl_add_u32 v{PADR+1}, v{t+1}, 2, v{t}")
    k(f"s_mul_i32 s{S_TMP+1}, s{S_H}, 5120")
    k(f"s_mul_i32 s{S_TMP+2}, s{S_J}, 1280")
    k(f"s_add_u32 s{S_TMP+1}, s{S_TMP+1}, s{S_TMP+2}")
    k(f"s_add_u32 s{S_TMP+1}, s{S_TMP+1}, {WS_SP}")
    k(f"s_lshl_b32 s{S_TMP+2}, s{S_WAVE}, 8")
    k(f"s_add_u32 s{S_TMP+2}, s{S_TMP+2}, s{S_TMP+1}")
    k(f"s_add_u32 s{S_TMP+1}, s{S_TMP+1}, 1024")
    k(f"v_lshlrev_b32 v{t}, 2, v{V_LANE}")
    k(f"s_mul_i32 s{S_TMP+3}, s{S_WAVE}, 1280")
    k(f"s_add_u32 s{S_TMP+3}, s{S_TMP+3}, {L_RED}")
    k(f"v_add_u32 v{PADR+3}, s{S_TMP+3}, v{t}")
    k(f"s_lshl_b32 s{S_TMP+3}, s{S_WAVE}, 8")
    k(f"s_add_u32 s{S_TMP+3}, s{S_TMP+3}, {L_RED}")
    k(f"v_add_u32 v{PADR+2}, s{S_TMP+3}, v{t}")
    k(f"v_add_u32 v{PADR+4}, {L_RED+1024}, v{t}")
    k(f"s_mov_b32 s{S_M+4}, 0")
    k(f"s_mov_b32 s{S_M+5}, -1")
    loads = [f"buffer_load_dwordx4 {vr(PG,4)}, v{PADR}, {srd(R_WS)}, s{S_TMP} offen sc1"]
    gather_check_loop(k, "cp", loads, [PG, PG + 1, PG + 2, PG + 3], 9)
    for ct in range(10):
        k(f"v_mfma_f32_16x16x32_bf16 {vr(PD+4*ct,4)}, {vr(PG,4)}, {vr(PWO+4*ct,4)}, 0")
    for ct in range(10):
        k(f"v_add_f32 v{PD+4*ct}, v{PD+4*ct}, v{PD+4*ct+1}")
        k(f"v_add_f32 v{PD+4*ct+2}, v{PD+4*ct+2}, v{PD+4*ct+3}")
        k(f"v_add_f32 v{PD+4*ct}, v{PD+4*ct}, v{PD+4*ct+2}")
    for u in range(5):
        k(f"v_cndmask_b32 v{PY+u}, v{PD+8*u}, v{PD+8*u+4}, s[{S_M+4}:{S_M+5}]")
    k(f"ds_write2st64_b32 v{PADR+3}, v{PY}, v{PY+1} offset0:0 offset1:1")
    k(f"ds_write2st64_b32 v{PADR+3}, v{PY+2}, v{PY+3} offset0:2 offset1:3")
    k(f"ds_write_b32 v{PADR+3}, v{PY+4} offset:1024")
    k("s_waitcnt lgkmcnt(0)")
    k("s_barrier")
    k(f"ds_read2st64_b32 {vr(t,2)}, v{PADR+2} offset0:0 offset1:5")
    k(f"ds_read2st64_b32 {vr(t+2,2)}, v{PADR+2} offset0:10 offset1:15")
    k(f"ds_read2st64_b32 {vr(t+4,2)}, v{PADR+4} offset0:0 offset1:5")
    k(f"ds_read2st64_b32 {vr(t+6,2)}, v{PADR+4} offset0:10 offset1:15")
    k("s_waitcnt lgkmcnt(2)")
    k(f"v_add_f32 v{t}, v{t}, v{t+1}")
    k(f"v_add_f32 v{t+2}, v{t+2}, v{t+3}")
    k(f"v_add_f32 v{t}, v{t}, v{t+2}")
    k(f"buffer_store_dword v{t}, v{PADR+1}, {srd(R_WS)}, s{S_TMP+2} offen sc1")
    skip = k.label("s5skip")
    k(f"s_cmp_eq_u32 s{S_WAVE}, 0")
    k(f"s_cbranch_scc0 {skip}")
    k("s_waitcnt lgkmcnt(0)")
    k(f"v_add_f32 v{t+4}, v{t+4}, v{t+5}")
    k(f"v_add_f32 v{t+6}, v{t+6}, v{t+7}")
    k(f"v_add_f32 v{t+4}, v{t+4}, v{t+6}")
    k(f"buffer_store_dword v{t+4}, v{PADR+1}, {srd(R_WS)}, s{S_TMP+1} offen sc1")
    k(f"{skip}:")
    k.stamp(9)


S_U = 73 + 7
BQ = 10
BG = 74
BD = 90
BS = 122
BP = 130
BL = 146
BADR = 150
BT = 166
BONE = 186
S_B, S_G, S_UU = 66, 67, 68


def b_roles(k):
    k(f"s_sub_u32 s{S_TMP}, s{S_J}, 4")
    k(f"s_and_b32 s{S_G}, s{S_TMP}, 1")
    k(f"s_lshr_b32 s{S_B}, s{S_TMP}, 1")
    k(f"s_lshl_b32 s{S_UU}, s{S_TMP}, 5")
    k(f"s_add_u32 s{S_UU}, s{S_UU}, s{S_H}")


def clears_B(k):
    t = V_T + 4
    k(f"s_mul_i32 s{S_TMP}, s{S_UU}, 5120")
    k(f"s_add_u32 s{S_TMP}, s{S_TMP}, {WS_FP}")
    k(f"s_cmp_lt_u32 s{S_UU}, {NF}")
    k(f"s_cselect_b32 s{S_TMP}, s{S_TMP}, 0x7f000000")
    k(f"v_lshlrev_b32 v{t}, 4, v{V_LANE}")
    for i in range(5):
        off = i * 1024
        if i == 4:
            k(f"s_add_u32 s{S_TMP}, s{S_TMP}, 4096")
            off = 0
        k(f"buffer_store_dwordx4 {vr(V_NEG1,4)}, v{t}, {srd(R_WS)}, s{S_TMP} offen offset:{off} sc1")
    return 5


def ckv_issue(k):
    t = V_T + 4
    k(f"s_lshl_b32 s{S_TMP}, s{S_B}, 12")
    k(f"s_lshl_b32 s{S_TMP+1}, s{S_H}, 7")
    k(f"s_add_u32 s{S_TMP}, s{S_TMP}, s{S_TMP+1}")
    k(f"s_lshl_b32 s{S_TMP+1}, s{S_WAVE}, 5")
    k(f"s_add_u32 s{S_TMP}, s{S_TMP}, s{S_TMP+1}")
    k(f"s_lshl_b32 s{S_TMP}, s{S_TMP}, 10")
    k(f"s_mul_i32 s{S_TMP+1}, s{S_WAVE}, {32*RS}")
    k(f"s_add_u32 s{S_TMP+1}, s{S_TMP+1}, {L_CKV}")
    k(f"v_lshlrev_b32 v{t}, 4, v{V_LANE}")
    for r in range(32):
        k(f"s_mov_b32 m0, s{S_TMP+1}")
        k(f"s_add_u32 s{S_TMP+1}, s{S_TMP+1}, {RS}")
        k(f"buffer_load_dwordx4 v{t}, {srd(R_A)}, s{S_TMP} offen lds")
        k(f"s_add_u32 s{S_TMP}, s{S_TMP}, 1024")


def flags_poll(k):
    t = BT
    k(f"s_lshl_b32 s{S_TMP}, s{S_WAVE}, 16")
    k(f"s_add_u32 s{S_TMP}, s{S_TMP}, {WS_QP}")
    k(f"v_lshlrev_b32 v{BADR}, 10, v{V_LANE}")
    top = k.label("fl")
    done = k.label("fld")
    spin_begin(k)
    k(f"s_mov_b64 s[{S_M}:{S_M+1}], exec")
    k(f"{top}:")
    k(f"buffer_load_dwordx4 {vr(BG,4)}, v{BADR}, {srd(R_WS)}, s{S_TMP} offen sc1")
    k("s_waitcnt vmcnt(0)")
    k(f"v_xor_b32 v{t}, s{S_T0}, v{BG+2}")
    k(f"v_xor_b32 v{t+1}, s{S_T1}, v{BG+3}")
    k(f"v_or_b32 v{t}, v{t}, v{t+1}")
    k(f"v_cmp_ne_u32 vcc, 0, v{t}")
    k(f"s_and_b64 exec, exec, vcc")
    k(f"s_cbranch_execz {done}")
    spin_retry(k, top)
    k(f"{done}:")
    k(f"s_mov_b64 exec, s[{S_M}:{S_M+1}]")


def attention(k):
    t = BT
    k(f"s_lshl_b32 s{S_TMP}, s{S_WAVE}, 5")
    k(f"v_add_u32 v{t}, s{S_TMP}, v{V_L15}")
    k(f"v_mul_u32_u24 v{t}, {RS}, v{t}")
    k(f"v_lshl_add_u32 v{t}, v{V_SLAB}, 8, v{t}")
    k(f"v_and_b32 v{t+1}, 1, v{V_SLAB}")
    k(f"v_lshlrev_b32 v{t+1}, 4, v{t+1}")
    k(f"v_add_u32 v{BADR}, v{t}, v{t+1}")
    k(f"v_sub_u32 v{BADR+1}, v{t}, v{t+1}")
    k(f"v_mul_u32_u24 v{t}, {RS}, v{V_L15}")
    k(f"v_lshl_add_u32 v{t}, v{V_SLAB}, 8, v{t}")
    k(f"v_add_u32 v{t}, {L_QB}, v{t}")
    k(f"v_add_u32 v{BADR+2}, v{t}, v{t+1}")
    k(f"v_sub_u32 v{BADR+3}, v{t}, v{t+1}")
    k(f"v_lshrrev_b32 v{t}, 2, v{V_L15}")
    k(f"v_lshl_add_u32 v{t}, v{V_SLAB}, 2, v{t}")
    k(f"v_mul_u32_u24 v{t}, {RS}, v{t}")
    k(f"v_and_b32 v{t+1}, 3, v{V_L15}")
    k(f"v_lshl_add_u32 v{t}, v{t+1}, 3, v{t}")
    k(f"s_lshl_b32 s{S_TMP}, s{S_WAVE}, 8")
    k(f"v_add_u32 v{BADR+4}, s{S_TMP}, v{t}")
    k(f"v_add_u32 v{BADR+5}, {64*RS}, v{BADR+4}")
    k(f"v_lshlrev_b32 v{BADR+6}, 4, v0")
    k(f"s_mul_i32 s{S_TMP}, s{S_WAVE}, {RS}")
    k(f"s_add_u32 s{S_TMP}, s{S_TMP}, {L_QB}")
    k(f"v_lshlrev_b32 v{t}, 4, v{V_LANE}")
    k(f"v_add_u32 v{BADR+7}, s{S_TMP}, v{t}")
    k(f"v_lshlrev_b32 v{t+1}, 2, v{V_LANE}")
    k(f"s_lshl_b32 s{S_TMP}, s{S_WAVE}, 8")
    k(f"s_add_u32 s{S_TMP}, s{S_TMP}, {L_MX}")
    k(f"v_add_u32 v{BADR+8}, s{S_TMP}, v{t+1}")
    k(f"v_add_u32 v{BADR+9}, {L_MX}, v{t+1}")
    k(f"s_lshl_b32 s{S_TMP}, s{S_WAVE}, 10")
    k(f"s_add_u32 s{S_TMP}, s{S_TMP}, {L_PB}")
    k(f"v_add_u32 v{BADR+10}, s{S_TMP}, v{t}")
    k(f"v_add_u32 v{BADR+11}, {L_PB}, v{t}")
    k(f"v_lshlrev_b32 v{t}, 16, v{V_L15}")
    k(f"v_lshl_add_u32 v{BADR+12}, v{V_SLAB}, 4, v{t}")
    k(f"v_lshlrev_b32 v{BADR+13}, 9, v{V_L15}")
    for i in range(4):
        k(f"v_mov_b32 v{BONE+i}, 0x3f803f80")
    for p in range(2):
        for i in range(16):
            k(f"ds_read_b128 {ar((p*16+i)*4,4)}, v{BADR+(i&1)} offset:{L_CKV+p*16*RS+i*16}")
    k("s_barrier")
    k.stamp(4)
    k(f"s_lshl_b32 s{S_TMP}, s{S_B}, 15")
    k(f"s_lshl_b32 s{S_TMP+1}, s{S_G}, 14")
    k(f"s_add_u32 s{S_TMP}, s{S_TMP}, s{S_TMP+1}")
    k(f"s_add_u32 s{S_TMP}, s{S_TMP}, {WS_QA}")
    for n in range(1, 4):
        k(f"s_add_u32 s{S_TMP+n}, s{S_TMP}, {4096*n}")
    for tt in range(8):
        for u in range(4):
            r = 128 + (tt * 4 + u) * 4
            base = BADR + 4 + (u >> 1)
            off = (u & 1) * 32 * RS + 32 * tt
            k(f"ds_read_b64_tr_b16 {ar(r,2)}, v{base} offset:{L_CKV+off}")
            k(f"ds_read_b64_tr_b16 {ar(r+2,2)}, v{base} offset:{L_CKV+off+16*RS}")
    loads = [f"buffer_load_dwordx4 {vr(BG+4*n,4)}, v{BADR+6}, {srd(R_WS)}, s{S_TMP+n} offen sc1" for n in range(4)]
    gather_check_loop(k, "qa", loads, list(range(BG, BG + 16)), 5)
    for n in range(4):
        k(f"ds_write_b128 v{BADR+7}, {vr(BG+4*n,4)} offset:{4*n*RS}")
    k("s_waitcnt lgkmcnt(0)")
    k("s_barrier")
    for i in range(16):
        k(f"ds_read_b128 {vr(BQ+4*i,4)}, v{BADR+2+(i&1)} offset:{i*16}")
    for i in range(16):
        k(f"s_waitcnt lgkmcnt({15-i})")
        for p in range(2):
            c = "0" if i == 0 else vr(BS + 4 * p, 4)
            k(f"v_mfma_f32_16x16x32_bf16 {vr(BS+4*p,4)}, {ar((p*16+i)*4,4)}, {vr(BQ+4*i,4)}, {c}")
    k.nop(8)
    k(f"v_max3_f32 v{t}, v{BS}, v{BS+1}, v{BS+2}")
    k(f"v_max3_f32 v{t+1}, v{BS+3}, v{BS+4}, v{BS+5}")
    k(f"v_max3_f32 v{t}, v{t}, v{BS+6}, v{BS+7}")
    k(f"v_max_f32 v{t}, v{t}, v{t+1}")
    for sw in ("v_permlane16_swap_b32", "v_permlane32_swap_b32"):
        k(f"v_mov_b32 v{t+1}, v{t}")
        k.nop(2)
        k(f"{sw} v{t}, v{t+1}")
        k.nop(1)
        k(f"v_max_f32 v{t}, v{t}, v{t+1}")
    k(f"ds_write_b32 v{BADR+8}, v{t}")
    k("s_waitcnt lgkmcnt(0)")
    k("s_barrier")
    k(f"ds_read2st64_b32 {vr(t,2)}, v{BADR+9} offset0:0 offset1:1")
    k(f"ds_read2st64_b32 {vr(t+2,2)}, v{BADR+9} offset0:2 offset1:3")
    k("s_waitcnt lgkmcnt(0)")
    k(f"v_max3_f32 v{t}, v{t}, v{t+1}, v{t+2}")
    k(f"v_max_f32 v{t+4}, v{t}, v{t+3}")
    for i in range(8):
        k(f"v_sub_f32 v{BS+i}, v{BS+i}, v{t+4}")
    for i in range(8):
        k(f"v_exp_f32 v{BS+i}, v{BS+i}")
    k.nop(1)
    for i in range(4):
        k(f"v_cvt_pk_bf16_f32 v{t+i}, v{BS+2*i}, v{BS+2*i+1}")
    k(f"ds_write_b128 v{BADR+10}, {vr(t,4)}")
    k("s_waitcnt lgkmcnt(0)")
    k("s_barrier")
    for u in range(4):
        k(f"ds_read_b128 {vr(BP+4*u,4)}, v{BADR+11} offset:{1024*u}")
    k(f"s_lshl_b32 s{S_TMP}, s{S_G}, 20")
    k(f"s_lshl_b32 s{S_TMP+1}, s{S_WAVE}, 14")
    k(f"s_add_u32 s{S_TMP}, s{S_TMP}, s{S_TMP+1}")
    k(f"s_lshl_b32 s{S_TMP+1}, s{S_B}, 5")
    k(f"s_add_u32 s{S_TMP+1}, s{S_TMP+1}, s{S_H}")
    k(f"s_lshl_b32 s{S_TMP+2}, s{S_TMP+1}, 8")
    k(f"s_add_u32 s{S_TMP}, s{S_TMP}, s{S_TMP+2}")
    k(f"s_add_u32 s{S_TMP}, s{S_TMP}, {WS_AO}")
    k(f"s_lshl_b32 s{S_TMP+1}, s{S_TMP+1}, 3")
    k(f"s_lshl_b32 s{S_TMP+2}, s{S_G}, 13")
    k(f"s_add_u32 s{S_TMP+1}, s{S_TMP+1}, s{S_TMP+2}")
    k(f"s_add_u32 s{S_TMP+1}, s{S_TMP+1}, {WS_ST}")
    for u in range(4):
        k(f"s_waitcnt lgkmcnt({3-u})")
        c = "0" if u == 0 else vr(BL, 4)
        k(f"v_mfma_f32_16x16x32_bf16 {vr(BL,4)}, {vr(BONE,4)}, {vr(BP+4*u,4)}, {c}")
        for tt in range(8):
            c = "0" if u == 0 else vr(BD + 4 * tt, 4)
            k(f"v_mfma_f32_16x16x32_bf16 {vr(BD+4*tt,4)}, {ar(128+(tt*4+u)*4,4)}, {vr(BP+4*u,4)}, {c}")
    k.nop(1)
    k(f"v_mov_b32 v{t+5}, v{BL}")
    for up in range(4):
        r = BQ + 4 * up
        k(f"v_cvt_pk_bf16_f32 v{r}, v{BD+8*up}, v{BD+8*up+1}")
        k(f"v_cvt_pk_bf16_f32 v{r+1}, v{BD+8*up+2}, v{BD+8*up+3}")
        k(f"v_cvt_pk_bf16_f32 v{r+2}, v{BD+8*up+4}, v{BD+8*up+5}")
        k(f"v_cvt_pk_bf16_f32 v{r+3}, v{BD+8*up+6}, v{BD+8*up+7}")
        k(f"buffer_store_dwordx4 {vr(r,4)}, v{BADR+12}, {srd(R_WS)}, s{S_TMP} offen offset:{64*up} sc1")
    skip = k.label("stskip")
    k(f"s_cmp_eq_u32 s{S_WAVE}, 0")
    k(f"s_cbranch_scc0 {skip}")
    k(f"s_mov_b64 exec, 0xffff")
    k(f"buffer_store_dwordx2 {vr(t+4,2)}, v{BADR+13}, {srd(R_WS)}, s{S_TMP+1} offen sc1")
    k(f"s_mov_b64 exec, -1")
    k(f"{skip}:")
    k.stamp(6)


def silu(k, v, t):
    k(f"v_mul_f32 v{t}, 0xbfb8aa3b, v{v}")
    k(f"v_exp_f32 v{t}, v{t}")
    k.nop(1)
    k(f"v_add_f32 v{t}, 1.0, v{t}")
    k(f"v_rcp_f32 v{t}, v{t}")
    k.nop(1)
    k(f"v_mul_f32 v{v}, v{v}, v{t}")


def round_bf16(k, v):
    k(f"v_cvt_pk_bf16_f32 v{v}, v{v}, v{v}")
    k(f"v_and_b32 v{v}, 0xffff0000, v{v}")


FW1 = 10
FW2 = 50
FX = 90
FD = 110
FH = 150
FADR = 154
FT = 166


def ffn(k):
    t = FT
    k("s_barrier")
    k(f"v_lshrrev_b32 v{t}, 2, v{V_LANE}")
    k(f"v_mul_u32_u24 v{t}, 3456, v{t}")
    k(f"v_and_b32 v{t+1}, 3, v{V_LANE}")
    k(f"v_lshl_add_u32 v{t}, v{t+1}, 4, v{t}")
    k(f"s_mul_i32 s{S_TMP}, s{S_WAVE}, {160*3456}")
    k(f"s_lshl_b32 s{S_TMP+1}, s{S_UU}, 6")
    k(f"s_add_u32 s{S_TMP}, s{S_TMP}, s{S_TMP+1}")
    k(f"s_mul_i32 s{S_TMP+1}, s{S_WAVE}, 10240")
    k(f"s_add_u32 s{S_TMP+1}, s{S_TMP+1}, {L_W1}")
    for i in range(10):
        k(f"s_mov_b32 m0, s{S_TMP+1}")
        k(f"s_add_u32 s{S_TMP+1}, s{S_TMP+1}, 1024")
        k(f"buffer_load_dwordx4 v{t}, {srd(R_B)}, s{S_TMP} offen lds")
        k(f"s_add_u32 s{S_TMP}, s{S_TMP}, {16*3456}")
    k(f"v_lshlrev_b32 v{t+1}, 4, v{V_LANE}")
    k(f"s_mul_i32 s{S_TMP}, s{S_UU}, 40960")
    k(f"s_mul_i32 s{S_TMP+1}, s{S_WAVE}, 10240")
    k(f"s_add_u32 s{S_TMP}, s{S_TMP}, s{S_TMP+1}")
    k(f"s_add_u32 s{S_TMP+1}, s{S_TMP+1}, {L_W2}")
    for i in range(10):
        k(f"s_mov_b32 m0, s{S_TMP+1}")
        k(f"s_add_u32 s{S_TMP+1}, s{S_TMP+1}, 1024")
        k(f"buffer_load_dwordx4 v{t+1}, {srd(R_C)}, s{S_TMP} offen lds")
        k(f"s_add_u32 s{S_TMP}, s{S_TMP}, 1024")
    k(f"v_and_b32 v{t}, 1, v{V_LANE}")
    k(f"v_mul_u32_u24 v{t}, 1280, v{t}")
    k(f"v_lshl_add_u32 v{t}, v{V_SLAB}, 3, v{t}")
    k(f"s_mul_i32 s{S_TMP}, s{S_WAVE}, 320")
    k(f"s_add_u32 s{S_TMP}, s{S_TMP}, {L_XN}")
    k(f"v_add_u32 v{FADR}, s{S_TMP}, v{t}")
    for i in range(5):
        k(f"ds_read_b64 {vr(FX+4*i,2)}, v{FADR} offset:{64*i}")
        k(f"ds_read_b64 {vr(FX+4*i+2,2)}, v{FADR} offset:{64*i+32}")
    k(f"v_lshrrev_b32 v{t}, 2, v{V_L15}")
    k(f"v_lshl_add_u32 v{t}, v{V_SLAB}, 2, v{t}")
    k(f"v_and_b32 v{t+1}, 3, v{V_L15}")
    k(f"v_lshlrev_b32 v{t+2}, 6, v{t}")
    k(f"v_lshl_add_u32 v{t+2}, v{t+1}, 3, v{t+2}")
    k(f"s_mul_i32 s{S_TMP}, s{S_WAVE}, 10240")
    k(f"s_add_u32 s{S_TMP}, s{S_TMP}, {L_W1}")
    k(f"v_add_u32 v{FADR+1}, s{S_TMP}, v{t+2}")
    k(f"v_mul_u32_u24 v{t+2}, 1280, v{t}")
    k(f"v_lshl_add_u32 v{t+2}, v{t+1}, 3, v{t+2}")
    k(f"s_mul_i32 s{S_TMP}, s{S_WAVE}, 320")
    k(f"s_add_u32 s{S_TMP}, s{S_TMP}, {L_W2}")
    k(f"v_add_u32 v{FADR+2}, s{S_TMP}, v{t+2}")
    k(f"v_lshlrev_b32 v{t+2}, 2, v{V_LANE}")
    k(f"s_lshl_b32 s{S_TMP}, s{S_WAVE}, 8")
    k(f"s_add_u32 s{S_TMP}, s{S_TMP}, {L_FRED}")
    k(f"v_add_u32 v{FADR+3}, s{S_TMP}, v{t+2}")
    k(f"v_add_u32 v{FADR+4}, {L_FRED}, v{t+2}")
    k(f"v_lshrrev_b32 v{t+2}, 2, v{V_L15}")
    k(f"v_lshlrev_b32 v{t+2}, 3, v{t+2}")
    k(f"v_lshrrev_b32 v{t+3}, 1, v{V_SLAB}")
    k(f"v_lshl_add_u32 v{t+2}, v{t+3}, 2, v{t+2}")
    k(f"v_add_u32 v{t+2}, v{t+2}, v{t+1}")
    k(f"v_and_b32 v{t+3}, 1, v{V_SLAB}")
    k(f"v_lshl_add_u32 v{t+2}, v{t+3}, 5, v{t+2}")
    k(f"v_lshlrev_b32 v{t+2}, 1, v{t+2}")
    k(f"s_lshl_b32 s{S_TMP}, s{S_WAVE}, 7")
    k(f"s_add_u32 s{S_TMP}, s{S_TMP}, {L_HB}")
    k(f"v_add_u32 v{FADR+5}, s{S_TMP}, v{t+2}")
    k(f"v_and_b32 v{t+2}, 1, v{V_LANE}")
    k(f"v_lshlrev_b32 v{t+2}, 6, v{t+2}")
    k(f"v_lshl_add_u32 v{t+2}, v{V_SLAB}, 4, v{t+2}")
    k(f"v_add_u32 v{FADR+6}, s{S_TMP}, v{t+2}")
    k(f"v_lshlrev_b32 v{FADR+7}, 3, v{V_LANE}")
    k(f"s_mul_i32 s{S_TMP+2}, s{S_UU}, 5120")
    k(f"s_mul_i32 s{S_TMP+3}, s{S_WAVE}, 1280")
    k(f"s_add_u32 s{S_TMP+2}, s{S_TMP+2}, s{S_TMP+3}")
    k(f"s_add_u32 s{S_TMP+2}, s{S_TMP+2}, {WS_FP}")
    k(f"s_mov_b32 s{S_M+2}, 0xffff0000")
    k(f"s_mov_b32 s{S_M+3}, 0xffff0000")
    k(f"s_mov_b32 s{S_M+4}, 0")
    k(f"s_mov_b32 s{S_M+5}, -1")
    k("s_waitcnt vmcnt(10)")
    for i in range(5):
        for ct in range(2):
            r = FW1 + (i * 2 + ct) * 4
            k(f"ds_read_b64_tr_b16 {vr(r,2)}, v{FADR+1} offset:{i*2048+32*ct}")
            k(f"ds_read_b64_tr_b16 {vr(r+2,2)}, v{FADR+1} offset:{i*2048+32*ct+1024}")
    k("s_waitcnt lgkmcnt(0)")
    for i in range(5):
        for ct in range(2):
            c = "0" if i == 0 else vr(FD + 4 * ct, 4)
            k(f"v_mfma_f32_16x16x32_bf16 {vr(FD+4*ct,4)}, {vr(FX+4*i,4)}, {vr(FW1+(i*2+ct)*4,4)}, {c}")
    k.nop(8)
    k(f"v_cndmask_b32 v{t}, v{FD}, v{FD+1}, s[{S_M+2}:{S_M+3}]")
    k(f"v_cndmask_b32 v{t+1}, v{FD+4}, v{FD+5}, s[{S_M+2}:{S_M+3}]")
    k(f"v_cndmask_b32 v{t}, v{t}, v{t+1}, s[{S_M+4}:{S_M+5}]")
    k(f"ds_write_b32 v{FADR+3}, v{t}")
    k("s_waitcnt vmcnt(0) lgkmcnt(0)")
    k("s_barrier")
    k(f"ds_read2st64_b32 {vr(t,2)}, v{FADR+4} offset0:0 offset1:1")
    k(f"ds_read2st64_b32 {vr(t+2,2)}, v{FADR+4} offset0:2 offset1:3")
    for ct in range(10):
        r = FW2 + 4 * ct
        k(f"ds_read_b64_tr_b16 {vr(r,2)}, v{FADR+2} offset:{32*ct}")
        k(f"ds_read_b64_tr_b16 {vr(r+2,2)}, v{FADR+2} offset:{32*ct+20480}")
    k("s_waitcnt lgkmcnt(0)")
    k(f"v_add_f32 v{t}, v{t}, v{t+1}")
    k(f"v_add_f32 v{t+2}, v{t+2}, v{t+3}")
    k(f"v_add_f32 v{t}, v{t}, v{t+2}")
    round_bf16(k, t)
    silu(k, t, t + 1)
    k(f"v_cvt_pk_bf16_f32 v{t}, v{t}, v{t}")
    k(f"ds_write_b16 v{FADR+5}, v{t}")
    k("s_waitcnt lgkmcnt(0)")
    k(f"ds_read_b128 {vr(FH+2,4)}, v{FADR+6}")
    k("s_waitcnt lgkmcnt(0)")
    for ct in range(10):
        k(f"v_mfma_f32_16x16x32_bf16 {vr(FD+4*ct,4)}, {vr(FH+2,4)}, {vr(FW2+4*ct,4)}, 0")
    k.nop(8)
    for q in range(3):
        for bb in range(2):
            a0, a1 = FD + 16 * q + bb, FD + 16 * q + 4 + bb
            k(f"v_cndmask_b32 v{t+2*q+bb}, v{a0}, v{a1}, s[{S_M+2}:{S_M+3}]")
            if q < 2:
                a2, a3 = FD + 16 * q + 8 + bb, FD + 16 * q + 12 + bb
                k(f"v_cndmask_b32 v{t+8}, v{a2}, v{a3}, s[{S_M+2}:{S_M+3}]")
                k(f"v_cndmask_b32 v{t+2*q+bb}, v{t+2*q+bb}, v{t+8}, s[{S_M+4}:{S_M+5}]")
    k(f"buffer_store_dwordx2 {vr(t,2)}, v{FADR+7}, {srd(R_WS)}, s{S_TMP+2} offen sc1")
    k(f"buffer_store_dwordx2 {vr(t+2,2)}, v{FADR+7}, {srd(R_WS)}, s{S_TMP+2} offen offset:512 sc1")
    k(f"s_mov_b32 exec_hi, 0")
    k(f"buffer_store_dwordx2 {vr(t+4,2)}, v{FADR+7}, {srd(R_WS)}, s{S_TMP+2} offen offset:1024 sc1")
    k(f"s_mov_b64 exec, -1")
    k.stamp(8)


ZG = 10
ZT = 44


def tree_reduce4(k, g, t):
    k.nop(2)
    k(f"v_permlane32_swap_b32 v{g}, v{g+2}")
    k(f"v_permlane32_swap_b32 v{g+1}, v{g+3}")
    k.nop(1)
    k(f"v_add_f32 v{g}, v{g}, v{g+2}")
    k(f"v_add_f32 v{g+1}, v{g+1}, v{g+3}")
    k.nop(2)
    k(f"v_permlane16_swap_b32 v{g}, v{g+1}")
    k.nop(1)
    k(f"v_add_f32 v{t}, v{g}, v{g+1}")
    k.nop(2)
    k(f"v_add_f32_dpp v{t}, v{t}, v{t} row_ror:8 row_mask:0xf bank_mask:0xf")


def final(k):
    t = ZT
    k(f"s_sub_u32 s{S_TMP}, s{S_UU}, {ZBASE}")
    k(f"v_and_b32 v{t}, 7, v{V_LANE}")
    k(f"v_lshrrev_b32 v{t+1}, 1, v{V_SLAB}")
    k(f"v_lshl_add_u32 v{t}, v{t}, 1, v{t+1}")
    k(f"v_and_b32 v{t+1}, 1, v{V_SLAB}")
    k(f"v_mul_u32_u24 v{t+1}, 640, v{t+1}")
    k(f"v_add_u32 v{t}, v{t}, v{t+1}")
    k(f"v_lshlrev_b32 v{t}, 1, v{t}")
    k(f"s_lshl_b32 s{S_TMP+1}, s{S_TMP}, 5")
    k(f"buffer_load_ushort v{t+2}, v{t}, {srd(R_X)}, s{S_TMP+1} offen")
    k(f"v_and_b32 v{t+3}, 7, v{V_LANE}")
    k(f"v_lshlrev_b32 v{t+3}, 2, v{t+3}")
    k(f"v_and_b32 v{t+4}, 1, v{V_SLAB}")
    k(f"v_mul_u32_u24 v{t+4}, 1280, v{t+4}")
    k(f"v_add_u32 v{t+3}, v{t+3}, v{t+4}")
    k(f"v_lshrrev_b32 v{t+4}, 3, v{V_LANE}")
    k(f"v_mul_u32_u24 v{t+4}, 5120, v{t+4}")
    k(f"v_and_b32 v{t+5}, 7, v{V_LANE}")
    k(f"v_lshl_add_u32 v{t+4}, v{t+5}, 4, v{t+4}")
    k(f"s_lshl_b32 s{S_TMP+2}, s{S_TMP}, 7")
    k(f"s_add_u32 s{S_TMP+3}, s{S_TMP+2}, {WS_FP}")
    k(f"v_add_u32 v{t+5}, s{S_TMP+3}, v{t+4}")
    k(f"v_add_u32 v{t+6}, {48*5120}, v{t+5}")
    k(f"v_cmp_gt_u32 vcc, 48, v{V_LANE}")
    k(f"s_mov_b64 s[{S_M+2}:{S_M+3}], vcc")
    k.nop(2)
    k(f"v_cndmask_b32 v{t+6}, v{t+5}, v{t+6}, vcc")
    loads = []
    for i in range(6):
        k(f"s_mov_b32 s{4+i}, {i*8*5120}")
        loads.append(f"buffer_load_dwordx4 {vr(ZG+4*i,4)}, v{t+5}, {srd(R_WS)}, s{4+i} offen sc1")
    loads.append(f"buffer_load_dwordx4 {vr(ZG+24,4)}, v{t+6}, {srd(R_WS)}, 0 offen sc1")
    gather_check_loop(k, "fp", loads, list(range(ZG, ZG + 28)), 7)
    for c in range(4):
        k(f"v_cndmask_b32 v{ZG+24+c}, 0, v{ZG+24+c}, s[{S_M+2}:{S_M+3}]")
    for c in range(4):
        k(f"v_add_f32 v{ZG+c}, v{ZG+c}, v{ZG+4+c}")
        k(f"v_add_f32 v{ZG+8+c}, v{ZG+8+c}, v{ZG+12+c}")
        k(f"v_add_f32 v{ZG+16+c}, v{ZG+16+c}, v{ZG+20+c}")
    for c in range(4):
        k(f"v_add_f32 v{ZG+c}, v{ZG+c}, v{ZG+8+c}")
        k(f"v_add_f32 v{ZG+16+c}, v{ZG+16+c}, v{ZG+24+c}")
    for c in range(4):
        k(f"v_add_f32 v{ZG+c}, v{ZG+c}, v{ZG+16+c}")
    tree_reduce4(k, ZG, t + 8)
    round_bf16(k, t + 8)
    silu(k, t + 8, t + 9)
    round_bf16(k, t + 8)
    k(f"v_lshlrev_b32 v{t+2}, 16, v{t+2}")
    k(f"s_add_u32 s{S_TMP+3}, s{S_TMP+2}, {WS_SP}")
    k(f"v_add_u32 v{t+5}, s{S_TMP+3}, v{t+4}")
    loads = []
    for i in range(4):
        loads.append(f"buffer_load_dwordx4 {vr(ZG+4*i,4)}, v{t+5}, {srd(R_WS)}, s{4+i} offen sc1")
    gather_check_loop(k, "sp", loads, list(range(ZG, ZG + 16)), 8)
    for c in range(4):
        k(f"v_add_f32 v{ZG+c}, v{ZG+c}, v{ZG+4+c}")
        k(f"v_add_f32 v{ZG+8+c}, v{ZG+8+c}, v{ZG+12+c}")
    for c in range(4):
        k(f"v_add_f32 v{ZG+c}, v{ZG+c}, v{ZG+8+c}")
    tree_reduce4(k, ZG, t + 9)
    round_bf16(k, t + 9)
    k(f"v_mul_f32 v{t+9}, v{t+9}, v{t+8}")
    round_bf16(k, t + 9)
    k(f"v_add_f32 v{t+9}, v{t+9}, v{t+2}")
    k(f"v_cvt_pk_bf16_f32 v{t+9}, v{t+9}, v{t+9}")
    k(f"v_mov_b32 v{t+10}, v{t+9}")
    k.nop(2)
    k(f"v_permlane32_swap_b32 v{t+9}, v{t+10}")
    k.nop(1)
    k(f"v_and_b32 v{t+9}, 0xffff, v{t+9}")
    k(f"v_lshl_or_b32 v{t+9}, v{t+10}, 16, v{t+9}")
    k(f"s_mov_b32 exec_lo, 0x00ff00ff")
    k(f"s_mov_b32 exec_hi, 0")
    k(f"s_lshl_b32 s{S_TMP+1}, s{S_TMP}, 5")
    k(f"buffer_store_dword v{t+9}, v{t+3}, {srd(R_OUT)}, s{S_TMP+1} offen")
    k(f"s_mov_b64 exec, -1")
    k.stamp(9)
    if K.opt.get("diag"):
        sk = k.label("dg")
        k(f"s_cmp_eq_u32 s{S_TMP}, 0")
        k(f"s_cbranch_scc0 {sk}")
        k(f"v_mov_b32 v{t}, 0")
        k(f"buffer_load_dword v{t+1}, v{t}, s[92:95], 0 offen sc1")
        k("s_waitcnt vmcnt(0)")
        k(f"v_readfirstlane_b32 s96, v{t+1}")
        k("s_memrealtime s[98:99]")
        k("s_waitcnt lgkmcnt(0)")
        k("s_not_b32 s96, s96")
        k("s_sub_u32 s97, s98, s96")
        mode = K.opt["diag"]
        if mode == "k0":
            k("s_mov_b32 s97, 0")
        elif mode == "k1":
            pass
        elif mode == "t1000":
            k("s_mov_b32 s97, 1000")
        if mode.startswith("cyc"):
            n = int(mode[3:])
            k(f"s_mov_b32 s97, {n}")
            lp = k.label("cy")
            k(f"{lp}:")
            k("s_nop 15")
            k("s_nop 15")
            k("s_sub_u32 s97, s97, 1")
            k("s_cmp_lg_u32 s97, 0")
            k(f"s_cbranch_scc1 {lp}")
        else:
            k("s_min_u32 s97, s97, 20000")
            k("s_add_u32 s97, s97, s98")
            lp = k.label("sp")
            k(f"{lp}:")
            k("s_memrealtime s[98:99]")
            k("s_waitcnt lgkmcnt(0)")
            k("s_sub_u32 s96, s97, s98")
            k("s_cmp_gt_i32 s96, 0")
            k(f"s_cbranch_scc1 {lp}")
        k(f"{sk}:")
    skip = k.label("ep")
    k(f"s_cmp_eq_u32 s{S_TMP}, 0")
    k(f"s_cbranch_scc0 {skip}")
    k(f"v_mov_b32 v{t}, 0")
    k(f"v_mov_b32 v{t+1}, s{S_T0}")
    k(f"s_mov_b64 exec, 1")
    k(f"buffer_store_dword v{t+1}, v{t}, {srd(R_WS)}, 0 offen offset:{WS_EPOCH} sc1")
    k(f"s_mov_b64 exec, -1")
    k(f"{skip}:")


def dump_stamps(k):
    if not k.stamps:
        return
    k("s_waitcnt vmcnt(0) lgkmcnt(0)")
    k(f"s_memrealtime s[98:99]")
    k("s_waitcnt lgkmcnt(0)")
    k(f"s_lshl_b32 s{S_TMP}, s2, 2")
    k(f"s_add_u32 s{S_TMP}, s{S_TMP}, s{S_WAVE}")
    k(f"s_lshl_b32 s{S_TMP}, s{S_TMP}, 6")
    k(f"s_add_u32 s{S_TMP}, s{S_TMP}, {WS_STAMP}")
    for i in range(10):
        k(f"v_mov_b32 v{10+i}, s{S_STAMP+2*i}")
    k(f"s_getreg_b32 s{S_TMP+1}, hwreg(HW_REG_XCC_ID)")
    k(f"v_mov_b32 v20, s{S_TMP+1}")
    k(f"v_mov_b32 v21, s{S_CNT}")
    k(f"v_mov_b32 v4, 0")
    k(f"s_mov_b64 exec, 1")
    for i in range(3):
        k(f"buffer_store_dwordx4 {vr(10+4*i,4)}, v4, {srd(R_WS)}, s{S_TMP} offen offset:{16*i}")
    k(f"s_mov_b64 exec, -1")


def build(stamps=False):
    k = K(stamps)
    hdr = open("recurrent_scan__compressed_kv_cla__dense_activation_silu__decode.s.ref").read()
    comments = [l for l in hdr.split("\n") if l.startswith(";") and "@launch" not in l and "Override" not in l and "grid=ceil" not in l]
    out = "\n".join(comments) + "\n"
    out += f"; @launch grid=(256,1,1) block=(256,1,1) lds={LDS_BYTES}\n"
    out += f""".amdgcn_target "amdgcn-amd-amdhsa--gfx950"
.text
.globl {NAME}
.p2align 8
.type {NAME},@function
{NAME}:
"""
    if stamps:
        for i in range(10):
            k(f"s_mov_b32 s{S_STAMP+2*i}, 0")
    if K.opt.get("diag"):
        k("s_memrealtime s[100:101]")
    prologue(k)
    if K.opt.get("diag"):
        k.srd(92, S_DBG, 256)
        k("s_cmp_lt_u32 s2, 8")
        k("s_cbranch_scc0 L_nodiag")
        k("s_not_b32 s100, s100")
        k("v_mov_b32 v8, s100")
        k("v_mov_b32 v9, 0")
        k("s_mov_b64 exec, 1")
        k("buffer_atomic_umax v8, v9, s[92:95], 0 offen")
        k("s_mov_b64 exec, -1")
        k("L_nodiag:")
    k(f"s_cmp_ge_u32 s{S_J}, 4")
    k(f"s_cbranch_scc1 L_B")
    k.srd(R_A, S_WUK, 512 * 4096 * 2)
    k.srd(R_B, S_WUV, 512 * 4096 * 2)
    k.srd(R_C, S_WO, 4096 * 640 * 2)
    k(f"s_cmp_eq_u32 s{S_WAVE}, 0")
    k(f"s_cbranch_scc0 L_P_w123")
    stage1_issue(k)
    k("s_barrier")
    nc = clears_P(k)
    stage1_selectors(k)
    layernorm(k, 1 + 20 + nc)
    k(f"s_waitcnt vmcnt({20+nc})")
    epoch_tags(k, VE)
    wuk_issue(k)
    stage1_publish_addr(k)
    k.stamp(2)
    stage1_mfma(k, nc + 8)
    stage1_publish(k, 8)
    k("s_branch L_P_join")
    k("L_P_w123:")
    k(f"v_mov_b32 v{V_T}, 0")
    k(f"buffer_load_dword v{VE}, v{V_T}, {srd(R_WS)}, 0 offen offset:{WS_EPOCH} sc1")
    k("s_barrier")
    wuk_issue(k)
    k("s_waitcnt vmcnt(8)")
    epoch_tags(k, VE)
    k("L_P_join:")
    stage2(k)
    p_weights_issue(k)
    stage4_setup(k)
    k("s_waitcnt vmcnt(0)")
    k("s_barrier")
    k.stamp(6)
    p_weights_preread(k)
    stage4(k)
    stage5(k)
    k("s_branch L_done")
    k("L_B:")
    b_roles(k)
    k.srd(R_A, S_CKV, 2 * 4096 * 512 * 2)
    k.srd(R_B, S_W1, 640 * 1728 * 2)
    k.srd(R_C, S_W2, 1728 * 640 * 2)
    k(f"s_cmp_eq_u32 s{S_WAVE}, 0")
    k(f"s_cbranch_scc0 L_B_w123")
    stage1_issue(k)
    k("s_barrier")
    nc = clears_B(k)
    stage1_selectors(k)
    layernorm(k, 1 + 20 + nc)
    k(f"s_waitcnt vmcnt({20+nc})")
    epoch_tags(k, VE)
    stage1_publish_addr(k)
    k.stamp(2)
    stage1_mfma(k, nc)
    stage1_publish(k, 0)
    ckv_issue(k)
    k("s_branch L_B_join")
    k("L_B_w123:")
    k(f"v_mov_b32 v{V_T}, 0")
    k(f"buffer_load_dword v{VE}, v{V_T}, {srd(R_WS)}, 0 offen offset:{WS_EPOCH} sc1")
    k("s_barrier")
    ckv_issue(k)
    k("s_waitcnt vmcnt(32)")
    epoch_tags(k, VE)
    k("L_B_join:")
    flags_poll(k)
    attention(k)
    k(f"s_cmp_lt_u32 s{S_UU}, {NF}")
    k(f"s_cbranch_scc0 L_B_nof")
    ffn(k)
    k("s_branch L_done")
    k("L_B_nof:")
    k(f"s_cmp_ge_u32 s{S_UU}, {ZBASE}")
    k(f"s_cbranch_scc0 L_done")
    k(f"s_cmp_eq_u32 s{S_WAVE}, 0")
    k(f"s_cbranch_scc0 L_done")
    final(k)
    k("L_done:")
    dump_stamps(k)
    k("L_exit:")
    k("s_endpgm")
    out += k.text()
    out += f""".section .rodata,"a"
.p2align 6
.amdhsa_kernel {NAME}
  .amdhsa_next_free_vgpr 512
  .amdhsa_next_free_sgpr 102
  .amdhsa_accum_offset 256
  .amdhsa_group_segment_fixed_size 0
  .amdhsa_kernarg_size 96
  .amdhsa_user_sgpr_count 2
  .amdhsa_user_sgpr_kernarg_segment_ptr 1
  .amdhsa_system_sgpr_workgroup_id_x 1
.end_amdhsa_kernel
"""
    return out


if __name__ == "__main__":
    stamps = "--stamps" in sys.argv
    for a in sys.argv[1:]:
        if a.startswith("--") and "=" in a:
            kk, vv = a[2:].split("=")
            K.opt[kk] = vv
    outp = [a for a in sys.argv[1:] if not a.startswith("--")]
    open(outp[0] if outp else "k.s", "w").write(build(stamps))
```

```python
import sys

NAME = "recurrent_scan__compressed_kv_cla__dense_activation_silu__decode_kernel"

WS_EPOCH = 0
WS_QP = 0x1000
WS_QA = 0x41000
WS_ST = 0x51000
WS_CP = 0x55000
WS_SP = 0x65000
WS_FP = 0x8D000
WS_AC = 0xE0000
WS_HO = 0xE4000
WS_TR = 0xF0000
WS_AO = 0x100000
WS_SIZE = 0x300000
WS_STAMP = 0x300000
NF = 54
S_JP = 10
S_F = 11
S_Z = 12
S_ROLE = 13

L_WUV = 0
L_WO = 32768
L_AOB = 107520
L_RED = 123904
L_CTX = 129024
L_XNP = 95744
L_CKV = 0
RS = 1056
L_QB = 128 * RS
L_XN = L_QB + 16 * RS
L_MX = L_XN + 2560
L_PB = L_MX + 1024
L_END = L_PB + 4096
L_WF = 0
L_WO5 = 66560
L_FRED = 81920
L_RED5 = 123904
LDS_BYTES = 163840

SPIN_LIMIT = 100000

S_X, S_CKV, S_WQ, S_WUK, S_WUV, S_WO, S_W1, S_W2, S_OUT, S_DBG, S_WSP = 4, 6, 8, 10, 12, 14, 18, 20, 22, 24, 26
R_X, R_WQ, R_WS, R_A, R_B, R_C, R_OUT = 28, 32, 36, 40, 44, 48, 52
S_WAVE, S_H, S_J, S_T0, S_T1 = 56, 57, 58, 59, 60
S_TMP = 61
S_PUB = 69
S_OFF = 70
S_CNT = 71
S_M = 72
S_STAMP = 80


CNT_SLOT = {'qp': 13, 'tr': 14, 'st': 15, 'ao': 16, 'qa': 17, 'cp': 18, 'fl': 18}


class K:
    opt = {}
    def __init__(self, stamps=False):
        self.lines = []
        self.nl = 0
        self.stamps = stamps
        self.nstamp = 0

    def __call__(self, s):
        for l in s.split("\n"):
            self.lines.append("    " + l.strip() if l.strip() and not l.strip().endswith(":") else l.strip())

    def label(self, stem):
        self.nl += 1
        return f"L_{stem}_{self.nl}"

    def nop(self, n):
        while n > 0:
            k = min(n, 16)
            self(f"s_nop {k-1}")
            n -= k

    def stamp(self, idx):
        if self.stamps:
            self(f"s_memrealtime s[100:101]")
            self("s_waitcnt lgkmcnt(0)")
            self(f"s_mov_b32 s{S_STAMP+idx}, s100")

    def srd(self, d, base, nbytes):
        self(f"s_mov_b32 s{d}, s{base}")
        self(f"s_and_b32 s{d+1}, s{base+1}, 0xffff")
        self(f"s_mov_b32 s{d+2}, {nbytes}")
        self(f"s_mov_b32 s{d+3}, 0x00020000")

    def text(self):
        return "\n".join(self.lines) + "\n"


def srd(d):
    return f"s[{d}:{d+3}]"


def vr(a, n=1):
    return f"v{a}" if n == 1 else f"v[{a}:{a+n-1}]"


def ar(a, n=1):
    return f"a{a}" if n == 1 else f"a[{a}:{a+n-1}]"


V_TID, V_LANE, V_L15, V_SLAB = 0, 1, 2, 3
V_T = 4
V_ONES = 242
V_NEG1 = 244


def spin_begin(k, cnt=S_CNT):
    k(f"s_mov_b32 s{cnt}, 0")


def spin_retry(k, top, cnt=S_CNT):
    k(f"s_add_u32 s{cnt}, s{cnt}, 1")
    k(f"s_cmp_lt_u32 s{cnt}, {SPIN_LIMIT}")
    k(f"s_cbranch_scc1 {top}")


NCH = 28


def prologue(k):
    k(f"s_cmp_ge_u32 s2, 256")
    k(f"s_cbranch_scc1 L_exit")
    k(f"s_load_dwordx16 s[4:19], s[0:1], 0")
    k(f"s_load_dwordx8 s[20:27], s[0:1], 64")
    k(f"v_lshrrev_b32 v{V_T}, 6, v0")
    k(f"v_and_b32 v{V_LANE}, 63, v0")
    k(f"v_readfirstlane_b32 s{S_WAVE}, v{V_T}")
    if K.opt.get("pf", "1") == "1":
        k(f"s_getpc_b64 s[{S_TMP+1}:{S_TMP+2}]")
        k(f"L_pc:")
        k(f"s_lshr_b32 s{S_TMP}, s2, 3")
        k(f"s_lshl_b32 s{S_TMP}, s{S_TMP}, 2")
        k(f"s_add_u32 s{S_TMP}, s{S_TMP}, s{S_WAVE}")
        k(f"s_cmp_lt_u32 s{S_TMP}, (L_exit-L_pc+1023)/1024")
        k(f"s_cbranch_scc0 L_nopf")
        k(f"s_lshl_b32 s{S_TMP}, s{S_TMP}, 10")
        k(f"s_min_u32 s{S_TMP}, s{S_TMP}, L_exit-L_pc-1024")
        k(f"v_lshl_add_u32 v{V_T+1}, v{V_LANE}, 4, s{S_TMP}")
        k(f"global_load_dwordx4 v[248:251], v{V_T+1}, s[{S_TMP+1}:{S_TMP+2}]")
        k(f"L_nopf:")
    k(f"v_and_b32 v{V_L15}, 15, v0")
    k(f"v_bfe_u32 v{V_SLAB}, v0, 4, 2")
    k(f"s_and_b32 s{S_H}, s2, 31")
    k(f"s_lshr_b32 s{S_J}, s2, 5")
    for i in range(4):
        k(f"v_mov_b32 v{V_NEG1+i}, -1")
    k.stamp(0)
    k(f"s_waitcnt lgkmcnt(0)")
    k.srd(R_X, S_X, 2560)
    k.srd(R_WS, S_WSP, WS_SIZE + (0x100000 if k.stamps else 0))
    k.srd(R_WQ, S_WQ, 640 * 4096 * 2)


VX = 10
VW = 20
VA = 100
VSEL = 180
VD1 = 188
VXR = 192
VE = 202
VS1 = 204
VWUK = 210


def stage1_issue(k):
    k(f"v_lshrrev_b32 v{V_T}, 5, v{V_LANE}")
    k(f"v_and_b32 v{V_T+1}, 31, v{V_LANE}")
    k(f"v_mul_u32_u24 v{V_T}, 1280, v{V_T}")
    k(f"v_mul_u32_u24 v{V_T+1}, 40, v{V_T+1}")
    k(f"v_add_u32 v{V_T}, v{V_T}, v{V_T+1}")
    k(f"v_mov_b32 v{V_T+2}, 0")
    k(f"buffer_load_dwordx4 {vr(VX,4)}, v{V_T}, {srd(R_X)}, 0 offen")
    k(f"buffer_load_dwordx4 {vr(VX+4,4)}, v{V_T}, {srd(R_X)}, 0 offen offset:16")
    k(f"buffer_load_dwordx2 {vr(VX+8,2)}, v{V_T}, {srd(R_X)}, 0 offen offset:32")
    k(f"buffer_load_dword v{VE}, v{V_T+2}, {srd(R_WS)}, 0 offen offset:{WS_EPOCH} sc1")
    k(f"s_mul_i32 s{S_TMP}, s{S_J}, {80*8192}")
    k(f"s_lshl_b32 s{S_TMP+1}, s{S_H}, 8")
    k(f"s_add_u32 s{S_TMP}, s{S_TMP}, s{S_TMP+1}")
    k(f"v_mul_u32_u24 v{V_T+3}, {20*8192}, v{V_SLAB}")
    k(f"v_lshl_add_u32 v{V_T+3}, v{V_L15}, 4, v{V_T+3}")
    k(f"v_add_u32 v{V_T+3}, s{S_TMP}, v{V_T+3}")
    k(f"s_mov_b32 s{S_OFF}, 0")
    k(f"s_movk_i32 s{S_TMP}, 0x2000")
    for t in range(20):
        k(f"buffer_load_dwordx4 {vr(VW+4*t,4)}, v{V_T+3}, {srd(R_WQ)}, s{S_OFF} offen")
        if t < 19:
            k(f"s_add_u32 s{S_OFF}, s{S_OFF}, s{S_TMP}")


def epoch_tags(k, ve):
    k(f"v_readfirstlane_b32 s{S_T0}, v{ve}")
    k.nop(4)
    k(f"s_add_u32 s{S_T0}, s{S_T0}, 1")
    k(f"s_mul_i32 s{S_T1}, s{S_T0}, 0x9e3779b1")
    k(f"s_xor_b32 s{S_T1}, s{S_T1}, 0x5bd1e995")


def stage1_selectors(k):
    t = VS1
    k(f"v_and_b32 v{t}, 1, v{V_LANE}")
    k(f"v_bfe_u32 v{t+1}, v{V_LANE}, 1, 2")
    k(f"v_cmp_eq_u32 vcc, 1, v{t}")
    k(f"v_mov_b32 v{t+2}, 0x0c0c0504")
    k(f"v_mov_b32 v{t+3}, 0x05040c0c")
    k(f"v_cndmask_b32 v{t+4}, v{t+2}, v{t+3}, vcc")
    k(f"v_mov_b32 v{t+2}, 0x0c0c0706")
    k(f"v_mov_b32 v{t+3}, 0x07060c0c")
    k(f"v_cndmask_b32 v{t+5}, v{t+2}, v{t+3}, vcc")
    k(f"v_mov_b32 v{t+2}, 0x0c0c0c0c")
    for r in range(4):
        k(f"v_cmp_eq_u32 vcc, {r}, v{t+1}")
        k.nop(2)
        k(f"v_cndmask_b32 v{VSEL+2*r}, v{t+2}, v{t+4}, vcc")
        k(f"v_cndmask_b32 v{VSEL+2*r+1}, v{t+2}, v{t+5}, vcc")


def layernorm(k, nafter):
    t = VS1
    k(f"s_mov_b32 s{S_TMP}, 0x3f803f80")
    k(f"v_mov_b32 v{t}, 0")
    k(f"v_mov_b32 v{t+1}, 0")
    k(f"v_mov_b32 v{t+2}, 0")
    k(f"v_mov_b32 v{t+3}, 0")
    k(f"s_waitcnt vmcnt({nafter})")
    k.stamp(1)
    for i in range(10):
        a = t + (i & 1)
        q = t + 2 + (i & 1)
        k(f"v_dot2_f32_bf16 v{a}, v{VX+i}, s{S_TMP}, v{a}")
        k(f"v_dot2_f32_bf16 v{q}, v{VX+i}, v{VX+i}, v{q}")
    k.nop(3)
    k(f"v_add_f32 v{t}, v{t}, v{t+1}")
    k(f"v_add_f32 v{t+2}, v{t+2}, v{t+3}")
    k.nop(1)
    for rot in (8, 4, 2, 1):
        k(f"v_add_f32_dpp v{t}, v{t}, v{t} row_ror:{rot} row_mask:0xf bank_mask:0xf")
        k(f"v_add_f32_dpp v{t+2}, v{t+2}, v{t+2} row_ror:{rot} row_mask:0xf bank_mask:0xf")
        k.nop(1)
    k.nop(1)
    k(f"v_permlane16_swap_b32 v{t}, v{t+2}")
    k.nop(1)
    k(f"v_add_f32 v{t}, v{t}, v{t+2}")
    k.nop(1)
    k(f"v_mov_b32 v{t+2}, v{t}")
    k.nop(2)
    k(f"v_permlane16_swap_b32 v{t}, v{t+2}")
    k.nop(1)
    k(f"v_mul_f32 v{t}, 0x3acccccd, v{t}")
    k(f"v_mul_f32 v{t+2}, 0x3acccccd, v{t+2}")
    k(f"v_fma_f32 v{t+2}, -v{t}, v{t}, v{t+2}")
    k(f"v_max_f32 v{t+2}, 0, v{t+2}")
    k(f"v_cvt_pk_bf16_f32 v{t+1}, v{t}, v{t+2}")
    k(f"v_lshlrev_b32 v{t}, 16, v{t+1}")
    k(f"v_and_b32 v{t+2}, 0xffff0000, v{t+1}")
    k(f"v_add_f32 v{t+2}, 0x3727c5ac, v{t+2}")
    k(f"v_cvt_pk_bf16_f32 v{t+2}, v{t+2}, v{t+2}")
    k(f"v_and_b32 v{t+2}, 0xffff0000, v{t+2}")
    k(f"v_sqrt_f32 v{t+2}, v{t+2}")
    k.nop(1)
    k(f"v_cvt_pk_bf16_f32 v{t+2}, v{t+2}, v{t+2}")
    k(f"v_and_b32 v{t+2}, 0xffff0000, v{t+2}")
    k(f"v_rcp_f32 v{t+2}, v{t+2}")
    k.nop(1)
    k(f"v_mul_f32 v{t}, v{t}, v{t+2}")
    k(f"v_sub_f32 v{t}, 0, v{t}")
    for i in range(10):
        k(f"v_lshlrev_b32 v{t+3}, 16, v{VX+i}")
        k(f"v_and_b32 v{t+4}, 0xffff0000, v{VX+i}")
        k(f"v_fma_f32 v{t+3}, v{t+3}, v{t+2}, v{t}")
        k(f"v_fma_f32 v{t+4}, v{t+4}, v{t+2}, v{t}")
        k(f"v_cvt_pk_bf16_f32 v{VX+i}, v{t+3}, v{t+4}")
    k(f"v_add_u32 v{t+3}, {L_XN}, v{V_T}")
    for i in range(5):
        k(f"ds_write_b64 v{t+3}, {vr(VX+2*i,2)} offset:{8*i}")
    k(f"v_bfe_u32 v{t}, v{V_LANE}, 3, 1")
    k(f"v_mul_u32_u24 v{t}, 1280, v{t}")
    k(f"v_mul_u32_u24 v{t+1}, 40, v{V_SLAB}")
    k(f"s_mul_i32 s{S_TMP}, s{S_J}, 160")
    k(f"s_add_u32 s{S_TMP}, s{S_TMP}, {L_XN}")
    k(f"v_add3_u32 v{t}, v{t}, v{t+1}, s{S_TMP}")
    k(f"s_waitcnt lgkmcnt(0)")
    for i in range(5):
        k(f"ds_read_b64 {vr(VXR+2*i,2)}, v{t} offset:{8*i}")
    k(f"s_waitcnt lgkmcnt(0)")
    for st in range(20):
        for r in range(4):
            k(f"v_perm_b32 v{VA+4*st+r}, v{VXR+(st>>1)}, v{VXR+(st>>1)}, v{VSEL+2*r+(st&1)}")


def stage1_mfma(k, nafter):
    for st in range(20):
        k(f"s_waitcnt vmcnt({19-st+nafter})")
        c = "0" if st == 0 else vr(VD1, 4)
        k(f"v_mfma_f32_16x16x32_bf16 {vr(VD1,4)}, {vr(VA+4*st,4)}, {vr(VW+4*st,4)}, {c}")


VPUB = 206


def stage1_publish_addr(k):
    t = VS1 + 4
    k(f"v_lshrrev_b32 v{t}, 1, v{V_SLAB}")
    k(f"v_and_b32 v{t+1}, 1, v{V_SLAB}")
    k(f"v_lshlrev_b32 v{t}, 5, v{t}")
    k(f"v_lshl_add_u32 v{t}, v{V_L15}, 1, v{t}")
    k(f"v_add_u32 v{t}, v{t}, v{t+1}")
    k(f"v_lshlrev_b32 v{VPUB}, 4, v{t}")
    k(f"s_lshl_b32 s{S_PUB}, s{S_H}, 3")
    k(f"s_add_u32 s{S_PUB}, s{S_PUB}, s{S_J}")
    k(f"s_lshl_b32 s{S_PUB}, s{S_PUB}, 10")
    k(f"s_add_u32 s{S_PUB}, s{S_PUB}, {WS_QP}")
    k(f"v_mov_b32 v{VD1+6}, s{S_T0}")
    k(f"v_mov_b32 v{VD1+7}, s{S_T1}")


def stage1_publish(k, nkeep):
    k.nop(8)
    k(f"v_cvt_pk_bf16_f32 v{VD1+4}, v{VD1}, v{VD1+1}")
    k(f"v_cvt_pk_bf16_f32 v{VD1+5}, v{VD1+2}, v{VD1+3}")
    k(f"s_waitcnt vmcnt({nkeep})")
    k(f"buffer_store_dwordx4 {vr(VD1+4,4)}, v{VPUB}, {srd(R_WS)}, s{S_PUB} offen sc1")
    k.stamp(3)


def sentinel_check(k, regs):
    t = V_T
    rs = list(regs)
    if len(rs) == 1:
        k(f"v_cmp_eq_u32 vcc, -1, v{rs[0]}")
        return
    if len(rs) == 2:
        k(f"v_max_u32 v{t}, v{rs[0]}, v{rs[1]}")
        rs = []
    else:
        k(f"v_max3_u32 v{t}, v{rs[0]}, v{rs[1]}, v{rs[2]}")
        rs = rs[3:]
    while len(rs) >= 2:
        k(f"v_max3_u32 v{t}, v{t}, v{rs[0]}, v{rs[1]}")
        rs = rs[2:]
    if rs:
        k(f"v_max_u32 v{t}, v{t}, v{rs[0]}")
    k(f"v_cmp_eq_u32 vcc, -1, v{t}")


def tag_check(k, pairs):
    t = V_T
    first = True
    for a, b in pairs:
        k(f"v_xor_b32 v{t+1}, s{S_T0}, v{a}")
        k(f"v_xor_b32 v{t+2}, s{S_T1}, v{b}")
        if first:
            k(f"v_or_b32 v{t}, v{t+1}, v{t+2}")
        else:
            k(f"v_or3_b32 v{t}, v{t}, v{t+1}, v{t+2}")
        first = False
    k(f"v_cmp_ne_u32 vcc, 0, v{t}")


def gather_loop(k, name, loads, check, stampidx=None, preissued=False, firstwait=0):
    chk = k.label(name)
    done = k.label(name + "d")
    spin_begin(k)
    k(f"s_mov_b64 s[{S_M}:{S_M+1}], exec")
    if not preissued:
        for l in loads:
            k(l)
    if firstwait:
        k(f"s_waitcnt vmcnt({firstwait})")
        k(f"s_branch {chk}_c")
    k(f"{chk}:")
    k("s_waitcnt vmcnt(0)")
    if firstwait:
        k(f"{chk}_c:")
    check(k)
    k(f"s_and_b64 exec, exec, vcc")
    k(f"s_cbranch_execz {done}")
    k(f"s_add_u32 s{S_CNT}, s{S_CNT}, 1")
    k(f"s_cmp_ge_u32 s{S_CNT}, {SPIN_LIMIT}")
    k(f"s_cbranch_scc1 {done}")
    for l in loads:
        k(l)
    k(f"s_branch {chk}")
    k(f"{done}:")
    k(f"s_mov_b64 exec, s[{S_M}:{S_M+1}]")
    if stampidx is not None:
        k.stamp(stampidx)
    if k.stamps and name in CNT_SLOT and not (K.opt.get("aoack") and name == "qa"):
        k(f"s_add_u32 s{S_STAMP+CNT_SLOT[name]}, s{S_CNT}, 1")


def gather_check_loop(k, name, loads, regs, stampidx=None, preissued=False):
    gather_loop(k, name, loads, lambda kk: sentinel_check(kk, regs), stampidx, preissued)


def clears_P(k):
    t = V_T + 4
    neg = vr(V_NEG1, 4)
    l2, l3, done = k.label("cp2"), k.label("cp3"), k.label("cpd")
    k(f"s_lshl_b32 s{S_TMP}, s{S_H}, 2")
    k(f"s_add_u32 s{S_TMP}, s{S_TMP}, s{S_J}")
    k(f"s_cmp_eq_u32 s{S_WAVE}, 1")
    k(f"s_cbranch_scc0 {l2}")
    k(f"v_lshlrev_b32 v{t}, 4, v{V_LANE}")
    k(f"s_mul_i32 s{S_TMP+1}, s{S_H}, 5120")
    k(f"s_mul_i32 s{S_TMP+2}, s{S_J}, 1280")
    k(f"s_add_u32 s{S_TMP+1}, s{S_TMP+1}, s{S_TMP+2}")
    k(f"s_add_u32 s{S_TMP+1}, s{S_TMP+1}, {WS_SP}")
    k(f"buffer_store_dwordx4 {neg}, v{t}, {srd(R_WS)}, s{S_TMP+1} offen sc1")
    k(f"v_lshlrev_b32 v{t+1}, 4, v{V_L15}")
    k(f"buffer_store_dwordx4 {neg}, v{t+1}, {srd(R_WS)}, s{S_TMP+1} offen offset:1024 sc1")
    k(f"s_branch {done}")
    k(f"{l2}:")
    k(f"s_cmp_eq_u32 s{S_WAVE}, 2")
    k(f"s_cbranch_scc0 {l3}")
    k(f"v_and_b32 v{t+1}, 31, v{V_LANE}")
    k(f"v_lshlrev_b32 v{t+1}, 4, v{t+1}")
    k(f"s_lshl_b32 s{S_TMP+1}, s{S_TMP}, 9")
    k(f"s_add_u32 s{S_TMP+1}, s{S_TMP+1}, {WS_CP}")
    k(f"buffer_store_dwordx4 {neg}, v{t+1}, {srd(R_WS)}, s{S_TMP+1} offen sc1")
    k(f"s_lshl_b32 s{S_TMP+1}, s{S_H}, 9")
    k(f"s_add_u32 s{S_TMP+1}, s{S_TMP+1}, {WS_ST}")
    k(f"buffer_store_dwordx4 {neg}, v{t+1}, {srd(R_WS)}, s{S_TMP+1} offen sc1")
    k(f"s_branch {done}")
    k(f"{l3}:")
    k(f"v_and_b32 v{t+1}, 1, v{V_SLAB}")
    k(f"v_lshlrev_b32 v{t+1}, 15, v{t+1}")
    k(f"v_lshl_add_u32 v{t+1}, v{V_L15}, 4, v{t+1}")
    k(f"s_lshl_b32 s{S_TMP+1}, s{S_H}, 10")
    k(f"s_lshl_b32 s{S_TMP+2}, s{S_J}, 8")
    k(f"s_add_u32 s{S_TMP+1}, s{S_TMP+1}, s{S_TMP+2}")
    k(f"s_add_u32 s{S_TMP+1}, s{S_TMP+1}, {WS_QA}")
    k(f"buffer_store_dwordx4 {neg}, v{t+1}, {srd(R_WS)}, s{S_TMP+1} offen sc1")
    k(f"{done}:")


L_WUK = 32768


def wuk_issue(k):
    t = V_T + 4
    k(f"s_sub_u32 s{S_TMP+2}, s{S_WAVE}, 1")
    k(f"s_mul_i32 s{S_TMP+2}, s{S_TMP+2}, 11")
    k(f"s_mul_i32 s{S_TMP}, s{S_J}, {128*8192}")
    k(f"s_lshl_b32 s{S_TMP+1}, s{S_H}, 8")
    k(f"s_add_u32 s{S_TMP}, s{S_TMP}, s{S_TMP+1}")
    k(f"s_lshl_b32 s{S_TMP+1}, s{S_TMP+2}, 15")
    k(f"s_add_u32 s{S_TMP}, s{S_TMP}, s{S_TMP+1}")
    k(f"s_lshl_b32 s{S_TMP+1}, s{S_TMP+2}, 10")
    k(f"s_add_u32 s{S_TMP+1}, s{S_TMP+1}, {L_WUK}")
    k(f"v_lshlrev_b32 v{t+1}, 13, v{V_SLAB}")
    lp = k.label("wuk")
    k(f"s_add_u32 s{S_TMP+4}, s{S_TMP+2}, 11")
    k(f"{lp}:")
    k(f"s_and_b32 s{S_TMP+3}, s{S_TMP+2}, 3")
    k(f"s_lshl_b32 s{S_TMP+3}, s{S_TMP+3}, 2")
    k(f"v_add_u32 v{t}, s{S_TMP+3}, v{V_SLAB}")
    k(f"v_xor_b32 v{t}, v{t}, v{V_L15}")
    k(f"v_lshl_add_u32 v{t}, v{t}, 4, v{t+1}")
    k(f"s_mov_b32 m0, s{S_TMP+1}")
    k(f"s_add_u32 s{S_TMP+1}, s{S_TMP+1}, 1024")
    k(f"buffer_load_dwordx4 v{t}, {srd(R_A)}, s{S_TMP} offen lds")
    k(f"s_add_u32 s{S_TMP}, s{S_TMP}, {4*8192}")
    k(f"s_add_u32 s{S_TMP+2}, s{S_TMP+2}, 1")
    k(f"s_cmp_lt_u32 s{S_TMP+2}, s{S_TMP+4}")
    k(f"s_cbranch_scc1 {lp}")


def wuk_preread(k):
    t = V_T + 4
    k(f"s_lshl_b32 s{S_TMP+4}, s{S_WAVE}, 2")
    k(f"v_add_u32 v{t}, s{S_TMP+4}, v{V_SLAB}")
    k(f"v_xor_b32 v{t}, v{t}, v{V_L15}")
    k(f"v_lshlrev_b32 v{t}, 4, v{t}")
    k(f"v_lshl_add_u32 v{t}, v{V_L15}, 8, v{t}")
    for i in range(8):
        k(f"ds_read_b128 {vr(VWUK+4*i,4)}, v{t} offset:{L_WUK+i*4096}")


PG = 10
PD = 28
PY = 68
PWV = 76
PWO = 108
PA = 148
PADR = 164
PM = 180
PT = 188


def stage2(k):
    t = PT
    k(f"v_and_b32 v{t}, 7, v{V_L15}")
    k(f"v_lshlrev_b32 v{t}, 10, v{t}")
    k(f"v_lshrrev_b32 v{t+1}, 3, v{V_L15}")
    k(f"v_lshl_add_u32 v{t}, v{t+1}, 9, v{t}")
    k(f"v_lshl_add_u32 v{PADR}, v{V_SLAB}, 5, v{t}")
    k(f"s_lshl_b32 s{S_TMP}, s{S_H}, 13")
    k(f"s_lshl_b32 s{S_TMP+1}, s{S_WAVE}, 7")
    k(f"s_add_u32 s{S_TMP}, s{S_TMP}, s{S_TMP+1}")
    k(f"s_add_u32 s{S_TMP}, s{S_TMP}, {WS_QP}")
    k(f"v_lshrrev_b32 v{t}, 1, v{V_SLAB}")
    k(f"v_lshlrev_b32 v{t}, 15, v{t}")
    k(f"v_and_b32 v{t+1}, 1, v{V_SLAB}")
    k(f"v_lshl_add_u32 v{t}, v{t+1}, 5, v{t}")
    k(f"v_lshl_add_u32 v{PADR+1}, v{V_L15}, 1, v{t}")
    k(f"s_lshl_b32 s{S_TMP+2}, s{S_H}, 10")
    k(f"s_lshl_b32 s{S_TMP+3}, s{S_J}, 8")
    k(f"s_add_u32 s{S_TMP+2}, s{S_TMP+2}, s{S_TMP+3}")
    k(f"s_lshl_b32 s{S_TMP+3}, s{S_WAVE}, 6")
    k(f"s_add_u32 s{S_TMP+2}, s{S_TMP+2}, s{S_TMP+3}")
    k(f"s_add_u32 s{S_TMP+2}, s{S_TMP+2}, {WS_QA}")
    k(f"v_lshlrev_b32 v{PADR+2}, 2, v{V_LANE}")
    k(f"s_lshl_b32 s{S_TMP+3}, s{S_WAVE}, 10")
    k(f"s_add_u32 s{S_TMP+3}, s{S_TMP+3}, {L_RED}")
    k(f"v_add_u32 v{PADR+3}, s{S_TMP+3}, v{PADR+2}")
    k(f"s_lshl_b32 s{S_TMP+3}, s{S_WAVE}, 8")
    k(f"s_add_u32 s{S_TMP+3}, s{S_TMP+3}, {L_RED}")
    k(f"v_add_u32 v{PADR+2}, s{S_TMP+3}, v{PADR+2}")
    k(f"s_mov_b32 s{S_M+2}, 0x55555555")
    k(f"s_mov_b32 s{S_M+3}, 0x55555555")
    loads = [f"buffer_load_dwordx4 {vr(PG,4)}, v{PADR}, {srd(R_WS)}, s{S_TMP} offen sc1",
             f"buffer_load_dwordx4 {vr(PG+4,4)}, v{PADR}, {srd(R_WS)}, s{S_TMP} offen offset:16 sc1"]
    for l in loads:
        k(l)
    k("s_waitcnt vmcnt(0)")
    k("s_barrier")
    wuk_preread(k)
    gather_loop(k, "qp", loads, lambda kk: tag_check(kk, [(PG+2, PG+3), (PG+6, PG+7)]), 4, preissued=True)
    k("s_waitcnt lgkmcnt(0)")
    k(f"v_mov_b32 v{PG+2}, v{PG+4}")
    k(f"v_mov_b32 v{PG+3}, v{PG+5}")
    k.nop(2)
    for i in range(8):
        k(f"v_mfma_f32_16x16x32_bf16 {vr(PD+4*i,4)}, {vr(PG,4)}, {vr(VWUK+4*i,4)}, 0")
    k.nop(1)
    for i in range(8):
        if i == 7:
            pass
        k(f"v_add_f32 v{PD+4*i}, v{PD+4*i}, v{PD+4*i+1}")
        k(f"v_add_f32 v{PD+4*i+2}, v{PD+4*i+2}, v{PD+4*i+3}")
        k(f"v_add_f32 v{PD+4*i}, v{PD+4*i}, v{PD+4*i+2}")
    k.nop(2)
    for u in range(4):
        k(f"v_permlane16_swap_b32 v{PD+8*u}, v{PD+8*u+4}")
    k.nop(1)
    for u in range(4):
        k(f"v_add_f32 v{PY+u}, v{PD+8*u}, v{PD+8*u+4}")
    k(f"ds_write2st64_b32 v{PADR+3}, v{PY}, v{PY+1} offset0:0 offset1:1")
    k(f"ds_write2st64_b32 v{PADR+3}, v{PY+2}, v{PY+3} offset0:2 offset1:3")
    k("s_waitcnt lgkmcnt(0)")
    k("s_barrier")
    k(f"ds_read2st64_b32 {vr(t,2)}, v{PADR+2} offset0:0 offset1:4")
    k(f"ds_read2st64_b32 {vr(t+2,2)}, v{PADR+2} offset0:8 offset1:12")
    k("s_waitcnt lgkmcnt(0)")
    k(f"v_add_f32 v{t}, v{t}, v{t+1}")
    k(f"v_add_f32 v{t+2}, v{t+2}, v{t+3}")
    k(f"v_add_f32 v{t}, v{t}, v{t+2}")
    k(f"v_mul_f32 v{t}, 0x3e0293ee, v{t}")
    k.nop(2)
    k(f"v_mov_b32_dpp v{t+1}, v{t} quad_perm:[1,0,3,2] row_mask:0xf bank_mask:0xf")
    k(f"v_cvt_pk_bf16_f32 v{t}, v{t}, v{t+1}")
    k(f"s_mov_b64 exec, s[{S_M+2}:{S_M+3}]")
    k(f"buffer_store_dword v{t}, v{PADR+1}, {srd(R_WS)}, s{S_TMP+2} offen sc1")
    k(f"s_mov_b64 exec, -1")
    k.stamp(5)


def p_weights_issue(k):
    t = PT
    if K.opt.get("trig", "1") == "1":
        k(f"s_lshl_b32 s{S_TMP}, s{S_H}, 2")
        k(f"s_add_u32 s{S_TMP}, s{S_TMP}, s{S_J}")
        k(f"s_lshl_b32 s{S_TMP}, s{S_TMP}, 6")
        k(f"s_add_u32 s{S_TMP}, s{S_TMP}, {WS_TR}")
        k(f"v_mov_b32 v{t}, 0")
        k(f"s_mov_b64 exec, 1")
        gather_loop(k, "tr", [f"buffer_load_dwordx2 {vr(t+2,2)}, v{t}, {srd(R_WS)}, s{S_TMP} offen sc1"], lambda kk: tag_check(kk, [(t+2, t+3)]), 12)
        k(f"s_mov_b64 exec, -1")
    for par in range(2):
        k(f"v_add_u32 v{t}, {4*par}, v{V_SLAB}")
        k(f"v_lshlrev_b32 v{t}, 1, v{t}")
        k(f"v_xor_b32 v{t}, v{t}, v{V_L15}")
        k(f"v_lshlrev_b32 v{t}, 4, v{t}")
        k(f"v_lshl_add_u32 v{PADR+4+par}, v{V_SLAB}, 13, v{t}")
    k(f"s_mul_i32 s{S_TMP}, s{S_J}, {128*8192}")
    k(f"s_lshl_b32 s{S_TMP+1}, s{S_H}, 8")
    k(f"s_add_u32 s{S_TMP}, s{S_TMP}, s{S_TMP+1}")
    k(f"s_lshl_b32 s{S_TMP+1}, s{S_WAVE}, 18")
    k(f"s_add_u32 s{S_TMP}, s{S_TMP}, s{S_TMP+1}")
    k(f"s_lshl_b32 s{S_TMP+1}, s{S_WAVE}, 13")
    k(f"s_add_u32 s{S_TMP+1}, s{S_TMP+1}, {L_WUV}")
    for ii in range(8):
        k(f"s_mov_b32 m0, s{S_TMP+1}")
        k(f"s_add_u32 s{S_TMP+1}, s{S_TMP+1}, 1024")
        k(f"buffer_load_dwordx4 v{PADR+4+(ii&1)}, {srd(R_B)}, s{S_TMP} offen lds")
        k(f"s_add_u32 s{S_TMP}, s{S_TMP}, {4*8192}")


def p_weights_preread(k):
    t = PT
    k(f"v_lshrrev_b32 v{t}, 2, v{V_L15}")
    k(f"v_and_b32 v{t+1}, 3, v{V_L15}")
    k(f"v_lshl_add_u32 v{t+2}, v{V_SLAB}, 2, v{t}")
    k(f"v_and_b32 v{t+3}, 7, v{t+2}")
    k(f"v_lshlrev_b32 v{t+3}, 1, v{t+3}")
    k(f"v_lshrrev_b32 v{t+4}, 1, v{t+1}")
    k(f"v_and_b32 v{t+5}, 1, v{t+1}")
    k(f"s_lshl_b32 s{S_TMP}, s{S_WAVE}, 2")
    for d in range(2):
        k(f"v_add_u32 v{t+6}, s{S_TMP}, v{t+4}")
        if d:
            k(f"v_add_u32 v{t+6}, 2, v{t+6}")
        k(f"v_xor_b32 v{t+6}, v{t+6}, v{t+3}")
        k(f"v_lshlrev_b32 v{t+6}, 4, v{t+6}")
        k(f"v_lshl_add_u32 v{t+6}, v{t+5}, 3, v{t+6}")
        k(f"v_lshl_add_u32 v{PADR+6+d}, v{t+2}, 8, v{t+6}")
    for d in range(2):
        for kk in range(4):
            r = PWV + (d * 4 + kk) * 4
            k(f"ds_read_b64_tr_b16 {vr(r,2)}, v{PADR+6+d} offset:{L_WUV+kk*8192}")
            k(f"ds_read_b64_tr_b16 {vr(r+2,2)}, v{PADR+6+d} offset:{L_WUV+kk*8192+4096}")


def wo_issue(k):
    t = PT
    k(f"s_mul_i32 s{S_TMP}, s{S_H}, {128*1280}")
    k(f"s_mul_i32 s{S_TMP+1}, s{S_J}, 320")
    k(f"s_add_u32 s{S_TMP}, s{S_TMP}, s{S_TMP+1}")
    k(f"s_mul_i32 s{S_TMP+1}, s{S_WAVE}, 640")
    k(f"v_add_u32 v{t}, s{S_TMP+1}, v{V_LANE}")
    k(f"s_mul_i32 s{S_TMP+1}, s{S_WAVE}, 10240")
    k(f"s_add_u32 s{S_TMP+1}, s{S_TMP+1}, {L_WO5}")
    k(f"s_movk_i32 s{S_TMP+2}, 3277")
    k(f"s_movk_i32 s{S_TMP+3}, 960")
    for ii in range(10):
        k(f"v_mul_u32_u24 v{t+1}, s{S_TMP+2}, v{t}")
        k(f"v_lshrrev_b32 v{t+1}, 16, v{t+1}")
        k(f"v_mul_u32_u24 v{t+1}, s{S_TMP+3}, v{t+1}")
        k(f"v_lshl_add_u32 v{t+2+(ii&1)}, v{t}, 4, v{t+1}")
        k(f"s_mov_b32 m0, s{S_TMP+1}")
        k(f"s_add_u32 s{S_TMP+1}, s{S_TMP+1}, 1024")
        k(f"buffer_load_dwordx4 v{t+2+(ii&1)}, {srd(R_C)}, s{S_TMP} offen lds")
        k(f"v_add_u32 v{t}, 64, v{t}")


def wo_preread(k):
    t = PT
    k(f"v_lshrrev_b32 v{t}, 2, v{V_L15}")
    k(f"v_and_b32 v{t+1}, 3, v{V_L15}")
    k(f"v_lshl_add_u32 v{t+2}, v{V_SLAB}, 2, v{t}")
    k(f"s_lshl_b32 s{S_TMP}, s{S_WAVE}, 5")
    k(f"v_add_u32 v{t+6}, s{S_TMP}, v{t+2}")
    k(f"v_mul_u32_u24 v{t+6}, 320, v{t+6}")
    k(f"v_lshl_add_u32 v{PADR+8}, v{t+1}, 3, v{t+6}")
    k(f"v_add_u32 v{PADR+8}, {L_WO5}, v{PADR+8}")
    for ct in range(10):
        r = PWO + 4 * ct
        k(f"ds_read_b64_tr_b16 {vr(r,2)}, v{PADR+8} offset:{32*ct}")
        k(f"ds_read_b64_tr_b16 {vr(r+2,2)}, v{PADR+8} offset:{32*ct+5120}")


def reduce_bits(k, op, v, tmp):
    for mod in ("quad_perm:[1,0,3,2]", "quad_perm:[2,3,0,1]", "row_half_mirror"):
        k.nop(2)
        k(f"{op}_dpp v{v}, v{v}, v{v} {mod} row_mask:0xf bank_mask:0xf")
    for sw in ("v_permlane16_swap_b32", "v_permlane32_swap_b32"):
        k(f"v_mov_b32 v{tmp}, v{v}")
        k.nop(2)
        k(f"{sw} v{v}, v{tmp}")
        k.nop(1)
        k(f"{op} v{v}, v{v}, v{tmp}")


def stage4_setup(k):
    t = PT
    k(f"v_bfe_u32 v{t}, v{V_LANE}, 3, 1")
    k(f"v_bfe_u32 v{t+1}, v{V_LANE}, 2, 1")
    k(f"v_and_b32 v{t+2}, 3, v{V_LANE}")
    k(f"v_lshlrev_b32 v{t+1}, 4, v{t+1}")
    k(f"v_lshl_add_u32 v{t+1}, v{V_SLAB}, 2, v{t+1}")
    k(f"v_add_u32 v{t+1}, v{t+1}, v{t+2}")
    k(f"v_lshl_add_u32 v{t+1}, v{t}, 5, v{t+1}")
    k(f"v_lshlrev_b32 v{PADR+9}, 3, v{t+1}")
    k(f"v_and_b32 v{t+1}, 1, v{V_LANE}")
    k(f"v_cmp_eq_u32 vcc, 1, v{t+1}")
    k(f"v_mov_b32 v{t+2}, 0xffff")
    k(f"v_mov_b32 v{t+3}, 0xffff0000")
    k(f"v_cndmask_b32 v{t+2}, v{t+2}, v{t+3}, vcc")
    k(f"v_bfe_u32 v{t+1}, v{V_LANE}, 1, 2")
    k(f"v_lshl_add_u32 v{t+1}, v{t}, 2, v{t+1}")
    for i in range(8):
        k(f"v_cmp_eq_u32 vcc, {i}, v{t+1}")
        k.nop(2)
        k(f"v_cndmask_b32 v{PM+i}, 0, v{t+2}, vcc")
    k(f"v_lshlrev_b32 v{PADR+10}, 4, v0")
    k(f"v_lshrrev_b32 v{t}, 4, v0")
    k(f"v_and_b32 v{t+1}, 7, v{t}")
    k(f"v_lshlrev_b32 v{t+1}, 1, v{t+1}")
    k(f"v_xor_b32 v{t+1}, v{t+1}, v{V_L15}")
    k(f"v_lshlrev_b32 v{t+1}, 4, v{t+1}")
    k(f"v_lshl_add_u32 v{t+1}, v{t}, 8, v{t+1}")
    k(f"v_add_u32 v{PADR+11}, {L_AOB}, v{t+1}")
    k(f"v_lshrrev_b32 v{t}, 2, v{V_L15}")
    k(f"v_lshl_add_u32 v{t}, v{V_SLAB}, 2, v{t}")
    k(f"v_and_b32 v{t+1}, 7, v{t}")
    k(f"v_lshlrev_b32 v{t+1}, 1, v{t+1}")
    k(f"v_bfe_u32 v{t+2}, v{V_L15}, 1, 1")
    k(f"v_and_b32 v{t+3}, 1, v{V_L15}")
    k(f"s_lshl_b32 s{S_TMP}, s{S_WAVE}, 2")
    for d in range(2):
        k(f"v_add_u32 v{t+4}, s{S_TMP}, v{t+2}")
        if d:
            k(f"v_add_u32 v{t+4}, 2, v{t+4}")
        k(f"v_xor_b32 v{t+4}, v{t+4}, v{t+1}")
        k(f"v_lshlrev_b32 v{t+4}, 4, v{t+4}")
        k(f"v_lshl_add_u32 v{t+4}, v{t+3}, 3, v{t+4}")
        k(f"v_lshl_add_u32 v{t+4}, v{t}, 8, v{t+4}")
        k(f"v_add_u32 v{PADR+12+d}, {L_AOB}, v{t+4}")
    k(f"v_lshrrev_b32 v{t}, 1, v{V_SLAB}")
    k(f"v_and_b32 v{t+1}, 1, v{V_SLAB}")
    k(f"v_lshlrev_b32 v{t}, 7, v{t}")
    k(f"v_lshl_add_u32 v{t}, v{t+1}, 4, v{t}")
    k(f"v_add_u32 v{t}, v{t}, v{V_L15}")
    k(f"s_lshl_b32 s{S_TMP}, s{S_WAVE}, 5")
    k(f"v_add_u32 v{t}, s{S_TMP}, v{t}")
    k(f"v_lshlrev_b32 v{t}, 1, v{t}")
    k(f"v_add_u32 v{PADR+14}, {L_CTX}, v{t}")
    k(f"v_and_b32 v{t}, 1, v{V_LANE}")
    k(f"v_lshlrev_b32 v{t}, 8, v{t}")
    k(f"v_lshl_add_u32 v{t}, v{V_SLAB}, 4, v{t}")
    k(f"v_add_u32 v{PADR+15}, {L_CTX}, v{t}")


def stage4(k):
    t = PT
    G = PG
    ST = 26
    k(f"s_lshl_b32 s{S_TMP}, s{S_H}, 9")
    k(f"s_add_u32 s{S_TMP}, s{S_TMP}, {WS_ST}")
    k(f"s_lshl_b32 s{S_TMP+1}, s{S_H}, 2")
    k(f"s_add_u32 s{S_TMP+1}, s{S_TMP+1}, s{S_J}")
    k(f"s_lshl_b32 s{S_TMP+2}, s{S_TMP+1}, 14")
    k(f"s_add_u32 s{S_TMP+2}, s{S_TMP+2}, {WS_AO}")
    for n in range(1, 4):
        k(f"s_add_u32 s{S_TMP+2+n}, s{S_TMP+2}, {4096*n}")
    gather_check_loop(k, "st", [f"buffer_load_dwordx2 {vr(ST,2)}, v{PADR+9}, {srd(R_WS)}, s{S_TMP} offen sc1"], [ST, ST + 1], 7)
    loads = [f"buffer_load_dwordx4 {vr(G+4*n,4)}, v{PADR+10}, {srd(R_WS)}, s{S_TMP+2+n} offen sc1" for n in range(4)]
    for l in loads:
        k(l)
    M = t + 8
    k(f"v_mov_b32 v{M}, v{ST}")
    reduce_bits(k, "v_max_f32", M, t + 9)
    k(f"v_sub_f32 v{t}, v{ST}, v{M}")
    k(f"v_exp_f32 v{t}, v{t}")
    k.nop(1)
    k(f"v_cvt_pk_bf16_f32 v{t}, v{t}, v{t}")
    for i in range(8):
        k(f"v_and_b32 v{PA+i}, v{t}, v{PM+i}")
    k(f"v_and_b32 v{t+1}, 0xffff0000, v{t}")
    k(f"v_mul_f32 v{t+1}, v{t+1}, v{ST+1}")
    reduce_bits(k, "v_add_f32", t + 1, t + 9)
    k(f"v_rcp_f32 v{t+1}, v{t+1}")
    k.nop(1)
    k(f"v_readlane_b32 s{S_TMP+6}, v{t+1}, 0")
    k(f"v_readlane_b32 s{S_TMP+7}, v{t+1}, 8")
    k(f"v_cmp_le_u32 vcc, 32, v{V_LANE}")
    k.nop(1)
    k(f"v_mov_b32 v{t+2}, s{S_TMP+6}")
    k(f"v_mov_b32 v{t+3}, s{S_TMP+7}")
    k(f"v_cndmask_b32 v{t+2}, v{t+2}, v{t+3}, vcc")
    gather_check_loop(k, "ao", loads, list(range(G, G + 16)), 8, preissued=True)
    for n in range(4):
        k(f"ds_write_b128 v{PADR+11}, {vr(G+4*n,4)} offset:{4096*n}")
    k("s_waitcnt lgkmcnt(0)")
    k("s_barrier")
    B = PD + 8
    for d in range(2):
        for bb in range(2):
            r = B + (d * 2 + bb) * 4
            k(f"ds_read_b64_tr_b16 {vr(r,2)}, v{PADR+12+d} offset:{bb*8192}")
            k(f"ds_read_b64_tr_b16 {vr(r+2,2)}, v{PADR+12+d} offset:{bb*8192+4096}")
    for d in range(2):
        k(f"s_waitcnt lgkmcnt({4-4*d})")
        k(f"v_mfma_f32_16x16x32_bf16 {vr(PD+4*d,4)}, {vr(PA,4)}, {vr(B+(d*2)*4,4)}, 0")
        k(f"v_mfma_f32_16x16x32_bf16 {vr(PD+4*d,4)}, {vr(PA+4,4)}, {vr(B+(d*2+1)*4,4)}, {vr(PD+4*d,4)}")
    k.nop(8)
    for d in range(2):
        k(f"v_add_f32 v{PD+4*d}, v{PD+4*d}, v{PD+4*d+1}")
        k(f"v_add_f32 v{PD+4*d+2}, v{PD+4*d+2}, v{PD+4*d+3}")
    for d in range(2):
        k(f"v_add_f32 v{PD+4*d}, v{PD+4*d}, v{PD+4*d+2}")
    k.nop(2)
    k(f"v_permlane16_swap_b32 v{PD}, v{PD+4}")
    k.nop(1)
    k(f"v_add_f32 v{PD}, v{PD}, v{PD+4}")
    k(f"v_mul_f32 v{PD}, v{PD}, v{t+2}")
    k(f"v_cvt_pk_bf16_f32 v{PD}, v{PD}, v{PD}")
    k(f"ds_write_b16 v{PADR+14}, v{PD}")
    k("s_waitcnt lgkmcnt(0)")
    k("s_barrier")
    for kk in range(4):
        k(f"ds_read_b128 {vr(PA+4*kk,4)}, v{PADR+15} offset:{64*kk}")
    k(f"v_lshrrev_b32 v{t}, 2, v{V_L15}")
    k(f"v_lshlrev_b32 v{t}, 3, v{t}")
    k(f"v_and_b32 v{t+1}, 1, v{V_SLAB}")
    k(f"v_lshl_add_u32 v{t}, v{t+1}, 2, v{t}")
    k(f"v_and_b32 v{t+1}, 2, v{V_L15}")
    k(f"v_add_u32 v{t}, v{t}, v{t+1}")
    k(f"v_lshrrev_b32 v{t+1}, 1, v{V_SLAB}")
    k(f"v_lshl_add_u32 v{t}, v{t+1}, 7, v{t}")
    k(f"v_lshlrev_b32 v{t}, 1, v{t}")
    k(f"s_lshl_b32 s{S_TMP}, s{S_H}, 2")
    k(f"s_add_u32 s{S_TMP}, s{S_TMP}, s{S_J}")
    k(f"s_lshl_b32 s{S_TMP}, s{S_TMP}, 9")
    k(f"s_lshl_b32 s{S_TMP+1}, s{S_WAVE}, 6")
    k(f"s_add_u32 s{S_TMP}, s{S_TMP}, s{S_TMP+1}")
    k(f"s_add_u32 s{S_TMP}, s{S_TMP}, {WS_CP}")
    k(f"s_mov_b32 s{S_M+2}, 0xffff0000")
    k(f"s_mov_b32 s{S_M+3}, 0xffff0000")
    k(f"s_mov_b32 s{S_M+4}, 0")
    k(f"s_mov_b32 s{S_M+5}, -1")
    k(f"s_mov_b32 s{S_M+6}, 0x55555555")
    k(f"s_mov_b32 s{S_M+7}, 0x55555555")
    for kk in range(4):
        k(f"s_waitcnt lgkmcnt({3-kk})")
        for d in range(2):
            c = "0" if kk == 0 else vr(PD + 4 * d, 4)
            k(f"v_mfma_f32_16x16x32_bf16 {vr(PD+4*d,4)}, {vr(PA+4*kk,4)}, {vr(PWV+(d*4+kk)*4,4)}, {c}")
    k.nop(8)
    k(f"v_cndmask_b32 v{t+2}, v{PD}, v{PD+4}, s[{S_M+2}:{S_M+3}]")
    k(f"v_cndmask_b32 v{t+3}, v{PD+1}, v{PD+5}, s[{S_M+2}:{S_M+3}]")
    k(f"v_cndmask_b32 v{t+2}, v{t+2}, v{t+3}, s[{S_M+4}:{S_M+5}]")
    k.nop(2)
    k(f"v_mov_b32_dpp v{t+3}, v{t+2} quad_perm:[1,0,3,2] row_mask:0xf bank_mask:0xf")
    k(f"v_cvt_pk_bf16_f32 v{t+2}, v{t+2}, v{t+3}")
    k(f"s_mov_b64 exec, s[{S_M+6}:{S_M+7}]")
    k(f"buffer_store_dword v{t+2}, v{t}, {srd(R_WS)}, s{S_TMP} offen sc1")
    k(f"s_mov_b64 exec, -1")
    k.stamp(9)


def stage5(k):
    t = PT
    k(f"v_and_b32 v{t}, 3, v{V_L15}")
    k(f"v_lshlrev_b32 v{t}, 9, v{t}")
    k(f"v_bfe_u32 v{t+1}, v{V_L15}, 2, 1")
    k(f"v_lshl_add_u32 v{t}, v{t+1}, 8, v{t}")
    k(f"v_lshl_add_u32 v{PADR}, v{V_SLAB}, 4, v{t}")
    k(f"s_lshl_b32 s{S_TMP}, s{S_H}, 11")
    k(f"s_lshl_b32 s{S_TMP+1}, s{S_WAVE}, 6")
    k(f"s_add_u32 s{S_TMP}, s{S_TMP}, s{S_TMP+1}")
    k(f"s_add_u32 s{S_TMP}, s{S_TMP}, {WS_CP}")
    k(f"v_lshrrev_b32 v{t}, 1, v{V_SLAB}")
    k(f"v_lshlrev_b32 v{t}, 4, v{t}")
    k(f"v_add_u32 v{t}, v{t}, v{V_L15}")
    k(f"v_lshlrev_b32 v{t}, 3, v{t}")
    k(f"v_and_b32 v{t+1}, 1, v{V_SLAB}")
    k(f"v_lshl_add_u32 v{PADR+1}, v{t+1}, 2, v{t}")
    k(f"s_mul_i32 s{S_TMP+1}, s{S_H}, 5120")
    k(f"s_mul_i32 s{S_TMP+2}, s{S_J}, 1280")
    k(f"s_add_u32 s{S_TMP+1}, s{S_TMP+1}, s{S_TMP+2}")
    k(f"s_add_u32 s{S_TMP+1}, s{S_TMP+1}, {WS_SP}")
    k(f"s_lshl_b32 s{S_TMP+2}, s{S_WAVE}, 8")
    k(f"s_add_u32 s{S_TMP+2}, s{S_TMP+2}, s{S_TMP+1}")
    k(f"s_add_u32 s{S_TMP+1}, s{S_TMP+1}, 1024")
    k(f"v_lshlrev_b32 v{t}, 2, v{V_LANE}")
    k(f"s_mul_i32 s{S_TMP+3}, s{S_WAVE}, 1280")
    k(f"s_add_u32 s{S_TMP+3}, s{S_TMP+3}, {L_RED5}")
    k(f"v_add_u32 v{PADR+3}, s{S_TMP+3}, v{t}")
    k(f"s_lshl_b32 s{S_TMP+3}, s{S_WAVE}, 8")
    k(f"s_add_u32 s{S_TMP+3}, s{S_TMP+3}, {L_RED5}")
    k(f"v_add_u32 v{PADR+2}, s{S_TMP+3}, v{t}")
    k(f"v_add_u32 v{PADR+4}, {L_RED5+1024}, v{t}")
    k(f"s_mov_b32 s{S_M+4}, 0")
    k(f"s_mov_b32 s{S_M+5}, -1")
    loads = [f"buffer_load_dwordx4 {vr(PG,4)}, v{PADR}, {srd(R_WS)}, s{S_TMP} offen sc1"]
    gather_check_loop(k, "cp", loads, [PG, PG + 1, PG + 2, PG + 3], 10)
    for ct in range(10):
        k(f"v_mfma_f32_16x16x32_bf16 {vr(PD+4*ct,4)}, {vr(PG,4)}, {vr(PWO+4*ct,4)}, 0")
    for ct in range(10):
        k(f"v_add_f32 v{PD+4*ct}, v{PD+4*ct}, v{PD+4*ct+1}")
        k(f"v_add_f32 v{PD+4*ct+2}, v{PD+4*ct+2}, v{PD+4*ct+3}")
        k(f"v_add_f32 v{PD+4*ct}, v{PD+4*ct}, v{PD+4*ct+2}")
    for u in range(5):
        k(f"v_cndmask_b32 v{PY+u}, v{PD+8*u}, v{PD+8*u+4}, s[{S_M+4}:{S_M+5}]")
    k(f"ds_write2st64_b32 v{PADR+3}, v{PY}, v{PY+1} offset0:0 offset1:1")
    k(f"ds_write2st64_b32 v{PADR+3}, v{PY+2}, v{PY+3} offset0:2 offset1:3")
    k(f"ds_write_b32 v{PADR+3}, v{PY+4} offset:1024")
    k("s_waitcnt lgkmcnt(0)")
    k("s_barrier")
    k(f"ds_read2st64_b32 {vr(t,2)}, v{PADR+2} offset0:0 offset1:5")
    k(f"ds_read2st64_b32 {vr(t+2,2)}, v{PADR+2} offset0:10 offset1:15")
    k(f"ds_read2st64_b32 {vr(t+4,2)}, v{PADR+4} offset0:0 offset1:5")
    k(f"ds_read2st64_b32 {vr(t+6,2)}, v{PADR+4} offset0:10 offset1:15")
    k("s_waitcnt lgkmcnt(2)")
    k(f"v_add_f32 v{t}, v{t}, v{t+1}")
    k(f"v_add_f32 v{t+2}, v{t+2}, v{t+3}")
    k(f"v_add_f32 v{t}, v{t}, v{t+2}")
    k(f"buffer_store_dword v{t}, v{PADR+1}, {srd(R_WS)}, s{S_TMP+2} offen sc1")
    skip = k.label("s5skip")
    k(f"s_cmp_eq_u32 s{S_WAVE}, 0")
    k(f"s_cbranch_scc0 {skip}")
    k("s_waitcnt lgkmcnt(0)")
    k(f"v_add_f32 v{t+4}, v{t+4}, v{t+5}")
    k(f"v_add_f32 v{t+6}, v{t+6}, v{t+7}")
    k(f"v_add_f32 v{t+4}, v{t+4}, v{t+6}")
    k(f"buffer_store_dword v{t+4}, v{PADR+1}, {srd(R_WS)}, s{S_TMP+1} offen sc1")
    k(f"{skip}:")
    k.stamp(11)


S_U = 73 + 7
BQ = 10
BG = 74
BD = 90
BS = 122
BP = 130
BL = 146
BADR = 150
BT = 166
BONE = 186
BAC = 190
BTR = 192
BWF = 194
S_WFL, S_WFO, S_WFS = 17, 22, 23
AOT_RS = 272
L_AOT = 98304
S_AC = 14 + 2
FIRSTWAIT_AC = 1
S_B, S_G, S_UU = 66, 67, 68


def b_roles(k):
    k(f"s_sub_u32 s{S_JP}, s{S_J}, 4")
    k(f"s_and_b32 s{S_G}, s{S_JP}, 1")
    k(f"s_lshr_b32 s{S_B}, s{S_JP}, 1")
    k(f"s_lshl_b32 s{S_UU}, s{S_JP}, 5")
    k(f"s_add_u32 s{S_UU}, s{S_UU}, s{S_H}")
    k(f"s_and_b32 s{S_F}, s{S_UU}, 63")
    k(f"s_lshr_b32 s{S_TMP}, s{S_UU}, 6")
    k(f"s_add_u32 s{S_ROLE}, s{S_TMP}, 1")
    k(f"s_cmp_lt_u32 s{S_F}, {NF}")
    k(f"s_cselect_b32 s{S_ROLE}, s{S_ROLE}, 3")
    k(f"s_mul_i32 s{S_TMP}, s{S_TMP}, 10")
    k(f"s_add_u32 s{S_Z}, s{S_F}, s{S_TMP}")
    k(f"s_sub_u32 s{S_Z}, s{S_Z}, {NF}")


def clears_B(k):
    t = V_T + 4
    neg = vr(V_NEG1, 4)
    k(f"v_lshlrev_b32 v{t}, 4, v{V_LANE}")
    k(f"s_lshl_b32 s{S_TMP}, s{S_H}, 2")
    k(f"s_add_u32 s{S_TMP}, s{S_TMP}, s{S_JP}")
    k(f"s_lshl_b32 s{S_TMP}, s{S_TMP}, 14")
    k(f"s_add_u32 s{S_TMP}, s{S_TMP}, {WS_AO}")
    k(f"s_mul_i32 s{S_TMP+1}, s{S_WAVE}, 5120")
    k(f"s_add_u32 s{S_TMP}, s{S_TMP}, s{S_TMP+1}")
    k(f"s_sub_u32 s{S_TMP}, s{S_TMP}, 4096")
    for i in range(5):
        off = i * 1024
        if i == 4:
            k(f"s_add_u32 s{S_TMP}, s{S_TMP}, 4096")
            off = 0
        k(f"buffer_store_dwordx4 {neg}, v{t}, {srd(R_WS)}, s{S_TMP} offen offset:{off} sc1")
    sk = k.label("cb")
    k(f"s_cmp_eq_u32 s{S_WAVE}, 1")
    k(f"s_cbranch_scc0 {sk}_2")
    k(f"s_sub_u32 s{S_TMP}, s{S_TMP}, 5120")
    k(f"buffer_store_dwordx4 {neg}, v{t}, {srd(R_WS)}, s{S_TMP} offen sc1")
    k(f"s_branch {sk}")
    k(f"{sk}_2:")
    k(f"s_cmp_eq_u32 s{S_WAVE}, 2")
    k(f"s_cbranch_scc0 {sk}")
    k(f"s_cmp_eq_u32 s{S_ROLE}, 2")
    k(f"s_cbranch_scc0 {sk}")
    k(f"s_mul_i32 s{S_TMP}, s{S_F}, 5120")
    k(f"s_add_u32 s{S_TMP}, s{S_TMP}, {WS_FP}")
    for i in range(5):
        off = i * 1024
        if i == 4:
            k(f"s_add_u32 s{S_TMP}, s{S_TMP}, 4096")
            off = 0
        k(f"buffer_store_dwordx4 {neg}, v{t}, {srd(R_WS)}, s{S_TMP} offen offset:{off} sc1")
    k(f"{sk}:")


def tag_store(k, base, shift, treg):
    k(f"s_lshl_b32 s{S_TMP+3}, s{S_H}, 2")
    k(f"s_add_u32 s{S_TMP+3}, s{S_TMP+3}, s{S_JP}")
    k(f"s_lshl_b32 s{S_TMP+3}, s{S_TMP+3}, {shift}")
    k(f"s_add_u32 s{S_TMP+3}, s{S_TMP+3}, {base}")
    k(f"v_mov_b32 v{treg}, s{S_T0}")
    k(f"v_mov_b32 v{treg+1}, s{S_T1}")
    k(f"v_mov_b32 v{treg+2}, 0")
    k(f"s_mov_b64 exec, 1")
    k(f"buffer_store_dwordx2 {vr(treg,2)}, v{treg+2}, {srd(R_WS)}, s{S_TMP+3} offen sc1")
    k(f"s_mov_b64 exec, -1")


def ac_publish(k):
    sk = k.label("acp")
    k(f"s_cmp_eq_u32 s{S_WAVE}, 1")
    k(f"s_cbranch_scc0 {sk}")
    tag_store(k, WS_AC, 3, BT + 2)
    k(f"{sk}:")


def ckv_issue(k):
    t = V_T + 4
    k(f"s_lshl_b32 s{S_TMP}, s{S_B}, 12")
    k(f"s_lshl_b32 s{S_TMP+1}, s{S_H}, 7")
    k(f"s_add_u32 s{S_TMP}, s{S_TMP}, s{S_TMP+1}")
    k(f"s_lshl_b32 s{S_TMP+1}, s{S_WAVE}, 5")
    k(f"s_add_u32 s{S_TMP}, s{S_TMP}, s{S_TMP+1}")
    k(f"s_lshl_b32 s{S_TMP}, s{S_TMP}, 10")
    k(f"s_mul_i32 s{S_TMP+1}, s{S_WAVE}, {32*RS}")
    k(f"s_add_u32 s{S_TMP+1}, s{S_TMP+1}, {L_CKV}")
    k(f"v_lshlrev_b32 v{t}, 4, v{V_LANE}")
    k(f"v_lshrrev_b32 v{t+1}, 2, v{V_LANE}")
    k(f"v_lshlrev_b32 v{t+1}, 13, v{t+1}")
    k(f"v_and_b32 v{BT}, 3, v{V_LANE}")
    k(f"v_lshl_add_u32 v{BADR+14}, v{BT}, 10, v{t+1}")
    k(f"s_lshl_b32 s{S_TMP+2}, s{S_G}, 17")
    k(f"s_add_u32 s{S_TMP+2}, s{S_TMP+2}, {WS_QP}")
    k(f"v_lshlrev_b32 v{BADR+15}, 3, v{V_LANE}")
    k(f"s_lshl_b32 s{S_AC}, s{S_G}, 9")
    k(f"s_add_u32 s{S_AC}, s{S_AC}, {WS_AC}")
    k(f"s_mul_i32 s{S_TMP+3}, s{S_G}, {16*1024}")
    k(f"s_add_u32 s{S_TMP}, s{S_TMP}, s{S_TMP+3}")
    k(f"s_mul_i32 s{S_TMP+3}, s{S_G}, {16*RS}")
    k(f"s_add_u32 s{S_TMP+1}, s{S_TMP+1}, s{S_TMP+3}")
    for r in range(32):
        if r == 24:
            k(flag_load())
            k(ac_load())
        if r == 16:
            k(f"s_mul_i32 s{S_TMP+3}, s{S_G}, {32*1024}")
            k(f"s_sub_u32 s{S_TMP}, s{S_TMP}, s{S_TMP+3}")
            k(f"s_mul_i32 s{S_TMP+3}, s{S_G}, {32*RS}")
            k(f"s_sub_u32 s{S_TMP+1}, s{S_TMP+1}, s{S_TMP+3}")
        k(f"s_mov_b32 m0, s{S_TMP+1}")
        k(f"s_add_u32 s{S_TMP+1}, s{S_TMP+1}, {RS}")
        k(f"buffer_load_dwordx4 v{t}, {srd(R_A)}, s{S_TMP} offen lds")
        k(f"s_add_u32 s{S_TMP}, s{S_TMP}, 1024")
    tag_store(k, WS_TR, 6, BT + 2)


def flag_load():
    return f"buffer_load_dwordx4 {vr(BG,4)}, v{BADR+14}, {srd(R_WS)}, s{S_TMP+2} offen sc1"


def ac_load():
    return f"buffer_load_dwordx2 {vr(BAC,2)}, v{BADR+15}, {srd(R_WS)}, s{S_AC} offen sc1"


def flags_poll(k):
    gather_loop(k, "fl", [flag_load(), ac_load()], lambda kk: tag_check(kk, [(BG+2, BG+3), (BAC, BAC+1)]), 14, preissued=True, firstwait=9)


def attention(k):
    t = BT
    k(f"s_lshl_b32 s{S_TMP}, s{S_WAVE}, 5")
    k(f"v_add_u32 v{t}, s{S_TMP}, v{V_L15}")
    k(f"v_mul_u32_u24 v{t}, {RS}, v{t}")
    k(f"v_lshl_add_u32 v{t}, v{V_SLAB}, 8, v{t}")
    k(f"v_and_b32 v{t+1}, 1, v{V_SLAB}")
    k(f"v_lshlrev_b32 v{t+1}, 4, v{t+1}")
    k(f"v_add_u32 v{BADR}, v{t}, v{t+1}")
    k(f"v_sub_u32 v{BADR+1}, v{t}, v{t+1}")
    k(f"v_mul_u32_u24 v{t}, {RS}, v{V_L15}")
    k(f"v_lshl_add_u32 v{t}, v{V_SLAB}, 8, v{t}")
    k(f"v_add_u32 v{t}, {L_QB}, v{t}")
    k(f"v_add_u32 v{BADR+2}, v{t}, v{t+1}")
    k(f"v_sub_u32 v{BADR+3}, v{t}, v{t+1}")
    k(f"v_lshrrev_b32 v{t}, 2, v{V_L15}")
    k(f"v_lshl_add_u32 v{t}, v{V_SLAB}, 2, v{t}")
    k(f"v_mul_u32_u24 v{t}, {RS}, v{t}")
    k(f"v_and_b32 v{t+1}, 3, v{V_L15}")
    k(f"v_lshl_add_u32 v{t}, v{t+1}, 3, v{t}")
    k(f"s_lshl_b32 s{S_TMP}, s{S_WAVE}, 8")
    k(f"v_add_u32 v{BADR+4}, s{S_TMP}, v{t}")
    k(f"v_add_u32 v{BADR+5}, {64*RS}, v{BADR+4}")
    k(f"v_lshlrev_b32 v{BADR+6}, 4, v0")
    k(f"s_mul_i32 s{S_TMP}, s{S_WAVE}, {RS}")
    k(f"s_add_u32 s{S_TMP}, s{S_TMP}, {L_QB}")
    k(f"v_lshlrev_b32 v{t}, 4, v{V_LANE}")
    k(f"v_add_u32 v{BADR+7}, s{S_TMP}, v{t}")
    k(f"v_lshlrev_b32 v{t+1}, 2, v{V_LANE}")
    k(f"s_lshl_b32 s{S_TMP}, s{S_WAVE}, 8")
    k(f"s_add_u32 s{S_TMP}, s{S_TMP}, {L_MX}")
    k(f"v_add_u32 v{BADR+8}, s{S_TMP}, v{t+1}")
    k(f"v_add_u32 v{BADR+9}, {L_MX}, v{t+1}")
    k(f"s_lshl_b32 s{S_TMP}, s{S_WAVE}, 10")
    k(f"s_add_u32 s{S_TMP}, s{S_TMP}, {L_PB}")
    k(f"v_add_u32 v{BADR+10}, s{S_TMP}, v{t}")
    k(f"v_add_u32 v{BADR+11}, {L_PB}, v{t}")
    k(f"s_mul_i32 s{S_TMP}, s{S_WAVE}, {16*AOT_RS}")
    k(f"s_add_u32 s{S_TMP}, s{S_TMP}, {L_AOT}")
    k(f"v_mul_u32_u24 v{t}, {AOT_RS}, v{V_L15}")
    k(f"v_lshl_add_u32 v{t}, v{V_SLAB}, 4, v{t}")
    k(f"v_add_u32 v{BADR+12}, s{S_TMP}, v{t}")
    k(f"v_mul_u32_u24 v{t}, {AOT_RS}, v{V_SLAB}")
    k(f"v_lshl_add_u32 v{t}, v{V_L15}, 4, v{t}")
    k(f"v_add_u32 v{BTR}, s{S_TMP}, v{t}")
    k(f"v_lshlrev_b32 v{t}, 16, v{V_SLAB}")
    k(f"v_lshl_add_u32 v{BTR+1}, v{V_L15}, 4, v{t}")
    k(f"v_lshlrev_b32 v{BADR+13}, 9, v{V_L15}")
    for i in range(4):
        k(f"v_mov_b32 v{BONE+i}, 0x3f803f80")
    k(f"s_lshl_b32 s{S_TMP}, s{S_B}, 15")
    k(f"s_lshl_b32 s{S_TMP+1}, s{S_G}, 14")
    k(f"s_add_u32 s{S_TMP}, s{S_TMP}, s{S_TMP+1}")
    k(f"s_add_u32 s{S_TMP}, s{S_TMP}, {WS_QA}")
    for n in range(1, 4):
        k(f"s_add_u32 s{S_TMP+n}, s{S_TMP}, {4096*n}")
    loads = [f"buffer_load_dwordx4 {vr(BG+4*n,4)}, v{BADR+6}, {srd(R_WS)}, s{S_TMP+n} offen sc1" for n in range(4)]
    for l in loads:
        k(l)
    k("s_waitcnt vmcnt(5)")
    k.stamp(4)
    for p in range(2):
        for i in range(16):
            k(f"ds_read_b128 {ar((p*16+i)*4,4)}, v{BADR+(i&1)} offset:{L_CKV+p*16*RS+i*16}")
    k("s_barrier")
    for tt in range(8):
        for u in range(4):
            r = 128 + (tt * 4 + u) * 4
            base = BADR + 4 + (u >> 1)
            off = (u & 1) * 32 * RS + 32 * tt
            k(f"ds_read_b64_tr_b16 {ar(r,2)}, v{base} offset:{L_CKV+off}")
            k(f"ds_read_b64_tr_b16 {ar(r+2,2)}, v{base} offset:{L_CKV+off+16*RS}")
    gather_check_loop(k, "qa", loads, list(range(BG, BG + 16)), 5, preissued=True)
    for n in range(4):
        k(f"ds_write_b128 v{BADR+7}, {vr(BG+4*n,4)} offset:{4*n*RS}")
    k("s_waitcnt lgkmcnt(0)")
    k("s_barrier")
    for i in range(16):
        k(f"ds_read_b128 {vr(BQ+4*i,4)}, v{BADR+2+(i&1)} offset:{i*16}")
    for i in range(16):
        k(f"s_waitcnt lgkmcnt({15-i})")
        for p in range(2):
            c = "0" if i == 0 else vr(BS + 4 * p, 4)
            k(f"v_mfma_f32_16x16x32_bf16 {vr(BS+4*p,4)}, {ar((p*16+i)*4,4)}, {vr(BQ+4*i,4)}, {c}")
        if i < 10 and not K.opt.get("nowf"):
            k(f"s_mov_b32 m0, s{S_WFL}")
            k(f"s_add_u32 s{S_WFL}, s{S_WFL}, 1024")
            k(f"buffer_load_dwordx4 v{BWF}, {srd(R_B)}, s{S_WFO} offen lds")
            k(f"s_add_u32 s{S_WFO}, s{S_WFO}, s{S_WFS}")
    k.nop(8)
    k.stamp(6)
    k(f"v_max3_f32 v{t}, v{BS}, v{BS+1}, v{BS+2}")
    k(f"v_max3_f32 v{t+1}, v{BS+3}, v{BS+4}, v{BS+5}")
    k(f"v_max3_f32 v{t}, v{t}, v{BS+6}, v{BS+7}")
    k(f"v_max_f32 v{t}, v{t}, v{t+1}")
    for sw in ("v_permlane16_swap_b32", "v_permlane32_swap_b32"):
        k(f"v_mov_b32 v{t+1}, v{t}")
        k.nop(2)
        k(f"{sw} v{t}, v{t+1}")
        k.nop(1)
        k(f"v_max_f32 v{t}, v{t}, v{t+1}")
    k(f"ds_write_b32 v{BADR+8}, v{t}")
    k("s_waitcnt lgkmcnt(0)")
    k("s_barrier")
    k(f"ds_read2st64_b32 {vr(t,2)}, v{BADR+9} offset0:0 offset1:1")
    k(f"ds_read2st64_b32 {vr(t+2,2)}, v{BADR+9} offset0:2 offset1:3")
    k("s_waitcnt lgkmcnt(0)")
    k(f"v_max3_f32 v{t}, v{t}, v{t+1}, v{t+2}")
    k(f"v_max_f32 v{t+4}, v{t}, v{t+3}")
    for i in range(8):
        k(f"v_sub_f32 v{BS+i}, v{BS+i}, v{t+4}")
    for i in range(8):
        k(f"v_exp_f32 v{BS+i}, v{BS+i}")
    k.nop(1)
    for i in range(4):
        k(f"v_cvt_pk_bf16_f32 v{t+i}, v{BS+2*i}, v{BS+2*i+1}")
    k(f"ds_write_b128 v{BADR+10}, {vr(t,4)}")
    k("s_waitcnt lgkmcnt(0)")
    k("s_barrier")
    k.stamp(7)
    for u in range(4):
        k(f"ds_read_b128 {vr(BP+4*u,4)}, v{BADR+11} offset:{1024*u}")
    k(f"s_lshl_b32 s{S_TMP}, s{S_G}, 20")
    k(f"s_lshl_b32 s{S_TMP+1}, s{S_WAVE}, 14")
    k(f"s_add_u32 s{S_TMP}, s{S_TMP}, s{S_TMP+1}")
    k(f"s_lshl_b32 s{S_TMP+1}, s{S_B}, 5")
    k(f"s_add_u32 s{S_TMP+1}, s{S_TMP+1}, s{S_H}")
    k(f"s_lshl_b32 s{S_TMP+2}, s{S_TMP+1}, 8")
    k(f"s_add_u32 s{S_TMP}, s{S_TMP}, s{S_TMP+2}")
    k(f"s_add_u32 s{S_TMP}, s{S_TMP}, {WS_AO}")
    k(f"s_lshl_b32 s{S_TMP+1}, s{S_TMP+1}, 3")
    k(f"s_lshl_b32 s{S_TMP+2}, s{S_G}, 13")
    k(f"s_add_u32 s{S_TMP+1}, s{S_TMP+1}, s{S_TMP+2}")
    k(f"s_add_u32 s{S_TMP+1}, s{S_TMP+1}, {WS_ST}")
    for u in range(4):
        k(f"s_waitcnt lgkmcnt({3-u})")
        c = "0" if u == 0 else vr(BL, 4)
        k(f"v_mfma_f32_16x16x32_bf16 {vr(BL,4)}, {vr(BONE,4)}, {vr(BP+4*u,4)}, {c}")
    for u in range(4):
        for tt in range(8):
            c = "0" if u == 0 else vr(BD + 4 * tt, 4)
            k(f"v_mfma_f32_16x16x32_bf16 {vr(BD+4*tt,4)}, {ar(128+(tt*4+u)*4,4)}, {vr(BP+4*u,4)}, {c}")
        if u == 0:
            skip = k.label("stskip")
            k(f"v_mov_b32 v{t+5}, v{BL}")
            k(f"s_cmp_eq_u32 s{S_WAVE}, 0")
            k(f"s_cbranch_scc0 {skip}")
            k(f"s_mov_b64 exec, 0xffff")
            k(f"buffer_store_dwordx2 {vr(t+4,2)}, v{BADR+13}, {srd(R_WS)}, s{S_TMP+1} offen sc1")
            k(f"s_mov_b64 exec, -1")
            k.nop(4)
            k(f"{skip}:")
    k.nop(2)
    for up in range(4):
        r = BQ + 4 * up
        k(f"v_cvt_pk_bf16_f32 v{r}, v{BD+8*up}, v{BD+8*up+1}")
        k(f"v_cvt_pk_bf16_f32 v{r+1}, v{BD+8*up+2}, v{BD+8*up+3}")
        k(f"v_cvt_pk_bf16_f32 v{r+2}, v{BD+8*up+4}, v{BD+8*up+5}")
        k(f"v_cvt_pk_bf16_f32 v{r+3}, v{BD+8*up+6}, v{BD+8*up+7}")
        k(f"ds_write_b128 v{BADR+12}, {vr(r,4)} offset:{64*up}")
    for n in range(4):
        k("s_waitcnt lgkmcnt(0)") if n == 0 else None
        k(f"ds_read_b128 {vr(BQ+16+4*n,4)}, v{BTR} offset:{4*n*AOT_RS}")
    for n in range(4):
        k(f"s_waitcnt lgkmcnt({3-n})")
        k(f"buffer_store_dwordx4 {vr(BQ+16+4*n,4)}, v{BTR+1}, {srd(R_WS)}, s{S_TMP} offen sc1")
        if n < 3:
            k(f"s_add_u32 s{S_TMP}, s{S_TMP}, {4*65536}")
    k.stamp(8)
    if K.opt.get("aoack"):
        k("s_waitcnt vmcnt(0)")
        k.stamp(17)


def silu(k, v, t):
    k(f"v_mul_f32 v{t}, 0xbfb8aa3b, v{v}")
    k(f"v_exp_f32 v{t}, v{t}")
    k.nop(1)
    k(f"v_add_f32 v{t}, 1.0, v{t}")
    k(f"v_rcp_f32 v{t}, v{t}")
    k.nop(1)
    k(f"v_mul_f32 v{v}, v{v}, v{t}")


def round_bf16(k, v):
    k(f"v_cvt_pk_bf16_f32 v{v}, v{v}, v{v}")
    k(f"v_and_b32 v{v}, 0xffff0000, v{v}")


FW1 = 10
FW2 = 50
FX = 90
FD = 110
FH = 150
FADR = 176
FT = 166


def wf_setup(k):
    t = BT
    r1, done = k.label("wf1"), k.label("wfd")
    k(f"s_mul_i32 s{S_WFL}, s{S_WAVE}, 10240")
    k(f"s_add_u32 s{S_WFL}, s{S_WFL}, {L_WF}")
    k(f"s_cmp_eq_u32 s{S_ROLE}, 1")
    k(f"s_cbranch_scc1 {r1}")
    k.srd(R_B, S_W2, 1728 * 640 * 2)
    k(f"s_cmp_eq_u32 s{S_ROLE}, 2")
    k(f"s_cselect_b32 s{R_B+2}, {1728 * 640 * 2}, 0")
    k(f"v_lshlrev_b32 v{BWF}, 4, v{V_LANE}")
    k(f"s_mul_i32 s{S_WFO}, s{S_F}, 40960")
    k(f"s_mul_i32 s{S_TMP}, s{S_WAVE}, 10240")
    k(f"s_add_u32 s{S_WFO}, s{S_WFO}, s{S_TMP}")
    k(f"s_mov_b32 s{S_WFS}, 1024")
    k(f"s_branch {done}")
    k(f"{r1}:")
    k.srd(R_B, S_W1, 640 * 1728 * 2)
    k(f"v_lshrrev_b32 v{t}, 2, v{V_LANE}")
    k(f"v_mul_u32_u24 v{t}, 3456, v{t}")
    k(f"v_and_b32 v{t+1}, 3, v{V_LANE}")
    k(f"v_lshl_add_u32 v{BWF}, v{t+1}, 4, v{t}")
    k(f"s_mul_i32 s{S_WFO}, s{S_WAVE}, {160*3456}")
    k(f"s_lshl_b32 s{S_TMP}, s{S_F}, 6")
    k(f"s_add_u32 s{S_WFO}, s{S_WFO}, s{S_TMP}")
    k(f"s_mov_b32 s{S_WFS}, {16*3456}")
    k(f"{done}:")


def ffn1(k):
    t = FT
    k(f"v_and_b32 v{t}, 1, v{V_LANE}")
    k(f"v_mul_u32_u24 v{t}, 1280, v{t}")
    k(f"v_lshl_add_u32 v{t}, v{V_SLAB}, 3, v{t}")
    k(f"s_mul_i32 s{S_TMP}, s{S_WAVE}, 320")
    k(f"s_add_u32 s{S_TMP}, s{S_TMP}, {L_XN}")
    k(f"v_add_u32 v{FADR}, s{S_TMP}, v{t}")
    for i in range(5):
        k(f"ds_read_b64 {vr(FX+4*i,2)}, v{FADR} offset:{64*i}")
        k(f"ds_read_b64 {vr(FX+4*i+2,2)}, v{FADR} offset:{64*i+32}")
    k(f"v_lshrrev_b32 v{t}, 2, v{V_L15}")
    k(f"v_lshl_add_u32 v{t}, v{V_SLAB}, 2, v{t}")
    k(f"v_and_b32 v{t+1}, 3, v{V_L15}")
    k(f"v_lshlrev_b32 v{t+2}, 6, v{t}")
    k(f"v_lshl_add_u32 v{t+2}, v{t+1}, 3, v{t+2}")
    k(f"s_mul_i32 s{S_TMP}, s{S_WAVE}, 10240")
    k(f"s_add_u32 s{S_TMP}, s{S_TMP}, {L_WF}")
    k(f"v_add_u32 v{FADR+1}, s{S_TMP}, v{t+2}")
    k(f"v_lshlrev_b32 v{t+2}, 2, v{V_LANE}")
    k(f"s_lshl_b32 s{S_TMP}, s{S_WAVE}, 8")
    k(f"s_add_u32 s{S_TMP}, s{S_TMP}, {L_FRED}")
    k(f"v_add_u32 v{FADR+3}, s{S_TMP}, v{t+2}")
    k(f"v_add_u32 v{FADR+4}, {L_FRED}, v{t+2}")
    k(f"v_lshrrev_b32 v{t+2}, 2, v{V_L15}")
    k(f"v_lshlrev_b32 v{t+2}, 1, v{t+2}")
    k(f"v_lshrrev_b32 v{t+3}, 1, v{V_SLAB}")
    k(f"v_add_u32 v{t+2}, v{t+2}, v{t+3}")
    k(f"v_and_b32 v{t+3}, 1, v{V_SLAB}")
    k(f"v_lshl_add_u32 v{t+2}, v{t+3}, 3, v{t+2}")
    k(f"v_lshlrev_b32 v{FADR+5}, 4, v{t+2}")
    k(f"s_lshl_b32 s{S_TMP+2}, s{S_F}, 8")
    k(f"s_add_u32 s{S_TMP+2}, s{S_TMP+2}, {WS_HO}")
    k(f"s_mov_b32 s{S_M+2}, 0xffff0000")
    k(f"s_mov_b32 s{S_M+3}, 0xffff0000")
    k(f"s_mov_b32 s{S_M+4}, 0")
    k(f"s_mov_b32 s{S_M+5}, -1")
    k("s_waitcnt vmcnt(4)")
    k.stamp(9)
    for i in range(5):
        for ct in range(2):
            r = FW1 + (i * 2 + ct) * 4
            k(f"ds_read_b64_tr_b16 {vr(r,2)}, v{FADR+1} offset:{i*2048+32*ct}")
            k(f"ds_read_b64_tr_b16 {vr(r+2,2)}, v{FADR+1} offset:{i*2048+32*ct+1024}")
    k("s_waitcnt lgkmcnt(0)")
    for i in range(5):
        for ct in range(2):
            c = "0" if i == 0 else vr(FD + 4 * ct, 4)
            k(f"v_mfma_f32_16x16x32_bf16 {vr(FD+4*ct,4)}, {vr(FX+4*i,4)}, {vr(FW1+(i*2+ct)*4,4)}, {c}")
    k.nop(8)
    k(f"v_cndmask_b32 v{t}, v{FD}, v{FD+1}, s[{S_M+2}:{S_M+3}]")
    k(f"v_cndmask_b32 v{t+1}, v{FD+4}, v{FD+5}, s[{S_M+2}:{S_M+3}]")
    k(f"v_cndmask_b32 v{t}, v{t}, v{t+1}, s[{S_M+4}:{S_M+5}]")
    k(f"ds_write_b32 v{FADR+3}, v{t}")
    k("s_waitcnt lgkmcnt(0)")
    k("s_barrier")
    sk = k.label("f1")
    k(f"s_cmp_eq_u32 s{S_WAVE}, 0")
    k(f"s_cbranch_scc0 {sk}")
    k(f"ds_read2st64_b32 {vr(t,2)}, v{FADR+4} offset0:0 offset1:1")
    k(f"ds_read2st64_b32 {vr(t+2,2)}, v{FADR+4} offset0:2 offset1:3")
    k("s_waitcnt lgkmcnt(0)")
    k(f"v_add_f32 v{t}, v{t}, v{t+1}")
    k(f"v_add_f32 v{t+2}, v{t+2}, v{t+3}")
    k(f"v_add_f32 v{t}, v{t}, v{t+2}")
    round_bf16(k, t)
    silu(k, t, t + 1)
    k(f"v_cvt_pk_bf16_f32 v{t}, v{t}, v{t}")
    k(f"v_and_b32 v{t}, 0xffff, v{t}")
    k.nop(2)
    k(f"v_mov_b32_dpp v{t+1}, v{t} quad_perm:[1,0,3,2] row_mask:0xf bank_mask:0xf")
    k(f"v_lshl_or_b32 v{t+2}, v{t+1}, 16, v{t}")
    k.nop(2)
    k(f"v_mov_b32_dpp v{t+3}, v{t+2} quad_perm:[2,3,0,1] row_mask:0xf bank_mask:0xf")
    k(f"v_mov_b32 v{t+4}, s{S_T0}")
    k(f"v_mov_b32 v{t+5}, s{S_T1}")
    k(f"s_mov_b32 exec_lo, 0x11111111")
    k(f"s_mov_b32 exec_hi, 0x11111111")
    k(f"buffer_store_dwordx4 {vr(t+2,4)}, v{FADR+5}, {srd(R_WS)}, s{S_TMP+2} offen sc1")
    k(f"s_mov_b64 exec, -1")
    k(f"{sk}:")
    k.stamp(10)


def ffn2(k):
    t = FT
    k(f"v_lshrrev_b32 v{t}, 2, v{V_L15}")
    k(f"v_lshl_add_u32 v{t}, v{V_SLAB}, 2, v{t}")
    k(f"v_and_b32 v{t+1}, 3, v{V_L15}")
    k(f"v_mul_u32_u24 v{t+2}, 1280, v{t}")
    k(f"v_lshl_add_u32 v{t+2}, v{t+1}, 3, v{t+2}")
    k(f"s_mul_i32 s{S_TMP}, s{S_WAVE}, 320")
    k(f"s_add_u32 s{S_TMP}, s{S_TMP}, {L_WF}")
    k(f"v_add_u32 v{FADR+2}, s{S_TMP}, v{t+2}")
    k(f"v_and_b32 v{t+2}, 1, v{V_LANE}")
    k(f"v_lshlrev_b32 v{t+2}, 7, v{t+2}")
    k(f"v_lshl_add_u32 v{FADR+6}, v{V_SLAB}, 5, v{t+2}")
    k(f"s_lshl_b32 s{S_TMP+3}, s{S_F}, 8")
    k(f"s_add_u32 s{S_TMP+3}, s{S_TMP+3}, {WS_HO}")
    k(f"v_lshlrev_b32 v{FADR+7}, 3, v{V_LANE}")
    k(f"s_mul_i32 s{S_TMP+2}, s{S_F}, 5120")
    k(f"s_mul_i32 s{S_TMP+1}, s{S_WAVE}, 1280")
    k(f"s_add_u32 s{S_TMP+2}, s{S_TMP+2}, s{S_TMP+1}")
    k(f"s_add_u32 s{S_TMP+2}, s{S_TMP+2}, {WS_FP}")
    k(f"s_mov_b32 s{S_M+2}, 0xffff0000")
    k(f"s_mov_b32 s{S_M+3}, 0xffff0000")
    k(f"s_mov_b32 s{S_M+4}, 0")
    k(f"s_mov_b32 s{S_M+5}, -1")
    k("s_waitcnt vmcnt(4)")
    k("s_barrier")
    k.stamp(9)
    for ct in range(10):
        r = FW2 + 4 * ct
        k(f"ds_read_b64_tr_b16 {vr(r,2)}, v{FADR+2} offset:{32*ct}")
        k(f"ds_read_b64_tr_b16 {vr(r+2,2)}, v{FADR+2} offset:{32*ct+20480}")
    H = FH + 2
    loads = [f"buffer_load_dwordx4 {vr(H,4)}, v{FADR+6}, {srd(R_WS)}, s{S_TMP+3} offen sc1",
             f"buffer_load_dwordx4 {vr(H+4,4)}, v{FADR+6}, {srd(R_WS)}, s{S_TMP+3} offen offset:16 sc1"]
    gather_loop(k, "ho", loads, lambda kk: tag_check(kk, [(H+2, H+3), (H+6, H+7)]), 10)
    k(f"v_mov_b32 v{H+2}, v{H+4}")
    k(f"v_mov_b32 v{H+3}, v{H+5}")
    k("s_waitcnt lgkmcnt(0)")
    k.nop(1)
    for ct in range(10):
        k(f"v_mfma_f32_16x16x32_bf16 {vr(FD+4*ct,4)}, {vr(H,4)}, {vr(FW2+4*ct,4)}, 0")
    k.nop(8)
    for q in range(3):
        for bb in range(2):
            a0, a1 = FD + 16 * q + bb, FD + 16 * q + 4 + bb
            k(f"v_cndmask_b32 v{t+2*q+bb}, v{a0}, v{a1}, s[{S_M+2}:{S_M+3}]")
            if q < 2:
                a2, a3 = FD + 16 * q + 8 + bb, FD + 16 * q + 12 + bb
                k(f"v_cndmask_b32 v{t+8}, v{a2}, v{a3}, s[{S_M+2}:{S_M+3}]")
                k(f"v_cndmask_b32 v{t+2*q+bb}, v{t+2*q+bb}, v{t+8}, s[{S_M+4}:{S_M+5}]")
    k(f"buffer_store_dwordx2 {vr(t,2)}, v{FADR+7}, {srd(R_WS)}, s{S_TMP+2} offen sc1")
    k(f"buffer_store_dwordx2 {vr(t+2,2)}, v{FADR+7}, {srd(R_WS)}, s{S_TMP+2} offen offset:512 sc1")
    k(f"s_mov_b32 exec_hi, 0")
    k(f"buffer_store_dwordx2 {vr(t+4,2)}, v{FADR+7}, {srd(R_WS)}, s{S_TMP+2} offen offset:1024 sc1")
    k(f"s_mov_b64 exec, -1")
    k.stamp(11)


ZG = 10
ZT = 44


def tree_reduce4(k, g, t):
    k.nop(2)
    k(f"v_permlane32_swap_b32 v{g}, v{g+2}")
    k(f"v_permlane32_swap_b32 v{g+1}, v{g+3}")
    k.nop(1)
    k(f"v_add_f32 v{g}, v{g}, v{g+2}")
    k(f"v_add_f32 v{g+1}, v{g+1}, v{g+3}")
    k.nop(2)
    k(f"v_permlane16_swap_b32 v{g}, v{g+1}")
    k.nop(1)
    k(f"v_add_f32 v{t}, v{g}, v{g+1}")
    k.nop(2)
    k(f"v_add_f32_dpp v{t}, v{t}, v{t} row_ror:8 row_mask:0xf bank_mask:0xf")


def final(k):
    t = ZT
    k(f"s_lshl_b32 s{S_TMP}, s{S_Z}, 1")
    k(f"s_add_u32 s{S_TMP}, s{S_TMP}, s{S_WAVE}")
    k(f"v_and_b32 v{t}, 7, v{V_LANE}")
    k(f"v_lshrrev_b32 v{t+1}, 1, v{V_SLAB}")
    k(f"v_lshl_add_u32 v{t}, v{t}, 1, v{t+1}")
    k(f"v_and_b32 v{t+1}, 1, v{V_SLAB}")
    k(f"v_mul_u32_u24 v{t+1}, 640, v{t+1}")
    k(f"v_add_u32 v{t}, v{t}, v{t+1}")
    k(f"v_lshlrev_b32 v{t}, 1, v{t}")
    k(f"s_lshl_b32 s{S_TMP+1}, s{S_TMP}, 5")
    k(f"buffer_load_ushort v{t+2}, v{t}, {srd(R_X)}, s{S_TMP+1} offen")
    k(f"v_and_b32 v{t+3}, 7, v{V_LANE}")
    k(f"v_lshlrev_b32 v{t+3}, 2, v{t+3}")
    k(f"v_and_b32 v{t+4}, 1, v{V_SLAB}")
    k(f"v_mul_u32_u24 v{t+4}, 1280, v{t+4}")
    k(f"v_add_u32 v{t+3}, v{t+3}, v{t+4}")
    k(f"v_lshrrev_b32 v{t+4}, 3, v{V_LANE}")
    k(f"v_mul_u32_u24 v{t+4}, 5120, v{t+4}")
    k(f"v_and_b32 v{t+5}, 7, v{V_LANE}")
    k(f"v_lshl_add_u32 v{t+4}, v{t+5}, 4, v{t+4}")
    k(f"s_lshl_b32 s{S_TMP+2}, s{S_TMP}, 7")
    k(f"v_lshrrev_b32 v{t+5}, 2, v{V_LANE}")
    k(f"v_lshlrev_b32 v{t+5}, 13, v{t+5}")
    k(f"v_and_b32 v{t+6}, 3, v{V_LANE}")
    k(f"v_lshl_add_u32 v{t+5}, v{t+6}, 10, v{t+5}")
    loads = []
    for i in range(2):
        k(f"s_mov_b32 s{4+i}, {WS_QP + i*16*8192}")
        loads.append(f"buffer_load_dwordx4 {vr(ZG+4*i,4)}, v{t+5}, {srd(R_WS)}, s{4+i} offen sc1")
    gather_loop(k, "zf", loads, lambda kk: tag_check(kk, [(ZG+4*i+2, ZG+4*i+3) for i in range(2)]))
    k(f"v_cmp_gt_u32 vcc, {NF}, v{V_LANE}")
    k.nop(2)
    k(f"v_cndmask_b32 v{t+5}, 0, v{V_LANE}, vcc")
    k(f"v_bfe_u32 v{t+6}, v{t+5}, 5, 1")
    k(f"v_lshlrev_b32 v{t+6}, 13, v{t+6}")
    k(f"v_and_b32 v{t+5}, 31, v{t+5}")
    k(f"v_lshl_add_u32 v{t+5}, v{t+5}, 3, v{t+6}")
    k(f"s_mov_b32 s4, {WS_ST + 256}")
    gather_check_loop(k, "zs", [f"buffer_load_dwordx2 {vr(ZG,2)}, v{t+5}, {srd(R_WS)}, s4 offen sc1"], [ZG, ZG + 1])
    k(f"s_add_u32 s{S_TMP+3}, s{S_TMP+2}, {WS_FP}")
    k(f"v_add_u32 v{t+5}, s{S_TMP+3}, v{t+4}")
    k(f"v_add_u32 v{t+6}, {48*5120}, v{t+5}")
    k(f"v_cmp_gt_u32 vcc, 48, v{V_LANE}")
    k(f"s_mov_b64 s[{S_M+2}:{S_M+3}], vcc")
    k.nop(2)
    k(f"v_cndmask_b32 v{t+6}, v{t+5}, v{t+6}, vcc")
    loads = []
    for i in range(6):
        k(f"s_mov_b32 s{4+i}, {i*8*5120}")
        loads.append(f"buffer_load_dwordx4 {vr(ZG+4*i,4)}, v{t+5}, {srd(R_WS)}, s{4+i} offen sc1")
    last = f"buffer_load_dwordx4 {vr(ZG+24,4)}, v{t+6}, {srd(R_WS)}, 0 offen sc1"
    gather_check_loop(k, "fq", [last], list(range(ZG + 24, ZG + 28)))
    gather_check_loop(k, "fp", loads, list(range(ZG, ZG + 24)), None)
    for c in range(4):
        k(f"v_cndmask_b32 v{ZG+24+c}, 0, v{ZG+24+c}, s[{S_M+2}:{S_M+3}]")
    for c in range(4):
        k(f"v_add_f32 v{ZG+c}, v{ZG+c}, v{ZG+4+c}")
        k(f"v_add_f32 v{ZG+8+c}, v{ZG+8+c}, v{ZG+12+c}")
        k(f"v_add_f32 v{ZG+16+c}, v{ZG+16+c}, v{ZG+20+c}")
    for c in range(4):
        k(f"v_add_f32 v{ZG+c}, v{ZG+c}, v{ZG+8+c}")
        k(f"v_add_f32 v{ZG+16+c}, v{ZG+16+c}, v{ZG+24+c}")
    for c in range(4):
        k(f"v_add_f32 v{ZG+c}, v{ZG+c}, v{ZG+16+c}")
    tree_reduce4(k, ZG, t + 8)
    round_bf16(k, t + 8)
    silu(k, t + 8, t + 9)
    round_bf16(k, t + 8)
    k(f"v_lshlrev_b32 v{t+2}, 16, v{t+2}")
    k(f"s_add_u32 s{S_TMP+3}, s{S_TMP+2}, {WS_SP}")
    k(f"v_add_u32 v{t+5}, s{S_TMP+3}, v{t+4}")
    loads = []
    for i in range(4):
        loads.append(f"buffer_load_dwordx4 {vr(ZG+4*i,4)}, v{t+5}, {srd(R_WS)}, s{4+i} offen sc1")
    gather_check_loop(k, "sp", loads, list(range(ZG, ZG + 16)), 15)
    for c in range(4):
        k(f"v_add_f32 v{ZG+c}, v{ZG+c}, v{ZG+4+c}")
        k(f"v_add_f32 v{ZG+8+c}, v{ZG+8+c}, v{ZG+12+c}")
    for c in range(4):
        k(f"v_add_f32 v{ZG+c}, v{ZG+c}, v{ZG+8+c}")
    tree_reduce4(k, ZG, t + 9)
    round_bf16(k, t + 9)
    k(f"v_mul_f32 v{t+9}, v{t+9}, v{t+8}")
    round_bf16(k, t + 9)
    k(f"v_add_f32 v{t+9}, v{t+9}, v{t+2}")
    k(f"v_cvt_pk_bf16_f32 v{t+9}, v{t+9}, v{t+9}")
    k(f"v_mov_b32 v{t+10}, v{t+9}")
    k.nop(2)
    k(f"v_permlane32_swap_b32 v{t+9}, v{t+10}")
    k.nop(1)
    k(f"v_and_b32 v{t+9}, 0xffff, v{t+9}")
    k(f"v_lshl_or_b32 v{t+9}, v{t+10}, 16, v{t+9}")
    k(f"s_mov_b32 exec_lo, 0x00ff00ff")
    k(f"s_mov_b32 exec_hi, 0")
    k(f"s_lshl_b32 s{S_TMP+1}, s{S_TMP}, 5")
    k(f"buffer_store_dword v{t+9}, v{t+3}, {srd(R_OUT)}, s{S_TMP+1} offen")
    k(f"s_mov_b64 exec, -1")
    k.stamp(16)
    if K.opt.get("diag"):
        sk = k.label("dg")
        k(f"s_cmp_eq_u32 s{S_TMP}, 0")
        k(f"s_cbranch_scc0 {sk}")
        k(f"v_mov_b32 v{t}, 0")
        k(f"buffer_load_dword v{t+1}, v{t}, s[92:95], 0 offen sc1")
        k("s_waitcnt vmcnt(0)")
        k(f"v_readfirstlane_b32 s96, v{t+1}")
        k("s_memrealtime s[98:99]")
        k("s_waitcnt lgkmcnt(0)")
        k("s_not_b32 s96, s96")
        k("s_sub_u32 s97, s98, s96")
        mode = K.opt["diag"]
        if mode == "k0":
            k("s_mov_b32 s97, 0")
        elif mode == "k1":
            pass
        elif mode == "t1000":
            k("s_mov_b32 s97, 1000")
        if mode.startswith("cyc"):
            n = int(mode[3:])
            k(f"s_mov_b32 s97, {n}")
            lp = k.label("cy")
            k(f"{lp}:")
            k("s_nop 15")
            k("s_nop 15")
            k("s_sub_u32 s97, s97, 1")
            k("s_cmp_lg_u32 s97, 0")
            k(f"s_cbranch_scc1 {lp}")
        else:
            k("s_min_u32 s97, s97, 20000")
            k("s_add_u32 s97, s97, s98")
            lp = k.label("sp")
            k(f"{lp}:")
            k("s_memrealtime s[98:99]")
            k("s_waitcnt lgkmcnt(0)")
            k("s_sub_u32 s96, s97, s98")
            k("s_cmp_gt_i32 s96, 0")
            k(f"s_cbranch_scc1 {lp}")
        k(f"{sk}:")
    skip = k.label("ep")
    k(f"s_cmp_eq_u32 s{S_TMP}, 0")
    k(f"s_cbranch_scc0 {skip}")
    k(f"v_mov_b32 v{t}, 0")
    k(f"v_mov_b32 v{t+1}, s{S_T0}")
    k(f"s_mov_b64 exec, 1")
    k(f"buffer_store_dword v{t+1}, v{t}, {srd(R_WS)}, 0 offen offset:{WS_EPOCH} sc1")
    k(f"s_mov_b64 exec, -1")
    k(f"{skip}:")


def dump_stamps(k):
    if not k.stamps:
        return
    k("s_waitcnt vmcnt(0) lgkmcnt(0)")
    k.stamp(19)
    k(f"s_lshl_b32 s{S_TMP}, s2, 2")
    k(f"s_add_u32 s{S_TMP}, s{S_TMP}, s{S_WAVE}")
    k(f"s_lshl_b32 s{S_TMP}, s{S_TMP}, 7")
    k(f"s_add_u32 s{S_TMP}, s{S_TMP}, {WS_STAMP}")
    for i in range(20):
        k(f"v_mov_b32 v{10+i}, s{S_STAMP+i}")
    k(f"s_getreg_b32 s{S_TMP+1}, hwreg(HW_REG_XCC_ID)")
    k(f"v_mov_b32 v30, s{S_TMP+1}")
    k(f"v_mov_b32 v31, s{S_CNT}")
    k(f"v_mov_b32 v4, 0")
    k(f"s_mov_b64 exec, 1")
    for i in range(6):
        k(f"buffer_store_dwordx4 {vr(10+4*i,4)}, v4, {srd(R_WS)}, s{S_TMP} offen offset:{16*i}")
    k(f"s_mov_b64 exec, -1")


def build(stamps=False):
    k = K(stamps)
    hdr = open("recurrent_scan__compressed_kv_cla__dense_activation_silu__decode.s.ref").read()
    comments = [l for l in hdr.split("\n") if l.startswith(";") and "@launch" not in l and "Override" not in l and "grid=ceil" not in l]
    out = "\n".join(comments) + "\n"
    out += f"; @launch grid=(256,1,1) block=(256,1,1) lds={LDS_BYTES}\n"
    out += f""".amdgcn_target "amdgcn-amd-amdhsa--gfx950"
.text
.globl {NAME}
.p2align 8
.type {NAME},@function
{NAME}:
"""
    if stamps:
        for i in range(20):
            k(f"s_mov_b32 s{S_STAMP+i}, 0")
    if K.opt.get("diag"):
        k("s_memrealtime s[100:101]")
    prologue(k)
    if K.opt.get("diag"):
        k.srd(92, S_DBG, 256)
        k("s_cmp_lt_u32 s2, 8")
        k("s_cbranch_scc0 L_nodiag")
        k("s_not_b32 s100, s100")
        k("v_mov_b32 v8, s100")
        k("v_mov_b32 v9, 0")
        k("s_mov_b64 exec, 1")
        k("buffer_atomic_umax v8, v9, s[92:95], 0 offen")
        k("s_mov_b64 exec, -1")
        k("L_nodiag:")
    k(f"s_cmp_eq_u32 s{S_WAVE}, 0")
    k(f"s_cbranch_scc0 L_w123")
    stage1_issue(k)
    k("s_barrier")
    k("s_branch L_w0")
    k("L_w123:")
    k(f"v_mov_b32 v{V_T}, 0")
    k(f"buffer_load_dword v{VE}, v{V_T}, {srd(R_WS)}, 0 offen offset:{WS_EPOCH} sc1")
    k(f"s_cmp_ge_u32 s{S_J}, 4")
    k(f"s_cbranch_scc1 L_Bw123")
    k.srd(R_A, S_WUK, 512 * 4096 * 2)
    clears_P(k)
    k("s_barrier")
    wuk_issue(k)
    k("s_waitcnt vmcnt(11)")
    epoch_tags(k, VE)
    k("s_barrier")
    k("s_branch L_P_join")
    k("L_Bw123:")
    b_roles(k)
    k("s_barrier")
    clears_B(k)
    k("s_barrier")
    k("s_waitcnt vmcnt(0)")
    epoch_tags(k, VE)
    k("s_branch L_B_join")
    k("L_w0:")
    stage1_selectors(k)
    layernorm(k, 1 + 20)
    k(f"s_waitcnt vmcnt(20)")
    epoch_tags(k, VE)
    stage1_publish_addr(k)
    k.stamp(2)
    stage1_mfma(k, 0)
    k("s_barrier")
    stage1_publish(k, 0)
    k(f"s_cmp_ge_u32 s{S_J}, 4")
    k(f"s_cbranch_scc1 L_B")
    k("L_P_join:")
    k.srd(R_B, S_WUV, 512 * 4096 * 2)
    k.srd(R_C, S_WO, 4096 * 640 * 2)
    stage2(k)
    if K.opt.get("pexit"):
        k("s_branch L_done")
    p_weights_issue(k)
    wo_issue(k)
    stage4_setup(k)
    k("s_waitcnt vmcnt(0)")
    k("s_barrier")
    k.stamp(6)
    p_weights_preread(k)
    wo_preread(k)
    stage4(k)
    stage5(k)
    k("s_branch L_done")
    k("L_B:")
    b_roles(k)
    k("L_B_join:")
    k.srd(R_A, S_CKV, 2 * 4096 * 512 * 2)
    k.srd(R_OUT, S_OUT, 2560)
    k("s_barrier")
    k.stamp(12)
    ac_publish(k)
    ckv_issue(k)
    k.stamp(13)
    wf_setup(k)
    if K.opt.get("noflags"):
        k("s_waitcnt vmcnt(9)")
    else:
        flags_poll(k)
    attention(k)
    k(f"s_cmp_eq_u32 s{S_ROLE}, 1")
    k(f"s_cbranch_scc0 L_B_r2")
    ffn1(k)
    k("s_branch L_done")
    k("L_B_r2:")
    k(f"s_cmp_eq_u32 s{S_ROLE}, 2")
    k(f"s_cbranch_scc0 L_B_r3")
    ffn2(k)
    k("s_branch L_done")
    k("L_B_r3:")
    k(f"s_cmp_lt_u32 s{S_WAVE}, 2")
    k(f"s_cbranch_scc0 L_done")
    final(k)
    k("L_done:")
    dump_stamps(k)
    k("L_exit:")
    k("s_endpgm")
    out += k.text()
    out += f""".section .rodata,"a"
.p2align 6
.amdhsa_kernel {NAME}
  .amdhsa_next_free_vgpr 512
  .amdhsa_next_free_sgpr 102
  .amdhsa_accum_offset 256
  .amdhsa_group_segment_fixed_size 0
  .amdhsa_kernarg_size 96
  .amdhsa_user_sgpr_count 2
  .amdhsa_user_sgpr_kernarg_segment_ptr 1
  .amdhsa_system_sgpr_workgroup_id_x 1
.end_amdhsa_kernel
"""
    return out


if __name__ == "__main__":
    for a in sys.argv[1:]:
        if a.startswith("--spin="):
            SPIN_LIMIT = int(a[7:])
    stamps = "--stamps" in sys.argv
    for a in sys.argv[1:]:
        if a.startswith("--") and "=" in a:
            kk, vv = a[2:].split("=")
            K.opt[kk] = vv
    outp = [a for a in sys.argv[1:] if not a.startswith("--")]
    open(outp[0] if outp else "k.s", "w").write(build(stamps))
```

```python
import sys

NAME = "recurrent_scan__compressed_kv_cla__dense_activation_silu__decode_kernel"

WS_EPOCH = 0
WS_QP = 0x1000
WS_QA = 0x41000
WS_ST = 0x51000
WS_CP = 0x55000
WS_SP = 0x65000
WS_FP = 0x8D000
WS_AC = 0xE0000
WS_HO = 0xE4000
WS_TR = 0xF0000
WS_AO = 0x100000
WS_SIZE = 0x300000
WS_STAMP = 0x300000
NF = 54
S_JP = 10
S_F = 11
S_Z = 12
S_ROLE = 13

L_WUV = 0
L_WO = 32768
L_AOB = 107520
L_RED = 123904
L_CTX = 129024
L_STX = 129536
L_XNP = 95744
L_CKV = 0
RS = 1056
L_QB = 128 * RS
L_XN = L_QB + 16 * RS
L_MX = L_XN + 2560
L_PB = L_MX + 1024
L_END = L_PB + 4096
L_WF = 0
L_WO5 = 66560
L_FRED = 81920
L_RED5 = 123904
LDS_BYTES = 163840

SPIN_LIMIT = 100000
FLAG_ROW = 28
QWAIT = [15 - i if i <= 8 else min(15, 15 - i) for i in range(16)]

S_X, S_CKV, S_WQ, S_WUK, S_WUV, S_WO, S_W1, S_W2, S_OUT, S_DBG, S_WSP = 4, 6, 8, 10, 12, 14, 18, 20, 22, 24, 26
R_X, R_WQ, R_WS, R_A, R_B, R_C, R_OUT = 28, 32, 36, 40, 44, 48, 52
S_WAVE, S_H, S_J, S_T0, S_T1 = 56, 57, 58, 59, 60
S_TMP = 61
S_PUB = 69
S_OFF = 70
S_CNT = 71
S_M = 72
S_STAMP = 80


CNT_SLOT = {'qp': 13, 'tr': 14, 'st': 15, 'ao': 16, 'qa': 17, 'cp': 18, 'fl': 18}


class K:
    opt = {}
    def __init__(self, stamps=False):
        self.lines = []
        self.nl = 0
        self.stamps = stamps
        self.nstamp = 0

    def __call__(self, s):
        for l in s.split("\n"):
            self.lines.append("    " + l.strip() if l.strip() and not l.strip().endswith(":") else l.strip())

    def label(self, stem):
        self.nl += 1
        return f"L_{stem}_{self.nl}"

    def nop(self, n):
        while n > 0:
            k = min(n, 16)
            self(f"s_nop {k-1}")
            n -= k

    def stamp(self, idx):
        if self.stamps:
            self(f"s_memrealtime s[100:101]")
            self("s_waitcnt lgkmcnt(0)")
            self(f"s_mov_b32 s{S_STAMP+idx}, s100")

    def srd(self, d, base, nbytes):
        self(f"s_mov_b32 s{d}, s{base}")
        self(f"s_and_b32 s{d+1}, s{base+1}, 0xffff")
        self(f"s_mov_b32 s{d+2}, {nbytes}")
        self(f"s_mov_b32 s{d+3}, 0x00020000")

    def text(self):
        return "\n".join(self.lines) + "\n"


def srd(d):
    return f"s[{d}:{d+3}]"


def vr(a, n=1):
    return f"v{a}" if n == 1 else f"v[{a}:{a+n-1}]"


def ar(a, n=1):
    return f"a{a}" if n == 1 else f"a[{a}:{a+n-1}]"


V_TID, V_LANE, V_L15, V_SLAB = 0, 1, 2, 3
V_T = 4
V_ONES = 242
V_NEG1 = 244


def spin_begin(k, cnt=S_CNT):
    k(f"s_mov_b32 s{cnt}, 0")


def spin_retry(k, top, cnt=S_CNT):
    k(f"s_add_u32 s{cnt}, s{cnt}, 1")
    k(f"s_cmp_lt_u32 s{cnt}, {SPIN_LIMIT}")
    k(f"s_cbranch_scc1 {top}")


NCH = 28


def prologue(k):
    k(f"s_cmp_ge_u32 s2, 256")
    k(f"s_cbranch_scc1 L_exit")
    k(f"s_load_dwordx16 s[4:19], s[0:1], 0")
    k(f"s_load_dwordx8 s[20:27], s[0:1], 64")
    k(f"v_lshrrev_b32 v{V_T}, 6, v0")
    k(f"v_and_b32 v{V_LANE}, 63, v0")
    k(f"v_readfirstlane_b32 s{S_WAVE}, v{V_T}")
    if K.opt.get("pf", "1") == "1":
        k(f"s_getpc_b64 s[{S_TMP+1}:{S_TMP+2}]")
        k(f"L_pc:")
        k(f"s_lshr_b32 s{S_TMP}, s2, 3")
        k(f"s_lshl_b32 s{S_TMP}, s{S_TMP}, 2")
        k(f"s_add_u32 s{S_TMP}, s{S_TMP}, s{S_WAVE}")
        k(f"s_cmp_lt_u32 s{S_TMP}, (L_exit-L_pc+1023)/1024")
        k(f"s_cbranch_scc0 L_nopf")
        k(f"s_lshl_b32 s{S_TMP}, s{S_TMP}, 10")
        k(f"s_min_u32 s{S_TMP}, s{S_TMP}, L_exit-L_pc-1024")
        k(f"v_lshl_add_u32 v{V_T+1}, v{V_LANE}, 4, s{S_TMP}")
        k(f"global_load_dwordx4 v[248:251], v{V_T+1}, s[{S_TMP+1}:{S_TMP+2}]")
        k(f"L_nopf:")
    k(f"v_and_b32 v{V_L15}, 15, v0")
    k(f"v_bfe_u32 v{V_SLAB}, v0, 4, 2")
    k(f"s_and_b32 s{S_H}, s2, 31")
    k(f"s_lshr_b32 s{S_J}, s2, 5")
    for i in range(4):
        k(f"v_mov_b32 v{V_NEG1+i}, -1")
    k.stamp(0)
    k(f"s_waitcnt lgkmcnt(0)")
    k.srd(R_X, S_X, 2560)
    k.srd(R_WS, S_WSP, WS_SIZE + (0x100000 if k.stamps else 0))
    k.srd(R_WQ, S_WQ, 640 * 4096 * 2)


VX = 10
VW = 20
VA = 100
VSEL = 180
VD1 = 188
VXR = 192
VE = 202
VS1 = 204
VWUK = 210


def stage1_issue(k):
    k(f"v_lshrrev_b32 v{V_T}, 5, v{V_LANE}")
    k(f"v_and_b32 v{V_T+1}, 31, v{V_LANE}")
    k(f"v_mul_u32_u24 v{V_T}, 1280, v{V_T}")
    k(f"v_mul_u32_u24 v{V_T+1}, 40, v{V_T+1}")
    k(f"v_add_u32 v{V_T}, v{V_T}, v{V_T+1}")
    k(f"v_mov_b32 v{V_T+2}, 0")
    k(f"buffer_load_dwordx4 {vr(VX,4)}, v{V_T}, {srd(R_X)}, 0 offen")
    k(f"buffer_load_dwordx4 {vr(VX+4,4)}, v{V_T}, {srd(R_X)}, 0 offen offset:16")
    k(f"buffer_load_dwordx2 {vr(VX+8,2)}, v{V_T}, {srd(R_X)}, 0 offen offset:32")
    k(f"buffer_load_dword v{VE}, v{V_T+2}, {srd(R_WS)}, 0 offen offset:{WS_EPOCH} sc1")
    k(f"s_mul_i32 s{S_TMP}, s{S_J}, {80*8192}")
    k(f"s_lshl_b32 s{S_TMP+1}, s{S_H}, 8")
    k(f"s_add_u32 s{S_TMP}, s{S_TMP}, s{S_TMP+1}")
    k(f"v_mul_u32_u24 v{V_T+3}, {20*8192}, v{V_SLAB}")
    k(f"v_lshl_add_u32 v{V_T+3}, v{V_L15}, 4, v{V_T+3}")
    k(f"v_add_u32 v{V_T+3}, s{S_TMP}, v{V_T+3}")
    k(f"s_mov_b32 s{S_OFF}, 0")
    k(f"s_movk_i32 s{S_TMP}, 0x2000")
    for t in range(20):
        k(f"buffer_load_dwordx4 {vr(VW+4*t,4)}, v{V_T+3}, {srd(R_WQ)}, s{S_OFF} offen")
        if t < 19:
            k(f"s_add_u32 s{S_OFF}, s{S_OFF}, s{S_TMP}")


def epoch_tags(k, ve):
    k(f"v_readfirstlane_b32 s{S_T0}, v{ve}")
    k.nop(4)
    k(f"s_add_u32 s{S_T0}, s{S_T0}, 1")
    k(f"s_mul_i32 s{S_T1}, s{S_T0}, 0x9e3779b1")
    k(f"s_xor_b32 s{S_T1}, s{S_T1}, 0x5bd1e995")


def stage1_selectors(k):
    t = VS1
    k(f"v_and_b32 v{t}, 1, v{V_LANE}")
    k(f"v_bfe_u32 v{t+1}, v{V_LANE}, 1, 2")
    k(f"v_cmp_eq_u32 vcc, 1, v{t}")
    k(f"v_mov_b32 v{t+2}, 0x0c0c0504")
    k(f"v_mov_b32 v{t+3}, 0x05040c0c")
    k(f"v_cndmask_b32 v{t+4}, v{t+2}, v{t+3}, vcc")
    k(f"v_mov_b32 v{t+2}, 0x0c0c0706")
    k(f"v_mov_b32 v{t+3}, 0x07060c0c")
    k(f"v_cndmask_b32 v{t+5}, v{t+2}, v{t+3}, vcc")
    k(f"v_mov_b32 v{t+2}, 0x0c0c0c0c")
    for r in range(4):
        k(f"v_cmp_eq_u32 vcc, {r}, v{t+1}")
        k.nop(2)
        k(f"v_cndmask_b32 v{VSEL+2*r}, v{t+2}, v{t+4}, vcc")
        k(f"v_cndmask_b32 v{VSEL+2*r+1}, v{t+2}, v{t+5}, vcc")


def layernorm(k, nafter):
    t = VS1
    k(f"s_mov_b32 s{S_TMP}, 0x3f803f80")
    k(f"v_mov_b32 v{t}, 0")
    k(f"v_mov_b32 v{t+1}, 0")
    k(f"v_mov_b32 v{t+2}, 0")
    k(f"v_mov_b32 v{t+3}, 0")
    k(f"s_waitcnt vmcnt({nafter})")
    k.stamp(1)
    for i in range(10):
        a = t + (i & 1)
        q = t + 2 + (i & 1)
        k(f"v_dot2_f32_bf16 v{a}, v{VX+i}, s{S_TMP}, v{a}")
        k(f"v_dot2_f32_bf16 v{q}, v{VX+i}, v{VX+i}, v{q}")
    k.nop(3)
    k(f"v_add_f32 v{t}, v{t}, v{t+1}")
    k(f"v_add_f32 v{t+2}, v{t+2}, v{t+3}")
    k.nop(1)
    for rot in (8, 4, 2, 1):
        k(f"v_add_f32_dpp v{t}, v{t}, v{t} row_ror:{rot} row_mask:0xf bank_mask:0xf")
        k(f"v_add_f32_dpp v{t+2}, v{t+2}, v{t+2} row_ror:{rot} row_mask:0xf bank_mask:0xf")
        k.nop(1)
    k.nop(1)
    k(f"v_permlane16_swap_b32 v{t}, v{t+2}")
    k.nop(1)
    k(f"v_add_f32 v{t}, v{t}, v{t+2}")
    k.nop(1)
    k(f"v_mov_b32 v{t+2}, v{t}")
    k.nop(2)
    k(f"v_permlane16_swap_b32 v{t}, v{t+2}")
    k.nop(1)
    k(f"v_mul_f32 v{t}, 0x3acccccd, v{t}")
    k(f"v_mul_f32 v{t+2}, 0x3acccccd, v{t+2}")
    k(f"v_fma_f32 v{t+2}, -v{t}, v{t}, v{t+2}")
    k(f"v_max_f32 v{t+2}, 0, v{t+2}")
    k(f"v_cvt_pk_bf16_f32 v{t+1}, v{t}, v{t+2}")
    k(f"v_lshlrev_b32 v{t}, 16, v{t+1}")
    k(f"v_and_b32 v{t+2}, 0xffff0000, v{t+1}")
    k(f"v_add_f32 v{t+2}, 0x3727c5ac, v{t+2}")
    k(f"v_cvt_pk_bf16_f32 v{t+2}, v{t+2}, v{t+2}")
    k(f"v_and_b32 v{t+2}, 0xffff0000, v{t+2}")
    k(f"v_sqrt_f32 v{t+2}, v{t+2}")
    k.nop(1)
    k(f"v_cvt_pk_bf16_f32 v{t+2}, v{t+2}, v{t+2}")
    k(f"v_and_b32 v{t+2}, 0xffff0000, v{t+2}")
    k(f"v_rcp_f32 v{t+2}, v{t+2}")
    k.nop(1)
    k(f"v_mul_f32 v{t}, v{t}, v{t+2}")
    k(f"v_sub_f32 v{t}, 0, v{t}")
    for i in range(10):
        k(f"v_lshlrev_b32 v{t+3}, 16, v{VX+i}")
        k(f"v_and_b32 v{t+4}, 0xffff0000, v{VX+i}")
        k(f"v_fma_f32 v{t+3}, v{t+3}, v{t+2}, v{t}")
        k(f"v_fma_f32 v{t+4}, v{t+4}, v{t+2}, v{t}")
        k(f"v_cvt_pk_bf16_f32 v{VX+i}, v{t+3}, v{t+4}")
    k(f"v_add_u32 v{t+3}, {L_XN}, v{V_T}")
    for i in range(5):
        k(f"ds_write_b64 v{t+3}, {vr(VX+2*i,2)} offset:{8*i}")
    k(f"v_bfe_u32 v{t}, v{V_LANE}, 3, 1")
    k(f"v_mul_u32_u24 v{t}, 1280, v{t}")
    k(f"v_mul_u32_u24 v{t+1}, 40, v{V_SLAB}")
    k(f"s_mul_i32 s{S_TMP}, s{S_J}, 160")
    k(f"s_add_u32 s{S_TMP}, s{S_TMP}, {L_XN}")
    k(f"v_add3_u32 v{t}, v{t}, v{t+1}, s{S_TMP}")
    k(f"s_waitcnt lgkmcnt(0)")
    for i in range(5):
        k(f"ds_read_b64 {vr(VXR+2*i,2)}, v{t} offset:{8*i}")
    k(f"s_waitcnt lgkmcnt(0)")
    for st in range(20):
        for r in range(4):
            k(f"v_perm_b32 v{VA+4*st+r}, v{VXR+(st>>1)}, v{VXR+(st>>1)}, v{VSEL+2*r+(st&1)}")


def stage1_mfma(k, nafter):
    for st in range(20):
        k(f"s_waitcnt vmcnt({19-st+nafter})")
        c = "0" if st == 0 else vr(VD1, 4)
        k(f"v_mfma_f32_16x16x32_bf16 {vr(VD1,4)}, {vr(VA+4*st,4)}, {vr(VW+4*st,4)}, {c}")


VPUB = 206


def stage1_publish_addr(k):
    t = VS1 + 4
    k(f"v_lshrrev_b32 v{t}, 1, v{V_SLAB}")
    k(f"v_and_b32 v{t+1}, 1, v{V_SLAB}")
    k(f"v_lshlrev_b32 v{t}, 5, v{t}")
    k(f"v_lshl_add_u32 v{t}, v{V_L15}, 1, v{t}")
    k(f"v_add_u32 v{t}, v{t}, v{t+1}")
    k(f"v_lshlrev_b32 v{VPUB}, 4, v{t}")
    k(f"s_lshl_b32 s{S_PUB}, s{S_H}, 3")
    k(f"s_add_u32 s{S_PUB}, s{S_PUB}, s{S_J}")
    k(f"s_lshl_b32 s{S_PUB}, s{S_PUB}, 10")
    k(f"s_add_u32 s{S_PUB}, s{S_PUB}, {WS_QP}")
    k(f"v_mov_b32 v{VD1+6}, s{S_T0}")
    k(f"v_mov_b32 v{VD1+7}, s{S_T1}")


def stage1_publish(k, nkeep):
    k.nop(8)
    k(f"v_cvt_pk_bf16_f32 v{VD1+4}, v{VD1}, v{VD1+1}")
    k(f"v_cvt_pk_bf16_f32 v{VD1+5}, v{VD1+2}, v{VD1+3}")
    k(f"s_waitcnt vmcnt({nkeep})")
    k(f"buffer_store_dwordx4 {vr(VD1+4,4)}, v{VPUB}, {srd(R_WS)}, s{S_PUB} offen sc1")
    k.stamp(3)


def sentinel_check(k, regs):
    t = V_T
    rs = list(regs)
    if len(rs) == 1:
        k(f"v_cmp_eq_u32 vcc, -1, v{rs[0]}")
        return
    if len(rs) == 2:
        k(f"v_max_u32 v{t}, v{rs[0]}, v{rs[1]}")
        rs = []
    else:
        k(f"v_max3_u32 v{t}, v{rs[0]}, v{rs[1]}, v{rs[2]}")
        rs = rs[3:]
    while len(rs) >= 2:
        k(f"v_max3_u32 v{t}, v{t}, v{rs[0]}, v{rs[1]}")
        rs = rs[2:]
    if rs:
        k(f"v_max_u32 v{t}, v{t}, v{rs[0]}")
    k(f"v_cmp_eq_u32 vcc, -1, v{t}")


def tag_check(k, pairs):
    t = V_T
    first = True
    for a, b in pairs:
        k(f"v_xor_b32 v{t+1}, s{S_T0}, v{a}")
        k(f"v_xor_b32 v{t+2}, s{S_T1}, v{b}")
        if first:
            k(f"v_or_b32 v{t}, v{t+1}, v{t+2}")
        else:
            k(f"v_or3_b32 v{t}, v{t}, v{t+1}, v{t+2}")
        first = False
    k(f"v_cmp_ne_u32 vcc, 0, v{t}")


def gather_loop(k, name, loads, check, stampidx=None, preissued=False, firstwait=0):
    chk = k.label(name)
    done = k.label(name + "d")
    spin_begin(k)
    k(f"s_mov_b64 s[{S_M}:{S_M+1}], exec")
    if not preissued:
        for l in loads:
            k(l)
    if firstwait:
        k(f"s_waitcnt vmcnt({firstwait})")
        k(f"s_branch {chk}_c")
    k(f"{chk}:")
    k("s_waitcnt vmcnt(0)")
    if firstwait:
        k(f"{chk}_c:")
    check(k)
    k(f"s_and_b64 exec, exec, vcc")
    k(f"s_cbranch_execz {done}")
    k(f"s_add_u32 s{S_CNT}, s{S_CNT}, 1")
    k(f"s_cmp_ge_u32 s{S_CNT}, {SPIN_LIMIT}")
    k(f"s_cbranch_scc1 {done}")
    for l in loads:
        k(l)
    k(f"s_branch {chk}")
    k(f"{done}:")
    k(f"s_mov_b64 exec, s[{S_M}:{S_M+1}]")
    if stampidx is not None:
        k.stamp(stampidx)
    if k.stamps and name in CNT_SLOT and not (K.opt.get("aoack") and name == "qa"):
        k(f"s_add_u32 s{S_STAMP+CNT_SLOT[name]}, s{S_CNT}, 1")


def gather_check_loop(k, name, loads, regs, stampidx=None, preissued=False):
    gather_loop(k, name, loads, lambda kk: sentinel_check(kk, regs), stampidx, preissued)


def clears_P(k):
    t = V_T + 4
    neg = vr(V_NEG1, 4)
    l2, l3, done = k.label("cp2"), k.label("cp3"), k.label("cpd")
    k(f"s_lshl_b32 s{S_TMP}, s{S_H}, 2")
    k(f"s_add_u32 s{S_TMP}, s{S_TMP}, s{S_J}")
    k(f"s_cmp_eq_u32 s{S_WAVE}, 1")
    k(f"s_cbranch_scc0 {l2}")
    k(f"v_lshlrev_b32 v{t}, 4, v{V_LANE}")
    k(f"s_mul_i32 s{S_TMP+1}, s{S_H}, 5120")
    k(f"s_mul_i32 s{S_TMP+2}, s{S_J}, 1280")
    k(f"s_add_u32 s{S_TMP+1}, s{S_TMP+1}, s{S_TMP+2}")
    k(f"s_add_u32 s{S_TMP+1}, s{S_TMP+1}, {WS_SP}")
    k(f"buffer_store_dwordx4 {neg}, v{t}, {srd(R_WS)}, s{S_TMP+1} offen sc1")
    k(f"v_lshlrev_b32 v{t+1}, 4, v{V_L15}")
    k(f"buffer_store_dwordx4 {neg}, v{t+1}, {srd(R_WS)}, s{S_TMP+1} offen offset:1024 sc1")
    k(f"s_branch {done}")
    k(f"{l2}:")
    k(f"s_cmp_eq_u32 s{S_WAVE}, 2")
    k(f"s_cbranch_scc0 {l3}")
    k(f"v_and_b32 v{t+1}, 31, v{V_LANE}")
    k(f"v_lshlrev_b32 v{t+1}, 4, v{t+1}")
    k(f"s_lshl_b32 s{S_TMP+1}, s{S_TMP}, 9")
    k(f"s_add_u32 s{S_TMP+1}, s{S_TMP+1}, {WS_CP}")
    k(f"buffer_store_dwordx4 {neg}, v{t+1}, {srd(R_WS)}, s{S_TMP+1} offen sc1")
    k(f"s_lshl_b32 s{S_TMP+1}, s{S_H}, 9")
    k(f"s_add_u32 s{S_TMP+1}, s{S_TMP+1}, {WS_ST}")
    k(f"buffer_store_dwordx4 {neg}, v{t+1}, {srd(R_WS)}, s{S_TMP+1} offen sc1")
    k(f"s_branch {done}")
    k(f"{l3}:")
    k(f"v_and_b32 v{t+1}, 1, v{V_SLAB}")
    k(f"v_lshlrev_b32 v{t+1}, 15, v{t+1}")
    k(f"v_lshl_add_u32 v{t+1}, v{V_L15}, 4, v{t+1}")
    k(f"s_lshl_b32 s{S_TMP+1}, s{S_H}, 10")
    k(f"s_lshl_b32 s{S_TMP+2}, s{S_J}, 8")
    k(f"s_add_u32 s{S_TMP+1}, s{S_TMP+1}, s{S_TMP+2}")
    k(f"s_add_u32 s{S_TMP+1}, s{S_TMP+1}, {WS_QA}")
    k(f"buffer_store_dwordx4 {neg}, v{t+1}, {srd(R_WS)}, s{S_TMP+1} offen sc1")
    k(f"{done}:")


L_WUK = 32768


def wuk_issue(k):
    t = V_T + 4
    k(f"s_sub_u32 s{S_TMP+2}, s{S_WAVE}, 1")
    k(f"s_mul_i32 s{S_TMP+2}, s{S_TMP+2}, 11")
    k(f"s_mul_i32 s{S_TMP}, s{S_J}, {128*8192}")
    k(f"s_lshl_b32 s{S_TMP+1}, s{S_H}, 8")
    k(f"s_add_u32 s{S_TMP}, s{S_TMP}, s{S_TMP+1}")
    k(f"s_lshl_b32 s{S_TMP+1}, s{S_TMP+2}, 15")
    k(f"s_add_u32 s{S_TMP}, s{S_TMP}, s{S_TMP+1}")
    k(f"s_lshl_b32 s{S_TMP+1}, s{S_TMP+2}, 10")
    k(f"s_add_u32 s{S_TMP+1}, s{S_TMP+1}, {L_WUK}")
    k(f"v_lshlrev_b32 v{t+1}, 13, v{V_SLAB}")
    lp = k.label("wuk")
    k(f"s_add_u32 s{S_TMP+4}, s{S_TMP+2}, 11")
    k(f"{lp}:")
    k(f"s_and_b32 s{S_TMP+3}, s{S_TMP+2}, 3")
    k(f"s_lshl_b32 s{S_TMP+3}, s{S_TMP+3}, 2")
    k(f"v_add_u32 v{t}, s{S_TMP+3}, v{V_SLAB}")
    k(f"v_xor_b32 v{t}, v{t}, v{V_L15}")
    k(f"v_lshl_add_u32 v{t}, v{t}, 4, v{t+1}")
    k(f"s_mov_b32 m0, s{S_TMP+1}")
    k(f"s_add_u32 s{S_TMP+1}, s{S_TMP+1}, 1024")
    k(f"buffer_load_dwordx4 v{t}, {srd(R_A)}, s{S_TMP} offen lds")
    k(f"s_add_u32 s{S_TMP}, s{S_TMP}, {4*8192}")
    k(f"s_add_u32 s{S_TMP+2}, s{S_TMP+2}, 1")
    k(f"s_cmp_lt_u32 s{S_TMP+2}, s{S_TMP+4}")
    k(f"s_cbranch_scc1 {lp}")


def wuk_preread(k):
    t = V_T + 4
    k(f"s_lshl_b32 s{S_TMP+4}, s{S_WAVE}, 2")
    k(f"v_add_u32 v{t}, s{S_TMP+4}, v{V_SLAB}")
    k(f"v_xor_b32 v{t}, v{t}, v{V_L15}")
    k(f"v_lshlrev_b32 v{t}, 4, v{t}")
    k(f"v_lshl_add_u32 v{t}, v{V_L15}, 8, v{t}")
    for i in range(8):
        k(f"ds_read_b128 {vr(VWUK+4*i,4)}, v{t} offset:{L_WUK+i*4096}")


PG = 10
PD = 28
PY = 68
PWV = 76
PWO = 108
PA = 148
PADR = 164
PM = 180
PT = 188


def stage2(k):
    t = PT
    k(f"v_and_b32 v{t}, 7, v{V_L15}")
    k(f"v_lshlrev_b32 v{t}, 10, v{t}")
    k(f"v_lshrrev_b32 v{t+1}, 3, v{V_L15}")
    k(f"v_lshl_add_u32 v{t}, v{t+1}, 9, v{t}")
    k(f"v_lshl_add_u32 v{PADR}, v{V_SLAB}, 5, v{t}")
    k(f"s_lshl_b32 s{S_TMP}, s{S_H}, 13")
    k(f"s_lshl_b32 s{S_TMP+1}, s{S_WAVE}, 7")
    k(f"s_add_u32 s{S_TMP}, s{S_TMP}, s{S_TMP+1}")
    k(f"s_add_u32 s{S_TMP}, s{S_TMP}, {WS_QP}")
    k(f"v_lshrrev_b32 v{t}, 1, v{V_SLAB}")
    k(f"v_lshlrev_b32 v{t}, 15, v{t}")
    k(f"v_and_b32 v{t+1}, 1, v{V_SLAB}")
    k(f"v_lshl_add_u32 v{t}, v{t+1}, 5, v{t}")
    k(f"v_lshl_add_u32 v{PADR+1}, v{V_L15}, 1, v{t}")
    k(f"s_lshl_b32 s{S_TMP+2}, s{S_H}, 10")
    k(f"s_lshl_b32 s{S_TMP+3}, s{S_J}, 8")
    k(f"s_add_u32 s{S_TMP+2}, s{S_TMP+2}, s{S_TMP+3}")
    k(f"s_lshl_b32 s{S_TMP+3}, s{S_WAVE}, 6")
    k(f"s_add_u32 s{S_TMP+2}, s{S_TMP+2}, s{S_TMP+3}")
    k(f"s_add_u32 s{S_TMP+2}, s{S_TMP+2}, {WS_QA}")
    k(f"v_lshlrev_b32 v{PADR+2}, 2, v{V_LANE}")
    k(f"s_lshl_b32 s{S_TMP+3}, s{S_WAVE}, 10")
    k(f"s_add_u32 s{S_TMP+3}, s{S_TMP+3}, {L_RED}")
    k(f"v_add_u32 v{PADR+3}, s{S_TMP+3}, v{PADR+2}")
    k(f"s_lshl_b32 s{S_TMP+3}, s{S_WAVE}, 8")
    k(f"s_add_u32 s{S_TMP+3}, s{S_TMP+3}, {L_RED}")
    k(f"v_add_u32 v{PADR+2}, s{S_TMP+3}, v{PADR+2}")
    k(f"s_mov_b32 s{S_M+2}, 0x55555555")
    k(f"s_mov_b32 s{S_M+3}, 0x55555555")
    loads = [f"buffer_load_dwordx4 {vr(PG,4)}, v{PADR}, {srd(R_WS)}, s{S_TMP} offen sc1",
             f"buffer_load_dwordx4 {vr(PG+4,4)}, v{PADR}, {srd(R_WS)}, s{S_TMP} offen offset:16 sc1"]
    for l in loads:
        k(l)
    k("s_waitcnt vmcnt(0)")
    k("s_barrier")
    wuk_preread(k)
    gather_loop(k, "qp", loads, lambda kk: tag_check(kk, [(PG+2, PG+3), (PG+6, PG+7)]), 4, preissued=True)
    k("s_waitcnt lgkmcnt(0)")
    k(f"v_mov_b32 v{PG+2}, v{PG+4}")
    k(f"v_mov_b32 v{PG+3}, v{PG+5}")
    k.nop(2)
    for i in range(8):
        k(f"v_mfma_f32_16x16x32_bf16 {vr(PD+4*i,4)}, {vr(PG,4)}, {vr(VWUK+4*i,4)}, 0")
    k.nop(1)
    for i in range(8):
        if i == 7:
            pass
        k(f"v_add_f32 v{PD+4*i}, v{PD+4*i}, v{PD+4*i+1}")
        k(f"v_add_f32 v{PD+4*i+2}, v{PD+4*i+2}, v{PD+4*i+3}")
        k(f"v_add_f32 v{PD+4*i}, v{PD+4*i}, v{PD+4*i+2}")
    k.nop(2)
    for u in range(4):
        k(f"v_permlane16_swap_b32 v{PD+8*u}, v{PD+8*u+4}")
    k.nop(1)
    for u in range(4):
        k(f"v_add_f32 v{PY+u}, v{PD+8*u}, v{PD+8*u+4}")
    k(f"ds_write2st64_b32 v{PADR+3}, v{PY}, v{PY+1} offset0:0 offset1:1")
    k(f"ds_write2st64_b32 v{PADR+3}, v{PY+2}, v{PY+3} offset0:2 offset1:3")
    k("s_waitcnt lgkmcnt(0)")
    k("s_barrier")
    k(f"ds_read2st64_b32 {vr(t,2)}, v{PADR+2} offset0:0 offset1:4")
    k(f"ds_read2st64_b32 {vr(t+2,2)}, v{PADR+2} offset0:8 offset1:12")
    k("s_waitcnt lgkmcnt(0)")
    k(f"v_add_f32 v{t}, v{t}, v{t+1}")
    k(f"v_add_f32 v{t+2}, v{t+2}, v{t+3}")
    k(f"v_add_f32 v{t}, v{t}, v{t+2}")
    k(f"v_mul_f32 v{t}, 0x3e0293ee, v{t}")
    k.nop(2)
    k(f"v_mov_b32_dpp v{t+1}, v{t} quad_perm:[1,0,3,2] row_mask:0xf bank_mask:0xf")
    k(f"v_cvt_pk_bf16_f32 v{t}, v{t}, v{t+1}")
    k(f"s_mov_b64 exec, s[{S_M+2}:{S_M+3}]")
    k(f"buffer_store_dword v{t}, v{PADR+1}, {srd(R_WS)}, s{S_TMP+2} offen sc1")
    k(f"s_mov_b64 exec, -1")
    k.stamp(5)


def p_weights_issue(k):
    t = PT
    if K.opt.get("trig", "0") == "1":
        k(f"s_and_b32 s{S_TMP}, s{S_H}, 7")
        k(f"s_lshl_b32 s{S_TMP}, s{S_TMP}, 8")
        k(f"s_add_u32 s{S_TMP}, s{S_TMP}, {WS_TR}")
        k(f"v_lshrrev_b32 v{t}, 2, v{V_L15}")
        k(f"v_lshlrev_b32 v{t}, 11, v{t}")
        k(f"v_and_b32 v{t+1}, 3, v{V_L15}")
        k(f"v_lshl_add_u32 v{t}, v{t+1}, 6, v{t}")
        sk = k.label("trw")
        k(f"s_cmp_eq_u32 s{S_WAVE}, 0")
        k(f"s_cbranch_scc0 {sk}")
        k(f"s_mov_b64 exec, 0xffff")
        gather_loop(k, "tr", [f"buffer_load_dwordx2 {vr(t+2,2)}, v{t}, {srd(R_WS)}, s{S_TMP} offen sc1"], lambda kk: tag_check(kk, [(t+2, t+3)]), 12)
        k(f"s_mov_b64 exec, -1")
        k(f"{sk}:")
        k("s_barrier")
    for par in range(2):
        k(f"v_add_u32 v{t}, {4*par}, v{V_SLAB}")
        k(f"v_lshlrev_b32 v{t}, 1, v{t}")
        k(f"v_xor_b32 v{t}, v{t}, v{V_L15}")
        k(f"v_lshlrev_b32 v{t}, 4, v{t}")
        k(f"v_lshl_add_u32 v{PADR+4+par}, v{V_SLAB}, 13, v{t}")
    k(f"s_mul_i32 s{S_TMP}, s{S_J}, {128*8192}")
    k(f"s_lshl_b32 s{S_TMP+1}, s{S_H}, 8")
    k(f"s_add_u32 s{S_TMP}, s{S_TMP}, s{S_TMP+1}")
    k(f"s_lshl_b32 s{S_TMP+1}, s{S_WAVE}, 18")
    k(f"s_add_u32 s{S_TMP}, s{S_TMP}, s{S_TMP+1}")
    k(f"s_lshl_b32 s{S_TMP+1}, s{S_WAVE}, 13")
    k(f"s_add_u32 s{S_TMP+1}, s{S_TMP+1}, {L_WUV}")
    for ii in range(8):
        k(f"s_mov_b32 m0, s{S_TMP+1}")
        k(f"s_add_u32 s{S_TMP+1}, s{S_TMP+1}, 1024")
        k(f"buffer_load_dwordx4 v{PADR+4+(ii&1)}, {srd(R_B)}, s{S_TMP} offen lds")
        k(f"s_add_u32 s{S_TMP}, s{S_TMP}, {4*8192}")


def p_weights_preread(k):
    t = PT
    k(f"v_lshrrev_b32 v{t}, 2, v{V_L15}")
    k(f"v_and_b32 v{t+1}, 3, v{V_L15}")
    k(f"v_lshl_add_u32 v{t+2}, v{V_SLAB}, 2, v{t}")
    k(f"v_and_b32 v{t+3}, 7, v{t+2}")
    k(f"v_lshlrev_b32 v{t+3}, 1, v{t+3}")
    k(f"v_lshrrev_b32 v{t+4}, 1, v{t+1}")
    k(f"v_and_b32 v{t+5}, 1, v{t+1}")
    k(f"s_lshl_b32 s{S_TMP}, s{S_WAVE}, 2")
    for d in range(2):
        k(f"v_add_u32 v{t+6}, s{S_TMP}, v{t+4}")
        if d:
            k(f"v_add_u32 v{t+6}, 2, v{t+6}")
        k(f"v_xor_b32 v{t+6}, v{t+6}, v{t+3}")
        k(f"v_lshlrev_b32 v{t+6}, 4, v{t+6}")
        k(f"v_lshl_add_u32 v{t+6}, v{t+5}, 3, v{t+6}")
        k(f"v_lshl_add_u32 v{PADR+6+d}, v{t+2}, 8, v{t+6}")
    for d in range(2):
        for kk in range(4):
            r = PWV + (d * 4 + kk) * 4
            k(f"ds_read_b64_tr_b16 {vr(r,2)}, v{PADR+6+d} offset:{L_WUV+kk*8192}")
            k(f"ds_read_b64_tr_b16 {vr(r+2,2)}, v{PADR+6+d} offset:{L_WUV+kk*8192+4096}")


def wo_issue(k):
    t = PT
    k(f"s_mul_i32 s{S_TMP}, s{S_H}, {128*1280}")
    k(f"s_mul_i32 s{S_TMP+1}, s{S_J}, 320")
    k(f"s_add_u32 s{S_TMP}, s{S_TMP}, s{S_TMP+1}")
    k(f"s_mul_i32 s{S_TMP+1}, s{S_WAVE}, 640")
    k(f"v_add_u32 v{t}, s{S_TMP+1}, v{V_LANE}")
    k(f"s_mul_i32 s{S_TMP+1}, s{S_WAVE}, 10240")
    k(f"s_add_u32 s{S_TMP+1}, s{S_TMP+1}, {L_WO5}")
    k(f"s_movk_i32 s{S_TMP+2}, 3277")
    k(f"s_movk_i32 s{S_TMP+3}, 960")
    for ii in range(10):
        k(f"v_mul_u32_u24 v{t+1}, s{S_TMP+2}, v{t}")
        k(f"v_lshrrev_b32 v{t+1}, 16, v{t+1}")
        k(f"v_mul_u32_u24 v{t+1}, s{S_TMP+3}, v{t+1}")
        k(f"v_lshl_add_u32 v{t+2+(ii&1)}, v{t}, 4, v{t+1}")
        k(f"s_mov_b32 m0, s{S_TMP+1}")
        k(f"s_add_u32 s{S_TMP+1}, s{S_TMP+1}, 1024")
        k(f"buffer_load_dwordx4 v{t+2+(ii&1)}, {srd(R_C)}, s{S_TMP} offen lds")
        k(f"v_add_u32 v{t}, 64, v{t}")


def wo_preread(k):
    t = PT
    k(f"v_lshrrev_b32 v{t}, 2, v{V_L15}")
    k(f"v_and_b32 v{t+1}, 3, v{V_L15}")
    k(f"v_lshl_add_u32 v{t+2}, v{V_SLAB}, 2, v{t}")
    k(f"s_lshl_b32 s{S_TMP}, s{S_WAVE}, 5")
    k(f"v_add_u32 v{t+6}, s{S_TMP}, v{t+2}")
    k(f"v_mul_u32_u24 v{t+6}, 320, v{t+6}")
    k(f"v_lshl_add_u32 v{PADR+8}, v{t+1}, 3, v{t+6}")
    k(f"v_add_u32 v{PADR+8}, {L_WO5}, v{PADR+8}")
    for ct in range(10):
        r = PWO + 4 * ct
        k(f"ds_read_b64_tr_b16 {vr(r,2)}, v{PADR+8} offset:{32*ct}")
        k(f"ds_read_b64_tr_b16 {vr(r+2,2)}, v{PADR+8} offset:{32*ct+5120}")


def reduce_bits(k, op, v, tmp):
    for mod in ("quad_perm:[1,0,3,2]", "quad_perm:[2,3,0,1]", "row_half_mirror"):
        k.nop(2)
        k(f"{op}_dpp v{v}, v{v}, v{v} {mod} row_mask:0xf bank_mask:0xf")
    for sw in ("v_permlane16_swap_b32", "v_permlane32_swap_b32"):
        k(f"v_mov_b32 v{tmp}, v{v}")
        k.nop(2)
        k(f"{sw} v{v}, v{tmp}")
        k.nop(1)
        k(f"{op} v{v}, v{v}, v{tmp}")


def stage4_setup(k):
    t = PT
    k(f"v_bfe_u32 v{t}, v{V_LANE}, 3, 1")
    k(f"v_bfe_u32 v{t+1}, v{V_LANE}, 2, 1")
    k(f"v_and_b32 v{t+2}, 3, v{V_LANE}")
    k(f"v_lshlrev_b32 v{t+1}, 4, v{t+1}")
    k(f"v_lshl_add_u32 v{t+1}, v{V_SLAB}, 2, v{t+1}")
    k(f"v_add_u32 v{t+1}, v{t+1}, v{t+2}")
    k(f"v_lshl_add_u32 v{t+1}, v{t}, 5, v{t+1}")
    k(f"v_lshlrev_b32 v{PADR+9}, 3, v{t+1}")
    k(f"v_and_b32 v{t+1}, 1, v{V_LANE}")
    k(f"v_cmp_eq_u32 vcc, 1, v{t+1}")
    k(f"v_mov_b32 v{t+2}, 0xffff")
    k(f"v_mov_b32 v{t+3}, 0xffff0000")
    k(f"v_cndmask_b32 v{t+2}, v{t+2}, v{t+3}, vcc")
    k(f"v_bfe_u32 v{t+1}, v{V_LANE}, 1, 2")
    k(f"v_lshl_add_u32 v{t+1}, v{t}, 2, v{t+1}")
    for i in range(8):
        k(f"v_cmp_eq_u32 vcc, {i}, v{t+1}")
        k.nop(2)
        k(f"v_cndmask_b32 v{PM+i}, 0, v{t+2}, vcc")
    k(f"v_lshlrev_b32 v{PADR+10}, 4, v0")
    k(f"v_lshrrev_b32 v{t}, 4, v0")
    k(f"v_and_b32 v{t+1}, 7, v{t}")
    k(f"v_lshlrev_b32 v{t+1}, 1, v{t+1}")
    k(f"v_xor_b32 v{t+1}, v{t+1}, v{V_L15}")
    k(f"v_lshlrev_b32 v{t+1}, 4, v{t+1}")
    k(f"v_lshl_add_u32 v{t+1}, v{t}, 8, v{t+1}")
    k(f"v_add_u32 v{PADR+11}, {L_AOB}, v{t+1}")
    k(f"v_lshrrev_b32 v{t}, 2, v{V_L15}")
    k(f"v_lshl_add_u32 v{t}, v{V_SLAB}, 2, v{t}")
    k(f"v_and_b32 v{t+1}, 7, v{t}")
    k(f"v_lshlrev_b32 v{t+1}, 1, v{t+1}")
    k(f"v_bfe_u32 v{t+2}, v{V_L15}, 1, 1")
    k(f"v_and_b32 v{t+3}, 1, v{V_L15}")
    k(f"s_lshl_b32 s{S_TMP}, s{S_WAVE}, 2")
    for d in range(2):
        k(f"v_add_u32 v{t+4}, s{S_TMP}, v{t+2}")
        if d:
            k(f"v_add_u32 v{t+4}, 2, v{t+4}")
        k(f"v_xor_b32 v{t+4}, v{t+4}, v{t+1}")
        k(f"v_lshlrev_b32 v{t+4}, 4, v{t+4}")
        k(f"v_lshl_add_u32 v{t+4}, v{t+3}, 3, v{t+4}")
        k(f"v_lshl_add_u32 v{t+4}, v{t}, 8, v{t+4}")
        k(f"v_add_u32 v{PADR+12+d}, {L_AOB}, v{t+4}")
    k(f"v_lshrrev_b32 v{t}, 1, v{V_SLAB}")
    k(f"v_and_b32 v{t+1}, 1, v{V_SLAB}")
    k(f"v_lshlrev_b32 v{t}, 7, v{t}")
    k(f"v_lshl_add_u32 v{t}, v{t+1}, 4, v{t}")
    k(f"v_add_u32 v{t}, v{t}, v{V_L15}")
    k(f"s_lshl_b32 s{S_TMP}, s{S_WAVE}, 5")
    k(f"v_add_u32 v{t}, s{S_TMP}, v{t}")
    k(f"v_lshlrev_b32 v{t}, 1, v{t}")
    k(f"v_add_u32 v{PADR+14}, {L_CTX}, v{t}")
    k(f"v_and_b32 v{t}, 1, v{V_LANE}")
    k(f"v_lshlrev_b32 v{t}, 8, v{t}")
    k(f"v_lshl_add_u32 v{t}, v{V_SLAB}, 4, v{t}")
    k(f"v_add_u32 v{PADR+15}, {L_CTX}, v{t}")


def stage4(k):
    t = PT
    G = PG
    ST = 26
    k(f"s_lshl_b32 s{S_TMP}, s{S_H}, 9")
    k(f"s_add_u32 s{S_TMP}, s{S_TMP}, {WS_ST}")
    k(f"s_lshl_b32 s{S_TMP+1}, s{S_H}, 2")
    k(f"s_add_u32 s{S_TMP+1}, s{S_TMP+1}, s{S_J}")
    k(f"s_lshl_b32 s{S_TMP+2}, s{S_TMP+1}, 14")
    k(f"s_add_u32 s{S_TMP+2}, s{S_TMP+2}, {WS_AO}")
    for n in range(1, 4):
        k(f"s_add_u32 s{S_TMP+2+n}, s{S_TMP+2}, {4096*n}")
    sk = k.label("stw")
    k(f"v_lshlrev_b32 v{t+12}, 3, v{V_LANE}")
    k(f"v_add_u32 v{t+12}, {L_STX}, v{t+12}")
    k(f"s_cmp_eq_u32 s{S_WAVE}, 0")
    k(f"s_cbranch_scc0 {sk}")
    gather_check_loop(k, "st", [f"buffer_load_dwordx2 {vr(ST,2)}, v{PADR+9}, {srd(R_WS)}, s{S_TMP} offen sc1"], [ST, ST + 1], None)
    k(f"ds_write_b64 v{t+12}, {vr(ST,2)}")
    k("s_waitcnt lgkmcnt(0)")
    k(f"{sk}:")
    k("s_barrier")
    k.stamp(7)
    loads = [f"buffer_load_dwordx4 {vr(G+4*n,4)}, v{PADR+10}, {srd(R_WS)}, s{S_TMP+2+n} offen sc1" for n in range(4)]
    for l in loads:
        k(l)
    k(f"ds_read_b64 {vr(ST,2)}, v{t+12}")
    k("s_waitcnt lgkmcnt(0)")
    M = t + 8
    k(f"v_mov_b32 v{M}, v{ST}")
    reduce_bits(k, "v_max_f32", M, t + 9)
    k(f"v_sub_f32 v{t}, v{ST}, v{M}")
    k(f"v_exp_f32 v{t}, v{t}")
    k.nop(1)
    k(f"v_cvt_pk_bf16_f32 v{t}, v{t}, v{t}")
    for i in range(8):
        k(f"v_and_b32 v{PA+i}, v{t}, v{PM+i}")
    k(f"v_and_b32 v{t+1}, 0xffff0000, v{t}")
    k(f"v_mul_f32 v{t+1}, v{t+1}, v{ST+1}")
    reduce_bits(k, "v_add_f32", t + 1, t + 9)
    k(f"v_rcp_f32 v{t+1}, v{t+1}")
    k.nop(1)
    k(f"v_readlane_b32 s{S_TMP+6}, v{t+1}, 0")
    k(f"v_readlane_b32 s{S_TMP+7}, v{t+1}, 8")
    k(f"v_cmp_le_u32 vcc, 32, v{V_LANE}")
    k.nop(1)
    k(f"v_mov_b32 v{t+2}, s{S_TMP+6}")
    k(f"v_mov_b32 v{t+3}, s{S_TMP+7}")
    k(f"v_cndmask_b32 v{t+2}, v{t+2}, v{t+3}, vcc")
    gather_check_loop(k, "ao", loads, list(range(G, G + 16)), 8, preissued=True)
    for n in range(4):
        k(f"ds_write_b128 v{PADR+11}, {vr(G+4*n,4)} offset:{4096*n}")
    k("s_waitcnt lgkmcnt(0)")
    k("s_barrier")
    B = PD + 8
    for d in range(2):
        for bb in range(2):
            r = B + (d * 2 + bb) * 4
            k(f"ds_read_b64_tr_b16 {vr(r,2)}, v{PADR+12+d} offset:{bb*8192}")
            k(f"ds_read_b64_tr_b16 {vr(r+2,2)}, v{PADR+12+d} offset:{bb*8192+4096}")
    for d in range(2):
        k(f"s_waitcnt lgkmcnt({4-4*d})")
        k(f"v_mfma_f32_16x16x32_bf16 {vr(PD+4*d,4)}, {vr(PA,4)}, {vr(B+(d*2)*4,4)}, 0")
        k(f"v_mfma_f32_16x16x32_bf16 {vr(PD+4*d,4)}, {vr(PA+4,4)}, {vr(B+(d*2+1)*4,4)}, {vr(PD+4*d,4)}")
    k.nop(8)
    for d in range(2):
        k(f"v_add_f32 v{PD+4*d}, v{PD+4*d}, v{PD+4*d+1}")
        k(f"v_add_f32 v{PD+4*d+2}, v{PD+4*d+2}, v{PD+4*d+3}")
    for d in range(2):
        k(f"v_add_f32 v{PD+4*d}, v{PD+4*d}, v{PD+4*d+2}")
    k.nop(2)
    k(f"v_permlane16_swap_b32 v{PD}, v{PD+4}")
    k.nop(1)
    k(f"v_add_f32 v{PD}, v{PD}, v{PD+4}")
    k(f"v_mul_f32 v{PD}, v{PD}, v{t+2}")
    k(f"v_cvt_pk_bf16_f32 v{PD}, v{PD}, v{PD}")
    k(f"ds_write_b16 v{PADR+14}, v{PD}")
    k("s_waitcnt lgkmcnt(0)")
    k("s_barrier")
    for kk in range(4):
        k(f"ds_read_b128 {vr(PA+4*kk,4)}, v{PADR+15} offset:{64*kk}")
    k(f"v_lshrrev_b32 v{t}, 2, v{V_L15}")
    k(f"v_lshlrev_b32 v{t}, 3, v{t}")
    k(f"v_and_b32 v{t+1}, 1, v{V_SLAB}")
    k(f"v_lshl_add_u32 v{t}, v{t+1}, 2, v{t}")
    k(f"v_and_b32 v{t+1}, 2, v{V_L15}")
    k(f"v_add_u32 v{t}, v{t}, v{t+1}")
    k(f"v_lshrrev_b32 v{t+1}, 1, v{V_SLAB}")
    k(f"v_lshl_add_u32 v{t}, v{t+1}, 7, v{t}")
    k(f"v_lshlrev_b32 v{t}, 1, v{t}")
    k(f"s_lshl_b32 s{S_TMP}, s{S_H}, 2")
    k(f"s_add_u32 s{S_TMP}, s{S_TMP}, s{S_J}")
    k(f"s_lshl_b32 s{S_TMP}, s{S_TMP}, 9")
    k(f"s_lshl_b32 s{S_TMP+1}, s{S_WAVE}, 6")
    k(f"s_add_u32 s{S_TMP}, s{S_TMP}, s{S_TMP+1}")
    k(f"s_add_u32 s{S_TMP}, s{S_TMP}, {WS_CP}")
    k(f"s_mov_b32 s{S_M+2}, 0xffff0000")
    k(f"s_mov_b32 s{S_M+3}, 0xffff0000")
    k(f"s_mov_b32 s{S_M+4}, 0")
    k(f"s_mov_b32 s{S_M+5}, -1")
    k(f"s_mov_b32 s{S_M+6}, 0x55555555")
    k(f"s_mov_b32 s{S_M+7}, 0x55555555")
    for kk in range(4):
        k(f"s_waitcnt lgkmcnt({3-kk})")
        for d in range(2):
            c = "0" if kk == 0 else vr(PD + 4 * d, 4)
            k(f"v_mfma_f32_16x16x32_bf16 {vr(PD+4*d,4)}, {vr(PA+4*kk,4)}, {vr(PWV+(d*4+kk)*4,4)}, {c}")
    k.nop(8)
    k(f"v_cndmask_b32 v{t+2}, v{PD}, v{PD+4}, s[{S_M+2}:{S_M+3}]")
    k(f"v_cndmask_b32 v{t+3}, v{PD+1}, v{PD+5}, s[{S_M+2}:{S_M+3}]")
    k(f"v_cndmask_b32 v{t+2}, v{t+2}, v{t+3}, s[{S_M+4}:{S_M+5}]")
    k.nop(2)
    k(f"v_mov_b32_dpp v{t+3}, v{t+2} quad_perm:[1,0,3,2] row_mask:0xf bank_mask:0xf")
    k(f"v_cvt_pk_bf16_f32 v{t+2}, v{t+2}, v{t+3}")
    k(f"s_mov_b64 exec, s[{S_M+6}:{S_M+7}]")
    k(f"buffer_store_dword v{t+2}, v{t}, {srd(R_WS)}, s{S_TMP} offen sc1")
    k(f"s_mov_b64 exec, -1")
    k.stamp(9)


def stage5(k):
    t = PT
    k(f"v_and_b32 v{t}, 3, v{V_L15}")
    k(f"v_lshlrev_b32 v{t}, 9, v{t}")
    k(f"v_bfe_u32 v{t+1}, v{V_L15}, 2, 1")
    k(f"v_lshl_add_u32 v{t}, v{t+1}, 8, v{t}")
    k(f"v_lshl_add_u32 v{PADR}, v{V_SLAB}, 4, v{t}")
    k(f"s_lshl_b32 s{S_TMP}, s{S_H}, 11")
    k(f"s_lshl_b32 s{S_TMP+1}, s{S_WAVE}, 6")
    k(f"s_add_u32 s{S_TMP}, s{S_TMP}, s{S_TMP+1}")
    k(f"s_add_u32 s{S_TMP}, s{S_TMP}, {WS_CP}")
    k(f"v_lshrrev_b32 v{t}, 1, v{V_SLAB}")
    k(f"v_lshlrev_b32 v{t}, 4, v{t}")
    k(f"v_add_u32 v{t}, v{t}, v{V_L15}")
    k(f"v_lshlrev_b32 v{t}, 3, v{t}")
    k(f"v_and_b32 v{t+1}, 1, v{V_SLAB}")
    k(f"v_lshl_add_u32 v{PADR+1}, v{t+1}, 2, v{t}")
    k(f"s_mul_i32 s{S_TMP+1}, s{S_H}, 5120")
    k(f"s_mul_i32 s{S_TMP+2}, s{S_J}, 1280")
    k(f"s_add_u32 s{S_TMP+1}, s{S_TMP+1}, s{S_TMP+2}")
    k(f"s_add_u32 s{S_TMP+1}, s{S_TMP+1}, {WS_SP}")
    k(f"s_lshl_b32 s{S_TMP+2}, s{S_WAVE}, 8")
    k(f"s_add_u32 s{S_TMP+2}, s{S_TMP+2}, s{S_TMP+1}")
    k(f"s_add_u32 s{S_TMP+1}, s{S_TMP+1}, 1024")
    k(f"v_lshlrev_b32 v{t}, 2, v{V_LANE}")
    k(f"s_mul_i32 s{S_TMP+3}, s{S_WAVE}, 1280")
    k(f"s_add_u32 s{S_TMP+3}, s{S_TMP+3}, {L_RED5}")
    k(f"v_add_u32 v{PADR+3}, s{S_TMP+3}, v{t}")
    k(f"s_lshl_b32 s{S_TMP+3}, s{S_WAVE}, 8")
    k(f"s_add_u32 s{S_TMP+3}, s{S_TMP+3}, {L_RED5}")
    k(f"v_add_u32 v{PADR+2}, s{S_TMP+3}, v{t}")
    k(f"v_add_u32 v{PADR+4}, {L_RED5+1024}, v{t}")
    k(f"s_mov_b32 s{S_M+4}, 0")
    k(f"s_mov_b32 s{S_M+5}, -1")
    loads = [f"buffer_load_dwordx4 {vr(PG,4)}, v{PADR}, {srd(R_WS)}, s{S_TMP} offen sc1"]
    gather_check_loop(k, "cp", loads, [PG, PG + 1, PG + 2, PG + 3], 10)
    for ct in range(10):
        k(f"v_mfma_f32_16x16x32_bf16 {vr(PD+4*ct,4)}, {vr(PG,4)}, {vr(PWO+4*ct,4)}, 0")
    for ct in range(10):
        k(f"v_add_f32 v{PD+4*ct}, v{PD+4*ct}, v{PD+4*ct+1}")
        k(f"v_add_f32 v{PD+4*ct+2}, v{PD+4*ct+2}, v{PD+4*ct+3}")
        k(f"v_add_f32 v{PD+4*ct}, v{PD+4*ct}, v{PD+4*ct+2}")
    for u in range(5):
        k(f"v_cndmask_b32 v{PY+u}, v{PD+8*u}, v{PD+8*u+4}, s[{S_M+4}:{S_M+5}]")
    k(f"ds_write2st64_b32 v{PADR+3}, v{PY}, v{PY+1} offset0:0 offset1:1")
    k(f"ds_write2st64_b32 v{PADR+3}, v{PY+2}, v{PY+3} offset0:2 offset1:3")
    k(f"ds_write_b32 v{PADR+3}, v{PY+4} offset:1024")
    k("s_waitcnt lgkmcnt(0)")
    k("s_barrier")
    k(f"ds_read2st64_b32 {vr(t,2)}, v{PADR+2} offset0:0 offset1:5")
    k(f"ds_read2st64_b32 {vr(t+2,2)}, v{PADR+2} offset0:10 offset1:15")
    k(f"ds_read2st64_b32 {vr(t+4,2)}, v{PADR+4} offset0:0 offset1:5")
    k(f"ds_read2st64_b32 {vr(t+6,2)}, v{PADR+4} offset0:10 offset1:15")
    k("s_waitcnt lgkmcnt(2)")
    k(f"v_add_f32 v{t}, v{t}, v{t+1}")
    k(f"v_add_f32 v{t+2}, v{t+2}, v{t+3}")
    k(f"v_add_f32 v{t}, v{t}, v{t+2}")
    k(f"buffer_store_dword v{t}, v{PADR+1}, {srd(R_WS)}, s{S_TMP+2} offen sc1")
    skip = k.label("s5skip")
    k(f"s_cmp_eq_u32 s{S_WAVE}, 0")
    k(f"s_cbranch_scc0 {skip}")
    k("s_waitcnt lgkmcnt(0)")
    k(f"v_add_f32 v{t+4}, v{t+4}, v{t+5}")
    k(f"v_add_f32 v{t+6}, v{t+6}, v{t+7}")
    k(f"v_add_f32 v{t+4}, v{t+4}, v{t+6}")
    k(f"buffer_store_dword v{t+4}, v{PADR+1}, {srd(R_WS)}, s{S_TMP+1} offen sc1")
    k(f"{skip}:")
    k.stamp(11)


S_U = 73 + 7
BQ = 10
BG = 74
BD = 90
BS = 122
BP = 130
BL = 146
BADR = 150
BT = 166
BONE = 186
BAC = 190
BTR = 192
BWF = 194
BA2 = 236
BWR = 196
S_WFL, S_WFO, S_WFS = 17, 22, 23
AOT_RS = 272
L_AOT = 98304
S_FLG = 14
S_AC = 14 + 2
FIRSTWAIT_AC = 1
S_B, S_G, S_UU = 66, 67, 68


def b_roles(k):
    k(f"s_sub_u32 s{S_JP}, s{S_J}, 4")
    k(f"s_and_b32 s{S_G}, s{S_JP}, 1")
    k(f"s_lshr_b32 s{S_B}, s{S_JP}, 1")
    k(f"s_lshl_b32 s{S_UU}, s{S_JP}, 5")
    k(f"s_add_u32 s{S_UU}, s{S_UU}, s{S_H}")
    k(f"s_and_b32 s{S_F}, s{S_UU}, 63")
    k(f"s_lshr_b32 s{S_TMP}, s{S_UU}, 6")
    k(f"s_add_u32 s{S_ROLE}, s{S_TMP}, 1")
    k(f"s_cmp_lt_u32 s{S_F}, {NF}")
    k(f"s_cselect_b32 s{S_ROLE}, s{S_ROLE}, 3")
    k(f"s_mul_i32 s{S_TMP}, s{S_TMP}, 10")
    k(f"s_add_u32 s{S_Z}, s{S_F}, s{S_TMP}")
    k(f"s_sub_u32 s{S_Z}, s{S_Z}, {NF}")


def clears_B(k):
    t = V_T + 4
    neg = vr(V_NEG1, 4)
    k(f"v_lshlrev_b32 v{t}, 4, v{V_LANE}")
    k(f"s_lshl_b32 s{S_TMP}, s{S_H}, 2")
    k(f"s_add_u32 s{S_TMP}, s{S_TMP}, s{S_JP}")
    k(f"s_lshl_b32 s{S_TMP}, s{S_TMP}, 14")
    k(f"s_add_u32 s{S_TMP}, s{S_TMP}, {WS_AO}")
    k(f"s_mul_i32 s{S_TMP+1}, s{S_WAVE}, 5120")
    k(f"s_add_u32 s{S_TMP}, s{S_TMP}, s{S_TMP+1}")
    k(f"s_sub_u32 s{S_TMP}, s{S_TMP}, 4096")
    for i in range(5):
        off = i * 1024
        if i == 4:
            k(f"s_add_u32 s{S_TMP}, s{S_TMP}, 4096")
            off = 0
        k(f"buffer_store_dwordx4 {neg}, v{t}, {srd(R_WS)}, s{S_TMP} offen offset:{off} sc1")
    sk = k.label("cb")
    k(f"s_cmp_eq_u32 s{S_WAVE}, 1")
    k(f"s_cbranch_scc0 {sk}_2")
    k(f"s_sub_u32 s{S_TMP}, s{S_TMP}, 5120")
    k(f"buffer_store_dwordx4 {neg}, v{t}, {srd(R_WS)}, s{S_TMP} offen sc1")
    k(f"s_branch {sk}")
    k(f"{sk}_2:")
    k(f"s_cmp_eq_u32 s{S_WAVE}, 2")
    k(f"s_cbranch_scc0 {sk}")
    k(f"s_cmp_eq_u32 s{S_ROLE}, 2")
    k(f"s_cbranch_scc0 {sk}")
    k(f"s_mul_i32 s{S_TMP}, s{S_F}, 5120")
    k(f"s_add_u32 s{S_TMP}, s{S_TMP}, {WS_FP}")
    for i in range(5):
        off = i * 1024
        if i == 4:
            k(f"s_add_u32 s{S_TMP}, s{S_TMP}, 4096")
            off = 0
        k(f"buffer_store_dwordx4 {neg}, v{t}, {srd(R_WS)}, s{S_TMP} offen offset:{off} sc1")
    k(f"{sk}:")


def tag_store(k, base, shift, treg, only_wave=None):
    k(f"s_lshl_b32 s{S_TMP+3}, s{S_H}, 2")
    k(f"s_add_u32 s{S_TMP+3}, s{S_TMP+3}, s{S_JP}")
    k(f"s_lshl_b32 s{S_TMP+3}, s{S_TMP+3}, {shift}")
    k(f"s_add_u32 s{S_TMP+3}, s{S_TMP+3}, {base}")
    if only_wave is not None:
        k(f"s_cmp_eq_u32 s{S_WAVE}, {only_wave}")
        k(f"s_cselect_b32 s{S_TMP+3}, s{S_TMP+3}, 0x7f000000")
    k(f"v_mov_b32 v{treg}, s{S_T0}")
    k(f"v_mov_b32 v{treg+1}, s{S_T1}")
    k(f"v_mov_b32 v{treg+2}, 0")
    k(f"s_mov_b64 exec, 1")
    k(f"buffer_store_dwordx2 {vr(treg,2)}, v{treg+2}, {srd(R_WS)}, s{S_TMP+3} offen sc1")
    k(f"s_mov_b64 exec, -1")


def ac_publish(k):
    sk = k.label("acp")
    k(f"s_cmp_eq_u32 s{S_WAVE}, 1")
    k(f"s_cbranch_scc0 {sk}")
    tag_store(k, WS_AC, 3, BT + 2)
    k(f"{sk}:")


def ckv_issue(k):
    t = V_T + 4
    k(f"s_lshl_b32 s{S_TMP}, s{S_B}, 12")
    k(f"s_lshl_b32 s{S_TMP+1}, s{S_H}, 7")
    k(f"s_add_u32 s{S_TMP}, s{S_TMP}, s{S_TMP+1}")
    k(f"s_lshl_b32 s{S_TMP+1}, s{S_WAVE}, 5")
    k(f"s_add_u32 s{S_TMP}, s{S_TMP}, s{S_TMP+1}")
    k(f"s_lshl_b32 s{S_TMP}, s{S_TMP}, 10")
    k(f"s_mul_i32 s{S_TMP+1}, s{S_WAVE}, {32*RS}")
    k(f"s_add_u32 s{S_TMP+1}, s{S_TMP+1}, {L_CKV}")
    k(f"v_lshlrev_b32 v{t}, 4, v{V_LANE}")
    k(f"v_lshrrev_b32 v{t+1}, 2, v{V_LANE}")
    k(f"v_lshlrev_b32 v{t+1}, 13, v{t+1}")
    k(f"v_and_b32 v{BT}, 3, v{V_LANE}")
    k(f"v_lshl_add_u32 v{BADR+14}, v{BT}, 10, v{t+1}")
    k(f"s_lshl_b32 s{S_FLG}, s{S_G}, 17")
    k(f"s_add_u32 s{S_FLG}, s{S_FLG}, {WS_QP}")
    k(f"v_lshlrev_b32 v{BADR+15}, 3, v{V_LANE}")
    k(f"s_lshl_b32 s{S_AC}, s{S_G}, 9")
    k(f"s_add_u32 s{S_AC}, s{S_AC}, {WS_AC}")
    k(f"s_mul_i32 s{S_TMP+3}, s{S_G}, {16*1024}")
    k(f"s_add_u32 s{S_TMP}, s{S_TMP}, s{S_TMP+3}")
    k(f"s_mul_i32 s{S_TMP+3}, s{S_G}, {16*RS}")
    k(f"s_add_u32 s{S_TMP+1}, s{S_TMP+1}, s{S_TMP+3}")
    for r in range(32):
        if r == 8:
            k("s_waitcnt vmcnt(8)")
            epoch_tags(k, VE)
            k("s_barrier")
            ac_publish(k)
        if r == FLAG_ROW:
            k(flag_load())
            k(ac_load())
        if r == 16:
            k(f"s_mul_i32 s{S_TMP+3}, s{S_G}, {32*1024}")
            k(f"s_sub_u32 s{S_TMP}, s{S_TMP}, s{S_TMP+3}")
            k(f"s_mul_i32 s{S_TMP+3}, s{S_G}, {32*RS}")
            k(f"s_sub_u32 s{S_TMP+1}, s{S_TMP+1}, s{S_TMP+3}")
        k(f"s_mov_b32 m0, s{S_TMP+1}")
        k(f"s_add_u32 s{S_TMP+1}, s{S_TMP+1}, {RS}")
        k(f"buffer_load_dwordx4 v{t}, {srd(R_A)}, s{S_TMP} offen lds")
        k(f"s_add_u32 s{S_TMP}, s{S_TMP}, 1024")
    if K.opt.get("trig", "0") == "1":
        tag_store(k, WS_TR, 6, BT + 2, only_wave=3)


def ntr():
    return 1 if K.opt.get("trig", "0") == "1" else 0


def flag_load():
    return f"buffer_load_dwordx4 {vr(BG,4)}, v{BADR+14}, {srd(R_WS)}, s{S_FLG} offen sc1"


def ac_load():
    return f"buffer_load_dwordx2 {vr(BAC,2)}, v{BADR+15}, {srd(R_WS)}, s{S_AC} offen sc1"


def flags_poll(k):
    gather_loop(k, "fl", [flag_load(), ac_load()], lambda kk: tag_check(kk, [(BG+2, BG+3), (BAC, BAC+1)]), 14, preissued=True, firstwait=32 - FLAG_ROW + ntr())


def wf_load(k, i):
    if K.opt.get("nowf"):
        return
    k(f"buffer_load_dwordx4 {vr(BWR+4*i,4)}, v{BWF}, {srd(R_B)}, s{S_WFO} offen")
    if i < 9:
        k(f"s_add_u32 s{S_WFO}, s{S_WFO}, s{S_WFS}")


def attention_setup(k):
    t = BT
    k(f"s_lshl_b32 s{S_TMP}, s{S_WAVE}, 5")
    k(f"v_add_u32 v{t}, s{S_TMP}, v{V_L15}")
    k(f"v_mul_u32_u24 v{t}, {RS}, v{t}")
    k(f"v_lshl_add_u32 v{t}, v{V_SLAB}, 8, v{t}")
    k(f"v_and_b32 v{t+1}, 1, v{V_SLAB}")
    k(f"v_lshlrev_b32 v{t+1}, 4, v{t+1}")
    k(f"s_mul_i32 s{S_TMP}, s{S_G}, {16*RS}")
    k(f"s_sub_u32 s{S_TMP+1}, {16*RS}, s{S_TMP}")
    k(f"v_add_u32 v{BADR}, v{t}, v{t+1}")
    k(f"v_sub_u32 v{BADR+1}, v{t}, v{t+1}")
    k(f"v_add_u32 v{BA2}, s{S_TMP+1}, v{BADR}")
    k(f"v_add_u32 v{BA2+1}, s{S_TMP+1}, v{BADR+1}")
    k(f"v_add_u32 v{BADR}, s{S_TMP}, v{BADR}")
    k(f"v_add_u32 v{BADR+1}, s{S_TMP}, v{BADR+1}")
    k(f"v_mul_u32_u24 v{t}, {RS}, v{V_L15}")
    k(f"v_lshl_add_u32 v{t}, v{V_SLAB}, 8, v{t}")
    k(f"v_add_u32 v{t}, {L_QB}, v{t}")
    k(f"v_add_u32 v{BADR+2}, v{t}, v{t+1}")
    k(f"v_sub_u32 v{BADR+3}, v{t}, v{t+1}")
    k(f"v_lshrrev_b32 v{t}, 2, v{V_L15}")
    k(f"v_lshl_add_u32 v{t}, v{V_SLAB}, 2, v{t}")
    k(f"v_mul_u32_u24 v{t}, {RS}, v{t}")
    k(f"v_and_b32 v{t+1}, 3, v{V_L15}")
    k(f"v_lshl_add_u32 v{t}, v{t+1}, 3, v{t}")
    k(f"s_lshl_b32 s{S_TMP}, s{S_WAVE}, 8")
    k(f"v_add_u32 v{t}, s{S_TMP}, v{t}")
    k(f"s_mul_i32 s{S_TMP}, s{S_G}, {16*RS}")
    k(f"s_sub_u32 s{S_TMP+1}, {16*RS}, s{S_TMP}")
    k(f"v_add_u32 v{BADR+4}, s{S_TMP}, v{t}")
    k(f"v_add_u32 v{BADR+5}, {64*RS}, v{BADR+4}")
    k(f"v_add_u32 v{BA2+2}, s{S_TMP+1}, v{t}")
    k(f"v_add_u32 v{BA2+3}, {64*RS}, v{BA2+2}")
    k(f"v_lshlrev_b32 v{BADR+6}, 4, v0")
    k(f"s_mul_i32 s{S_TMP}, s{S_WAVE}, {RS}")
    k(f"s_add_u32 s{S_TMP}, s{S_TMP}, {L_QB}")
    k(f"v_lshlrev_b32 v{t}, 4, v{V_LANE}")
    k(f"v_add_u32 v{BADR+7}, s{S_TMP}, v{t}")
    k(f"v_lshlrev_b32 v{t+1}, 2, v{V_LANE}")
    k(f"s_lshl_b32 s{S_TMP}, s{S_WAVE}, 8")
    k(f"s_add_u32 s{S_TMP}, s{S_TMP}, {L_MX}")
    k(f"v_add_u32 v{BADR+8}, s{S_TMP}, v{t+1}")
    k(f"v_add_u32 v{BADR+9}, {L_MX}, v{t+1}")
    k(f"s_lshl_b32 s{S_TMP}, s{S_WAVE}, 10")
    k(f"s_add_u32 s{S_TMP}, s{S_TMP}, {L_PB}")
    k(f"v_add_u32 v{BADR+10}, s{S_TMP}, v{t}")
    k(f"v_add_u32 v{BADR+11}, {L_PB}, v{t}")
    k(f"s_mul_i32 s{S_TMP}, s{S_WAVE}, {16*AOT_RS}")
    k(f"s_add_u32 s{S_TMP}, s{S_TMP}, {L_AOT}")
    k(f"v_mul_u32_u24 v{t}, {AOT_RS}, v{V_L15}")
    k(f"v_lshl_add_u32 v{t}, v{V_SLAB}, 4, v{t}")
    k(f"v_add_u32 v{BADR+12}, s{S_TMP}, v{t}")
    k(f"v_mul_u32_u24 v{t}, {AOT_RS}, v{V_SLAB}")
    k(f"v_lshl_add_u32 v{t}, v{V_L15}, 4, v{t}")
    k(f"v_add_u32 v{BTR}, s{S_TMP}, v{t}")
    k(f"v_lshlrev_b32 v{t}, 16, v{V_SLAB}")
    k(f"v_lshl_add_u32 v{BTR+1}, v{V_L15}, 4, v{t}")
    k(f"v_lshlrev_b32 v{BADR+13}, 9, v{V_L15}")
    for i in range(4):
        k(f"v_mov_b32 v{BONE+i}, 0x3f803f80")


def attention(k):
    t = BT

    def pv_read(tt, u, half):
        r = 128 + (tt * 4 + u) * 4 + 2 * half
        base = (BADR + 4 if half == 0 else BA2 + 2) + (u >> 1)
        k(f"ds_read_b64_tr_b16 {ar(r,2)}, v{base} offset:{L_CKV + (u & 1) * 32 * RS + 32 * tt}")

    def a_read(p):
        for i in range(16):
            base = (BADR if p == 0 else BA2) + (i & 1)
            k(f"ds_read_b128 {ar((p*16+i)*4,4)}, v{base} offset:{L_CKV+i*16}")

    k(f"s_waitcnt vmcnt({18 + ntr()})")
    a_read(0)
    k("s_barrier")
    for tt in range(8):
        for u in range(4):
            pv_read(tt, u, 0)
    if K.opt.get("noflags"):
        k(f"s_waitcnt vmcnt({4 + ntr()})")
    else:
        flags_poll(k)
    k(f"s_lshl_b32 s{S_TMP}, s{S_B}, 15")
    k(f"s_lshl_b32 s{S_TMP+1}, s{S_G}, 14")
    k(f"s_add_u32 s{S_TMP}, s{S_TMP}, s{S_TMP+1}")
    k(f"s_add_u32 s{S_TMP}, s{S_TMP}, {WS_QA}")
    for n in range(1, 4):
        k(f"s_add_u32 s{S_TMP+n}, s{S_TMP}, {4096*n}")
    loads = [f"buffer_load_dwordx4 {vr(BG+4*n,4)}, v{BADR+6}, {srd(R_WS)}, s{S_TMP+n} offen sc1" for n in range(4)]
    for l in loads:
        k(l)
    k(f"s_waitcnt vmcnt({4 + ntr()})")
    k.stamp(4)
    a_read(1)
    gather_check_loop(k, "qa", loads, list(range(BG, BG + 16)), 5, preissued=True)
    for n in range(4):
        k(f"ds_write_b128 v{BADR+7}, {vr(BG+4*n,4)} offset:{4*n*RS}")
    k("s_waitcnt lgkmcnt(0)")
    k("s_barrier")
    for i in range(16):
        k(f"ds_read_b128 {vr(BQ+4*i,4)}, v{BADR+2+(i&1)} offset:{i*16}")
    for i in range(16):
        if i < 8:
            k(f"s_waitcnt lgkmcnt({15-i})")
        elif i == 8:
            k("s_waitcnt lgkmcnt(0)")
        for p in range(2):
            c = "0" if i == 0 else vr(BS + 4 * p, 4)
            k(f"v_mfma_f32_16x16x32_bf16 {vr(BS+4*p,4)}, {ar((p*16+i)*4,4)}, {vr(BQ+4*i,4)}, {c}")
        if i >= 8:
            for u in range(4):
                pv_read(i - 8, u, 1)
        if i & 1:
            wf_load(k, i >> 1)
    k.nop(8)
    k.stamp(6)
    k(f"v_max3_f32 v{t}, v{BS}, v{BS+1}, v{BS+2}")
    k(f"v_max3_f32 v{t+1}, v{BS+3}, v{BS+4}, v{BS+5}")
    k(f"v_max3_f32 v{t}, v{t}, v{BS+6}, v{BS+7}")
    k(f"v_max_f32 v{t}, v{t}, v{t+1}")
    for sw in ("v_permlane16_swap_b32", "v_permlane32_swap_b32"):
        k(f"v_mov_b32 v{t+1}, v{t}")
        k.nop(2)
        k(f"{sw} v{t}, v{t+1}")
        k.nop(1)
        k(f"v_max_f32 v{t}, v{t}, v{t+1}")
    k(f"ds_write_b32 v{BADR+8}, v{t}")
    k("s_waitcnt lgkmcnt(0)")
    k("s_barrier")
    k(f"ds_read2st64_b32 {vr(t,2)}, v{BADR+9} offset0:0 offset1:1")
    k(f"ds_read2st64_b32 {vr(t+2,2)}, v{BADR+9} offset0:2 offset1:3")
    k("s_waitcnt lgkmcnt(0)")
    k(f"v_max3_f32 v{t}, v{t}, v{t+1}, v{t+2}")
    k(f"v_max_f32 v{t+4}, v{t}, v{t+3}")
    for i in range(8):
        k(f"v_sub_f32 v{BS+i}, v{BS+i}, v{t+4}")
    for i in range(8):
        k(f"v_exp_f32 v{BS+i}, v{BS+i}")
    k.nop(1)
    for i in range(4):
        k(f"v_cvt_pk_bf16_f32 v{t+i}, v{BS+2*i}, v{BS+2*i+1}")
    k(f"ds_write_b128 v{BADR+10}, {vr(t,4)}")
    k("s_waitcnt lgkmcnt(0)")
    k("s_barrier")
    k.stamp(7)
    for u in range(4):
        k(f"ds_read_b128 {vr(BP+4*u,4)}, v{BADR+11} offset:{1024*u}")
    k(f"s_lshl_b32 s{S_TMP}, s{S_G}, 20")
    k(f"s_lshl_b32 s{S_TMP+1}, s{S_WAVE}, 14")
    k(f"s_add_u32 s{S_TMP}, s{S_TMP}, s{S_TMP+1}")
    k(f"s_lshl_b32 s{S_TMP+1}, s{S_B}, 5")
    k(f"s_add_u32 s{S_TMP+1}, s{S_TMP+1}, s{S_H}")
    k(f"s_lshl_b32 s{S_TMP+2}, s{S_TMP+1}, 8")
    k(f"s_add_u32 s{S_TMP}, s{S_TMP}, s{S_TMP+2}")
    k(f"s_add_u32 s{S_TMP}, s{S_TMP}, {WS_AO}")
    k(f"s_lshl_b32 s{S_TMP+1}, s{S_TMP+1}, 3")
    k(f"s_lshl_b32 s{S_TMP+2}, s{S_G}, 13")
    k(f"s_add_u32 s{S_TMP+1}, s{S_TMP+1}, s{S_TMP+2}")
    k(f"s_add_u32 s{S_TMP+1}, s{S_TMP+1}, {WS_ST}")
    for u in range(4):
        k(f"s_waitcnt lgkmcnt({3-u})")
        c = "0" if u == 0 else vr(BL, 4)
        k(f"v_mfma_f32_16x16x32_bf16 {vr(BL,4)}, {vr(BONE,4)}, {vr(BP+4*u,4)}, {c}")
    for u in range(4):
        for tt in range(8):
            c = "0" if u == 0 else vr(BD + 4 * tt, 4)
            k(f"v_mfma_f32_16x16x32_bf16 {vr(BD+4*tt,4)}, {ar(128+(tt*4+u)*4,4)}, {vr(BP+4*u,4)}, {c}")
            if u == 0 and tt in (1, 5):
                wf_load(k, 8 + (tt >> 2))
        if u == 0:
            skip = k.label("stskip")
            k(f"v_mov_b32 v{t+5}, v{BL}")
            k(f"s_cmp_eq_u32 s{S_WAVE}, 0")
            k(f"s_cbranch_scc0 {skip}")
            k(f"s_mov_b64 exec, 0xffff")
            k(f"buffer_store_dwordx2 {vr(t+4,2)}, v{BADR+13}, {srd(R_WS)}, s{S_TMP+1} offen sc1")
            k(f"s_mov_b64 exec, -1")
            k.nop(4)
            k(f"{skip}:")
    k.nop(2)
    for up in range(4):
        r = BQ + 4 * up
        k(f"v_cvt_pk_bf16_f32 v{r}, v{BD+8*up}, v{BD+8*up+1}")
        k(f"v_cvt_pk_bf16_f32 v{r+1}, v{BD+8*up+2}, v{BD+8*up+3}")
        k(f"v_cvt_pk_bf16_f32 v{r+2}, v{BD+8*up+4}, v{BD+8*up+5}")
        k(f"v_cvt_pk_bf16_f32 v{r+3}, v{BD+8*up+6}, v{BD+8*up+7}")
        k(f"ds_write_b128 v{BADR+12}, {vr(r,4)} offset:{64*up}")
    for n in range(4):
        k("s_waitcnt lgkmcnt(0)") if n == 0 else None
        k(f"ds_read_b128 {vr(BQ+16+4*n,4)}, v{BTR} offset:{4*n*AOT_RS}")
    for n in range(4):
        k(f"s_waitcnt lgkmcnt({3-n})")
        k(f"buffer_store_dwordx4 {vr(BQ+16+4*n,4)}, v{BTR+1}, {srd(R_WS)}, s{S_TMP} offen sc1")
        if n < 3:
            k(f"s_add_u32 s{S_TMP}, s{S_TMP}, {4*65536}")
    k.stamp(8)
    if K.opt.get("aoack"):
        k("s_waitcnt vmcnt(0)")
        k.stamp(17)


def silu(k, v, t):
    k(f"v_mul_f32 v{t}, 0xbfb8aa3b, v{v}")
    k(f"v_exp_f32 v{t}, v{t}")
    k.nop(1)
    k(f"v_add_f32 v{t}, 1.0, v{t}")
    k(f"v_rcp_f32 v{t}, v{t}")
    k.nop(1)
    k(f"v_mul_f32 v{v}, v{v}, v{t}")


def round_bf16(k, v):
    k(f"v_cvt_pk_bf16_f32 v{v}, v{v}, v{v}")
    k(f"v_and_b32 v{v}, 0xffff0000, v{v}")


FW1 = 10
FW2 = 50
FX = 90
FD = 110
FH = 150
FADR = 176
FT = 166


def wf_setup(k):
    t = BT
    r1, done = k.label("wf1"), k.label("wfd")
    k(f"s_mul_i32 s{S_WFL}, s{S_WAVE}, 10240")
    k(f"s_add_u32 s{S_WFL}, s{S_WFL}, {L_WF}")
    k(f"s_cmp_eq_u32 s{S_ROLE}, 1")
    k(f"s_cbranch_scc1 {r1}")
    k.srd(R_B, S_W2, 1728 * 640 * 2)
    k(f"s_cmp_eq_u32 s{S_ROLE}, 2")
    k(f"s_cselect_b32 s{R_B+2}, {1728 * 640 * 2}, 0")
    k(f"v_lshlrev_b32 v{BWF}, 4, v{V_LANE}")
    k(f"s_mul_i32 s{S_WFO}, s{S_F}, 40960")
    k(f"s_mul_i32 s{S_TMP}, s{S_WAVE}, 10240")
    k(f"s_add_u32 s{S_WFO}, s{S_WFO}, s{S_TMP}")
    k(f"s_mov_b32 s{S_WFS}, 1024")
    k(f"s_branch {done}")
    k(f"{r1}:")
    k.srd(R_B, S_W1, 640 * 1728 * 2)
    k(f"v_lshrrev_b32 v{t}, 2, v{V_LANE}")
    k(f"v_mul_u32_u24 v{t}, 3456, v{t}")
    k(f"v_and_b32 v{t+1}, 3, v{V_LANE}")
    k(f"v_lshl_add_u32 v{BWF}, v{t+1}, 4, v{t}")
    k(f"s_mul_i32 s{S_WFO}, s{S_WAVE}, {160*3456}")
    k(f"s_lshl_b32 s{S_TMP}, s{S_F}, 6")
    k(f"s_add_u32 s{S_WFO}, s{S_WFO}, s{S_TMP}")
    k(f"s_mov_b32 s{S_WFS}, {16*3456}")
    k(f"{done}:")


def ffn1(k):
    t = FT
    k(f"v_and_b32 v{t}, 1, v{V_LANE}")
    k(f"v_mul_u32_u24 v{t}, 1280, v{t}")
    k(f"v_lshl_add_u32 v{t}, v{V_SLAB}, 3, v{t}")
    k(f"s_mul_i32 s{S_TMP}, s{S_WAVE}, 320")
    k(f"s_add_u32 s{S_TMP}, s{S_TMP}, {L_XN}")
    k(f"v_add_u32 v{FADR}, s{S_TMP}, v{t}")
    for i in range(5):
        k(f"ds_read_b64 {vr(FX+4*i,2)}, v{FADR} offset:{64*i}")
        k(f"ds_read_b64 {vr(FX+4*i+2,2)}, v{FADR} offset:{64*i+32}")
    k(f"v_lshrrev_b32 v{t}, 2, v{V_L15}")
    k(f"v_lshl_add_u32 v{t}, v{V_SLAB}, 2, v{t}")
    k(f"v_and_b32 v{t+1}, 3, v{V_L15}")
    k(f"v_lshlrev_b32 v{t+2}, 6, v{t}")
    k(f"v_lshl_add_u32 v{t+2}, v{t+1}, 3, v{t+2}")
    k(f"s_mul_i32 s{S_TMP}, s{S_WAVE}, 10240")
    k(f"s_add_u32 s{S_TMP}, s{S_TMP}, {L_WF}")
    k(f"v_add_u32 v{FADR+1}, s{S_TMP}, v{t+2}")
    k(f"v_lshlrev_b32 v{t+2}, 2, v{V_LANE}")
    k(f"s_lshl_b32 s{S_TMP}, s{S_WAVE}, 8")
    k(f"s_add_u32 s{S_TMP}, s{S_TMP}, {L_FRED}")
    k(f"v_add_u32 v{FADR+3}, s{S_TMP}, v{t+2}")
    k(f"v_add_u32 v{FADR+4}, {L_FRED}, v{t+2}")
    k(f"v_lshrrev_b32 v{t+2}, 2, v{V_L15}")
    k(f"v_lshlrev_b32 v{t+2}, 1, v{t+2}")
    k(f"v_lshrrev_b32 v{t+3}, 1, v{V_SLAB}")
    k(f"v_add_u32 v{t+2}, v{t+2}, v{t+3}")
    k(f"v_and_b32 v{t+3}, 1, v{V_SLAB}")
    k(f"v_lshl_add_u32 v{t+2}, v{t+3}, 3, v{t+2}")
    k(f"v_lshlrev_b32 v{FADR+5}, 4, v{t+2}")
    k(f"s_lshl_b32 s{S_TMP+2}, s{S_F}, 8")
    k(f"s_add_u32 s{S_TMP+2}, s{S_TMP+2}, {WS_HO}")
    k(f"s_mov_b32 s{S_M+2}, 0xffff0000")
    k(f"s_mov_b32 s{S_M+3}, 0xffff0000")
    k(f"s_mov_b32 s{S_M+4}, 0")
    k(f"s_mov_b32 s{S_M+5}, -1")
    k("s_waitcnt vmcnt(4)")
    k(f"v_lshlrev_b32 v{t+9}, 4, v{V_LANE}")
    k(f"v_add_u32 v{t+9}, s{S_WFL}, v{t+9}")
    for i in range(10):
        k(f"ds_write_b128 v{t+9}, {vr(BWR+4*i,4)} offset:{1024*i}")
    k("s_waitcnt lgkmcnt(0)")
    k.stamp(9)
    for i in range(5):
        for ct in range(2):
            r = FW1 + (i * 2 + ct) * 4
            k(f"ds_read_b64_tr_b16 {vr(r,2)}, v{FADR+1} offset:{i*2048+32*ct}")
            k(f"ds_read_b64_tr_b16 {vr(r+2,2)}, v{FADR+1} offset:{i*2048+32*ct+1024}")
    k("s_waitcnt lgkmcnt(0)")
    for i in range(5):
        for ct in range(2):
            c = "0" if i == 0 else vr(FD + 4 * ct, 4)
            k(f"v_mfma_f32_16x16x32_bf16 {vr(FD+4*ct,4)}, {vr(FX+4*i,4)}, {vr(FW1+(i*2+ct)*4,4)}, {c}")
    k.nop(8)
    k(f"v_cndmask_b32 v{t}, v{FD}, v{FD+1}, s[{S_M+2}:{S_M+3}]")
    k(f"v_cndmask_b32 v{t+1}, v{FD+4}, v{FD+5}, s[{S_M+2}:{S_M+3}]")
    k(f"v_cndmask_b32 v{t}, v{t}, v{t+1}, s[{S_M+4}:{S_M+5}]")
    k(f"ds_write_b32 v{FADR+3}, v{t}")
    k("s_waitcnt lgkmcnt(0)")
    k("s_barrier")
    sk = k.label("f1")
    k(f"s_cmp_eq_u32 s{S_WAVE}, 0")
    k(f"s_cbranch_scc0 {sk}")
    k(f"ds_read2st64_b32 {vr(t,2)}, v{FADR+4} offset0:0 offset1:1")
    k(f"ds_read2st64_b32 {vr(t+2,2)}, v{FADR+4} offset0:2 offset1:3")
    k("s_waitcnt lgkmcnt(0)")
    k(f"v_add_f32 v{t}, v{t}, v{t+1}")
    k(f"v_add_f32 v{t+2}, v{t+2}, v{t+3}")
    k(f"v_add_f32 v{t}, v{t}, v{t+2}")
    round_bf16(k, t)
    silu(k, t, t + 1)
    k(f"v_cvt_pk_bf16_f32 v{t}, v{t}, v{t}")
    k(f"v_and_b32 v{t}, 0xffff, v{t}")
    k.nop(2)
    k(f"v_mov_b32_dpp v{t+1}, v{t} quad_perm:[1,0,3,2] row_mask:0xf bank_mask:0xf")
    k(f"v_lshl_or_b32 v{t+2}, v{t+1}, 16, v{t}")
    k.nop(2)
    k(f"v_mov_b32_dpp v{t+3}, v{t+2} quad_perm:[2,3,0,1] row_mask:0xf bank_mask:0xf")
    k(f"v_mov_b32 v{t+4}, s{S_T0}")
    k(f"v_mov_b32 v{t+5}, s{S_T1}")
    k(f"s_mov_b32 exec_lo, 0x11111111")
    k(f"s_mov_b32 exec_hi, 0x11111111")
    k(f"buffer_store_dwordx4 {vr(t+2,4)}, v{FADR+5}, {srd(R_WS)}, s{S_TMP+2} offen sc1")
    k(f"s_mov_b64 exec, -1")
    k(f"{sk}:")
    k.stamp(10)


def ffn2(k):
    t = FT
    k(f"v_lshrrev_b32 v{t}, 2, v{V_L15}")
    k(f"v_lshl_add_u32 v{t}, v{V_SLAB}, 2, v{t}")
    k(f"v_and_b32 v{t+1}, 3, v{V_L15}")
    k(f"v_mul_u32_u24 v{t+2}, 1280, v{t}")
    k(f"v_lshl_add_u32 v{t+2}, v{t+1}, 3, v{t+2}")
    k(f"s_mul_i32 s{S_TMP}, s{S_WAVE}, 320")
    k(f"s_add_u32 s{S_TMP}, s{S_TMP}, {L_WF}")
    k(f"v_add_u32 v{FADR+2}, s{S_TMP}, v{t+2}")
    k(f"v_and_b32 v{t+2}, 1, v{V_LANE}")
    k(f"v_lshlrev_b32 v{t+2}, 7, v{t+2}")
    k(f"v_lshl_add_u32 v{FADR+6}, v{V_SLAB}, 5, v{t+2}")
    k(f"s_lshl_b32 s{S_TMP+3}, s{S_F}, 8")
    k(f"s_add_u32 s{S_TMP+3}, s{S_TMP+3}, {WS_HO}")
    k(f"v_lshlrev_b32 v{FADR+7}, 3, v{V_LANE}")
    k(f"s_mul_i32 s{S_TMP+2}, s{S_F}, 5120")
    k(f"s_mul_i32 s{S_TMP+1}, s{S_WAVE}, 1280")
    k(f"s_add_u32 s{S_TMP+2}, s{S_TMP+2}, s{S_TMP+1}")
    k(f"s_add_u32 s{S_TMP+2}, s{S_TMP+2}, {WS_FP}")
    k(f"s_mov_b32 s{S_M+2}, 0xffff0000")
    k(f"s_mov_b32 s{S_M+3}, 0xffff0000")
    k(f"s_mov_b32 s{S_M+4}, 0")
    k(f"s_mov_b32 s{S_M+5}, -1")
    k("s_waitcnt vmcnt(4)")
    k(f"v_lshlrev_b32 v{t+9}, 4, v{V_LANE}")
    k(f"v_add_u32 v{t+9}, s{S_WFL}, v{t+9}")
    for i in range(10):
        k(f"ds_write_b128 v{t+9}, {vr(BWR+4*i,4)} offset:{1024*i}")
    k("s_waitcnt lgkmcnt(0)")
    k("s_barrier")
    k.stamp(9)
    for ct in range(10):
        r = FW2 + 4 * ct
        k(f"ds_read_b64_tr_b16 {vr(r,2)}, v{FADR+2} offset:{32*ct}")
        k(f"ds_read_b64_tr_b16 {vr(r+2,2)}, v{FADR+2} offset:{32*ct+20480}")
    H = FH + 2
    loads = [f"buffer_load_dwordx4 {vr(H,4)}, v{FADR+6}, {srd(R_WS)}, s{S_TMP+3} offen sc1",
             f"buffer_load_dwordx4 {vr(H+4,4)}, v{FADR+6}, {srd(R_WS)}, s{S_TMP+3} offen offset:16 sc1"]
    gather_loop(k, "ho", loads, lambda kk: tag_check(kk, [(H+2, H+3), (H+6, H+7)]), 10)
    k(f"v_mov_b32 v{H+2}, v{H+4}")
    k(f"v_mov_b32 v{H+3}, v{H+5}")
    k("s_waitcnt lgkmcnt(0)")
    k.nop(1)
    for ct in range(10):
        k(f"v_mfma_f32_16x16x32_bf16 {vr(FD+4*ct,4)}, {vr(H,4)}, {vr(FW2+4*ct,4)}, 0")
    k.nop(8)
    for q in range(3):
        for bb in range(2):
            a0, a1 = FD + 16 * q + bb, FD + 16 * q + 4 + bb
            k(f"v_cndmask_b32 v{t+2*q+bb}, v{a0}, v{a1}, s[{S_M+2}:{S_M+3}]")
            if q < 2:
                a2, a3 = FD + 16 * q + 8 + bb, FD + 16 * q + 12 + bb
                k(f"v_cndmask_b32 v{t+8}, v{a2}, v{a3}, s[{S_M+2}:{S_M+3}]")
                k(f"v_cndmask_b32 v{t+2*q+bb}, v{t+2*q+bb}, v{t+8}, s[{S_M+4}:{S_M+5}]")
    k(f"buffer_store_dwordx2 {vr(t,2)}, v{FADR+7}, {srd(R_WS)}, s{S_TMP+2} offen sc1")
    k(f"buffer_store_dwordx2 {vr(t+2,2)}, v{FADR+7}, {srd(R_WS)}, s{S_TMP+2} offen offset:512 sc1")
    k(f"s_mov_b32 exec_hi, 0")
    k(f"buffer_store_dwordx2 {vr(t+4,2)}, v{FADR+7}, {srd(R_WS)}, s{S_TMP+2} offen offset:1024 sc1")
    k(f"s_mov_b64 exec, -1")
    k.stamp(11)


ZG = 10
ZT = 44


def tree_reduce4(k, g, t):
    k.nop(2)
    k(f"v_permlane32_swap_b32 v{g}, v{g+2}")
    k(f"v_permlane32_swap_b32 v{g+1}, v{g+3}")
    k.nop(1)
    k(f"v_add_f32 v{g}, v{g}, v{g+2}")
    k(f"v_add_f32 v{g+1}, v{g+1}, v{g+3}")
    k.nop(2)
    k(f"v_permlane16_swap_b32 v{g}, v{g+1}")
    k.nop(1)
    k(f"v_add_f32 v{t}, v{g}, v{g+1}")
    k.nop(2)
    k(f"v_add_f32_dpp v{t}, v{t}, v{t} row_ror:8 row_mask:0xf bank_mask:0xf")


def final(k):
    t = ZT
    k(f"s_lshl_b32 s{S_TMP}, s{S_Z}, 1")
    k(f"s_add_u32 s{S_TMP}, s{S_TMP}, s{S_WAVE}")
    k(f"v_and_b32 v{t}, 7, v{V_LANE}")
    k(f"v_lshrrev_b32 v{t+1}, 1, v{V_SLAB}")
    k(f"v_lshl_add_u32 v{t}, v{t}, 1, v{t+1}")
    k(f"v_and_b32 v{t+1}, 1, v{V_SLAB}")
    k(f"v_mul_u32_u24 v{t+1}, 640, v{t+1}")
    k(f"v_add_u32 v{t}, v{t}, v{t+1}")
    k(f"v_lshlrev_b32 v{t}, 1, v{t}")
    k(f"s_lshl_b32 s{S_TMP+1}, s{S_TMP}, 5")
    k(f"buffer_load_ushort v{t+2}, v{t}, {srd(R_X)}, s{S_TMP+1} offen")
    k(f"v_and_b32 v{t+3}, 7, v{V_LANE}")
    k(f"v_lshlrev_b32 v{t+3}, 2, v{t+3}")
    k(f"v_and_b32 v{t+4}, 1, v{V_SLAB}")
    k(f"v_mul_u32_u24 v{t+4}, 1280, v{t+4}")
    k(f"v_add_u32 v{t+3}, v{t+3}, v{t+4}")
    k(f"v_lshrrev_b32 v{t+4}, 3, v{V_LANE}")
    k(f"v_mul_u32_u24 v{t+4}, 5120, v{t+4}")
    k(f"v_and_b32 v{t+5}, 7, v{V_LANE}")
    k(f"v_lshl_add_u32 v{t+4}, v{t+5}, 4, v{t+4}")
    k(f"s_lshl_b32 s{S_TMP+2}, s{S_TMP}, 7")
    k(f"v_lshrrev_b32 v{t+5}, 2, v{V_LANE}")
    k(f"v_lshlrev_b32 v{t+5}, 13, v{t+5}")
    k(f"v_and_b32 v{t+6}, 3, v{V_LANE}")
    k(f"v_lshl_add_u32 v{t+5}, v{t+6}, 10, v{t+5}")
    loads = []
    for i in range(2):
        k(f"s_mov_b32 s{4+i}, {WS_QP + i*16*8192}")
        loads.append(f"buffer_load_dwordx4 {vr(ZG+4*i,4)}, v{t+5}, {srd(R_WS)}, s{4+i} offen sc1")
    gather_loop(k, "zf", loads, lambda kk: tag_check(kk, [(ZG+4*i+2, ZG+4*i+3) for i in range(2)]))
    k(f"v_cmp_gt_u32 vcc, {NF}, v{V_LANE}")
    k.nop(2)
    k(f"v_cndmask_b32 v{t+5}, 0, v{V_LANE}, vcc")
    k(f"v_bfe_u32 v{t+6}, v{t+5}, 5, 1")
    k(f"v_lshlrev_b32 v{t+6}, 13, v{t+6}")
    k(f"v_and_b32 v{t+5}, 31, v{t+5}")
    k(f"v_lshl_add_u32 v{t+5}, v{t+5}, 3, v{t+6}")
    k(f"s_mov_b32 s4, {WS_ST + 256}")
    gather_check_loop(k, "zs", [f"buffer_load_dwordx2 {vr(ZG,2)}, v{t+5}, {srd(R_WS)}, s4 offen sc1"], [ZG, ZG + 1])
    k(f"s_add_u32 s{S_TMP+3}, s{S_TMP+2}, {WS_FP}")
    k(f"v_add_u32 v{t+5}, s{S_TMP+3}, v{t+4}")
    k(f"v_add_u32 v{t+6}, {48*5120}, v{t+5}")
    k(f"v_cmp_gt_u32 vcc, 48, v{V_LANE}")
    k(f"s_mov_b64 s[{S_M+2}:{S_M+3}], vcc")
    k.nop(2)
    k(f"v_cndmask_b32 v{t+6}, v{t+5}, v{t+6}, vcc")
    loads = []
    for i in range(6):
        k(f"s_mov_b32 s{4+i}, {i*8*5120}")
        loads.append(f"buffer_load_dwordx4 {vr(ZG+4*i,4)}, v{t+5}, {srd(R_WS)}, s{4+i} offen sc1")
    last = f"buffer_load_dwordx4 {vr(ZG+24,4)}, v{t+6}, {srd(R_WS)}, 0 offen sc1"
    gather_check_loop(k, "fq", [last], list(range(ZG + 24, ZG + 28)))
    gather_check_loop(k, "fp", loads, list(range(ZG, ZG + 24)), None)
    for c in range(4):
        k(f"v_cndmask_b32 v{ZG+24+c}, 0, v{ZG+24+c}, s[{S_M+2}:{S_M+3}]")
    for c in range(4):
        k(f"v_add_f32 v{ZG+c}, v{ZG+c}, v{ZG+4+c}")
        k(f"v_add_f32 v{ZG+8+c}, v{ZG+8+c}, v{ZG+12+c}")
        k(f"v_add_f32 v{ZG+16+c}, v{ZG+16+c}, v{ZG+20+c}")
    for c in range(4):
        k(f"v_add_f32 v{ZG+c}, v{ZG+c}, v{ZG+8+c}")
        k(f"v_add_f32 v{ZG+16+c}, v{ZG+16+c}, v{ZG+24+c}")
    for c in range(4):
        k(f"v_add_f32 v{ZG+c}, v{ZG+c}, v{ZG+16+c}")
    tree_reduce4(k, ZG, t + 8)
    round_bf16(k, t + 8)
    silu(k, t + 8, t + 9)
    round_bf16(k, t + 8)
    k(f"v_lshlrev_b32 v{t+2}, 16, v{t+2}")
    k(f"s_add_u32 s{S_TMP+3}, s{S_TMP+2}, {WS_SP}")
    k(f"v_add_u32 v{t+5}, s{S_TMP+3}, v{t+4}")
    loads = []
    for i in range(4):
        loads.append(f"buffer_load_dwordx4 {vr(ZG+4*i,4)}, v{t+5}, {srd(R_WS)}, s{4+i} offen sc1")
    gather_check_loop(k, "sp", loads, list(range(ZG, ZG + 16)), 15)
    for c in range(4):
        k(f"v_add_f32 v{ZG+c}, v{ZG+c}, v{ZG+4+c}")
        k(f"v_add_f32 v{ZG+8+c}, v{ZG+8+c}, v{ZG+12+c}")
    for c in range(4):
        k(f"v_add_f32 v{ZG+c}, v{ZG+c}, v{ZG+8+c}")
    tree_reduce4(k, ZG, t + 9)
    round_bf16(k, t + 9)
    k(f"v_mul_f32 v{t+9}, v{t+9}, v{t+8}")
    round_bf16(k, t + 9)
    k(f"v_add_f32 v{t+9}, v{t+9}, v{t+2}")
    k(f"v_cvt_pk_bf16_f32 v{t+9}, v{t+9}, v{t+9}")
    k(f"v_mov_b32 v{t+10}, v{t+9}")
    k.nop(2)
    k(f"v_permlane32_swap_b32 v{t+9}, v{t+10}")
    k.nop(1)
    k(f"v_and_b32 v{t+9}, 0xffff, v{t+9}")
    k(f"v_lshl_or_b32 v{t+9}, v{t+10}, 16, v{t+9}")
    k(f"s_mov_b32 exec_lo, 0x00ff00ff")
    k(f"s_mov_b32 exec_hi, 0")
    k(f"s_lshl_b32 s{S_TMP+1}, s{S_TMP}, 5")
    k(f"buffer_store_dword v{t+9}, v{t+3}, {srd(R_OUT)}, s{S_TMP+1} offen")
    k(f"s_mov_b64 exec, -1")
    k.stamp(16)
    if K.opt.get("diag"):
        sk = k.label("dg")
        k(f"s_cmp_eq_u32 s{S_TMP}, 0")
        k(f"s_cbranch_scc0 {sk}")
        k(f"v_mov_b32 v{t}, 0")
        k(f"buffer_load_dword v{t+1}, v{t}, s[92:95], 0 offen sc1")
        k("s_waitcnt vmcnt(0)")
        k(f"v_readfirstlane_b32 s96, v{t+1}")
        k("s_memrealtime s[98:99]")
        k("s_waitcnt lgkmcnt(0)")
        k("s_not_b32 s96, s96")
        k("s_sub_u32 s97, s98, s96")
        mode = K.opt["diag"]
        if mode == "k0":
            k("s_mov_b32 s97, 0")
        elif mode == "k1":
            pass
        elif mode == "t1000":
            k("s_mov_b32 s97, 1000")
        if mode.startswith("cyc"):
            n = int(mode[3:])
            k(f"s_mov_b32 s97, {n}")
            lp = k.label("cy")
            k(f"{lp}:")
            k("s_nop 15")
            k("s_nop 15")
            k("s_sub_u32 s97, s97, 1")
            k("s_cmp_lg_u32 s97, 0")
            k(f"s_cbranch_scc1 {lp}")
        else:
            k("s_min_u32 s97, s97, 20000")
            k("s_add_u32 s97, s97, s98")
            lp = k.label("sp")
            k(f"{lp}:")
            k("s_memrealtime s[98:99]")
            k("s_waitcnt lgkmcnt(0)")
            k("s_sub_u32 s96, s97, s98")
            k("s_cmp_gt_i32 s96, 0")
            k(f"s_cbranch_scc1 {lp}")
        k(f"{sk}:")
    skip = k.label("ep")
    k(f"s_cmp_eq_u32 s{S_TMP}, 0")
    k(f"s_cbranch_scc0 {skip}")
    k(f"v_mov_b32 v{t}, 0")
    k(f"v_mov_b32 v{t+1}, s{S_T0}")
    k(f"s_mov_b64 exec, 1")
    k(f"buffer_store_dword v{t+1}, v{t}, {srd(R_WS)}, 0 offen offset:{WS_EPOCH} sc1")
    k(f"s_mov_b64 exec, -1")
    k(f"{skip}:")


def dump_stamps(k):
    if not k.stamps:
        return
    k("s_waitcnt vmcnt(0) lgkmcnt(0)")
    k.stamp(19)
    k(f"s_lshl_b32 s{S_TMP}, s2, 2")
    k(f"s_add_u32 s{S_TMP}, s{S_TMP}, s{S_WAVE}")
    k(f"s_lshl_b32 s{S_TMP}, s{S_TMP}, 7")
    k(f"s_add_u32 s{S_TMP}, s{S_TMP}, {WS_STAMP}")
    for i in range(20):
        k(f"v_mov_b32 v{10+i}, s{S_STAMP+i}")
    k(f"s_getreg_b32 s{S_TMP+1}, hwreg(HW_REG_XCC_ID)")
    k(f"v_mov_b32 v30, s{S_TMP+1}")
    k(f"v_mov_b32 v31, s{S_CNT}")
    k(f"v_mov_b32 v4, 0")
    k(f"s_mov_b64 exec, 1")
    for i in range(6):
        k(f"buffer_store_dwordx4 {vr(10+4*i,4)}, v4, {srd(R_WS)}, s{S_TMP} offen offset:{16*i}")
    k(f"s_mov_b64 exec, -1")


def build(stamps=False):
    k = K(stamps)
    hdr = open("recurrent_scan__compressed_kv_cla__dense_activation_silu__decode.s.ref").read()
    comments = [l for l in hdr.split("\n") if l.startswith(";") and "@launch" not in l and "Override" not in l and "grid=ceil" not in l]
    out = "\n".join(comments) + "\n"
    out += f"; @launch grid=(256,1,1) block=(256,1,1) lds={LDS_BYTES}\n"
    out += f""".amdgcn_target "amdgcn-amd-amdhsa--gfx950"
.text
.globl {NAME}
.p2align 8
.type {NAME},@function
{NAME}:
"""
    if stamps:
        for i in range(20):
            k(f"s_mov_b32 s{S_STAMP+i}, 0")
    if K.opt.get("diag"):
        k("s_memrealtime s[100:101]")
    prologue(k)
    if K.opt.get("diag"):
        k.srd(92, S_DBG, 256)
        k("s_cmp_lt_u32 s2, 8")
        k("s_cbranch_scc0 L_nodiag")
        k("s_not_b32 s100, s100")
        k("v_mov_b32 v8, s100")
        k("v_mov_b32 v9, 0")
        k("s_mov_b64 exec, 1")
        k("buffer_atomic_umax v8, v9, s[92:95], 0 offen")
        k("s_mov_b64 exec, -1")
        k("L_nodiag:")
    k(f"s_cmp_eq_u32 s{S_WAVE}, 0")
    k(f"s_cbranch_scc0 L_w123")
    stage1_issue(k)
    k("s_barrier")
    k("s_branch L_w0")
    k("L_w123:")
    k(f"v_mov_b32 v{V_T}, 0")
    k(f"buffer_load_dword v{VE}, v{V_T}, {srd(R_WS)}, 0 offen offset:{WS_EPOCH} sc1")
    if K.opt.get("tlb", "1") == "1":
        sk = k.label("tlb")
        k(f"s_cmp_eq_u32 s{S_WAVE}, 3")
        k(f"s_cbranch_scc0 {sk}")
        k(f"v_lshlrev_b32 v{V_T+1}, 20, v{V_LANE}")
        for ptr, size in ((S_CKV, 2*4096*512*2), (S_WUV, 512*4096*2), (S_WO, 4096*640*2), (S_W1, 640*1728*2), (S_W2, 1728*640*2)):
            k.srd(R_B, ptr, size)
            k(f"buffer_load_dword v252, v{V_T+1}, {srd(R_B)}, 0 offen")
        k(f"{sk}:")
    k(f"s_cmp_ge_u32 s{S_J}, 4")
    k(f"s_cbranch_scc1 L_Bw123")
    k.srd(R_A, S_WUK, 512 * 4096 * 2)
    clears_P(k)
    k("s_barrier")
    wuk_issue(k)
    k("s_waitcnt vmcnt(11)")
    epoch_tags(k, VE)
    k("s_barrier")
    k("s_branch L_P_join")
    k("L_Bw123:")
    b_roles(k)
    k("s_barrier")
    clears_B(k)
    k("s_barrier")
    k("s_branch L_B_join")
    k("L_w0:")
    stage1_selectors(k)
    layernorm(k, 1 + 20)
    k(f"s_waitcnt vmcnt(20)")
    epoch_tags(k, VE)
    stage1_publish_addr(k)
    k.stamp(2)
    stage1_mfma(k, 0)
    k("s_barrier")
    stage1_publish(k, 0)
    k(f"s_cmp_ge_u32 s{S_J}, 4")
    k(f"s_cbranch_scc1 L_B")
    k("L_P_join:")
    k.srd(R_B, S_WUV, 512 * 4096 * 2)
    k.srd(R_C, S_WO, 4096 * 640 * 2)
    stage2(k)
    if K.opt.get("pexit"):
        k("s_branch L_done")
    p_weights_issue(k)
    wo_issue(k)
    stage4_setup(k)
    k("s_waitcnt vmcnt(0)")
    k("s_barrier")
    k.stamp(6)
    p_weights_preread(k)
    wo_preread(k)
    stage4(k)
    stage5(k)
    k("s_branch L_done")
    k("L_B:")
    b_roles(k)
    k("L_B_join:")
    k.srd(R_A, S_CKV, 2 * 4096 * 512 * 2)
    k.srd(R_OUT, S_OUT, 2560)
    k.stamp(12)
    ckv_issue(k)
    k.stamp(13)
    wf_setup(k)
    attention_setup(k)
    attention(k)
    k(f"s_cmp_eq_u32 s{S_ROLE}, 1")
    k(f"s_cbranch_scc0 L_B_r2")
    ffn1(k)
    k("s_branch L_done")
    k("L_B_r2:")
    k(f"s_cmp_eq_u32 s{S_ROLE}, 2")
    k(f"s_cbranch_scc0 L_B_r3")
    ffn2(k)
    k("s_branch L_done")
    k("L_B_r3:")
    k(f"s_cmp_lt_u32 s{S_WAVE}, 2")
    k(f"s_cbranch_scc0 L_done")
    final(k)
    k("L_done:")
    dump_stamps(k)
    k("L_exit:")
    k("s_endpgm")
    out += k.text()
    out += f""".section .rodata,"a"
.p2align 6
.amdhsa_kernel {NAME}
  .amdhsa_next_free_vgpr 512
  .amdhsa_next_free_sgpr 102
  .amdhsa_accum_offset 256
  .amdhsa_group_segment_fixed_size 0
  .amdhsa_kernarg_size 96
  .amdhsa_user_sgpr_count 2
  .amdhsa_user_sgpr_kernarg_segment_ptr 1
  .amdhsa_system_sgpr_workgroup_id_x 1
.end_amdhsa_kernel
"""
    return out


if __name__ == "__main__":
    for a in sys.argv[1:]:
        if a.startswith("--spin="):
            SPIN_LIMIT = int(a[7:])
    stamps = "--stamps" in sys.argv
    for a in sys.argv[1:]:
        if a.startswith("--") and "=" in a:
            kk, vv = a[2:].split("=")
            K.opt[kk] = vv
    outp = [a for a in sys.argv[1:] if not a.startswith("--")]
    open(outp[0] if outp else "k.s", "w").write(build(stamps))
```

```python
import sys

NAME = "recurrent_scan__compressed_kv_cla__dense_activation_silu__decode_kernel"

WS_EPOCH = 0
WS_QP = 0x1000
WS_QA = 0x41000
WS_ST = 0x51000
WS_CP = 0x55000
WS_SP = 0x65000
WS_FP = 0x8D000
WS_AC = 0xE0000
WS_HO = 0xE4000
WS_TR = 0xF0000
WS_CF = 0xE8000
WS_QF = 0x300000
WS_AO = 0x100000
WS_SIZE = 0x340000
WS_STAMP = 0x340000
NF = 54
S_JP = 10
S_F = 11
S_Z = 12
S_ROLE = 13

L_WUV = 0
L_WO = 32768
L_AOB = 107520
L_RED = 123904
L_CTX = 129024
L_STX = 129536
L_XNP = 95744
L_CKV = 0
RS = 1056
L_QB = 128 * RS
L_XN = L_QB + 16 * RS
L_MX = L_XN + 2560
L_PB = L_MX + 1024
L_END = L_PB + 4096
L_WF = 0
L_WO5 = 66560
L_FRED = 81920
L_RED5 = 123904
LDS_BYTES = 163840

SPIN_LIMIT = 100000
FLAG_ROW = 28
QWAIT = [15 - i if i <= 8 else min(15, 15 - i) for i in range(16)]

S_X, S_CKV, S_WQ, S_WUK, S_WUV, S_WO, S_W1, S_W2, S_OUT, S_DBG, S_WSP = 4, 6, 8, 10, 12, 14, 18, 20, 22, 24, 26
R_X, R_WQ, R_WS, R_A, R_B, R_C, R_OUT = 28, 32, 36, 40, 44, 48, 52
S_WAVE, S_H, S_J, S_T0, S_T1 = 56, 57, 58, 59, 60
S_TMP = 61
S_PUB = 69
S_OFF = 70
S_CNT = 71
S_M = 72
S_STAMP = 80


CNT_SLOT = {'qp': 13, 'tr': 14, 'st': 15, 'ao': 16, 'qa': 17, 'cp': 18, 'fl': 18}


class K:
    opt = {}
    def __init__(self, stamps=False):
        self.lines = []
        self.nl = 0
        self.stamps = stamps
        self.nstamp = 0

    def __call__(self, s):
        for l in s.split("\n"):
            self.lines.append("    " + l.strip() if l.strip() and not l.strip().endswith(":") else l.strip())

    def label(self, stem):
        self.nl += 1
        return f"L_{stem}_{self.nl}"

    def nop(self, n):
        while n > 0:
            k = min(n, 16)
            self(f"s_nop {k-1}")
            n -= k

    def stamp(self, idx):
        if self.stamps:
            self(f"s_memrealtime s[100:101]")
            self("s_waitcnt lgkmcnt(0)")
            self(f"s_mov_b32 s{S_STAMP+idx}, s100")

    def srd(self, d, base, nbytes):
        self(f"s_mov_b32 s{d}, s{base}")
        self(f"s_and_b32 s{d+1}, s{base+1}, 0xffff")
        self(f"s_mov_b32 s{d+2}, {nbytes}")
        self(f"s_mov_b32 s{d+3}, 0x00020000")

    def text(self):
        return "\n".join(self.lines) + "\n"


def srd(d):
    return f"s[{d}:{d+3}]"


def vr(a, n=1):
    return f"v{a}" if n == 1 else f"v[{a}:{a+n-1}]"


def ar(a, n=1):
    return f"a{a}" if n == 1 else f"a[{a}:{a+n-1}]"


V_TID, V_LANE, V_L15, V_SLAB = 0, 1, 2, 3
V_T = 4
V_ONES = 242
V_NEG1 = 244


def spin_begin(k, cnt=S_CNT):
    k(f"s_mov_b32 s{cnt}, 0")


def spin_retry(k, top, cnt=S_CNT):
    k(f"s_add_u32 s{cnt}, s{cnt}, 1")
    k(f"s_cmp_lt_u32 s{cnt}, {SPIN_LIMIT}")
    k(f"s_cbranch_scc1 {top}")


NCH = 28


def prologue(k):
    k(f"s_cmp_ge_u32 s2, 256")
    k(f"s_cbranch_scc1 L_exit")
    k(f"s_load_dwordx16 s[4:19], s[0:1], 0")
    k(f"s_load_dwordx8 s[20:27], s[0:1], 64")
    k(f"v_lshrrev_b32 v{V_T}, 6, v0")
    k(f"v_and_b32 v{V_LANE}, 63, v0")
    k(f"v_readfirstlane_b32 s{S_WAVE}, v{V_T}")
    if K.opt.get("pf", "1") == "1":
        k(f"s_getpc_b64 s[{S_TMP+1}:{S_TMP+2}]")
        k(f"L_pc:")
        k(f"s_lshr_b32 s{S_TMP}, s2, 3")
        k(f"s_lshl_b32 s{S_TMP}, s{S_TMP}, 2")
        k(f"s_add_u32 s{S_TMP}, s{S_TMP}, s{S_WAVE}")
        k(f"s_cmp_lt_u32 s{S_TMP}, (L_exit-L_pc+1023)/1024")
        k(f"s_cbranch_scc0 L_nopf")
        k(f"s_lshl_b32 s{S_TMP}, s{S_TMP}, 10")
        k(f"s_min_u32 s{S_TMP}, s{S_TMP}, L_exit-L_pc-1024")
        k(f"v_lshl_add_u32 v{V_T+1}, v{V_LANE}, 4, s{S_TMP}")
        k(f"global_load_dwordx4 v[248:251], v{V_T+1}, s[{S_TMP+1}:{S_TMP+2}]")
        k(f"L_nopf:")
    k(f"v_and_b32 v{V_L15}, 15, v0")
    k(f"v_bfe_u32 v{V_SLAB}, v0, 4, 2")
    k(f"s_and_b32 s{S_H}, s2, 31")
    k(f"s_lshr_b32 s{S_J}, s2, 5")
    for i in range(4):
        k(f"v_mov_b32 v{V_NEG1+i}, -1")
    k.stamp(0)
    k(f"s_waitcnt lgkmcnt(0)")
    k.srd(R_X, S_X, 2560)
    k.srd(R_WS, S_WSP, WS_SIZE + (0x100000 if k.stamps else 0))
    k.srd(R_WQ, S_WQ, 640 * 4096 * 2)


VX = 10
VW = 20
VA = 100
VSEL = 180
VD1 = 188
VXR = 192
VE = 202
VS1 = 204
VWUK = 210


def stage1_issue(k):
    k(f"v_lshrrev_b32 v{V_T}, 5, v{V_LANE}")
    k(f"v_and_b32 v{V_T+1}, 31, v{V_LANE}")
    k(f"v_mul_u32_u24 v{V_T}, 1280, v{V_T}")
    k(f"v_mul_u32_u24 v{V_T+1}, 40, v{V_T+1}")
    k(f"v_add_u32 v{V_T}, v{V_T}, v{V_T+1}")
    k(f"v_mov_b32 v{V_T+2}, 0")
    k(f"buffer_load_dwordx4 {vr(VX,4)}, v{V_T}, {srd(R_X)}, 0 offen")
    k(f"buffer_load_dwordx4 {vr(VX+4,4)}, v{V_T}, {srd(R_X)}, 0 offen offset:16")
    k(f"buffer_load_dwordx2 {vr(VX+8,2)}, v{V_T}, {srd(R_X)}, 0 offen offset:32")
    k(f"buffer_load_dword v{VE}, v{V_T+2}, {srd(R_WS)}, 0 offen offset:{WS_EPOCH} sc1")
    k(f"s_mul_i32 s{S_TMP}, s{S_J}, {80*8192}")
    k(f"s_lshl_b32 s{S_TMP+1}, s{S_H}, 8")
    k(f"s_add_u32 s{S_TMP}, s{S_TMP}, s{S_TMP+1}")
    k(f"v_mul_u32_u24 v{V_T+3}, {20*8192}, v{V_SLAB}")
    k(f"v_lshl_add_u32 v{V_T+3}, v{V_L15}, 4, v{V_T+3}")
    k(f"v_add_u32 v{V_T+3}, s{S_TMP}, v{V_T+3}")
    k(f"s_mov_b32 s{S_OFF}, 0")
    k(f"s_movk_i32 s{S_TMP}, 0x2000")
    for t in range(20):
        k(f"buffer_load_dwordx4 {vr(VW+4*t,4)}, v{V_T+3}, {srd(R_WQ)}, s{S_OFF} offen")
        if t < 19:
            k(f"s_add_u32 s{S_OFF}, s{S_OFF}, s{S_TMP}")


def epoch_tags(k, ve):
    k(f"v_readfirstlane_b32 s{S_T0}, v{ve}")
    k.nop(4)
    k(f"s_add_u32 s{S_T0}, s{S_T0}, 1")
    k(f"s_mul_i32 s{S_T1}, s{S_T0}, 0x9e3779b1")
    k(f"s_xor_b32 s{S_T1}, s{S_T1}, 0x5bd1e995")


def stage1_selectors(k):
    t = VS1
    k(f"v_and_b32 v{t}, 1, v{V_LANE}")
    k(f"v_bfe_u32 v{t+1}, v{V_LANE}, 1, 2")
    k(f"v_cmp_eq_u32 vcc, 1, v{t}")
    k(f"v_mov_b32 v{t+2}, 0x0c0c0504")
    k(f"v_mov_b32 v{t+3}, 0x05040c0c")
    k(f"v_cndmask_b32 v{t+4}, v{t+2}, v{t+3}, vcc")
    k(f"v_mov_b32 v{t+2}, 0x0c0c0706")
    k(f"v_mov_b32 v{t+3}, 0x07060c0c")
    k(f"v_cndmask_b32 v{t+5}, v{t+2}, v{t+3}, vcc")
    k(f"v_mov_b32 v{t+2}, 0x0c0c0c0c")
    for r in range(4):
        k(f"v_cmp_eq_u32 vcc, {r}, v{t+1}")
        k.nop(2)
        k(f"v_cndmask_b32 v{VSEL+2*r}, v{t+2}, v{t+4}, vcc")
        k(f"v_cndmask_b32 v{VSEL+2*r+1}, v{t+2}, v{t+5}, vcc")


def layernorm(k, nafter):
    t = VS1
    k(f"s_mov_b32 s{S_TMP}, 0x3f803f80")
    k(f"v_mov_b32 v{t}, 0")
    k(f"v_mov_b32 v{t+1}, 0")
    k(f"v_mov_b32 v{t+2}, 0")
    k(f"v_mov_b32 v{t+3}, 0")
    k(f"s_waitcnt vmcnt({nafter})")
    k.stamp(1)
    for i in range(10):
        a = t + (i & 1)
        q = t + 2 + (i & 1)
        k(f"v_dot2_f32_bf16 v{a}, v{VX+i}, s{S_TMP}, v{a}")
        k(f"v_dot2_f32_bf16 v{q}, v{VX+i}, v{VX+i}, v{q}")
    k.nop(3)
    k(f"v_add_f32 v{t}, v{t}, v{t+1}")
    k(f"v_add_f32 v{t+2}, v{t+2}, v{t+3}")
    k.nop(1)
    for rot in (8, 4, 2, 1):
        k(f"v_add_f32_dpp v{t}, v{t}, v{t} row_ror:{rot} row_mask:0xf bank_mask:0xf")
        k(f"v_add_f32_dpp v{t+2}, v{t+2}, v{t+2} row_ror:{rot} row_mask:0xf bank_mask:0xf")
        k.nop(1)
    k.nop(1)
    k(f"v_permlane16_swap_b32 v{t}, v{t+2}")
    k.nop(1)
    k(f"v_add_f32 v{t}, v{t}, v{t+2}")
    k.nop(1)
    k(f"v_mov_b32 v{t+2}, v{t}")
    k.nop(2)
    k(f"v_permlane16_swap_b32 v{t}, v{t+2}")
    k.nop(1)
    k(f"v_mul_f32 v{t}, 0x3acccccd, v{t}")
    k(f"v_mul_f32 v{t+2}, 0x3acccccd, v{t+2}")
    k(f"v_fma_f32 v{t+2}, -v{t}, v{t}, v{t+2}")
    k(f"v_max_f32 v{t+2}, 0, v{t+2}")
    k(f"v_cvt_pk_bf16_f32 v{t+1}, v{t}, v{t+2}")
    k(f"v_lshlrev_b32 v{t}, 16, v{t+1}")
    k(f"v_and_b32 v{t+2}, 0xffff0000, v{t+1}")
    k(f"v_add_f32 v{t+2}, 0x3727c5ac, v{t+2}")
    k(f"v_cvt_pk_bf16_f32 v{t+2}, v{t+2}, v{t+2}")
    k(f"v_and_b32 v{t+2}, 0xffff0000, v{t+2}")
    k(f"v_sqrt_f32 v{t+2}, v{t+2}")
    k.nop(1)
    k(f"v_cvt_pk_bf16_f32 v{t+2}, v{t+2}, v{t+2}")
    k(f"v_and_b32 v{t+2}, 0xffff0000, v{t+2}")
    k(f"v_rcp_f32 v{t+2}, v{t+2}")
    k.nop(1)
    k(f"v_mul_f32 v{t}, v{t}, v{t+2}")
    k(f"v_sub_f32 v{t}, 0, v{t}")
    for i in range(10):
        k(f"v_lshlrev_b32 v{t+3}, 16, v{VX+i}")
        k(f"v_and_b32 v{t+4}, 0xffff0000, v{VX+i}")
        k(f"v_fma_f32 v{t+3}, v{t+3}, v{t+2}, v{t}")
        k(f"v_fma_f32 v{t+4}, v{t+4}, v{t+2}, v{t}")
        k(f"v_cvt_pk_bf16_f32 v{VX+i}, v{t+3}, v{t+4}")
    k(f"v_add_u32 v{t+3}, {L_XN}, v{V_T}")
    for i in range(5):
        k(f"ds_write_b64 v{t+3}, {vr(VX+2*i,2)} offset:{8*i}")
    k(f"v_bfe_u32 v{t}, v{V_LANE}, 3, 1")
    k(f"v_mul_u32_u24 v{t}, 1280, v{t}")
    k(f"v_mul_u32_u24 v{t+1}, 40, v{V_SLAB}")
    k(f"s_mul_i32 s{S_TMP}, s{S_J}, 160")
    k(f"s_add_u32 s{S_TMP}, s{S_TMP}, {L_XN}")
    k(f"v_add3_u32 v{t}, v{t}, v{t+1}, s{S_TMP}")
    k(f"s_waitcnt lgkmcnt(0)")
    for i in range(5):
        k(f"ds_read_b64 {vr(VXR+2*i,2)}, v{t} offset:{8*i}")
    k(f"s_waitcnt lgkmcnt(0)")
    for st in range(20):
        for r in range(4):
            k(f"v_perm_b32 v{VA+4*st+r}, v{VXR+(st>>1)}, v{VXR+(st>>1)}, v{VSEL+2*r+(st&1)}")


def stage1_mfma(k, nafter):
    for st in range(20):
        k(f"s_waitcnt vmcnt({19-st+nafter})")
        c = "0" if st == 0 else vr(VD1, 4)
        k(f"v_mfma_f32_16x16x32_bf16 {vr(VD1,4)}, {vr(VA+4*st,4)}, {vr(VW+4*st,4)}, {c}")


VPUB = 206


def stage1_publish_addr(k):
    t = VS1 + 4
    k(f"v_lshrrev_b32 v{t}, 1, v{V_SLAB}")
    k(f"v_and_b32 v{t+1}, 1, v{V_SLAB}")
    k(f"v_lshlrev_b32 v{t}, 5, v{t}")
    k(f"v_lshl_add_u32 v{t}, v{V_L15}, 1, v{t}")
    k(f"v_add_u32 v{t}, v{t}, v{t+1}")
    k(f"v_lshlrev_b32 v{VPUB}, 4, v{t}")
    k(f"s_lshl_b32 s{S_PUB}, s{S_H}, 3")
    k(f"s_add_u32 s{S_PUB}, s{S_PUB}, s{S_J}")
    k(f"s_lshl_b32 s{S_PUB}, s{S_PUB}, 10")
    k(f"s_add_u32 s{S_PUB}, s{S_PUB}, {WS_QP}")
    k(f"v_mov_b32 v{VD1+6}, s{S_T0}")
    k(f"v_mov_b32 v{VD1+7}, s{S_T1}")


def stage1_publish(k, nkeep):
    k.nop(8)
    k(f"v_cvt_pk_bf16_f32 v{VD1+4}, v{VD1}, v{VD1+1}")
    k(f"v_cvt_pk_bf16_f32 v{VD1+5}, v{VD1+2}, v{VD1+3}")
    k(f"s_waitcnt vmcnt({nkeep})")
    if use_fast1():
        sk = k.label("qps")
        k(f"s_add_u32 s{S_TMP}, s{S_PUB}, {WS_QF - WS_QP}")
        k(f"buffer_store_dwordx4 {vr(VD1+4,4)}, v{VPUB}, {srd(R_WS)}, s{S_TMP} offen")
        k(f"s_cmp_ge_u32 s{S_J}, 4")
        k(f"s_cbranch_scc0 {sk}")
        k(f"buffer_store_dwordx4 {vr(VD1+4,4)}, v{VPUB}, {srd(R_WS)}, s{S_PUB} offen sc1")
        k(f"{sk}:")
    else:
        k(f"buffer_store_dwordx4 {vr(VD1+4,4)}, v{VPUB}, {srd(R_WS)}, s{S_PUB} offen sc1")
    k.stamp(3)


def sentinel_check(k, regs):
    t = V_T
    rs = list(regs)
    if len(rs) == 1:
        k(f"v_cmp_eq_u32 vcc, -1, v{rs[0]}")
        return
    if len(rs) == 2:
        k(f"v_max_u32 v{t}, v{rs[0]}, v{rs[1]}")
        rs = []
    else:
        k(f"v_max3_u32 v{t}, v{rs[0]}, v{rs[1]}, v{rs[2]}")
        rs = rs[3:]
    while len(rs) >= 2:
        k(f"v_max3_u32 v{t}, v{t}, v{rs[0]}, v{rs[1]}")
        rs = rs[2:]
    if rs:
        k(f"v_max_u32 v{t}, v{t}, v{rs[0]}")
    k(f"v_cmp_eq_u32 vcc, -1, v{t}")


def tag_check(k, pairs):
    t = V_T
    first = True
    for a, b in pairs:
        k(f"v_xor_b32 v{t+1}, s{S_T0}, v{a}")
        k(f"v_xor_b32 v{t+2}, s{S_T1}, v{b}")
        if first:
            k(f"v_or_b32 v{t}, v{t+1}, v{t+2}")
        else:
            k(f"v_or3_b32 v{t}, v{t}, v{t+1}, v{t+2}")
        first = False
    k(f"v_cmp_ne_u32 vcc, 0, v{t}")


def gather_loop(k, name, loads, check, stampidx=None, preissued=False, firstwait=0, fast=None, after_fast=None):
    chk = k.label(name)
    done = k.label(name + "d")
    spin_begin(k)
    k(f"s_mov_b64 s[{S_M}:{S_M+1}], exec")
    if fast is not None:
        floads, nfast = fast
        fchk = k.label(name + "f")
        if not preissued:
            for l in floads:
                k(l)
        k(f"{fchk}:")
        k("s_waitcnt vmcnt(0)")
        check(k)
        k(f"s_and_b64 exec, exec, vcc")
        k(f"s_cbranch_execz {done}_fast")
        k(f"s_add_u32 s{S_CNT}, s{S_CNT}, 1")
        k(f"s_cmp_ge_u32 s{S_CNT}, {nfast}")
        k(f"s_cbranch_scc1 {chk}_slow")
        for l in floads:
            k(l)
        k(f"s_branch {fchk}")
        k(f"{done}_fast:")
        k(f"s_mov_b64 exec, s[{S_M}:{S_M+1}]")
        if after_fast:
            after_fast(k)
        k(f"s_branch {done}")
        k(f"{chk}_slow:")
        if after_fast:
            k(f"s_mov_b64 s[18:19], exec")
            k(f"s_mov_b64 exec, s[{S_M}:{S_M+1}]")
            after_fast(k)
            k(f"s_mov_b64 exec, s[18:19]")
        for l in loads:
            k(l)
    elif not preissued:
        for l in loads:
            k(l)
    if firstwait:
        k(f"s_waitcnt vmcnt({firstwait})")
        k(f"s_branch {chk}_c")
    k(f"{chk}:")
    k("s_waitcnt vmcnt(0)")
    if firstwait:
        k(f"{chk}_c:")
    check(k)
    k(f"s_and_b64 exec, exec, vcc")
    k(f"s_cbranch_execz {done}")
    k(f"s_add_u32 s{S_CNT}, s{S_CNT}, 1")
    k(f"s_cmp_ge_u32 s{S_CNT}, {SPIN_LIMIT}")
    k(f"s_cbranch_scc1 {done}")
    for l in loads:
        k(l)
    k(f"s_branch {chk}")
    k(f"{done}:")
    k(f"s_mov_b64 exec, s[{S_M}:{S_M+1}]")
    if stampidx is not None:
        k.stamp(stampidx)
    if k.stamps and name in CNT_SLOT and not (K.opt.get("aoack") and name == "qa"):
        k(f"s_add_u32 s{S_STAMP+CNT_SLOT[name]}, s{S_CNT}, 1")


def use_fast():
    return K.opt.get("fast", "1") == "1"


def use_fast1():
    return K.opt.get("fast1", "0") == "1"


def gather_check_loop(k, name, loads, regs, stampidx=None, preissued=False):
    gather_loop(k, name, loads, lambda kk: sentinel_check(kk, regs), stampidx, preissued)


def clears_P(k):
    t = V_T + 4
    neg = vr(V_NEG1, 4)
    l2, l3, done = k.label("cp2"), k.label("cp3"), k.label("cpd")
    k(f"s_lshl_b32 s{S_TMP}, s{S_H}, 2")
    k(f"s_add_u32 s{S_TMP}, s{S_TMP}, s{S_J}")
    k(f"s_cmp_eq_u32 s{S_WAVE}, 1")
    k(f"s_cbranch_scc0 {l2}")
    k(f"v_lshlrev_b32 v{t}, 4, v{V_LANE}")
    k(f"s_mul_i32 s{S_TMP+1}, s{S_H}, 5120")
    k(f"s_mul_i32 s{S_TMP+2}, s{S_J}, 1280")
    k(f"s_add_u32 s{S_TMP+1}, s{S_TMP+1}, s{S_TMP+2}")
    k(f"s_add_u32 s{S_TMP+1}, s{S_TMP+1}, {WS_SP}")
    k(f"buffer_store_dwordx4 {neg}, v{t}, {srd(R_WS)}, s{S_TMP+1} offen sc1")
    k(f"v_lshlrev_b32 v{t+1}, 4, v{V_L15}")
    k(f"buffer_store_dwordx4 {neg}, v{t+1}, {srd(R_WS)}, s{S_TMP+1} offen offset:1024 sc1")
    k(f"s_branch {done}")
    k(f"{l2}:")
    k(f"s_cmp_eq_u32 s{S_WAVE}, 2")
    k(f"s_cbranch_scc0 {l3}")
    k(f"v_and_b32 v{t+1}, 31, v{V_LANE}")
    k(f"v_lshlrev_b32 v{t+1}, 4, v{t+1}")
    k(f"s_lshl_b32 s{S_TMP+1}, s{S_TMP}, 9")
    k(f"s_add_u32 s{S_TMP+1}, s{S_TMP+1}, {WS_CP}")
    k(f"buffer_store_dwordx4 {neg}, v{t+1}, {srd(R_WS)}, s{S_TMP+1} offen sc1")
    if use_fast():
        k(f"s_add_u32 s{S_TMP+1}, s{S_TMP+1}, {WS_CF - WS_CP}")
        k(f"buffer_store_dwordx4 {neg}, v{t+1}, {srd(R_WS)}, s{S_TMP+1} offen sc1")
    k(f"s_lshl_b32 s{S_TMP+1}, s{S_H}, 9")
    k(f"s_add_u32 s{S_TMP+1}, s{S_TMP+1}, {WS_ST}")
    k(f"buffer_store_dwordx4 {neg}, v{t+1}, {srd(R_WS)}, s{S_TMP+1} offen sc1")
    k(f"s_branch {done}")
    k(f"{l3}:")
    k(f"v_and_b32 v{t+1}, 1, v{V_SLAB}")
    k(f"v_lshlrev_b32 v{t+1}, 15, v{t+1}")
    k(f"v_lshl_add_u32 v{t+1}, v{V_L15}, 4, v{t+1}")
    k(f"s_lshl_b32 s{S_TMP+1}, s{S_H}, 10")
    k(f"s_lshl_b32 s{S_TMP+2}, s{S_J}, 8")
    k(f"s_add_u32 s{S_TMP+1}, s{S_TMP+1}, s{S_TMP+2}")
    k(f"s_add_u32 s{S_TMP+1}, s{S_TMP+1}, {WS_QA}")
    k(f"buffer_store_dwordx4 {neg}, v{t+1}, {srd(R_WS)}, s{S_TMP+1} offen sc1")
    k(f"{done}:")


L_WUK = 32768


def wuk_issue(k):
    t = V_T + 4
    k(f"s_sub_u32 s{S_TMP+2}, s{S_WAVE}, 1")
    k(f"s_mul_i32 s{S_TMP+2}, s{S_TMP+2}, 11")
    k(f"s_mul_i32 s{S_TMP}, s{S_J}, {128*8192}")
    k(f"s_lshl_b32 s{S_TMP+1}, s{S_H}, 8")
    k(f"s_add_u32 s{S_TMP}, s{S_TMP}, s{S_TMP+1}")
    k(f"s_lshl_b32 s{S_TMP+1}, s{S_TMP+2}, 15")
    k(f"s_add_u32 s{S_TMP}, s{S_TMP}, s{S_TMP+1}")
    k(f"s_lshl_b32 s{S_TMP+1}, s{S_TMP+2}, 10")
    k(f"s_add_u32 s{S_TMP+1}, s{S_TMP+1}, {L_WUK}")
    k(f"v_lshlrev_b32 v{t+1}, 13, v{V_SLAB}")
    lp = k.label("wuk")
    k(f"s_add_u32 s{S_TMP+4}, s{S_TMP+2}, 11")
    k(f"{lp}:")
    k(f"s_and_b32 s{S_TMP+3}, s{S_TMP+2}, 3")
    k(f"s_lshl_b32 s{S_TMP+3}, s{S_TMP+3}, 2")
    k(f"v_add_u32 v{t}, s{S_TMP+3}, v{V_SLAB}")
    k(f"v_xor_b32 v{t}, v{t}, v{V_L15}")
    k(f"v_lshl_add_u32 v{t}, v{t}, 4, v{t+1}")
    k(f"s_mov_b32 m0, s{S_TMP+1}")
    k(f"s_add_u32 s{S_TMP+1}, s{S_TMP+1}, 1024")
    k(f"buffer_load_dwordx4 v{t}, {srd(R_A)}, s{S_TMP} offen lds")
    k(f"s_add_u32 s{S_TMP}, s{S_TMP}, {4*8192}")
    k(f"s_add_u32 s{S_TMP+2}, s{S_TMP+2}, 1")
    k(f"s_cmp_lt_u32 s{S_TMP+2}, s{S_TMP+4}")
    k(f"s_cbranch_scc1 {lp}")


def wuk_preread(k):
    t = V_T + 4
    k(f"s_lshl_b32 s{S_TMP+4}, s{S_WAVE}, 2")
    k(f"v_add_u32 v{t}, s{S_TMP+4}, v{V_SLAB}")
    k(f"v_xor_b32 v{t}, v{t}, v{V_L15}")
    k(f"v_lshlrev_b32 v{t}, 4, v{t}")
    k(f"v_lshl_add_u32 v{t}, v{V_L15}, 8, v{t}")
    for i in range(8):
        k(f"ds_read_b128 {vr(VWUK+4*i,4)}, v{t} offset:{L_WUK+i*4096}")


PG = 10
PD = 28
PY = 68
PWV = 76
PWO = 108
PA = 148
PADR = 164
PM = 180
PT = 188
PKEEP = 206
S_KEEP = 16


def stage2(k):
    t = PT
    k(f"v_and_b32 v{t}, 7, v{V_L15}")
    k(f"v_lshlrev_b32 v{t}, 10, v{t}")
    k(f"v_lshrrev_b32 v{t+1}, 3, v{V_L15}")
    k(f"v_lshl_add_u32 v{t}, v{t+1}, 9, v{t}")
    k(f"v_lshl_add_u32 v{PADR}, v{V_SLAB}, 5, v{t}")
    k(f"s_lshl_b32 s{S_TMP}, s{S_H}, 13")
    k(f"s_lshl_b32 s{S_TMP+1}, s{S_WAVE}, 7")
    k(f"s_add_u32 s{S_TMP}, s{S_TMP}, s{S_TMP+1}")
    k(f"s_add_u32 s{S_TMP}, s{S_TMP}, {WS_QP}")
    k(f"v_lshrrev_b32 v{t}, 1, v{V_SLAB}")
    k(f"v_lshlrev_b32 v{t}, 15, v{t}")
    k(f"v_and_b32 v{t+1}, 1, v{V_SLAB}")
    k(f"v_lshl_add_u32 v{t}, v{t+1}, 5, v{t}")
    k(f"v_lshl_add_u32 v{PADR+1}, v{V_L15}, 1, v{t}")
    k(f"s_lshl_b32 s{S_TMP+2}, s{S_H}, 10")
    k(f"s_lshl_b32 s{S_TMP+3}, s{S_J}, 8")
    k(f"s_add_u32 s{S_TMP+2}, s{S_TMP+2}, s{S_TMP+3}")
    k(f"s_lshl_b32 s{S_TMP+3}, s{S_WAVE}, 6")
    k(f"s_add_u32 s{S_TMP+2}, s{S_TMP+2}, s{S_TMP+3}")
    k(f"s_add_u32 s{S_TMP+2}, s{S_TMP+2}, {WS_QA}")
    k(f"v_lshlrev_b32 v{PADR+2}, 2, v{V_LANE}")
    k(f"s_lshl_b32 s{S_TMP+3}, s{S_WAVE}, 10")
    k(f"s_add_u32 s{S_TMP+3}, s{S_TMP+3}, {L_RED}")
    k(f"v_add_u32 v{PADR+3}, s{S_TMP+3}, v{PADR+2}")
    k(f"s_lshl_b32 s{S_TMP+3}, s{S_WAVE}, 8")
    k(f"s_add_u32 s{S_TMP+3}, s{S_TMP+3}, {L_RED}")
    k(f"v_add_u32 v{PADR+2}, s{S_TMP+3}, v{PADR+2}")
    k(f"s_mov_b32 s{S_M+2}, 0x55555555")
    k(f"s_mov_b32 s{S_M+3}, 0x55555555")
    loads = [f"buffer_load_dwordx4 {vr(PG,4)}, v{PADR}, {srd(R_WS)}, s{S_TMP} offen sc1",
             f"buffer_load_dwordx4 {vr(PG+4,4)}, v{PADR}, {srd(R_WS)}, s{S_TMP} offen offset:16 sc1"]
    floads = [l.replace(f"s{S_TMP} offen", f"s{S_TMP+5} offen") for l in loads]
    k(f"s_add_u32 s{S_TMP+5}, s{S_TMP}, {WS_QF - WS_QP}")
    for l in (floads if use_fast1() else loads):
        k(l)
    k("s_waitcnt vmcnt(0)")
    k("s_barrier")
    wuk_preread(k)
    def send_qp(kk):
        sk = kk.label("qpw")
        kk(f"s_cmp_eq_u32 s{S_WAVE}, 0")
        kk(f"s_cbranch_scc0 {sk}")
        kk(f"buffer_store_dwordx4 {vr(VD1+4,4)}, v{VPUB}, {srd(R_WS)}, s{S_PUB} offen sc1")
        kk(f"{sk}:")
    gather_loop(k, "qp", loads, lambda kk: tag_check(kk, [(PG+2, PG+3), (PG+6, PG+7)]), 4, preissued=True,
                fast=(floads, 24) if use_fast1() else None, after_fast=send_qp if use_fast1() else None)
    k("s_waitcnt lgkmcnt(0)")
    k(f"v_mov_b32 v{PG+2}, v{PG+4}")
    k(f"v_mov_b32 v{PG+3}, v{PG+5}")
    k.nop(2)
    for i in range(8):
        k(f"v_mfma_f32_16x16x32_bf16 {vr(PD+4*i,4)}, {vr(PG,4)}, {vr(VWUK+4*i,4)}, 0")
    k.nop(1)
    for i in range(8):
        if i == 7:
            pass
        k(f"v_add_f32 v{PD+4*i}, v{PD+4*i}, v{PD+4*i+1}")
        k(f"v_add_f32 v{PD+4*i+2}, v{PD+4*i+2}, v{PD+4*i+3}")
        k(f"v_add_f32 v{PD+4*i}, v{PD+4*i}, v{PD+4*i+2}")
    k.nop(2)
    for u in range(4):
        k(f"v_permlane16_swap_b32 v{PD+8*u}, v{PD+8*u+4}")
    k.nop(1)
    for u in range(4):
        k(f"v_add_f32 v{PY+u}, v{PD+8*u}, v{PD+8*u+4}")
    k(f"ds_write2st64_b32 v{PADR+3}, v{PY}, v{PY+1} offset0:0 offset1:1")
    k(f"ds_write2st64_b32 v{PADR+3}, v{PY+2}, v{PY+3} offset0:2 offset1:3")
    k("s_waitcnt lgkmcnt(0)")
    k("s_barrier")
    k(f"ds_read2st64_b32 {vr(t,2)}, v{PADR+2} offset0:0 offset1:4")
    k(f"ds_read2st64_b32 {vr(t+2,2)}, v{PADR+2} offset0:8 offset1:12")
    k("s_waitcnt lgkmcnt(0)")
    k(f"v_add_f32 v{t}, v{t}, v{t+1}")
    k(f"v_add_f32 v{t+2}, v{t+2}, v{t+3}")
    k(f"v_add_f32 v{t}, v{t}, v{t+2}")
    k(f"v_mul_f32 v{t}, 0x3e0293ee, v{t}")
    k.nop(2)
    k(f"v_mov_b32_dpp v{t+1}, v{t} quad_perm:[1,0,3,2] row_mask:0xf bank_mask:0xf")
    k(f"v_cvt_pk_bf16_f32 v{t}, v{t}, v{t+1}")
    k(f"s_mov_b64 exec, s[{S_M+2}:{S_M+3}]")
    k(f"buffer_store_dword v{t}, v{PADR+1}, {srd(R_WS)}, s{S_TMP+2} offen sc1")
    k(f"s_mov_b64 exec, -1")
    k.stamp(5)


def p_weights_issue(k):
    t = PT
    if K.opt.get("trig", "0") == "1":
        k(f"s_and_b32 s{S_TMP}, s{S_H}, 7")
        k(f"s_lshl_b32 s{S_TMP}, s{S_TMP}, 8")
        k(f"s_add_u32 s{S_TMP}, s{S_TMP}, {WS_TR}")
        k(f"v_lshrrev_b32 v{t}, 2, v{V_L15}")
        k(f"v_lshlrev_b32 v{t}, 11, v{t}")
        k(f"v_and_b32 v{t+1}, 3, v{V_L15}")
        k(f"v_lshl_add_u32 v{t}, v{t+1}, 6, v{t}")
        sk = k.label("trw")
        k(f"s_cmp_eq_u32 s{S_WAVE}, 0")
        k(f"s_cbranch_scc0 {sk}")
        k(f"s_mov_b64 exec, 0xffff")
        gather_loop(k, "tr", [f"buffer_load_dwordx2 {vr(t+2,2)}, v{t}, {srd(R_WS)}, s{S_TMP} offen sc1"], lambda kk: tag_check(kk, [(t+2, t+3)]), 12)
        k(f"s_mov_b64 exec, -1")
        k(f"{sk}:")
        k("s_barrier")
    for par in range(2):
        k(f"v_add_u32 v{t}, {4*par}, v{V_SLAB}")
        k(f"v_lshlrev_b32 v{t}, 1, v{t}")
        k(f"v_xor_b32 v{t}, v{t}, v{V_L15}")
        k(f"v_lshlrev_b32 v{t}, 4, v{t}")
        k(f"v_lshl_add_u32 v{PADR+4+par}, v{V_SLAB}, 13, v{t}")
    k(f"s_mul_i32 s{S_TMP}, s{S_J}, {128*8192}")
    k(f"s_lshl_b32 s{S_TMP+1}, s{S_H}, 8")
    k(f"s_add_u32 s{S_TMP}, s{S_TMP}, s{S_TMP+1}")
    k(f"s_lshl_b32 s{S_TMP+1}, s{S_WAVE}, 18")
    k(f"s_add_u32 s{S_TMP}, s{S_TMP}, s{S_TMP+1}")
    k(f"s_lshl_b32 s{S_TMP+1}, s{S_WAVE}, 13")
    k(f"s_add_u32 s{S_TMP+1}, s{S_TMP+1}, {L_WUV}")
    for ii in range(8):
        k(f"s_mov_b32 m0, s{S_TMP+1}")
        k(f"s_add_u32 s{S_TMP+1}, s{S_TMP+1}, 1024")
        k(f"buffer_load_dwordx4 v{PADR+4+(ii&1)}, {srd(R_B)}, s{S_TMP} offen lds")
        k(f"s_add_u32 s{S_TMP}, s{S_TMP}, {4*8192}")


def p_weights_preread(k):
    t = PT
    k(f"v_lshrrev_b32 v{t}, 2, v{V_L15}")
    k(f"v_and_b32 v{t+1}, 3, v{V_L15}")
    k(f"v_lshl_add_u32 v{t+2}, v{V_SLAB}, 2, v{t}")
    k(f"v_and_b32 v{t+3}, 7, v{t+2}")
    k(f"v_lshlrev_b32 v{t+3}, 1, v{t+3}")
    k(f"v_lshrrev_b32 v{t+4}, 1, v{t+1}")
    k(f"v_and_b32 v{t+5}, 1, v{t+1}")
    k(f"s_lshl_b32 s{S_TMP}, s{S_WAVE}, 2")
    for d in range(2):
        k(f"v_add_u32 v{t+6}, s{S_TMP}, v{t+4}")
        if d:
            k(f"v_add_u32 v{t+6}, 2, v{t+6}")
        k(f"v_xor_b32 v{t+6}, v{t+6}, v{t+3}")
        k(f"v_lshlrev_b32 v{t+6}, 4, v{t+6}")
        k(f"v_lshl_add_u32 v{t+6}, v{t+5}, 3, v{t+6}")
        k(f"v_lshl_add_u32 v{PADR+6+d}, v{t+2}, 8, v{t+6}")
    for d in range(2):
        for kk in range(4):
            r = PWV + (d * 4 + kk) * 4
            k(f"ds_read_b64_tr_b16 {vr(r,2)}, v{PADR+6+d} offset:{L_WUV+kk*8192}")
            k(f"ds_read_b64_tr_b16 {vr(r+2,2)}, v{PADR+6+d} offset:{L_WUV+kk*8192+4096}")


def wo_issue(k):
    t = PT
    k(f"s_mul_i32 s{S_TMP}, s{S_H}, {128*1280}")
    k(f"s_mul_i32 s{S_TMP+1}, s{S_J}, 320")
    k(f"s_add_u32 s{S_TMP}, s{S_TMP}, s{S_TMP+1}")
    k(f"s_mul_i32 s{S_TMP+1}, s{S_WAVE}, 640")
    k(f"v_add_u32 v{t}, s{S_TMP+1}, v{V_LANE}")
    k(f"s_mul_i32 s{S_TMP+1}, s{S_WAVE}, 10240")
    k(f"s_add_u32 s{S_TMP+1}, s{S_TMP+1}, {L_WO5}")
    k(f"s_movk_i32 s{S_TMP+2}, 3277")
    k(f"s_movk_i32 s{S_TMP+3}, 960")
    for ii in range(10):
        k(f"v_mul_u32_u24 v{t+1}, s{S_TMP+2}, v{t}")
        k(f"v_lshrrev_b32 v{t+1}, 16, v{t+1}")
        k(f"v_mul_u32_u24 v{t+1}, s{S_TMP+3}, v{t+1}")
        k(f"v_lshl_add_u32 v{t+2+(ii&1)}, v{t}, 4, v{t+1}")
        k(f"s_mov_b32 m0, s{S_TMP+1}")
        k(f"s_add_u32 s{S_TMP+1}, s{S_TMP+1}, 1024")
        k(f"buffer_load_dwordx4 v{t+2+(ii&1)}, {srd(R_C)}, s{S_TMP} offen lds")
        k(f"v_add_u32 v{t}, 64, v{t}")


def wo_preread(k):
    t = PT
    k(f"v_lshrrev_b32 v{t}, 2, v{V_L15}")
    k(f"v_and_b32 v{t+1}, 3, v{V_L15}")
    k(f"v_lshl_add_u32 v{t+2}, v{V_SLAB}, 2, v{t}")
    k(f"s_lshl_b32 s{S_TMP}, s{S_WAVE}, 5")
    k(f"v_add_u32 v{t+6}, s{S_TMP}, v{t+2}")
    k(f"v_mul_u32_u24 v{t+6}, 320, v{t+6}")
    k(f"v_lshl_add_u32 v{PADR+8}, v{t+1}, 3, v{t+6}")
    k(f"v_add_u32 v{PADR+8}, {L_WO5}, v{PADR+8}")
    for ct in range(10):
        r = PWO + 4 * ct
        k(f"ds_read_b64_tr_b16 {vr(r,2)}, v{PADR+8} offset:{32*ct}")
        k(f"ds_read_b64_tr_b16 {vr(r+2,2)}, v{PADR+8} offset:{32*ct+5120}")


def reduce_bits(k, op, v, tmp):
    for mod in ("quad_perm:[1,0,3,2]", "quad_perm:[2,3,0,1]", "row_half_mirror"):
        k.nop(2)
        k(f"{op}_dpp v{v}, v{v}, v{v} {mod} row_mask:0xf bank_mask:0xf")
    for sw in ("v_permlane16_swap_b32", "v_permlane32_swap_b32"):
        k(f"v_mov_b32 v{tmp}, v{v}")
        k.nop(2)
        k(f"{sw} v{v}, v{tmp}")
        k.nop(1)
        k(f"{op} v{v}, v{v}, v{tmp}")


def stage4_setup(k):
    t = PT
    k(f"v_bfe_u32 v{t}, v{V_LANE}, 3, 1")
    k(f"v_bfe_u32 v{t+1}, v{V_LANE}, 2, 1")
    k(f"v_and_b32 v{t+2}, 3, v{V_LANE}")
    k(f"v_lshlrev_b32 v{t+1}, 4, v{t+1}")
    k(f"v_lshl_add_u32 v{t+1}, v{V_SLAB}, 2, v{t+1}")
    k(f"v_add_u32 v{t+1}, v{t+1}, v{t+2}")
    k(f"v_lshl_add_u32 v{t+1}, v{t}, 5, v{t+1}")
    k(f"v_lshlrev_b32 v{PADR+9}, 3, v{t+1}")
    k(f"v_and_b32 v{t+1}, 1, v{V_LANE}")
    k(f"v_cmp_eq_u32 vcc, 1, v{t+1}")
    k(f"v_mov_b32 v{t+2}, 0xffff")
    k(f"v_mov_b32 v{t+3}, 0xffff0000")
    k(f"v_cndmask_b32 v{t+2}, v{t+2}, v{t+3}, vcc")
    k(f"v_bfe_u32 v{t+1}, v{V_LANE}, 1, 2")
    k(f"v_lshl_add_u32 v{t+1}, v{t}, 2, v{t+1}")
    for i in range(8):
        k(f"v_cmp_eq_u32 vcc, {i}, v{t+1}")
        k.nop(2)
        k(f"v_cndmask_b32 v{PM+i}, 0, v{t+2}, vcc")
    k(f"v_lshlrev_b32 v{PADR+10}, 4, v0")
    k(f"v_lshrrev_b32 v{t}, 4, v0")
    k(f"v_and_b32 v{t+1}, 7, v{t}")
    k(f"v_lshlrev_b32 v{t+1}, 1, v{t+1}")
    k(f"v_xor_b32 v{t+1}, v{t+1}, v{V_L15}")
    k(f"v_lshlrev_b32 v{t+1}, 4, v{t+1}")
    k(f"v_lshl_add_u32 v{t+1}, v{t}, 8, v{t+1}")
    k(f"v_add_u32 v{PADR+11}, {L_AOB}, v{t+1}")
    k(f"v_lshrrev_b32 v{t}, 2, v{V_L15}")
    k(f"v_lshl_add_u32 v{t}, v{V_SLAB}, 2, v{t}")
    k(f"v_and_b32 v{t+1}, 7, v{t}")
    k(f"v_lshlrev_b32 v{t+1}, 1, v{t+1}")
    k(f"v_bfe_u32 v{t+2}, v{V_L15}, 1, 1")
    k(f"v_and_b32 v{t+3}, 1, v{V_L15}")
    k(f"s_lshl_b32 s{S_TMP}, s{S_WAVE}, 2")
    for d in range(2):
        k(f"v_add_u32 v{t+4}, s{S_TMP}, v{t+2}")
        if d:
            k(f"v_add_u32 v{t+4}, 2, v{t+4}")
        k(f"v_xor_b32 v{t+4}, v{t+4}, v{t+1}")
        k(f"v_lshlrev_b32 v{t+4}, 4, v{t+4}")
        k(f"v_lshl_add_u32 v{t+4}, v{t+3}, 3, v{t+4}")
        k(f"v_lshl_add_u32 v{t+4}, v{t}, 8, v{t+4}")
        k(f"v_add_u32 v{PADR+12+d}, {L_AOB}, v{t+4}")
    k(f"v_lshrrev_b32 v{t}, 1, v{V_SLAB}")
    k(f"v_and_b32 v{t+1}, 1, v{V_SLAB}")
    k(f"v_lshlrev_b32 v{t}, 7, v{t}")
    k(f"v_lshl_add_u32 v{t}, v{t+1}, 4, v{t}")
    k(f"v_add_u32 v{t}, v{t}, v{V_L15}")
    k(f"s_lshl_b32 s{S_TMP}, s{S_WAVE}, 5")
    k(f"v_add_u32 v{t}, s{S_TMP}, v{t}")
    k(f"v_lshlrev_b32 v{t}, 1, v{t}")
    k(f"v_add_u32 v{PADR+14}, {L_CTX}, v{t}")
    k(f"v_and_b32 v{t}, 1, v{V_LANE}")
    k(f"v_lshlrev_b32 v{t}, 8, v{t}")
    k(f"v_lshl_add_u32 v{t}, v{V_SLAB}, 4, v{t}")
    k(f"v_add_u32 v{PADR+15}, {L_CTX}, v{t}")


def stage4(k):
    t = PT
    G = PG
    ST = 26
    k(f"s_lshl_b32 s{S_TMP}, s{S_H}, 9")
    k(f"s_add_u32 s{S_TMP}, s{S_TMP}, {WS_ST}")
    k(f"s_lshl_b32 s{S_TMP+1}, s{S_H}, 2")
    k(f"s_add_u32 s{S_TMP+1}, s{S_TMP+1}, s{S_J}")
    k(f"s_lshl_b32 s{S_TMP+2}, s{S_TMP+1}, 14")
    k(f"s_add_u32 s{S_TMP+2}, s{S_TMP+2}, {WS_AO}")
    for n in range(1, 4):
        k(f"s_add_u32 s{S_TMP+2+n}, s{S_TMP+2}, {4096*n}")
    sk = k.label("stw")
    k(f"v_lshlrev_b32 v{t+12}, 3, v{V_LANE}")
    k(f"v_add_u32 v{t+12}, {L_STX}, v{t+12}")
    k(f"s_cmp_eq_u32 s{S_WAVE}, 0")
    k(f"s_cbranch_scc0 {sk}")
    gather_check_loop(k, "st", [f"buffer_load_dwordx2 {vr(ST,2)}, v{PADR+9}, {srd(R_WS)}, s{S_TMP} offen sc1"], [ST, ST + 1], None)
    k(f"ds_write_b64 v{t+12}, {vr(ST,2)}")
    k("s_waitcnt lgkmcnt(0)")
    k(f"{sk}:")
    k("s_barrier")
    k.stamp(7)
    loads = [f"buffer_load_dwordx4 {vr(G+4*n,4)}, v{PADR+10}, {srd(R_WS)}, s{S_TMP+2+n} offen sc1" for n in range(4)]
    for l in loads:
        k(l)
    k(f"ds_read_b64 {vr(ST,2)}, v{t+12}")
    k("s_waitcnt lgkmcnt(0)")
    M = t + 8
    k(f"v_mov_b32 v{M}, v{ST}")
    reduce_bits(k, "v_max_f32", M, t + 9)
    k(f"v_sub_f32 v{t}, v{ST}, v{M}")
    k(f"v_exp_f32 v{t}, v{t}")
    k.nop(1)
    k(f"v_cvt_pk_bf16_f32 v{t}, v{t}, v{t}")
    for i in range(8):
        k(f"v_and_b32 v{PA+i}, v{t}, v{PM+i}")
    k(f"v_and_b32 v{t+1}, 0xffff0000, v{t}")
    k(f"v_mul_f32 v{t+1}, v{t+1}, v{ST+1}")
    reduce_bits(k, "v_add_f32", t + 1, t + 9)
    k(f"v_rcp_f32 v{t+1}, v{t+1}")
    k.nop(1)
    k(f"v_readlane_b32 s{S_TMP+6}, v{t+1}, 0")
    k(f"v_readlane_b32 s{S_TMP+7}, v{t+1}, 8")
    k(f"v_cmp_le_u32 vcc, 32, v{V_LANE}")
    k.nop(1)
    k(f"v_mov_b32 v{t+2}, s{S_TMP+6}")
    k(f"v_mov_b32 v{t+3}, s{S_TMP+7}")
    k(f"v_cndmask_b32 v{t+2}, v{t+2}, v{t+3}, vcc")
    gather_check_loop(k, "ao", loads, list(range(G, G + 16)), 8, preissued=True)
    for n in range(4):
        k(f"ds_write_b128 v{PADR+11}, {vr(G+4*n,4)} offset:{4096*n}")
    k("s_waitcnt lgkmcnt(0)")
    k("s_barrier")
    B = PD + 8
    for d in range(2):
        for bb in range(2):
            r = B + (d * 2 + bb) * 4
            k(f"ds_read_b64_tr_b16 {vr(r,2)}, v{PADR+12+d} offset:{bb*8192}")
            k(f"ds_read_b64_tr_b16 {vr(r+2,2)}, v{PADR+12+d} offset:{bb*8192+4096}")
    for d in range(2):
        k(f"s_waitcnt lgkmcnt({4-4*d})")
        k(f"v_mfma_f32_16x16x32_bf16 {vr(PD+4*d,4)}, {vr(PA,4)}, {vr(B+(d*2)*4,4)}, 0")
        k(f"v_mfma_f32_16x16x32_bf16 {vr(PD+4*d,4)}, {vr(PA+4,4)}, {vr(B+(d*2+1)*4,4)}, {vr(PD+4*d,4)}")
    k.nop(8)
    for d in range(2):
        k(f"v_add_f32 v{PD+4*d}, v{PD+4*d}, v{PD+4*d+1}")
        k(f"v_add_f32 v{PD+4*d+2}, v{PD+4*d+2}, v{PD+4*d+3}")
    for d in range(2):
        k(f"v_add_f32 v{PD+4*d}, v{PD+4*d}, v{PD+4*d+2}")
    k.nop(2)
    k(f"v_permlane16_swap_b32 v{PD}, v{PD+4}")
    k.nop(1)
    k(f"v_add_f32 v{PD}, v{PD}, v{PD+4}")
    k(f"v_mul_f32 v{PD}, v{PD}, v{t+2}")
    k(f"v_cvt_pk_bf16_f32 v{PD}, v{PD}, v{PD}")
    k(f"ds_write_b16 v{PADR+14}, v{PD}")
    k("s_waitcnt lgkmcnt(0)")
    k("s_barrier")
    for kk in range(4):
        k(f"ds_read_b128 {vr(PA+4*kk,4)}, v{PADR+15} offset:{64*kk}")
    k(f"v_lshrrev_b32 v{t}, 2, v{V_L15}")
    k(f"v_lshlrev_b32 v{t}, 3, v{t}")
    k(f"v_and_b32 v{t+1}, 1, v{V_SLAB}")
    k(f"v_lshl_add_u32 v{t}, v{t+1}, 2, v{t}")
    k(f"v_and_b32 v{t+1}, 2, v{V_L15}")
    k(f"v_add_u32 v{t}, v{t}, v{t+1}")
    k(f"v_lshrrev_b32 v{t+1}, 1, v{V_SLAB}")
    k(f"v_lshl_add_u32 v{t}, v{t+1}, 7, v{t}")
    k(f"v_lshlrev_b32 v{t}, 1, v{t}")
    k(f"s_lshl_b32 s{S_TMP}, s{S_H}, 2")
    k(f"s_add_u32 s{S_TMP}, s{S_TMP}, s{S_J}")
    k(f"s_lshl_b32 s{S_TMP}, s{S_TMP}, 9")
    k(f"s_lshl_b32 s{S_TMP+1}, s{S_WAVE}, 6")
    k(f"s_add_u32 s{S_TMP}, s{S_TMP}, s{S_TMP+1}")
    k(f"s_add_u32 s{S_TMP}, s{S_TMP}, {WS_CP}")
    k(f"s_add_u32 s{S_TMP+1}, s{S_TMP}, {WS_CF - WS_CP}")
    k(f"s_mov_b32 s{S_M+2}, 0xffff0000")
    k(f"s_mov_b32 s{S_M+3}, 0xffff0000")
    k(f"s_mov_b32 s{S_M+4}, 0")
    k(f"s_mov_b32 s{S_M+5}, -1")
    k(f"s_mov_b32 s{S_M+6}, 0x55555555")
    k(f"s_mov_b32 s{S_M+7}, 0x55555555")
    for kk in range(4):
        k(f"s_waitcnt lgkmcnt({3-kk})")
        for d in range(2):
            c = "0" if kk == 0 else vr(PD + 4 * d, 4)
            k(f"v_mfma_f32_16x16x32_bf16 {vr(PD+4*d,4)}, {vr(PA+4*kk,4)}, {vr(PWV+(d*4+kk)*4,4)}, {c}")
    k.nop(8)
    k(f"v_cndmask_b32 v{t+2}, v{PD}, v{PD+4}, s[{S_M+2}:{S_M+3}]")
    k(f"v_cndmask_b32 v{t+3}, v{PD+1}, v{PD+5}, s[{S_M+2}:{S_M+3}]")
    k(f"v_cndmask_b32 v{t+2}, v{t+2}, v{t+3}, s[{S_M+4}:{S_M+5}]")
    k.nop(2)
    k(f"v_mov_b32_dpp v{t+3}, v{t+2} quad_perm:[1,0,3,2] row_mask:0xf bank_mask:0xf")
    k(f"v_cvt_pk_bf16_f32 v{t+2}, v{t+2}, v{t+3}")
    if use_fast():
        k(f"v_mov_b32 v{PKEEP}, v{t+2}")
        k(f"v_mov_b32 v{PKEEP+1}, v{t}")
        k(f"s_mov_b32 s{S_KEEP}, s{S_TMP}")
    k(f"s_mov_b64 exec, s[{S_M+6}:{S_M+7}]")
    if use_fast():
        k(f"buffer_store_dword v{t+2}, v{t}, {srd(R_WS)}, s{S_TMP+1} offen")
    else:
        k(f"buffer_store_dword v{t+2}, v{t}, {srd(R_WS)}, s{S_TMP} offen sc1")
    k(f"s_mov_b64 exec, -1")
    k.stamp(9)


def stage5(k):
    t = PT
    k(f"v_and_b32 v{t}, 3, v{V_L15}")
    k(f"v_lshlrev_b32 v{t}, 9, v{t}")
    k(f"v_bfe_u32 v{t+1}, v{V_L15}, 2, 1")
    k(f"v_lshl_add_u32 v{t}, v{t+1}, 8, v{t}")
    k(f"v_lshl_add_u32 v{PADR}, v{V_SLAB}, 4, v{t}")
    k(f"s_lshl_b32 s{S_TMP}, s{S_H}, 11")
    k(f"s_lshl_b32 s{S_TMP+1}, s{S_WAVE}, 6")
    k(f"s_add_u32 s{S_TMP}, s{S_TMP}, s{S_TMP+1}")
    k(f"s_add_u32 s{S_TMP}, s{S_TMP}, {WS_CP}")
    k(f"v_lshrrev_b32 v{t}, 1, v{V_SLAB}")
    k(f"v_lshlrev_b32 v{t}, 4, v{t}")
    k(f"v_add_u32 v{t}, v{t}, v{V_L15}")
    k(f"v_lshlrev_b32 v{t}, 3, v{t}")
    k(f"v_and_b32 v{t+1}, 1, v{V_SLAB}")
    k(f"v_lshl_add_u32 v{PADR+1}, v{t+1}, 2, v{t}")
    k(f"s_mul_i32 s{S_TMP+1}, s{S_H}, 5120")
    k(f"s_mul_i32 s{S_TMP+2}, s{S_J}, 1280")
    k(f"s_add_u32 s{S_TMP+1}, s{S_TMP+1}, s{S_TMP+2}")
    k(f"s_add_u32 s{S_TMP+1}, s{S_TMP+1}, {WS_SP}")
    k(f"s_lshl_b32 s{S_TMP+2}, s{S_WAVE}, 8")
    k(f"s_add_u32 s{S_TMP+2}, s{S_TMP+2}, s{S_TMP+1}")
    k(f"s_add_u32 s{S_TMP+1}, s{S_TMP+1}, 1024")
    k(f"v_lshlrev_b32 v{t}, 2, v{V_LANE}")
    k(f"s_mul_i32 s{S_TMP+3}, s{S_WAVE}, 1280")
    k(f"s_add_u32 s{S_TMP+3}, s{S_TMP+3}, {L_RED5}")
    k(f"v_add_u32 v{PADR+3}, s{S_TMP+3}, v{t}")
    k(f"s_lshl_b32 s{S_TMP+3}, s{S_WAVE}, 8")
    k(f"s_add_u32 s{S_TMP+3}, s{S_TMP+3}, {L_RED5}")
    k(f"v_add_u32 v{PADR+2}, s{S_TMP+3}, v{t}")
    k(f"v_add_u32 v{PADR+4}, {L_RED5+1024}, v{t}")
    k(f"s_mov_b32 s{S_M+4}, 0")
    k(f"s_mov_b32 s{S_M+5}, -1")
    loads = [f"buffer_load_dwordx4 {vr(PG,4)}, v{PADR}, {srd(R_WS)}, s{S_TMP} offen sc1"]
    k(f"s_add_u32 s{S_TMP+5}, s{S_TMP}, {WS_CF - WS_CP}")
    floads = [f"buffer_load_dwordx4 {vr(PG,4)}, v{PADR}, {srd(R_WS)}, s{S_TMP+5} offen sc1"]
    def send_cp(kk):
        kk(f"s_mov_b32 exec_lo, 0x55555555")
        kk(f"s_mov_b32 exec_hi, 0x55555555")
        kk(f"buffer_store_dword v{PKEEP}, v{PKEEP+1}, {srd(R_WS)}, s{S_KEEP} offen sc1")
        kk(f"s_mov_b64 exec, -1")
    gather_loop(k, "cp", loads, lambda kk: sentinel_check(kk, [PG, PG + 1, PG + 2, PG + 3]), 10,
                fast=(floads, 16) if use_fast() else None, after_fast=send_cp if use_fast() else None)
    for ct in range(10):
        k(f"v_mfma_f32_16x16x32_bf16 {vr(PD+4*ct,4)}, {vr(PG,4)}, {vr(PWO+4*ct,4)}, 0")
    for ct in range(10):
        k(f"v_add_f32 v{PD+4*ct}, v{PD+4*ct}, v{PD+4*ct+1}")
        k(f"v_add_f32 v{PD+4*ct+2}, v{PD+4*ct+2}, v{PD+4*ct+3}")
        k(f"v_add_f32 v{PD+4*ct}, v{PD+4*ct}, v{PD+4*ct+2}")
    for u in range(5):
        k(f"v_cndmask_b32 v{PY+u}, v{PD+8*u}, v{PD+8*u+4}, s[{S_M+4}:{S_M+5}]")
    k(f"ds_write2st64_b32 v{PADR+3}, v{PY}, v{PY+1} offset0:0 offset1:1")
    k(f"ds_write2st64_b32 v{PADR+3}, v{PY+2}, v{PY+3} offset0:2 offset1:3")
    k(f"ds_write_b32 v{PADR+3}, v{PY+4} offset:1024")
    k("s_waitcnt lgkmcnt(0)")
    k("s_barrier")
    k(f"ds_read2st64_b32 {vr(t,2)}, v{PADR+2} offset0:0 offset1:5")
    k(f"ds_read2st64_b32 {vr(t+2,2)}, v{PADR+2} offset0:10 offset1:15")
    k(f"ds_read2st64_b32 {vr(t+4,2)}, v{PADR+4} offset0:0 offset1:5")
    k(f"ds_read2st64_b32 {vr(t+6,2)}, v{PADR+4} offset0:10 offset1:15")
    k("s_waitcnt lgkmcnt(2)")
    k(f"v_add_f32 v{t}, v{t}, v{t+1}")
    k(f"v_add_f32 v{t+2}, v{t+2}, v{t+3}")
    k(f"v_add_f32 v{t}, v{t}, v{t+2}")
    k(f"buffer_store_dword v{t}, v{PADR+1}, {srd(R_WS)}, s{S_TMP+2} offen sc1")
    skip = k.label("s5skip")
    k(f"s_cmp_eq_u32 s{S_WAVE}, 0")
    k(f"s_cbranch_scc0 {skip}")
    k("s_waitcnt lgkmcnt(0)")
    k(f"v_add_f32 v{t+4}, v{t+4}, v{t+5}")
    k(f"v_add_f32 v{t+6}, v{t+6}, v{t+7}")
    k(f"v_add_f32 v{t+4}, v{t+4}, v{t+6}")
    k(f"buffer_store_dword v{t+4}, v{PADR+1}, {srd(R_WS)}, s{S_TMP+1} offen sc1")
    k(f"{skip}:")
    k.stamp(11)


S_U = 73 + 7
BQ = 10
BG = 74
BD = 90
BS = 122
BP = 130
BL = 146
BADR = 150
BT = 166
BONE = 186
BAC = 190
BTR = 192
BWF = 194
BA2 = 236
BROW = 240
BWR = 196
S_WFL, S_WFO, S_WFS = 17, 22, 23
AOT_RS = 272
L_AOT = 98304
S_FLG = 14
S_AC = 14 + 2
FIRSTWAIT_AC = 1
S_B, S_G, S_UU = 66, 67, 68


def b_roles(k):
    k(f"s_sub_u32 s{S_JP}, s{S_J}, 4")
    k(f"s_and_b32 s{S_G}, s{S_JP}, 1")
    k(f"s_lshr_b32 s{S_B}, s{S_JP}, 1")
    k(f"s_lshl_b32 s{S_UU}, s{S_JP}, 5")
    k(f"s_add_u32 s{S_UU}, s{S_UU}, s{S_H}")
    k(f"s_and_b32 s{S_F}, s{S_UU}, 63")
    k(f"s_lshr_b32 s{S_TMP}, s{S_UU}, 6")
    k(f"s_add_u32 s{S_ROLE}, s{S_TMP}, 1")
    k(f"s_cmp_lt_u32 s{S_F}, {NF}")
    k(f"s_cselect_b32 s{S_ROLE}, s{S_ROLE}, 3")
    k(f"s_mul_i32 s{S_TMP}, s{S_TMP}, 10")
    k(f"s_add_u32 s{S_Z}, s{S_F}, s{S_TMP}")
    k(f"s_sub_u32 s{S_Z}, s{S_Z}, {NF}")


def clears_B(k):
    t = V_T + 4
    neg = vr(V_NEG1, 4)
    k(f"v_lshlrev_b32 v{t}, 4, v{V_LANE}")
    k(f"s_lshl_b32 s{S_TMP}, s{S_H}, 2")
    k(f"s_add_u32 s{S_TMP}, s{S_TMP}, s{S_JP}")
    k(f"s_lshl_b32 s{S_TMP}, s{S_TMP}, 14")
    k(f"s_add_u32 s{S_TMP}, s{S_TMP}, {WS_AO}")
    k(f"s_mul_i32 s{S_TMP+1}, s{S_WAVE}, 5120")
    k(f"s_add_u32 s{S_TMP}, s{S_TMP}, s{S_TMP+1}")
    k(f"s_sub_u32 s{S_TMP}, s{S_TMP}, 4096")
    for i in range(5):
        off = i * 1024
        if i == 4:
            k(f"s_add_u32 s{S_TMP}, s{S_TMP}, 4096")
            off = 0
        k(f"buffer_store_dwordx4 {neg}, v{t}, {srd(R_WS)}, s{S_TMP} offen offset:{off} sc1")
    sk = k.label("cb")
    k(f"s_cmp_eq_u32 s{S_WAVE}, 1")
    k(f"s_cbranch_scc0 {sk}_2")
    k(f"s_sub_u32 s{S_TMP}, s{S_TMP}, 5120")
    k(f"buffer_store_dwordx4 {neg}, v{t}, {srd(R_WS)}, s{S_TMP} offen sc1")
    k(f"s_branch {sk}")
    k(f"{sk}_2:")
    k(f"s_cmp_eq_u32 s{S_WAVE}, 2")
    k(f"s_cbranch_scc0 {sk}")
    k(f"s_cmp_eq_u32 s{S_ROLE}, 2")
    k(f"s_cbranch_scc0 {sk}")
    k(f"s_mul_i32 s{S_TMP}, s{S_F}, 5120")
    k(f"s_add_u32 s{S_TMP}, s{S_TMP}, {WS_FP}")
    for i in range(5):
        off = i * 1024
        if i == 4:
            k(f"s_add_u32 s{S_TMP}, s{S_TMP}, 4096")
            off = 0
        k(f"buffer_store_dwordx4 {neg}, v{t}, {srd(R_WS)}, s{S_TMP} offen offset:{off} sc1")
    k(f"{sk}:")


def tag_store(k, base, shift, treg, only_wave=None):
    k(f"s_lshl_b32 s{S_TMP+3}, s{S_H}, 2")
    k(f"s_add_u32 s{S_TMP+3}, s{S_TMP+3}, s{S_JP}")
    k(f"s_lshl_b32 s{S_TMP+3}, s{S_TMP+3}, {shift}")
    k(f"s_add_u32 s{S_TMP+3}, s{S_TMP+3}, {base}")
    if only_wave is not None:
        k(f"s_cmp_eq_u32 s{S_WAVE}, {only_wave}")
        k(f"s_cselect_b32 s{S_TMP+3}, s{S_TMP+3}, 0x7f000000")
    k(f"v_mov_b32 v{treg}, s{S_T0}")
    k(f"v_mov_b32 v{treg+1}, s{S_T1}")
    k(f"v_mov_b32 v{treg+2}, 0")
    k(f"s_mov_b64 exec, 1")
    k(f"buffer_store_dwordx2 {vr(treg,2)}, v{treg+2}, {srd(R_WS)}, s{S_TMP+3} offen sc1")
    k(f"s_mov_b64 exec, -1")


def ac_publish(k):
    sk = k.label("acp")
    k(f"s_cmp_eq_u32 s{S_WAVE}, 1")
    k(f"s_cbranch_scc0 {sk}")
    tag_store(k, WS_AC, 3, BT + 2)
    k(f"{sk}:")


S_RO, S_RL = 24, 25


def ckv_setup(k):
    k(f"s_lshl_b32 s{S_RO}, s{S_B}, 12")
    k(f"s_lshl_b32 s{S_TMP+1}, s{S_H}, 7")
    k(f"s_add_u32 s{S_RO}, s{S_RO}, s{S_TMP+1}")
    k(f"s_lshl_b32 s{S_TMP+1}, s{S_WAVE}, 5")
    k(f"s_add_u32 s{S_RO}, s{S_RO}, s{S_TMP+1}")
    k(f"s_lshl_b32 s{S_RO}, s{S_RO}, 10")
    k(f"s_mul_i32 s{S_RL}, s{S_WAVE}, {32*RS}")
    k(f"s_add_u32 s{S_RL}, s{S_RL}, {L_CKV}")
    k(f"v_lshlrev_b32 v{BROW}, 4, v{V_LANE}")
    k(f"s_mul_i32 s{S_TMP+3}, s{S_G}, {16*1024}")
    k(f"s_add_u32 s{S_RO}, s{S_RO}, s{S_TMP+3}")
    k(f"s_mul_i32 s{S_TMP+3}, s{S_G}, {16*RS}")
    k(f"s_add_u32 s{S_RL}, s{S_RL}, s{S_TMP+3}")
    if K.opt.get("g1skip"):
        k(f"s_cmp_eq_u32 s{S_G}, 1")
        k(f"s_cselect_b32 s{R_A+2}, 0, s{R_A+2}")


def flags_setup(k):
    t = V_T + 4
    k(f"v_lshrrev_b32 v{t+1}, 2, v{V_LANE}")
    k(f"v_lshlrev_b32 v{t+1}, 13, v{t+1}")
    k(f"v_and_b32 v{BT}, 3, v{V_LANE}")
    k(f"v_lshl_add_u32 v{BADR+14}, v{BT}, 10, v{t+1}")
    k(f"s_lshl_b32 s{S_FLG}, s{S_G}, 17")
    k(f"s_add_u32 s{S_FLG}, s{S_FLG}, {WS_QP}")
    k(f"v_lshlrev_b32 v{BADR+15}, 3, v{V_LANE}")
    k(f"s_lshl_b32 s{S_AC}, s{S_G}, 9")
    k(f"s_add_u32 s{S_AC}, s{S_AC}, {WS_AC}")


def ckv_rows(k, r0, r1):
    for r in range(r0, r1):
        if r == 8:
            sk = k.label("acw")
            k(f"s_cmp_eq_u32 s{S_WAVE}, 0")
            k(f"s_cbranch_scc1 {sk}")
            k("s_waitcnt vmcnt(8)")
            epoch_tags(k, VE)
            k(f"{sk}:")
            k("s_barrier")
            ac_publish(k)
            flags_setup(k)
        if r == flag_row():
            k(flag_load())
            k(ac_load())
        if r == 16 and K.opt.get("halfstamp"):
            k.stamp(15)
        if r == 24 and K.opt.get("halfstamp"):
            k.stamp(16)
        if r == 16:
            k(f"s_mul_i32 s{S_TMP+3}, s{S_G}, {32*1024}")
            k(f"s_sub_u32 s{S_RO}, s{S_RO}, s{S_TMP+3}")
            k(f"s_mul_i32 s{S_TMP+3}, s{S_G}, {32*RS}")
            k(f"s_sub_u32 s{S_RL}, s{S_RL}, s{S_TMP+3}")
        nin = int(K.opt.get("infl", 8))
        if nin and r >= nin and r != 8:
            k(f"s_waitcnt vmcnt({nin - 1 + (2 if flag_row() <= r < flag_row() + nin else 0)})")
        k(f"s_mov_b32 m0, s{S_RL}")
        k(f"s_add_u32 s{S_RL}, s{S_RL}, {RS}")
        k(f"buffer_load_dwordx4 v{BROW}, {srd(R_A)}, s{S_RO} offen lds")
        k(f"s_add_u32 s{S_RO}, s{S_RO}, 1024")
        if K.opt.get("g1skip") and r == r0 and r0 == 0:
            pass


def early_rows():
    return int(K.opt.get("erows", 0))


def flag_row():
    return int(K.opt.get("frow", FLAG_ROW))


def ntr():
    return 1 if K.opt.get("trig", "0") == "1" else 0


def flag_load():
    return f"buffer_load_dwordx4 {vr(BG,4)}, v{BADR+14}, {srd(R_WS)}, s{S_FLG} offen sc1"


def ac_load():
    return f"buffer_load_dwordx2 {vr(BAC,2)}, v{BADR+15}, {srd(R_WS)}, s{S_AC} offen sc1"


def flags_poll(k):
    gather_loop(k, "fl", [flag_load(), ac_load()], lambda kk: tag_check(kk, [(BG+2, BG+3), (BAC, BAC+1)]), 14, preissued=True, firstwait=32 - flag_row() + ntr())


def wf_load(k, i):
    if K.opt.get("nowf"):
        return
    k(f"buffer_load_dwordx4 {vr(BWR+4*i,4)}, v{BWF}, {srd(R_B)}, s{S_WFO} offen")
    if i < 9:
        k(f"s_add_u32 s{S_WFO}, s{S_WFO}, s{S_WFS}")


def attention_setup(k):
    t = BT
    k(f"s_lshl_b32 s{S_TMP}, s{S_WAVE}, 5")
    k(f"v_add_u32 v{t}, s{S_TMP}, v{V_L15}")
    k(f"v_mul_u32_u24 v{t}, {RS}, v{t}")
    k(f"v_lshl_add_u32 v{t}, v{V_SLAB}, 8, v{t}")
    k(f"v_and_b32 v{t+1}, 1, v{V_SLAB}")
    k(f"v_lshlrev_b32 v{t+1}, 4, v{t+1}")
    k(f"s_mul_i32 s{S_TMP}, s{S_G}, {16*RS}")
    k(f"s_sub_u32 s{S_TMP+1}, {16*RS}, s{S_TMP}")
    k(f"v_add_u32 v{BADR}, v{t}, v{t+1}")
    k(f"v_sub_u32 v{BADR+1}, v{t}, v{t+1}")
    k(f"v_add_u32 v{BA2}, s{S_TMP+1}, v{BADR}")
    k(f"v_add_u32 v{BA2+1}, s{S_TMP+1}, v{BADR+1}")
    k(f"v_add_u32 v{BADR}, s{S_TMP}, v{BADR}")
    k(f"v_add_u32 v{BADR+1}, s{S_TMP}, v{BADR+1}")
    k(f"v_mul_u32_u24 v{t}, {RS}, v{V_L15}")
    k(f"v_lshl_add_u32 v{t}, v{V_SLAB}, 8, v{t}")
    k(f"v_add_u32 v{t}, {L_QB}, v{t}")
    k(f"v_add_u32 v{BADR+2}, v{t}, v{t+1}")
    k(f"v_sub_u32 v{BADR+3}, v{t}, v{t+1}")
    k(f"v_lshrrev_b32 v{t}, 2, v{V_L15}")
    k(f"v_lshl_add_u32 v{t}, v{V_SLAB}, 2, v{t}")
    k(f"v_mul_u32_u24 v{t}, {RS}, v{t}")
    k(f"v_and_b32 v{t+1}, 3, v{V_L15}")
    k(f"v_lshl_add_u32 v{t}, v{t+1}, 3, v{t}")
    k(f"s_lshl_b32 s{S_TMP}, s{S_WAVE}, 8")
    k(f"v_add_u32 v{t}, s{S_TMP}, v{t}")
    k(f"s_mul_i32 s{S_TMP}, s{S_G}, {16*RS}")
    k(f"s_sub_u32 s{S_TMP+1}, {16*RS}, s{S_TMP}")
    k(f"v_add_u32 v{BADR+4}, s{S_TMP}, v{t}")
    k(f"v_add_u32 v{BADR+5}, {64*RS}, v{BADR+4}")
    k(f"v_add_u32 v{BA2+2}, s{S_TMP+1}, v{t}")
    k(f"v_add_u32 v{BA2+3}, {64*RS}, v{BA2+2}")
    k(f"v_lshlrev_b32 v{BADR+6}, 4, v0")
    k(f"s_mul_i32 s{S_TMP}, s{S_WAVE}, {RS}")
    k(f"s_add_u32 s{S_TMP}, s{S_TMP}, {L_QB}")
    k(f"v_lshlrev_b32 v{t}, 4, v{V_LANE}")
    k(f"v_add_u32 v{BADR+7}, s{S_TMP}, v{t}")
    k(f"v_lshlrev_b32 v{t+1}, 2, v{V_LANE}")
    k(f"s_lshl_b32 s{S_TMP}, s{S_WAVE}, 8")
    k(f"s_add_u32 s{S_TMP}, s{S_TMP}, {L_MX}")
    k(f"v_add_u32 v{BADR+8}, s{S_TMP}, v{t+1}")
    k(f"v_add_u32 v{BADR+9}, {L_MX}, v{t+1}")
    k(f"s_lshl_b32 s{S_TMP}, s{S_WAVE}, 10")
    k(f"s_add_u32 s{S_TMP}, s{S_TMP}, {L_PB}")
    k(f"v_add_u32 v{BADR+10}, s{S_TMP}, v{t}")
    k(f"v_add_u32 v{BADR+11}, {L_PB}, v{t}")
    k(f"s_mul_i32 s{S_TMP}, s{S_WAVE}, {16*AOT_RS}")
    k(f"s_add_u32 s{S_TMP}, s{S_TMP}, {L_AOT}")
    k(f"v_mul_u32_u24 v{t}, {AOT_RS}, v{V_L15}")
    k(f"v_lshl_add_u32 v{t}, v{V_SLAB}, 4, v{t}")
    k(f"v_add_u32 v{BADR+12}, s{S_TMP}, v{t}")
    k(f"v_mul_u32_u24 v{t}, {AOT_RS}, v{V_SLAB}")
    k(f"v_lshl_add_u32 v{t}, v{V_L15}, 4, v{t}")
    k(f"v_add_u32 v{BTR}, s{S_TMP}, v{t}")
    k(f"v_lshlrev_b32 v{t}, 16, v{V_SLAB}")
    k(f"v_lshl_add_u32 v{BTR+1}, v{V_L15}, 4, v{t}")
    k(f"v_lshlrev_b32 v{BADR+13}, 9, v{V_L15}")
    for i in range(4):
        k(f"v_mov_b32 v{BONE+i}, 0x3f803f80")


def attention(k):
    t = BT

    def pv_read(tt, u, half):
        r = 128 + (tt * 4 + u) * 4 + 2 * half
        base = (BADR + 4 if half == 0 else BA2 + 2) + (u >> 1)
        k(f"ds_read_b64_tr_b16 {ar(r,2)}, v{base} offset:{L_CKV + (u & 1) * 32 * RS + 32 * tt}")

    def a_read(p):
        for i in range(16):
            base = (BADR if p == 0 else BA2) + (i & 1)
            k(f"ds_read_b128 {ar((p*16+i)*4,4)}, v{base} offset:{L_CKV+i*16}")

    k(f"s_waitcnt vmcnt({18 + ntr()})")
    a_read(0)
    k("s_barrier")
    for tt in range(8):
        for u in range(4):
            pv_read(tt, u, 0)
    if K.opt.get("noflags"):
        k(f"s_waitcnt vmcnt({4 + ntr()})")
    else:
        flags_poll(k)
    k(f"s_lshl_b32 s{S_TMP}, s{S_B}, 15")
    k(f"s_lshl_b32 s{S_TMP+1}, s{S_G}, 14")
    k(f"s_add_u32 s{S_TMP}, s{S_TMP}, s{S_TMP+1}")
    k(f"s_add_u32 s{S_TMP}, s{S_TMP}, {WS_QA}")
    for n in range(1, 4):
        k(f"s_add_u32 s{S_TMP+n}, s{S_TMP}, {4096*n}")
    loads = [f"buffer_load_dwordx4 {vr(BG+4*n,4)}, v{BADR+6}, {srd(R_WS)}, s{S_TMP+n} offen sc1" for n in range(4)]
    for l in loads:
        k(l)
    k(f"s_waitcnt vmcnt({4 + ntr()})")
    k.stamp(4)
    if K.opt.get("bstop"):
        k("s_branch L_done")
    a_read(1)
    gather_check_loop(k, "qa", loads, list(range(BG, BG + 16)), 5, preissued=True)
    for n in range(4):
        k(f"ds_write_b128 v{BADR+7}, {vr(BG+4*n,4)} offset:{4*n*RS}")
    k("s_waitcnt lgkmcnt(0)")
    k("s_barrier")
    for i in range(16):
        k(f"ds_read_b128 {vr(BQ+4*i,4)}, v{BADR+2+(i&1)} offset:{i*16}")
    for i in range(16):
        if i < 8:
            k(f"s_waitcnt lgkmcnt({15-i})")
        elif i == 8:
            k("s_waitcnt lgkmcnt(0)")
        for p in range(2):
            c = "0" if i == 0 else vr(BS + 4 * p, 4)
            k(f"v_mfma_f32_16x16x32_bf16 {vr(BS+4*p,4)}, {ar((p*16+i)*4,4)}, {vr(BQ+4*i,4)}, {c}")
        if i >= 8:
            for u in range(4):
                pv_read(i - 8, u, 1)
        if i & 1:
            wf_load(k, i >> 1)
    k.nop(8)
    k.stamp(6)
    k(f"v_max3_f32 v{t}, v{BS}, v{BS+1}, v{BS+2}")
    k(f"v_max3_f32 v{t+1}, v{BS+3}, v{BS+4}, v{BS+5}")
    k(f"v_max3_f32 v{t}, v{t}, v{BS+6}, v{BS+7}")
    k(f"v_max_f32 v{t}, v{t}, v{t+1}")
    for sw in ("v_permlane16_swap_b32", "v_permlane32_swap_b32"):
        k(f"v_mov_b32 v{t+1}, v{t}")
        k.nop(2)
        k(f"{sw} v{t}, v{t+1}")
        k.nop(1)
        k(f"v_max_f32 v{t}, v{t}, v{t+1}")
    k(f"ds_write_b32 v{BADR+8}, v{t}")
    k("s_waitcnt lgkmcnt(0)")
    k("s_barrier")
    k(f"ds_read2st64_b32 {vr(t,2)}, v{BADR+9} offset0:0 offset1:1")
    k(f"ds_read2st64_b32 {vr(t+2,2)}, v{BADR+9} offset0:2 offset1:3")
    k("s_waitcnt lgkmcnt(0)")
    k(f"v_max3_f32 v{t}, v{t}, v{t+1}, v{t+2}")
    k(f"v_max_f32 v{t+4}, v{t}, v{t+3}")
    for i in range(8):
        k(f"v_sub_f32 v{BS+i}, v{BS+i}, v{t+4}")
    for i in range(8):
        k(f"v_exp_f32 v{BS+i}, v{BS+i}")
    k.nop(1)
    for i in range(4):
        k(f"v_cvt_pk_bf16_f32 v{t+i}, v{BS+2*i}, v{BS+2*i+1}")
    k(f"ds_write_b128 v{BADR+10}, {vr(t,4)}")
    k("s_waitcnt lgkmcnt(0)")
    k("s_barrier")
    k.stamp(7)
    for u in range(4):
        k(f"ds_read_b128 {vr(BP+4*u,4)}, v{BADR+11} offset:{1024*u}")
    k(f"s_lshl_b32 s{S_TMP}, s{S_G}, 20")
    k(f"s_lshl_b32 s{S_TMP+1}, s{S_WAVE}, 14")
    k(f"s_add_u32 s{S_TMP}, s{S_TMP}, s{S_TMP+1}")
    k(f"s_lshl_b32 s{S_TMP+1}, s{S_B}, 5")
    k(f"s_add_u32 s{S_TMP+1}, s{S_TMP+1}, s{S_H}")
    k(f"s_lshl_b32 s{S_TMP+2}, s{S_TMP+1}, 8")
    k(f"s_add_u32 s{S_TMP}, s{S_TMP}, s{S_TMP+2}")
    k(f"s_add_u32 s{S_TMP}, s{S_TMP}, {WS_AO}")
    k(f"s_lshl_b32 s{S_TMP+1}, s{S_TMP+1}, 3")
    k(f"s_lshl_b32 s{S_TMP+2}, s{S_G}, 13")
    k(f"s_add_u32 s{S_TMP+1}, s{S_TMP+1}, s{S_TMP+2}")
    k(f"s_add_u32 s{S_TMP+1}, s{S_TMP+1}, {WS_ST}")
    for u in range(4):
        k(f"s_waitcnt lgkmcnt({3-u})")
        c = "0" if u == 0 else vr(BL, 4)
        k(f"v_mfma_f32_16x16x32_bf16 {vr(BL,4)}, {vr(BONE,4)}, {vr(BP+4*u,4)}, {c}")
    for u in range(4):
        for tt in range(8):
            c = "0" if u == 0 else vr(BD + 4 * tt, 4)
            k(f"v_mfma_f32_16x16x32_bf16 {vr(BD+4*tt,4)}, {ar(128+(tt*4+u)*4,4)}, {vr(BP+4*u,4)}, {c}")
            if u == 0 and tt in (1, 5):
                wf_load(k, 8 + (tt >> 2))
        if u == 0:
            skip = k.label("stskip")
            k(f"v_mov_b32 v{t+5}, v{BL}")
            k(f"s_cmp_eq_u32 s{S_WAVE}, 0")
            k(f"s_cbranch_scc0 {skip}")
            k(f"s_mov_b64 exec, 0xffff")
            k(f"buffer_store_dwordx2 {vr(t+4,2)}, v{BADR+13}, {srd(R_WS)}, s{S_TMP+1} offen sc1")
            k(f"s_mov_b64 exec, -1")
            k.nop(4)
            k(f"{skip}:")
    k.nop(2)
    for up in range(4):
        r = BQ + 4 * up
        k(f"v_cvt_pk_bf16_f32 v{r}, v{BD+8*up}, v{BD+8*up+1}")
        k(f"v_cvt_pk_bf16_f32 v{r+1}, v{BD+8*up+2}, v{BD+8*up+3}")
        k(f"v_cvt_pk_bf16_f32 v{r+2}, v{BD+8*up+4}, v{BD+8*up+5}")
        k(f"v_cvt_pk_bf16_f32 v{r+3}, v{BD+8*up+6}, v{BD+8*up+7}")
        k(f"ds_write_b128 v{BADR+12}, {vr(r,4)} offset:{64*up}")
    for n in range(4):
        k("s_waitcnt lgkmcnt(0)") if n == 0 else None
        k(f"ds_read_b128 {vr(BQ+16+4*n,4)}, v{BTR} offset:{4*n*AOT_RS}")
    for n in range(4):
        k(f"s_waitcnt lgkmcnt({3-n})")
        k(f"buffer_store_dwordx4 {vr(BQ+16+4*n,4)}, v{BTR+1}, {srd(R_WS)}, s{S_TMP} offen sc1")
        if n < 3:
            k(f"s_add_u32 s{S_TMP}, s{S_TMP}, {4*65536}")
    k.stamp(8)
    if K.opt.get("aoack"):
        k("s_waitcnt vmcnt(0)")
        k.stamp(17)


def silu(k, v, t):
    k(f"v_mul_f32 v{t}, 0xbfb8aa3b, v{v}")
    k(f"v_exp_f32 v{t}, v{t}")
    k.nop(1)
    k(f"v_add_f32 v{t}, 1.0, v{t}")
    k(f"v_rcp_f32 v{t}, v{t}")
    k.nop(1)
    k(f"v_mul_f32 v{v}, v{v}, v{t}")


def round_bf16(k, v):
    k(f"v_cvt_pk_bf16_f32 v{v}, v{v}, v{v}")
    k(f"v_and_b32 v{v}, 0xffff0000, v{v}")


FW1 = 10
FW2 = 50
FX = 90
FD = 110
FH = 150
FADR = 176
FT = 166


def wf_setup(k):
    t = BT
    r1, done = k.label("wf1"), k.label("wfd")
    k(f"s_mul_i32 s{S_WFL}, s{S_WAVE}, 10240")
    k(f"s_add_u32 s{S_WFL}, s{S_WFL}, {L_WF}")
    k(f"s_cmp_eq_u32 s{S_ROLE}, 1")
    k(f"s_cbranch_scc1 {r1}")
    k.srd(R_B, S_W2, 1728 * 640 * 2)
    k(f"s_cmp_eq_u32 s{S_ROLE}, 2")
    k(f"s_cselect_b32 s{R_B+2}, {1728 * 640 * 2}, 0")
    k(f"v_lshlrev_b32 v{BWF}, 4, v{V_LANE}")
    k(f"s_mul_i32 s{S_WFO}, s{S_F}, 40960")
    k(f"s_mul_i32 s{S_TMP}, s{S_WAVE}, 10240")
    k(f"s_add_u32 s{S_WFO}, s{S_WFO}, s{S_TMP}")
    k(f"s_mov_b32 s{S_WFS}, 1024")
    k(f"s_branch {done}")
    k(f"{r1}:")
    k.srd(R_B, S_W1, 640 * 1728 * 2)
    k(f"v_lshrrev_b32 v{t}, 2, v{V_LANE}")
    k(f"v_mul_u32_u24 v{t}, 3456, v{t}")
    k(f"v_and_b32 v{t+1}, 3, v{V_LANE}")
    k(f"v_lshl_add_u32 v{BWF}, v{t+1}, 4, v{t}")
    k(f"s_mul_i32 s{S_WFO}, s{S_WAVE}, {160*3456}")
    k(f"s_lshl_b32 s{S_TMP}, s{S_F}, 6")
    k(f"s_add_u32 s{S_WFO}, s{S_WFO}, s{S_TMP}")
    k(f"s_mov_b32 s{S_WFS}, {16*3456}")
    k(f"{done}:")


def ffn1(k):
    t = FT
    k(f"v_and_b32 v{t}, 1, v{V_LANE}")
    k(f"v_mul_u32_u24 v{t}, 1280, v{t}")
    k(f"v_lshl_add_u32 v{t}, v{V_SLAB}, 3, v{t}")
    k(f"s_mul_i32 s{S_TMP}, s{S_WAVE}, 320")
    k(f"s_add_u32 s{S_TMP}, s{S_TMP}, {L_XN}")
    k(f"v_add_u32 v{FADR}, s{S_TMP}, v{t}")
    for i in range(5):
        k(f"ds_read_b64 {vr(FX+4*i,2)}, v{FADR} offset:{64*i}")
        k(f"ds_read_b64 {vr(FX+4*i+2,2)}, v{FADR} offset:{64*i+32}")
    k(f"v_lshrrev_b32 v{t}, 2, v{V_L15}")
    k(f"v_lshl_add_u32 v{t}, v{V_SLAB}, 2, v{t}")
    k(f"v_and_b32 v{t+1}, 3, v{V_L15}")
    k(f"v_lshlrev_b32 v{t+2}, 6, v{t}")
    k(f"v_lshl_add_u32 v{t+2}, v{t+1}, 3, v{t+2}")
    k(f"s_mul_i32 s{S_TMP}, s{S_WAVE}, 10240")
    k(f"s_add_u32 s{S_TMP}, s{S_TMP}, {L_WF}")
    k(f"v_add_u32 v{FADR+1}, s{S_TMP}, v{t+2}")
    k(f"v_lshlrev_b32 v{t+2}, 2, v{V_LANE}")
    k(f"s_lshl_b32 s{S_TMP}, s{S_WAVE}, 8")
    k(f"s_add_u32 s{S_TMP}, s{S_TMP}, {L_FRED}")
    k(f"v_add_u32 v{FADR+3}, s{S_TMP}, v{t+2}")
    k(f"v_add_u32 v{FADR+4}, {L_FRED}, v{t+2}")
    k(f"v_lshrrev_b32 v{t+2}, 2, v{V_L15}")
    k(f"v_lshlrev_b32 v{t+2}, 1, v{t+2}")
    k(f"v_lshrrev_b32 v{t+3}, 1, v{V_SLAB}")
    k(f"v_add_u32 v{t+2}, v{t+2}, v{t+3}")
    k(f"v_and_b32 v{t+3}, 1, v{V_SLAB}")
    k(f"v_lshl_add_u32 v{t+2}, v{t+3}, 3, v{t+2}")
    k(f"v_lshlrev_b32 v{FADR+5}, 4, v{t+2}")
    k(f"s_lshl_b32 s{S_TMP+2}, s{S_F}, 8")
    k(f"s_add_u32 s{S_TMP+2}, s{S_TMP+2}, {WS_HO}")
    k(f"s_mov_b32 s{S_M+2}, 0xffff0000")
    k(f"s_mov_b32 s{S_M+3}, 0xffff0000")
    k(f"s_mov_b32 s{S_M+4}, 0")
    k(f"s_mov_b32 s{S_M+5}, -1")
    k("s_waitcnt vmcnt(4)")
    k(f"v_lshlrev_b32 v{t+9}, 4, v{V_LANE}")
    k(f"v_add_u32 v{t+9}, s{S_WFL}, v{t+9}")
    for i in range(10):
        k(f"ds_write_b128 v{t+9}, {vr(BWR+4*i,4)} offset:{1024*i}")
    k("s_waitcnt lgkmcnt(0)")
    k.stamp(9)
    for i in range(5):
        for ct in range(2):
            r = FW1 + (i * 2 + ct) * 4
            k(f"ds_read_b64_tr_b16 {vr(r,2)}, v{FADR+1} offset:{i*2048+32*ct}")
            k(f"ds_read_b64_tr_b16 {vr(r+2,2)}, v{FADR+1} offset:{i*2048+32*ct+1024}")
    k("s_waitcnt lgkmcnt(0)")
    for i in range(5):
        for ct in range(2):
            c = "0" if i == 0 else vr(FD + 4 * ct, 4)
            k(f"v_mfma_f32_16x16x32_bf16 {vr(FD+4*ct,4)}, {vr(FX+4*i,4)}, {vr(FW1+(i*2+ct)*4,4)}, {c}")
    k.nop(8)
    k(f"v_cndmask_b32 v{t}, v{FD}, v{FD+1}, s[{S_M+2}:{S_M+3}]")
    k(f"v_cndmask_b32 v{t+1}, v{FD+4}, v{FD+5}, s[{S_M+2}:{S_M+3}]")
    k(f"v_cndmask_b32 v{t}, v{t}, v{t+1}, s[{S_M+4}:{S_M+5}]")
    k(f"ds_write_b32 v{FADR+3}, v{t}")
    k("s_waitcnt lgkmcnt(0)")
    k("s_barrier")
    sk = k.label("f1")
    k(f"s_cmp_eq_u32 s{S_WAVE}, 0")
    k(f"s_cbranch_scc0 {sk}")
    k(f"ds_read2st64_b32 {vr(t,2)}, v{FADR+4} offset0:0 offset1:1")
    k(f"ds_read2st64_b32 {vr(t+2,2)}, v{FADR+4} offset0:2 offset1:3")
    k("s_waitcnt lgkmcnt(0)")
    k(f"v_add_f32 v{t}, v{t}, v{t+1}")
    k(f"v_add_f32 v{t+2}, v{t+2}, v{t+3}")
    k(f"v_add_f32 v{t}, v{t}, v{t+2}")
    round_bf16(k, t)
    silu(k, t, t + 1)
    k(f"v_cvt_pk_bf16_f32 v{t}, v{t}, v{t}")
    k(f"v_and_b32 v{t}, 0xffff, v{t}")
    k.nop(2)
    k(f"v_mov_b32_dpp v{t+1}, v{t} quad_perm:[1,0,3,2] row_mask:0xf bank_mask:0xf")
    k(f"v_lshl_or_b32 v{t+2}, v{t+1}, 16, v{t}")
    k.nop(2)
    k(f"v_mov_b32_dpp v{t+3}, v{t+2} quad_perm:[2,3,0,1] row_mask:0xf bank_mask:0xf")
    k(f"v_mov_b32 v{t+4}, s{S_T0}")
    k(f"v_mov_b32 v{t+5}, s{S_T1}")
    k(f"s_mov_b32 exec_lo, 0x11111111")
    k(f"s_mov_b32 exec_hi, 0x11111111")
    k(f"buffer_store_dwordx4 {vr(t+2,4)}, v{FADR+5}, {srd(R_WS)}, s{S_TMP+2} offen sc1")
    k(f"s_mov_b64 exec, -1")
    k(f"{sk}:")
    k.stamp(10)


def ffn2(k):
    t = FT
    k(f"v_lshrrev_b32 v{t}, 2, v{V_L15}")
    k(f"v_lshl_add_u32 v{t}, v{V_SLAB}, 2, v{t}")
    k(f"v_and_b32 v{t+1}, 3, v{V_L15}")
    k(f"v_mul_u32_u24 v{t+2}, 1280, v{t}")
    k(f"v_lshl_add_u32 v{t+2}, v{t+1}, 3, v{t+2}")
    k(f"s_mul_i32 s{S_TMP}, s{S_WAVE}, 320")
    k(f"s_add_u32 s{S_TMP}, s{S_TMP}, {L_WF}")
    k(f"v_add_u32 v{FADR+2}, s{S_TMP}, v{t+2}")
    k(f"v_and_b32 v{t+2}, 1, v{V_LANE}")
    k(f"v_lshlrev_b32 v{t+2}, 7, v{t+2}")
    k(f"v_lshl_add_u32 v{FADR+6}, v{V_SLAB}, 5, v{t+2}")
    k(f"s_lshl_b32 s{S_TMP+3}, s{S_F}, 8")
    k(f"s_add_u32 s{S_TMP+3}, s{S_TMP+3}, {WS_HO}")
    k(f"v_lshlrev_b32 v{FADR+7}, 3, v{V_LANE}")
    k(f"s_mul_i32 s{S_TMP+2}, s{S_F}, 5120")
    k(f"s_mul_i32 s{S_TMP+1}, s{S_WAVE}, 1280")
    k(f"s_add_u32 s{S_TMP+2}, s{S_TMP+2}, s{S_TMP+1}")
    k(f"s_add_u32 s{S_TMP+2}, s{S_TMP+2}, {WS_FP}")
    k(f"s_mov_b32 s{S_M+2}, 0xffff0000")
    k(f"s_mov_b32 s{S_M+3}, 0xffff0000")
    k(f"s_mov_b32 s{S_M+4}, 0")
    k(f"s_mov_b32 s{S_M+5}, -1")
    k("s_waitcnt vmcnt(4)")
    k(f"v_lshlrev_b32 v{t+9}, 4, v{V_LANE}")
    k(f"v_add_u32 v{t+9}, s{S_WFL}, v{t+9}")
    for i in range(10):
        k(f"ds_write_b128 v{t+9}, {vr(BWR+4*i,4)} offset:{1024*i}")
    k("s_waitcnt lgkmcnt(0)")
    k("s_barrier")
    k.stamp(9)
    for ct in range(10):
        r = FW2 + 4 * ct
        k(f"ds_read_b64_tr_b16 {vr(r,2)}, v{FADR+2} offset:{32*ct}")
        k(f"ds_read_b64_tr_b16 {vr(r+2,2)}, v{FADR+2} offset:{32*ct+20480}")
    H = FH + 2
    loads = [f"buffer_load_dwordx4 {vr(H,4)}, v{FADR+6}, {srd(R_WS)}, s{S_TMP+3} offen sc1",
             f"buffer_load_dwordx4 {vr(H+4,4)}, v{FADR+6}, {srd(R_WS)}, s{S_TMP+3} offen offset:16 sc1"]
    gather_loop(k, "ho", loads, lambda kk: tag_check(kk, [(H+2, H+3), (H+6, H+7)]), 10)
    k(f"v_mov_b32 v{H+2}, v{H+4}")
    k(f"v_mov_b32 v{H+3}, v{H+5}")
    k("s_waitcnt lgkmcnt(0)")
    k.nop(1)
    for ct in range(10):
        k(f"v_mfma_f32_16x16x32_bf16 {vr(FD+4*ct,4)}, {vr(H,4)}, {vr(FW2+4*ct,4)}, 0")
    k.nop(8)
    for q in range(3):
        for bb in range(2):
            a0, a1 = FD + 16 * q + bb, FD + 16 * q + 4 + bb
            k(f"v_cndmask_b32 v{t+2*q+bb}, v{a0}, v{a1}, s[{S_M+2}:{S_M+3}]")
            if q < 2:
                a2, a3 = FD + 16 * q + 8 + bb, FD + 16 * q + 12 + bb
                k(f"v_cndmask_b32 v{t+8}, v{a2}, v{a3}, s[{S_M+2}:{S_M+3}]")
                k(f"v_cndmask_b32 v{t+2*q+bb}, v{t+2*q+bb}, v{t+8}, s[{S_M+4}:{S_M+5}]")
    k(f"buffer_store_dwordx2 {vr(t,2)}, v{FADR+7}, {srd(R_WS)}, s{S_TMP+2} offen sc1")
    k(f"buffer_store_dwordx2 {vr(t+2,2)}, v{FADR+7}, {srd(R_WS)}, s{S_TMP+2} offen offset:512 sc1")
    k(f"s_mov_b32 exec_hi, 0")
    k(f"buffer_store_dwordx2 {vr(t+4,2)}, v{FADR+7}, {srd(R_WS)}, s{S_TMP+2} offen offset:1024 sc1")
    k(f"s_mov_b64 exec, -1")
    k.stamp(11)


ZG = 10
ZT = 44


def tree_reduce4(k, g, t):
    k.nop(2)
    k(f"v_permlane32_swap_b32 v{g}, v{g+2}")
    k(f"v_permlane32_swap_b32 v{g+1}, v{g+3}")
    k.nop(1)
    k(f"v_add_f32 v{g}, v{g}, v{g+2}")
    k(f"v_add_f32 v{g+1}, v{g+1}, v{g+3}")
    k.nop(2)
    k(f"v_permlane16_swap_b32 v{g}, v{g+1}")
    k.nop(1)
    k(f"v_add_f32 v{t}, v{g}, v{g+1}")
    k.nop(2)
    k(f"v_add_f32_dpp v{t}, v{t}, v{t} row_ror:8 row_mask:0xf bank_mask:0xf")


def final(k):
    t = ZT
    k(f"s_lshl_b32 s{S_TMP}, s{S_Z}, 1")
    k(f"s_add_u32 s{S_TMP}, s{S_TMP}, s{S_WAVE}")
    k(f"v_and_b32 v{t}, 7, v{V_LANE}")
    k(f"v_lshrrev_b32 v{t+1}, 1, v{V_SLAB}")
    k(f"v_lshl_add_u32 v{t}, v{t}, 1, v{t+1}")
    k(f"v_and_b32 v{t+1}, 1, v{V_SLAB}")
    k(f"v_mul_u32_u24 v{t+1}, 640, v{t+1}")
    k(f"v_add_u32 v{t}, v{t}, v{t+1}")
    k(f"v_lshlrev_b32 v{t}, 1, v{t}")
    k(f"s_lshl_b32 s{S_TMP+1}, s{S_TMP}, 5")
    k(f"buffer_load_ushort v{t+2}, v{t}, {srd(R_X)}, s{S_TMP+1} offen")
    k(f"v_and_b32 v{t+3}, 7, v{V_LANE}")
    k(f"v_lshlrev_b32 v{t+3}, 2, v{t+3}")
    k(f"v_and_b32 v{t+4}, 1, v{V_SLAB}")
    k(f"v_mul_u32_u24 v{t+4}, 1280, v{t+4}")
    k(f"v_add_u32 v{t+3}, v{t+3}, v{t+4}")
    k(f"v_lshrrev_b32 v{t+4}, 3, v{V_LANE}")
    k(f"v_mul_u32_u24 v{t+4}, 5120, v{t+4}")
    k(f"v_and_b32 v{t+5}, 7, v{V_LANE}")
    k(f"v_lshl_add_u32 v{t+4}, v{t+5}, 4, v{t+4}")
    k(f"s_lshl_b32 s{S_TMP+2}, s{S_TMP}, 7")
    k(f"v_lshrrev_b32 v{t+5}, 2, v{V_LANE}")
    k(f"v_lshlrev_b32 v{t+5}, 13, v{t+5}")
    k(f"v_and_b32 v{t+6}, 3, v{V_LANE}")
    k(f"v_lshl_add_u32 v{t+5}, v{t+6}, 10, v{t+5}")
    loads = []
    for i in range(2):
        k(f"s_mov_b32 s{4+i}, {WS_QP + i*16*8192}")
        loads.append(f"buffer_load_dwordx4 {vr(ZG+4*i,4)}, v{t+5}, {srd(R_WS)}, s{4+i} offen sc1")
    gather_loop(k, "zf", loads, lambda kk: tag_check(kk, [(ZG+4*i+2, ZG+4*i+3) for i in range(2)]))
    k(f"v_cmp_gt_u32 vcc, {NF}, v{V_LANE}")
    k.nop(2)
    k(f"v_cndmask_b32 v{t+5}, 0, v{V_LANE}, vcc")
    k(f"v_bfe_u32 v{t+6}, v{t+5}, 5, 1")
    k(f"v_lshlrev_b32 v{t+6}, 13, v{t+6}")
    k(f"v_and_b32 v{t+5}, 31, v{t+5}")
    k(f"v_lshl_add_u32 v{t+5}, v{t+5}, 3, v{t+6}")
    k(f"s_mov_b32 s4, {WS_ST + 256}")
    gather_check_loop(k, "zs", [f"buffer_load_dwordx2 {vr(ZG,2)}, v{t+5}, {srd(R_WS)}, s4 offen sc1"], [ZG, ZG + 1])
    k(f"s_add_u32 s{S_TMP+3}, s{S_TMP+2}, {WS_FP}")
    k(f"v_add_u32 v{t+5}, s{S_TMP+3}, v{t+4}")
    k(f"v_add_u32 v{t+6}, {48*5120}, v{t+5}")
    k(f"v_cmp_gt_u32 vcc, 48, v{V_LANE}")
    k(f"s_mov_b64 s[{S_M+2}:{S_M+3}], vcc")
    k.nop(2)
    k(f"v_cndmask_b32 v{t+6}, v{t+5}, v{t+6}, vcc")
    loads = []
    for i in range(6):
        k(f"s_mov_b32 s{4+i}, {i*8*5120}")
        loads.append(f"buffer_load_dwordx4 {vr(ZG+4*i,4)}, v{t+5}, {srd(R_WS)}, s{4+i} offen sc1")
    last = f"buffer_load_dwordx4 {vr(ZG+24,4)}, v{t+6}, {srd(R_WS)}, 0 offen sc1"
    gather_check_loop(k, "fq", [last], list(range(ZG + 24, ZG + 28)))
    gather_check_loop(k, "fp", loads, list(range(ZG, ZG + 24)), None)
    for c in range(4):
        k(f"v_cndmask_b32 v{ZG+24+c}, 0, v{ZG+24+c}, s[{S_M+2}:{S_M+3}]")
    for c in range(4):
        k(f"v_add_f32 v{ZG+c}, v{ZG+c}, v{ZG+4+c}")
        k(f"v_add_f32 v{ZG+8+c}, v{ZG+8+c}, v{ZG+12+c}")
        k(f"v_add_f32 v{ZG+16+c}, v{ZG+16+c}, v{ZG+20+c}")
    for c in range(4):
        k(f"v_add_f32 v{ZG+c}, v{ZG+c}, v{ZG+8+c}")
        k(f"v_add_f32 v{ZG+16+c}, v{ZG+16+c}, v{ZG+24+c}")
    for c in range(4):
        k(f"v_add_f32 v{ZG+c}, v{ZG+c}, v{ZG+16+c}")
    tree_reduce4(k, ZG, t + 8)
    round_bf16(k, t + 8)
    silu(k, t + 8, t + 9)
    round_bf16(k, t + 8)
    k(f"v_lshlrev_b32 v{t+2}, 16, v{t+2}")
    k(f"s_add_u32 s{S_TMP+3}, s{S_TMP+2}, {WS_SP}")
    k(f"v_add_u32 v{t+5}, s{S_TMP+3}, v{t+4}")
    loads = []
    for i in range(4):
        loads.append(f"buffer_load_dwordx4 {vr(ZG+4*i,4)}, v{t+5}, {srd(R_WS)}, s{4+i} offen sc1")
    gather_check_loop(k, "sp", loads, list(range(ZG, ZG + 16)), 15)
    skip = k.label("ep")
    k(f"s_cmp_eq_u32 s{S_TMP}, 0")
    k(f"s_cbranch_scc0 {skip}")
    k(f"v_mov_b32 v{t}, 0")
    k(f"v_mov_b32 v{t+1}, s{S_T0}")
    k(f"s_mov_b64 exec, 1")
    k(f"buffer_store_dword v{t+1}, v{t}, {srd(R_WS)}, 0 offen offset:{WS_EPOCH}")
    k(f"s_mov_b64 exec, -1")
    k(f"{skip}:")
    for c in range(4):
        k(f"v_add_f32 v{ZG+c}, v{ZG+c}, v{ZG+4+c}")
        k(f"v_add_f32 v{ZG+8+c}, v{ZG+8+c}, v{ZG+12+c}")
    for c in range(4):
        k(f"v_add_f32 v{ZG+c}, v{ZG+c}, v{ZG+8+c}")
    tree_reduce4(k, ZG, t + 9)
    round_bf16(k, t + 9)
    k(f"v_mul_f32 v{t+9}, v{t+9}, v{t+8}")
    round_bf16(k, t + 9)
    k(f"v_add_f32 v{t+9}, v{t+9}, v{t+2}")
    k(f"v_cvt_pk_bf16_f32 v{t+9}, v{t+9}, v{t+9}")
    k(f"v_mov_b32 v{t+10}, v{t+9}")
    k.nop(2)
    k(f"v_permlane32_swap_b32 v{t+9}, v{t+10}")
    k.nop(1)
    k(f"v_and_b32 v{t+9}, 0xffff, v{t+9}")
    k(f"v_lshl_or_b32 v{t+9}, v{t+10}, 16, v{t+9}")
    k(f"s_mov_b32 exec_lo, 0x00ff00ff")
    k(f"s_mov_b32 exec_hi, 0")
    k(f"s_lshl_b32 s{S_TMP+1}, s{S_TMP}, 5")
    k(f"buffer_store_dword v{t+9}, v{t+3}, {srd(R_OUT)}, s{S_TMP+1} offen")
    k(f"s_mov_b64 exec, -1")
    k.stamp(16)
    if K.opt.get("diag"):
        sk = k.label("dg")
        k(f"s_cmp_eq_u32 s{S_TMP}, 0")
        k(f"s_cbranch_scc0 {sk}")
        k(f"v_mov_b32 v{t}, 0")
        k(f"buffer_load_dword v{t+1}, v{t}, s[92:95], 0 offen sc1")
        k("s_waitcnt vmcnt(0)")
        k(f"v_readfirstlane_b32 s96, v{t+1}")
        k("s_memrealtime s[98:99]")
        k("s_waitcnt lgkmcnt(0)")
        k("s_not_b32 s96, s96")
        k("s_sub_u32 s97, s98, s96")
        mode = K.opt["diag"]
        if mode == "k0":
            k("s_mov_b32 s97, 0")
        elif mode == "k1":
            pass
        elif mode == "t1000":
            k("s_mov_b32 s97, 1000")
        if mode.startswith("cyc"):
            n = int(mode[3:])
            k(f"s_mov_b32 s97, {n}")
            lp = k.label("cy")
            k(f"{lp}:")
            k("s_nop 15")
            k("s_nop 15")
            k("s_sub_u32 s97, s97, 1")
            k("s_cmp_lg_u32 s97, 0")
            k(f"s_cbranch_scc1 {lp}")
        else:
            k("s_min_u32 s97, s97, 20000")
            k("s_add_u32 s97, s97, s98")
            lp = k.label("sp")
            k(f"{lp}:")
            k("s_memrealtime s[98:99]")
            k("s_waitcnt lgkmcnt(0)")
            k("s_sub_u32 s96, s97, s98")
            k("s_cmp_gt_i32 s96, 0")
            k(f"s_cbranch_scc1 {lp}")
        k(f"{sk}:")


def dump_stamps(k):
    if not k.stamps:
        return
    k("s_waitcnt vmcnt(0) lgkmcnt(0)")
    k.stamp(19)
    k(f"s_lshl_b32 s{S_TMP}, s2, 2")
    k(f"s_add_u32 s{S_TMP}, s{S_TMP}, s{S_WAVE}")
    k(f"s_lshl_b32 s{S_TMP}, s{S_TMP}, 7")
    k(f"s_add_u32 s{S_TMP}, s{S_TMP}, {WS_STAMP}")
    for i in range(20):
        k(f"v_mov_b32 v{10+i}, s{S_STAMP+i}")
    k(f"s_getreg_b32 s{S_TMP+1}, hwreg(HW_REG_XCC_ID)")
    k(f"v_mov_b32 v30, s{S_TMP+1}")
    k(f"v_mov_b32 v31, s{S_CNT}")
    k(f"v_mov_b32 v4, 0")
    k(f"s_mov_b64 exec, 1")
    for i in range(6):
        k(f"buffer_store_dwordx4 {vr(10+4*i,4)}, v4, {srd(R_WS)}, s{S_TMP} offen offset:{16*i}")
    k(f"s_mov_b64 exec, -1")


def build(stamps=False):
    k = K(stamps)
    hdr = open("recurrent_scan__compressed_kv_cla__dense_activation_silu__decode.s.ref").read()
    comments = [l for l in hdr.split("\n") if l.startswith(";") and "@launch" not in l and "Override" not in l and "grid=ceil" not in l]
    out = "\n".join(comments) + "\n"
    out += f"; @launch grid=(256,1,1) block=(256,1,1) lds={LDS_BYTES}\n"
    out += f""".amdgcn_target "amdgcn-amd-amdhsa--gfx950"
.text
.globl {NAME}
.p2align 8
.type {NAME},@function
{NAME}:
"""
    if stamps:
        for i in range(20):
            k(f"s_mov_b32 s{S_STAMP+i}, 0")
    if K.opt.get("diag"):
        k("s_memrealtime s[100:101]")
    prologue(k)
    if K.opt.get("diag"):
        k.srd(92, S_DBG, 256)
        k("s_cmp_lt_u32 s2, 8")
        k("s_cbranch_scc0 L_nodiag")
        k("s_not_b32 s100, s100")
        k("v_mov_b32 v8, s100")
        k("v_mov_b32 v9, 0")
        k("s_mov_b64 exec, 1")
        k("buffer_atomic_umax v8, v9, s[92:95], 0 offen")
        k("s_mov_b64 exec, -1")
        k("L_nodiag:")
    if K.opt.get("bdirect"):
        k(f"s_cmp_ge_u32 s{S_J}, 4")
        k(f"s_cbranch_scc0 L_done")
        k(f"s_mov_b32 s{S_T0}, 0")
        k(f"s_mov_b32 s{S_T1}, 0")
        k(f"v_mov_b32 v{VE}, 0")
        k("s_branch L_B")
    if K.opt.get("pnone"):
        k(f"s_cmp_lt_u32 s{S_J}, 4")
        k(f"s_cbranch_scc1 L_done")
    k(f"s_cmp_eq_u32 s{S_WAVE}, 0")
    k(f"s_cbranch_scc0 L_w123")
    stage1_issue(k)
    k("s_barrier")
    k("s_branch L_w0")
    k("L_w123:")
    k(f"v_mov_b32 v{V_T}, 0")
    k(f"buffer_load_dword v{VE}, v{V_T}, {srd(R_WS)}, 0 offen offset:{WS_EPOCH} sc1")
    if K.opt.get("tlb", "1") == "1":
        sk = k.label("tlb")
        k(f"s_cmp_eq_u32 s{S_WAVE}, 3")
        k(f"s_cbranch_scc0 {sk}")
        k(f"v_lshlrev_b32 v{V_T+1}, 20, v{V_LANE}")
        for ptr, size in ((S_CKV, 2*4096*512*2), (S_WUV, 512*4096*2), (S_WO, 4096*640*2), (S_W1, 640*1728*2), (S_W2, 1728*640*2)):
            k.srd(R_B, ptr, size)
            k(f"buffer_load_dword v252, v{V_T+1}, {srd(R_B)}, 0 offen")
        k(f"{sk}:")
    k(f"s_cmp_ge_u32 s{S_J}, 4")
    k(f"s_cbranch_scc1 L_Bw123")
    k.srd(R_A, S_WUK, 512 * 4096 * 2)
    clears_P(k)
    k("s_barrier")
    if not K.opt.get("nowuk"):
        wuk_issue(k)
    k("s_waitcnt vmcnt(11)" if not K.opt.get("nowuk") else "s_waitcnt vmcnt(0)")
    epoch_tags(k, VE)
    k("s_barrier")
    k("s_branch L_P_join")
    k("L_Bw123:")
    b_roles(k)
    k.srd(R_A, S_CKV, 2 * 4096 * 512 * 2)
    ckv_setup(k)
    k("s_barrier")
    if not K.opt.get("noclr"):
        clears_B(k)
    ne = early_rows()
    if ne:
        k(f"s_cmp_ge_u32 s{S_WAVE}, 2")
        k(f"s_cbranch_scc0 L_Bw1")
        ckv_rows(k, 0, ne)
        k("s_barrier")
        k("s_branch L_B_rowsE")
        k("L_Bw1:")
    k("s_barrier")
    k("s_branch L_B_rows0")
    k("L_w0:")
    stage1_selectors(k)
    layernorm(k, 1 + 20)
    k(f"s_waitcnt vmcnt(20)")
    epoch_tags(k, VE)
    stage1_publish_addr(k)
    k.stamp(2)
    stage1_mfma(k, 0)
    k("s_barrier")
    stage1_publish(k, 0)
    k(f"s_cmp_ge_u32 s{S_J}, 4")
    k(f"s_cbranch_scc1 L_B")
    k("L_P_join:")
    k.srd(R_B, S_WUV, 512 * 4096 * 2)
    k.srd(R_C, S_WO, 4096 * 640 * 2)
    stage2(k)
    if K.opt.get("pexit"):
        k("s_branch L_done")
    p_weights_issue(k)
    wo_issue(k)
    stage4_setup(k)
    k("s_waitcnt vmcnt(0)")
    k("s_barrier")
    k.stamp(6)
    p_weights_preread(k)
    wo_preread(k)
    stage4(k)
    stage5(k)
    k("s_branch L_done")
    k("L_B:")
    b_roles(k)
    k.srd(R_A, S_CKV, 2 * 4096 * 512 * 2)
    ckv_setup(k)
    k("L_B_rows0:")
    k.stamp(12)
    ckv_rows(k, 0, early_rows())
    k("L_B_rowsE:")
    ckv_rows(k, early_rows(), 32)
    if K.opt.get("trig", "0") == "1":
        tag_store(k, WS_TR, 6, BT + 2, only_wave=3)
    k.stamp(13)
    if K.opt.get("bdirect"):
        k("s_waitcnt vmcnt(0)")
        k.stamp(4)
        k("s_branch L_done")
    k.srd(R_OUT, S_OUT, 2560)
    wf_setup(k)
    attention_setup(k)
    attention(k)
    k(f"s_cmp_eq_u32 s{S_ROLE}, 1")
    k(f"s_cbranch_scc0 L_B_r2")
    ffn1(k)
    k("s_branch L_done")
    k("L_B_r2:")
    k(f"s_cmp_eq_u32 s{S_ROLE}, 2")
    k(f"s_cbranch_scc0 L_B_r3")
    ffn2(k)
    k("s_branch L_done")
    k("L_B_r3:")
    k(f"s_cmp_lt_u32 s{S_WAVE}, 2")
    k(f"s_cbranch_scc0 L_done")
    final(k)
    k("L_done:")
    dump_stamps(k)
    k("L_exit:")
    k("s_endpgm")
    out += k.text()
    out += f""".section .rodata,"a"
.p2align 6
.amdhsa_kernel {NAME}
  .amdhsa_next_free_vgpr 512
  .amdhsa_next_free_sgpr 102
  .amdhsa_accum_offset 256
  .amdhsa_group_segment_fixed_size 0
  .amdhsa_kernarg_size 96
  .amdhsa_user_sgpr_count 2
  .amdhsa_user_sgpr_kernarg_segment_ptr 1
  .amdhsa_system_sgpr_workgroup_id_x 1
.end_amdhsa_kernel
"""
    return out


if __name__ == "__main__":
    for a in sys.argv[1:]:
        if a.startswith("--spin="):
            SPIN_LIMIT = int(a[7:])
    stamps = "--stamps" in sys.argv
    for a in sys.argv[1:]:
        if a.startswith("--") and "=" in a:
            kk, vv = a[2:].split("=")
            K.opt[kk] = vv
    outp = [a for a in sys.argv[1:] if not a.startswith("--")]
    open(outp[0] if outp else "k.s", "w").write(build(stamps))
```

```python
import sys

NAME = "recurrent_scan__compressed_kv_cla__dense_activation_silu__decode_kernel"

WS_EPOCH = 0
WS_QP = 0x1000
WS_QA = 0x41000
WS_ST = 0x51000
WS_CP = 0x55000
WS_SP = 0x65000
WS_FP = 0x8D000
WS_AC = 0xE0000
WS_HO = 0xE4000
WS_TR = 0xF0000
WS_CF = 0xE8000
WS_QF = 0x300000
WS_HP = 0x300000
WS_AO = 0x100000
WS_SIZE = 0x340000
WS_STAMP = 0x340000
NF = 54
S_JP = 10
S_F = 11
S_Z = 12
S_ROLE = 13

L_WUV = 0
L_WO = 32768
L_AOB = 107520
L_RED = 123904
L_CTX = 129024
L_STX = 129536
L_W1P = 130560
L_XNP = 95744
L_CKV = 0
RS = 1056
L_QB = 128 * RS
L_XN = L_QB + 16 * RS
L_MX = L_XN + 2560
L_PB = L_MX + 1024
L_END = L_PB + 4096
L_WF = 0
L_WO5 = 66560
L_FRED = 81920
L_RED5 = 123904
LDS_BYTES = 163840

SPIN_LIMIT = 100000
FLAG_ROW = 28
NWF_EARLY = 6
W2RS = 1312
QWAIT = [15 - i if i <= 8 else min(15, 15 - i) for i in range(16)]

S_X, S_CKV, S_WQ, S_WUK, S_WUV, S_WO, S_W1, S_W2, S_OUT, S_DBG, S_WSP = 4, 6, 8, 10, 12, 14, 18, 20, 22, 24, 26
R_X, R_WQ, R_WS, R_A, R_B, R_C, R_OUT = 28, 32, 36, 40, 44, 48, 52
S_WAVE, S_H, S_J, S_T0, S_T1 = 56, 57, 58, 59, 60
S_TMP = 61
S_PUB = 69
S_OFF = 70
S_CNT = 71
S_M = 72
S_STAMP = 80


CNT_SLOT = {'qp': 13, 'tr': 14, 'st': 15, 'ao': 16, 'qa': 17, 'cp': 18, 'fl': 18}


class K:
    opt = {}
    def __init__(self, stamps=False):
        self.lines = []
        self.nl = 0
        self.stamps = stamps
        self.nstamp = 0

    def __call__(self, s):
        for l in s.split("\n"):
            self.lines.append("    " + l.strip() if l.strip() and not l.strip().endswith(":") else l.strip())

    def label(self, stem):
        self.nl += 1
        return f"L_{stem}_{self.nl}"

    def nop(self, n):
        while n > 0:
            k = min(n, 16)
            self(f"s_nop {k-1}")
            n -= k

    def stamp(self, idx):
        if self.stamps:
            self(f"s_memrealtime s[100:101]")
            self("s_waitcnt lgkmcnt(0)")
            self(f"s_mov_b32 s{S_STAMP+idx}, s100")

    def srd(self, d, base, nbytes):
        self(f"s_mov_b32 s{d}, s{base}")
        self(f"s_and_b32 s{d+1}, s{base+1}, 0xffff")
        self(f"s_mov_b32 s{d+2}, {nbytes}")
        self(f"s_mov_b32 s{d+3}, 0x00020000")

    def text(self):
        return "\n".join(self.lines) + "\n"


def srd(d):
    return f"s[{d}:{d+3}]"


def vr(a, n=1):
    return f"v{a}" if n == 1 else f"v[{a}:{a+n-1}]"


def ar(a, n=1):
    return f"a{a}" if n == 1 else f"a[{a}:{a+n-1}]"


V_TID, V_LANE, V_L15, V_SLAB = 0, 1, 2, 3
V_T = 4
V_ONES = 242
V_NEG1 = 244


def spin_begin(k, cnt=S_CNT):
    k(f"s_mov_b32 s{cnt}, 0")


def spin_retry(k, top, cnt=S_CNT):
    k(f"s_add_u32 s{cnt}, s{cnt}, 1")
    k(f"s_cmp_lt_u32 s{cnt}, {SPIN_LIMIT}")
    k(f"s_cbranch_scc1 {top}")


NCH = 28


def prologue(k):
    k(f"s_cmp_ge_u32 s2, 256")
    k(f"s_cbranch_scc1 L_exit")
    if K.opt.get("perm"):
        k("s_and_b32 s3, s2, 7")
        k("s_lshl_b32 s3, s3, 5")
        k("s_lshr_b32 s2, s2, 3")
        k("s_or_b32 s2, s2, s3")
    k(f"s_load_dwordx16 s[4:19], s[0:1], 0")
    k(f"s_load_dwordx8 s[20:27], s[0:1], 64")
    k(f"v_lshrrev_b32 v{V_T}, 6, v0")
    k(f"v_and_b32 v{V_LANE}, 63, v0")
    k(f"v_readfirstlane_b32 s{S_WAVE}, v{V_T}")
    if K.opt.get("pf", "1") == "1":
        k(f"s_getpc_b64 s[{S_TMP+1}:{S_TMP+2}]")
        k(f"L_pc:")
        k(f"s_lshr_b32 s{S_TMP}, s2, 3")
        k(f"s_lshl_b32 s{S_TMP}, s{S_TMP}, 2")
        k(f"s_add_u32 s{S_TMP}, s{S_TMP}, s{S_WAVE}")
        k(f"s_cmp_lt_u32 s{S_TMP}, (L_exit-L_pc+1023)/1024")
        k(f"s_cbranch_scc0 L_nopf")
        k(f"s_lshl_b32 s{S_TMP}, s{S_TMP}, 10")
        k(f"s_min_u32 s{S_TMP}, s{S_TMP}, L_exit-L_pc-1024")
        k(f"v_lshl_add_u32 v{V_T+1}, v{V_LANE}, 4, s{S_TMP}")
        k(f"global_load_dwordx4 v[248:251], v{V_T+1}, s[{S_TMP+1}:{S_TMP+2}]")
        k(f"L_nopf:")
    k(f"v_and_b32 v{V_L15}, 15, v0")
    k(f"v_bfe_u32 v{V_SLAB}, v0, 4, 2")
    k(f"s_and_b32 s{S_H}, s2, 31")
    k(f"s_lshr_b32 s{S_J}, s2, 5")
    for i in range(4):
        k(f"v_mov_b32 v{V_NEG1+i}, -1")
    k.stamp(0)
    k(f"s_waitcnt lgkmcnt(0)")
    k.srd(R_X, S_X, 2560)
    k.srd(R_WS, S_WSP, WS_SIZE + (0x100000 if k.stamps else 0))
    k.srd(R_WQ, S_WQ, 640 * 4096 * 2)


VX = 10
VW = 20
VA = 100
VSEL = 180
VD1 = 188
VXR = 192
VE = 202
VS1 = 204
VWUK = 210


def stage1_issue(k):
    k(f"v_lshrrev_b32 v{V_T}, 5, v{V_LANE}")
    k(f"v_and_b32 v{V_T+1}, 31, v{V_LANE}")
    k(f"v_mul_u32_u24 v{V_T}, 1280, v{V_T}")
    k(f"v_mul_u32_u24 v{V_T+1}, 40, v{V_T+1}")
    k(f"v_add_u32 v{V_T}, v{V_T}, v{V_T+1}")
    k(f"v_mov_b32 v{V_T+2}, 0")
    k(f"buffer_load_dwordx4 {vr(VX,4)}, v{V_T}, {srd(R_X)}, 0 offen")
    k(f"buffer_load_dwordx4 {vr(VX+4,4)}, v{V_T}, {srd(R_X)}, 0 offen offset:16")
    k(f"buffer_load_dwordx2 {vr(VX+8,2)}, v{V_T}, {srd(R_X)}, 0 offen offset:32")
    k(f"buffer_load_dword v{VE}, v{V_T+2}, {srd(R_WS)}, 0 offen offset:{WS_EPOCH} sc1")
    k(f"s_mul_i32 s{S_TMP}, s{S_J}, {80*8192}")
    k(f"s_lshl_b32 s{S_TMP+1}, s{S_H}, 8")
    k(f"s_add_u32 s{S_TMP}, s{S_TMP}, s{S_TMP+1}")
    k(f"v_mul_u32_u24 v{V_T+3}, {20*8192}, v{V_SLAB}")
    k(f"v_lshl_add_u32 v{V_T+3}, v{V_L15}, 4, v{V_T+3}")
    k(f"v_add_u32 v{V_T+3}, s{S_TMP}, v{V_T+3}")
    k(f"s_mov_b32 s{S_OFF}, 0")
    k(f"s_movk_i32 s{S_TMP}, 0x2000")
    for t in range(20):
        k(f"buffer_load_dwordx4 {vr(VW+4*t,4)}, v{V_T+3}, {srd(R_WQ)}, s{S_OFF} offen")
        if t < 19:
            k(f"s_add_u32 s{S_OFF}, s{S_OFF}, s{S_TMP}")


def epoch_tags(k, ve):
    k(f"v_readfirstlane_b32 s{S_T0}, v{ve}")
    k.nop(4)
    k(f"s_add_u32 s{S_T0}, s{S_T0}, 1")
    k(f"s_mul_i32 s{S_T1}, s{S_T0}, 0x9e3779b1")
    k(f"s_xor_b32 s{S_T1}, s{S_T1}, 0x5bd1e995")


def stage1_selectors(k):
    t = VS1
    k(f"v_and_b32 v{t}, 1, v{V_LANE}")
    k(f"v_bfe_u32 v{t+1}, v{V_LANE}, 1, 2")
    k(f"v_cmp_eq_u32 vcc, 1, v{t}")
    k(f"v_mov_b32 v{t+2}, 0x0c0c0504")
    k(f"v_mov_b32 v{t+3}, 0x05040c0c")
    k(f"v_cndmask_b32 v{t+4}, v{t+2}, v{t+3}, vcc")
    k(f"v_mov_b32 v{t+2}, 0x0c0c0706")
    k(f"v_mov_b32 v{t+3}, 0x07060c0c")
    k(f"v_cndmask_b32 v{t+5}, v{t+2}, v{t+3}, vcc")
    k(f"v_mov_b32 v{t+2}, 0x0c0c0c0c")
    for r in range(4):
        k(f"v_cmp_eq_u32 vcc, {r}, v{t+1}")
        k.nop(2)
        k(f"v_cndmask_b32 v{VSEL+2*r}, v{t+2}, v{t+4}, vcc")
        k(f"v_cndmask_b32 v{VSEL+2*r+1}, v{t+2}, v{t+5}, vcc")


def layernorm(k, nafter):
    t = VS1
    k(f"s_mov_b32 s{S_TMP}, 0x3f803f80")
    k(f"v_mov_b32 v{t}, 0")
    k(f"v_mov_b32 v{t+1}, 0")
    k(f"v_mov_b32 v{t+2}, 0")
    k(f"v_mov_b32 v{t+3}, 0")
    k(f"s_waitcnt vmcnt({nafter})")
    k.stamp(1)
    for i in range(10):
        a = t + (i & 1)
        q = t + 2 + (i & 1)
        k(f"v_dot2_f32_bf16 v{a}, v{VX+i}, s{S_TMP}, v{a}")
        k(f"v_dot2_f32_bf16 v{q}, v{VX+i}, v{VX+i}, v{q}")
    k.nop(3)
    k(f"v_add_f32 v{t}, v{t}, v{t+1}")
    k(f"v_add_f32 v{t+2}, v{t+2}, v{t+3}")
    k.nop(1)
    for rot in (8, 4, 2, 1):
        k(f"v_add_f32_dpp v{t}, v{t}, v{t} row_ror:{rot} row_mask:0xf bank_mask:0xf")
        k(f"v_add_f32_dpp v{t+2}, v{t+2}, v{t+2} row_ror:{rot} row_mask:0xf bank_mask:0xf")
        k.nop(1)
    k.nop(1)
    k(f"v_permlane16_swap_b32 v{t}, v{t+2}")
    k.nop(1)
    k(f"v_add_f32 v{t}, v{t}, v{t+2}")
    k.nop(1)
    k(f"v_mov_b32 v{t+2}, v{t}")
    k.nop(2)
    k(f"v_permlane16_swap_b32 v{t}, v{t+2}")
    k.nop(1)
    k(f"v_mul_f32 v{t}, 0x3acccccd, v{t}")
    k(f"v_mul_f32 v{t+2}, 0x3acccccd, v{t+2}")
    k(f"v_fma_f32 v{t+2}, -v{t}, v{t}, v{t+2}")
    k(f"v_max_f32 v{t+2}, 0, v{t+2}")
    k(f"v_cvt_pk_bf16_f32 v{t+1}, v{t}, v{t+2}")
    k(f"v_lshlrev_b32 v{t}, 16, v{t+1}")
    k(f"v_and_b32 v{t+2}, 0xffff0000, v{t+1}")
    k(f"v_add_f32 v{t+2}, 0x3727c5ac, v{t+2}")
    k(f"v_cvt_pk_bf16_f32 v{t+2}, v{t+2}, v{t+2}")
    k(f"v_and_b32 v{t+2}, 0xffff0000, v{t+2}")
    k(f"v_sqrt_f32 v{t+2}, v{t+2}")
    k.nop(1)
    k(f"v_cvt_pk_bf16_f32 v{t+2}, v{t+2}, v{t+2}")
    k(f"v_and_b32 v{t+2}, 0xffff0000, v{t+2}")
    k(f"v_rcp_f32 v{t+2}, v{t+2}")
    k.nop(1)
    k(f"v_mul_f32 v{t}, v{t}, v{t+2}")
    k(f"v_sub_f32 v{t}, 0, v{t}")
    for i in range(10):
        k(f"v_lshlrev_b32 v{t+3}, 16, v{VX+i}")
        k(f"v_and_b32 v{t+4}, 0xffff0000, v{VX+i}")
        k(f"v_fma_f32 v{t+3}, v{t+3}, v{t+2}, v{t}")
        k(f"v_fma_f32 v{t+4}, v{t+4}, v{t+2}, v{t}")
        k(f"v_cvt_pk_bf16_f32 v{VX+i}, v{t+3}, v{t+4}")
    k(f"v_add_u32 v{t+3}, {L_XN}, v{V_T}")
    for i in range(5):
        k(f"ds_write_b64 v{t+3}, {vr(VX+2*i,2)} offset:{8*i}")
    k(f"v_bfe_u32 v{t}, v{V_LANE}, 3, 1")
    k(f"v_mul_u32_u24 v{t}, 1280, v{t}")
    k(f"v_mul_u32_u24 v{t+1}, 40, v{V_SLAB}")
    k(f"s_mul_i32 s{S_TMP}, s{S_J}, 160")
    k(f"s_add_u32 s{S_TMP}, s{S_TMP}, {L_XN}")
    k(f"v_add3_u32 v{t}, v{t}, v{t+1}, s{S_TMP}")
    k(f"s_waitcnt lgkmcnt(0)")
    for i in range(5):
        k(f"ds_read_b64 {vr(VXR+2*i,2)}, v{t} offset:{8*i}")
    k(f"s_waitcnt lgkmcnt(0)")
    for st in range(20):
        for r in range(4):
            k(f"v_perm_b32 v{VA+4*st+r}, v{VXR+(st>>1)}, v{VXR+(st>>1)}, v{VSEL+2*r+(st&1)}")


def stage1_mfma(k, nafter):
    for st in range(20):
        k(f"s_waitcnt vmcnt({19-st+nafter})")
        c = "0" if st == 0 else vr(VD1, 4)
        k(f"v_mfma_f32_16x16x32_bf16 {vr(VD1,4)}, {vr(VA+4*st,4)}, {vr(VW+4*st,4)}, {c}")


VPUB = 206


def stage1_publish_addr(k):
    t = VS1 + 4
    k(f"v_lshrrev_b32 v{t}, 1, v{V_SLAB}")
    k(f"v_and_b32 v{t+1}, 1, v{V_SLAB}")
    k(f"v_lshlrev_b32 v{t}, 5, v{t}")
    k(f"v_lshl_add_u32 v{t}, v{V_L15}, 1, v{t}")
    k(f"v_add_u32 v{t}, v{t}, v{t+1}")
    k(f"v_lshlrev_b32 v{VPUB}, 4, v{t}")
    k(f"s_lshl_b32 s{S_PUB}, s{S_H}, 3")
    k(f"s_add_u32 s{S_PUB}, s{S_PUB}, s{S_J}")
    k(f"s_lshl_b32 s{S_PUB}, s{S_PUB}, 10")
    k(f"s_add_u32 s{S_PUB}, s{S_PUB}, {WS_QP}")
    k(f"v_mov_b32 v{VD1+6}, s{S_T0}")
    k(f"v_mov_b32 v{VD1+7}, s{S_T1}")


def stage1_publish(k, nkeep):
    k.nop(8)
    k(f"v_cvt_pk_bf16_f32 v{VD1+4}, v{VD1}, v{VD1+1}")
    k(f"v_cvt_pk_bf16_f32 v{VD1+5}, v{VD1+2}, v{VD1+3}")
    k(f"s_waitcnt vmcnt({nkeep})")
    if use_fast1():
        sk = k.label("qps")
        k(f"s_add_u32 s{S_TMP}, s{S_PUB}, {WS_QF - WS_QP}")
        k(f"buffer_store_dwordx4 {vr(VD1+4,4)}, v{VPUB}, {srd(R_WS)}, s{S_TMP} offen")
        k(f"s_cmp_ge_u32 s{S_J}, 4")
        k(f"s_cbranch_scc0 {sk}")
        k(f"buffer_store_dwordx4 {vr(VD1+4,4)}, v{VPUB}, {srd(R_WS)}, s{S_PUB} offen sc1")
        k(f"{sk}:")
    else:
        k(f"buffer_store_dwordx4 {vr(VD1+4,4)}, v{VPUB}, {srd(R_WS)}, s{S_PUB} offen sc1")
    k.stamp(3)


def sentinel_check(k, regs):
    t = V_T
    rs = list(regs)
    if len(rs) == 1:
        k(f"v_cmp_eq_u32 vcc, -1, v{rs[0]}")
        return
    if len(rs) == 2:
        k(f"v_max_u32 v{t}, v{rs[0]}, v{rs[1]}")
        rs = []
    else:
        k(f"v_max3_u32 v{t}, v{rs[0]}, v{rs[1]}, v{rs[2]}")
        rs = rs[3:]
    while len(rs) >= 2:
        k(f"v_max3_u32 v{t}, v{t}, v{rs[0]}, v{rs[1]}")
        rs = rs[2:]
    if rs:
        k(f"v_max_u32 v{t}, v{t}, v{rs[0]}")
    k(f"v_cmp_eq_u32 vcc, -1, v{t}")


def tag_check(k, pairs):
    t = V_T
    first = True
    for a, b in pairs:
        k(f"v_xor_b32 v{t+1}, s{S_T0}, v{a}")
        k(f"v_xor_b32 v{t+2}, s{S_T1}, v{b}")
        if first:
            k(f"v_or_b32 v{t}, v{t+1}, v{t+2}")
        else:
            k(f"v_or3_b32 v{t}, v{t}, v{t+1}, v{t+2}")
        first = False
    k(f"v_cmp_ne_u32 vcc, 0, v{t}")


def gather_loop(k, name, loads, check, stampidx=None, preissued=False, firstwait=0, fast=None, after_fast=None):
    chk = k.label(name)
    done = k.label(name + "d")
    spin_begin(k)
    k(f"s_mov_b64 s[{S_M}:{S_M+1}], exec")
    if fast is not None:
        floads, nfast = fast
        fchk = k.label(name + "f")
        if not preissued:
            for l in floads:
                k(l)
        k(f"{fchk}:")
        k("s_waitcnt vmcnt(0)")
        check(k)
        k(f"s_and_b64 exec, exec, vcc")
        k(f"s_cbranch_execz {done}_fast")
        k(f"s_add_u32 s{S_CNT}, s{S_CNT}, 1")
        k(f"s_cmp_ge_u32 s{S_CNT}, {nfast}")
        k(f"s_cbranch_scc1 {chk}_slow")
        for l in floads:
            k(l)
        k(f"s_branch {fchk}")
        k(f"{done}_fast:")
        k(f"s_mov_b64 exec, s[{S_M}:{S_M+1}]")
        if after_fast:
            after_fast(k)
        k(f"s_branch {done}")
        k(f"{chk}_slow:")
        if after_fast:
            k(f"s_mov_b64 s[18:19], exec")
            k(f"s_mov_b64 exec, s[{S_M}:{S_M+1}]")
            after_fast(k)
            k(f"s_mov_b64 exec, s[18:19]")
        for l in loads:
            k(l)
    elif not preissued:
        for l in loads:
            k(l)
    if firstwait:
        k(f"s_waitcnt vmcnt({firstwait})")
        k(f"s_branch {chk}_c")
    k(f"{chk}:")
    k("s_waitcnt vmcnt(0)")
    if firstwait:
        k(f"{chk}_c:")
    check(k)
    k(f"s_and_b64 exec, exec, vcc")
    k(f"s_cbranch_execz {done}")
    k(f"s_add_u32 s{S_CNT}, s{S_CNT}, 1")
    k(f"s_cmp_ge_u32 s{S_CNT}, {SPIN_LIMIT}")
    k(f"s_cbranch_scc1 {done}")
    for l in loads:
        k(l)
    k(f"s_branch {chk}")
    k(f"{done}:")
    k(f"s_mov_b64 exec, s[{S_M}:{S_M+1}]")
    if stampidx is not None:
        k.stamp(stampidx)
    if k.stamps and name in CNT_SLOT and not (K.opt.get("aoack") and name == "qa"):
        k(f"s_add_u32 s{S_STAMP+CNT_SLOT[name]}, s{S_CNT}, 1")


def use_fast():
    return K.opt.get("fast", "1") == "1"


def use_fast1():
    return K.opt.get("fast1", "0") == "1"


def gather_check_loop(k, name, loads, regs, stampidx=None, preissued=False):
    gather_loop(k, name, loads, lambda kk: sentinel_check(kk, regs), stampidx, preissued)


def clears_P(k):
    t = V_T + 4
    neg = vr(V_NEG1, 4)
    l2, l3, done = k.label("cp2"), k.label("cp3"), k.label("cpd")
    k(f"s_lshl_b32 s{S_TMP}, s{S_H}, 2")
    k(f"s_add_u32 s{S_TMP}, s{S_TMP}, s{S_J}")
    k(f"s_cmp_eq_u32 s{S_WAVE}, 1")
    k(f"s_cbranch_scc0 {l2}")
    k(f"v_lshlrev_b32 v{t}, 4, v{V_LANE}")
    k(f"s_mul_i32 s{S_TMP+1}, s{S_H}, 5120")
    k(f"s_mul_i32 s{S_TMP+2}, s{S_J}, 1280")
    k(f"s_add_u32 s{S_TMP+1}, s{S_TMP+1}, s{S_TMP+2}")
    k(f"s_add_u32 s{S_TMP+1}, s{S_TMP+1}, {WS_SP}")
    k(f"buffer_store_dwordx4 {neg}, v{t}, {srd(R_WS)}, s{S_TMP+1} offen sc1")
    k(f"v_lshlrev_b32 v{t+1}, 4, v{V_L15}")
    k(f"buffer_store_dwordx4 {neg}, v{t+1}, {srd(R_WS)}, s{S_TMP+1} offen offset:1024 sc1")
    k(f"s_branch {done}")
    k(f"{l2}:")
    k(f"s_cmp_eq_u32 s{S_WAVE}, 2")
    k(f"s_cbranch_scc0 {l3}")
    k(f"v_and_b32 v{t+1}, 31, v{V_LANE}")
    k(f"v_lshlrev_b32 v{t+1}, 4, v{t+1}")
    k(f"s_lshl_b32 s{S_TMP+1}, s{S_TMP}, 9")
    k(f"s_add_u32 s{S_TMP+1}, s{S_TMP+1}, {WS_CP}")
    k(f"buffer_store_dwordx4 {neg}, v{t+1}, {srd(R_WS)}, s{S_TMP+1} offen sc1")
    if use_fast():
        k(f"s_add_u32 s{S_TMP+1}, s{S_TMP+1}, {WS_CF - WS_CP}")
        k(f"buffer_store_dwordx4 {neg}, v{t+1}, {srd(R_WS)}, s{S_TMP+1} offen sc1")
    k(f"s_lshl_b32 s{S_TMP+1}, s{S_H}, 9")
    k(f"s_add_u32 s{S_TMP+1}, s{S_TMP+1}, {WS_ST}")
    k(f"buffer_store_dwordx4 {neg}, v{t+1}, {srd(R_WS)}, s{S_TMP+1} offen sc1")
    k(f"s_branch {done}")
    k(f"{l3}:")
    k(f"v_and_b32 v{t+1}, 1, v{V_SLAB}")
    k(f"v_lshlrev_b32 v{t+1}, 15, v{t+1}")
    k(f"v_lshl_add_u32 v{t+1}, v{V_L15}, 4, v{t+1}")
    k(f"s_lshl_b32 s{S_TMP+1}, s{S_H}, 10")
    k(f"s_lshl_b32 s{S_TMP+2}, s{S_J}, 8")
    k(f"s_add_u32 s{S_TMP+1}, s{S_TMP+1}, s{S_TMP+2}")
    k(f"s_add_u32 s{S_TMP+1}, s{S_TMP+1}, {WS_QA}")
    k(f"buffer_store_dwordx4 {neg}, v{t+1}, {srd(R_WS)}, s{S_TMP+1} offen sc1")
    k(f"{done}:")


L_WUK = 32768


def wuk_issue(k):
    t = V_T + 4
    k(f"s_sub_u32 s{S_TMP+2}, s{S_WAVE}, 1")
    k(f"s_mul_i32 s{S_TMP+2}, s{S_TMP+2}, 11")
    k(f"s_mul_i32 s{S_TMP}, s{S_J}, {128*8192}")
    k(f"s_lshl_b32 s{S_TMP+1}, s{S_H}, 8")
    k(f"s_add_u32 s{S_TMP}, s{S_TMP}, s{S_TMP+1}")
    k(f"s_lshl_b32 s{S_TMP+1}, s{S_TMP+2}, 15")
    k(f"s_add_u32 s{S_TMP}, s{S_TMP}, s{S_TMP+1}")
    k(f"s_lshl_b32 s{S_TMP+1}, s{S_TMP+2}, 10")
    k(f"s_add_u32 s{S_TMP+1}, s{S_TMP+1}, {L_WUK}")
    k(f"v_lshlrev_b32 v{t+1}, 13, v{V_SLAB}")
    lp = k.label("wuk")
    k(f"s_add_u32 s{S_TMP+4}, s{S_TMP+2}, 11")
    k(f"{lp}:")
    k(f"s_and_b32 s{S_TMP+3}, s{S_TMP+2}, 3")
    k(f"s_lshl_b32 s{S_TMP+3}, s{S_TMP+3}, 2")
    k(f"v_add_u32 v{t}, s{S_TMP+3}, v{V_SLAB}")
    k(f"v_xor_b32 v{t}, v{t}, v{V_L15}")
    k(f"v_lshl_add_u32 v{t}, v{t}, 4, v{t+1}")
    k(f"s_mov_b32 m0, s{S_TMP+1}")
    k(f"s_add_u32 s{S_TMP+1}, s{S_TMP+1}, 1024")
    k(f"buffer_load_dwordx4 v{t}, {srd(R_A)}, s{S_TMP} offen lds")
    k(f"s_add_u32 s{S_TMP}, s{S_TMP}, {4*8192}")
    k(f"s_add_u32 s{S_TMP+2}, s{S_TMP+2}, 1")
    k(f"s_cmp_lt_u32 s{S_TMP+2}, s{S_TMP+4}")
    k(f"s_cbranch_scc1 {lp}")


def wuk_preread(k):
    t = V_T + 4
    k(f"s_lshl_b32 s{S_TMP+4}, s{S_WAVE}, 2")
    k(f"v_add_u32 v{t}, s{S_TMP+4}, v{V_SLAB}")
    k(f"v_xor_b32 v{t}, v{t}, v{V_L15}")
    k(f"v_lshlrev_b32 v{t}, 4, v{t}")
    k(f"v_lshl_add_u32 v{t}, v{V_L15}, 8, v{t}")
    for i in range(8):
        k(f"ds_read_b128 {vr(VWUK+4*i,4)}, v{t} offset:{L_WUK+i*4096}")


PG = 10
PD = 28
PY = 68
PWV = 76
PWO = 108
PA = 148
PADR = 164
PM = 180
PT = 188
PKEEP = 206
S_KEEP = 16


def stage2(k):
    t = PT
    k(f"v_and_b32 v{t}, 7, v{V_L15}")
    k(f"v_lshlrev_b32 v{t}, 10, v{t}")
    k(f"v_lshrrev_b32 v{t+1}, 3, v{V_L15}")
    k(f"v_lshl_add_u32 v{t}, v{t+1}, 9, v{t}")
    k(f"v_lshl_add_u32 v{PADR}, v{V_SLAB}, 5, v{t}")
    k(f"s_lshl_b32 s{S_TMP}, s{S_H}, 13")
    k(f"s_lshl_b32 s{S_TMP+1}, s{S_WAVE}, 7")
    k(f"s_add_u32 s{S_TMP}, s{S_TMP}, s{S_TMP+1}")
    k(f"s_add_u32 s{S_TMP}, s{S_TMP}, {WS_QP}")
    k(f"v_lshrrev_b32 v{t}, 1, v{V_SLAB}")
    k(f"v_lshlrev_b32 v{t}, 15, v{t}")
    k(f"v_and_b32 v{t+1}, 1, v{V_SLAB}")
    k(f"v_lshl_add_u32 v{t}, v{t+1}, 5, v{t}")
    k(f"v_lshl_add_u32 v{PADR+1}, v{V_L15}, 1, v{t}")
    k(f"s_lshl_b32 s{S_TMP+2}, s{S_H}, 10")
    k(f"s_lshl_b32 s{S_TMP+3}, s{S_J}, 8")
    k(f"s_add_u32 s{S_TMP+2}, s{S_TMP+2}, s{S_TMP+3}")
    k(f"s_lshl_b32 s{S_TMP+3}, s{S_WAVE}, 6")
    k(f"s_add_u32 s{S_TMP+2}, s{S_TMP+2}, s{S_TMP+3}")
    k(f"s_add_u32 s{S_TMP+2}, s{S_TMP+2}, {WS_QA}")
    k(f"v_lshlrev_b32 v{PADR+2}, 2, v{V_LANE}")
    k(f"s_lshl_b32 s{S_TMP+3}, s{S_WAVE}, 10")
    k(f"s_add_u32 s{S_TMP+3}, s{S_TMP+3}, {L_RED}")
    k(f"v_add_u32 v{PADR+3}, s{S_TMP+3}, v{PADR+2}")
    k(f"s_lshl_b32 s{S_TMP+3}, s{S_WAVE}, 8")
    k(f"s_add_u32 s{S_TMP+3}, s{S_TMP+3}, {L_RED}")
    k(f"v_add_u32 v{PADR+2}, s{S_TMP+3}, v{PADR+2}")
    k(f"s_mov_b32 s{S_M+2}, 0x55555555")
    k(f"s_mov_b32 s{S_M+3}, 0x55555555")
    loads = [f"buffer_load_dwordx4 {vr(PG,4)}, v{PADR}, {srd(R_WS)}, s{S_TMP} offen sc1",
             f"buffer_load_dwordx4 {vr(PG+4,4)}, v{PADR}, {srd(R_WS)}, s{S_TMP} offen offset:16 sc1"]
    floads = [l.replace(f"s{S_TMP} offen", f"s{S_TMP+5} offen") for l in loads]
    k(f"s_add_u32 s{S_TMP+5}, s{S_TMP}, {WS_QF - WS_QP}")
    for l in (floads if use_fast1() else loads):
        k(l)
    k("s_waitcnt vmcnt(0)")
    k("s_barrier")
    wuk_preread(k)
    def send_qp(kk):
        sk = kk.label("qpw")
        kk(f"s_cmp_eq_u32 s{S_WAVE}, 0")
        kk(f"s_cbranch_scc0 {sk}")
        kk(f"buffer_store_dwordx4 {vr(VD1+4,4)}, v{VPUB}, {srd(R_WS)}, s{S_PUB} offen sc1")
        kk(f"{sk}:")
    gather_loop(k, "qp", loads, lambda kk: tag_check(kk, [(PG+2, PG+3), (PG+6, PG+7)]), 4, preissued=True,
                fast=(floads, 24) if use_fast1() else None, after_fast=send_qp if use_fast1() else None)
    k("s_waitcnt lgkmcnt(0)")
    k(f"v_mov_b32 v{PG+2}, v{PG+4}")
    k(f"v_mov_b32 v{PG+3}, v{PG+5}")
    k.nop(2)
    for i in range(8):
        k(f"v_mfma_f32_16x16x32_bf16 {vr(PD+4*i,4)}, {vr(PG,4)}, {vr(VWUK+4*i,4)}, 0")
    k.nop(1)
    for i in range(8):
        if i == 7:
            pass
        k(f"v_add_f32 v{PD+4*i}, v{PD+4*i}, v{PD+4*i+1}")
        k(f"v_add_f32 v{PD+4*i+2}, v{PD+4*i+2}, v{PD+4*i+3}")
        k(f"v_add_f32 v{PD+4*i}, v{PD+4*i}, v{PD+4*i+2}")
    k.nop(2)
    for u in range(4):
        k(f"v_permlane16_swap_b32 v{PD+8*u}, v{PD+8*u+4}")
    k.nop(1)
    for u in range(4):
        k(f"v_add_f32 v{PY+u}, v{PD+8*u}, v{PD+8*u+4}")
    k(f"ds_write2st64_b32 v{PADR+3}, v{PY}, v{PY+1} offset0:0 offset1:1")
    k(f"ds_write2st64_b32 v{PADR+3}, v{PY+2}, v{PY+3} offset0:2 offset1:3")
    k("s_waitcnt lgkmcnt(0)")
    k("s_barrier")
    k(f"ds_read2st64_b32 {vr(t,2)}, v{PADR+2} offset0:0 offset1:4")
    k(f"ds_read2st64_b32 {vr(t+2,2)}, v{PADR+2} offset0:8 offset1:12")
    k("s_waitcnt lgkmcnt(0)")
    k(f"v_add_f32 v{t}, v{t}, v{t+1}")
    k(f"v_add_f32 v{t+2}, v{t+2}, v{t+3}")
    k(f"v_add_f32 v{t}, v{t}, v{t+2}")
    k(f"v_mul_f32 v{t}, 0x3e0293ee, v{t}")
    k.nop(2)
    k(f"v_mov_b32_dpp v{t+1}, v{t} quad_perm:[1,0,3,2] row_mask:0xf bank_mask:0xf")
    k(f"v_cvt_pk_bf16_f32 v{t}, v{t}, v{t+1}")
    k(f"s_mov_b64 exec, s[{S_M+2}:{S_M+3}]")
    k(f"buffer_store_dword v{t}, v{PADR+1}, {srd(R_WS)}, s{S_TMP+2} offen sc1")
    k(f"s_mov_b64 exec, -1")
    k.stamp(5)


def p_weights_issue(k):
    t = PT
    if K.opt.get("trig", "0") == "1":
        k(f"s_and_b32 s{S_TMP}, s{S_H}, 7")
        k(f"s_lshl_b32 s{S_TMP}, s{S_TMP}, 8")
        k(f"s_add_u32 s{S_TMP}, s{S_TMP}, {WS_TR}")
        k(f"v_lshrrev_b32 v{t}, 2, v{V_L15}")
        k(f"v_lshlrev_b32 v{t}, 11, v{t}")
        k(f"v_and_b32 v{t+1}, 3, v{V_L15}")
        k(f"v_lshl_add_u32 v{t}, v{t+1}, 6, v{t}")
        sk = k.label("trw")
        k(f"s_cmp_eq_u32 s{S_WAVE}, 0")
        k(f"s_cbranch_scc0 {sk}")
        k(f"s_mov_b64 exec, 0xffff")
        gather_loop(k, "tr", [f"buffer_load_dwordx2 {vr(t+2,2)}, v{t}, {srd(R_WS)}, s{S_TMP} offen sc1"], lambda kk: tag_check(kk, [(t+2, t+3)]), 12)
        k(f"s_mov_b64 exec, -1")
        k(f"{sk}:")
        k("s_barrier")
    for par in range(2):
        k(f"v_add_u32 v{t}, {4*par}, v{V_SLAB}")
        k(f"v_lshlrev_b32 v{t}, 1, v{t}")
        k(f"v_xor_b32 v{t}, v{t}, v{V_L15}")
        k(f"v_lshlrev_b32 v{t}, 4, v{t}")
        k(f"v_lshl_add_u32 v{PADR+4+par}, v{V_SLAB}, 13, v{t}")
    k(f"s_mul_i32 s{S_TMP}, s{S_J}, {128*8192}")
    k(f"s_lshl_b32 s{S_TMP+1}, s{S_H}, 8")
    k(f"s_add_u32 s{S_TMP}, s{S_TMP}, s{S_TMP+1}")
    k(f"s_lshl_b32 s{S_TMP+1}, s{S_WAVE}, 18")
    k(f"s_add_u32 s{S_TMP}, s{S_TMP}, s{S_TMP+1}")
    k(f"s_lshl_b32 s{S_TMP+1}, s{S_WAVE}, 13")
    k(f"s_add_u32 s{S_TMP+1}, s{S_TMP+1}, {L_WUV}")
    for ii in range(8):
        k(f"s_mov_b32 m0, s{S_TMP+1}")
        k(f"s_add_u32 s{S_TMP+1}, s{S_TMP+1}, 1024")
        k(f"buffer_load_dwordx4 v{PADR+4+(ii&1)}, {srd(R_B)}, s{S_TMP} offen lds")
        k(f"s_add_u32 s{S_TMP}, s{S_TMP}, {4*8192}")


def w1p_issue(k):
    t = PT
    k.srd(R_WQ, S_W1, 640 * 1728 * 2)
    k(f"v_lshrrev_b32 v{t}, 3, v{V_LANE}")
    k(f"v_mul_u32_u24 v{t}, 3456, v{t}")
    k(f"v_and_b32 v{t+1}, 7, v{V_LANE}")
    k(f"v_lshl_add_u32 v{t}, v{t+1}, 4, v{t}")
    k(f"s_mul_i32 s{S_TMP}, s{S_J}, {160*3456}")
    k(f"s_mul_i32 s{S_TMP+1}, s{S_WAVE}, {40*3456}")
    k(f"s_add_u32 s{S_TMP}, s{S_TMP}, s{S_TMP+1}")
    k(f"s_lshl_b32 s{S_TMP+1}, s{S_H}, 7")
    k(f"s_add_u32 s{S_TMP}, s{S_TMP}, s{S_TMP+1}")
    k(f"s_mul_i32 s{S_TMP+1}, s{S_WAVE}, 5120")
    k(f"s_add_u32 s{S_TMP+1}, s{S_TMP+1}, {L_W1P}")
    for i in range(5):
        k(f"s_mov_b32 m0, s{S_TMP+1}")
        k(f"s_add_u32 s{S_TMP+1}, s{S_TMP+1}, 1024")
        k(f"buffer_load_dwordx4 v{t}, {srd(R_WQ)}, s{S_TMP} offen lds")
        k(f"s_add_u32 s{S_TMP}, s{S_TMP}, {8*3456}")


def ffn1p(k):
    t = PT
    X, W, D = 28, 48, 68
    k(f"v_and_b32 v{t}, 1, v{V_LANE}")
    k(f"v_mul_u32_u24 v{t}, 1280, v{t}")
    k(f"v_lshl_add_u32 v{t}, v{V_SLAB}, 3, v{t}")
    k(f"s_mul_i32 s{S_TMP}, s{S_J}, 320")
    k(f"s_add_u32 s{S_TMP}, s{S_TMP}, {L_XN}")
    k(f"v_add_u32 v{t}, s{S_TMP}, v{t}")
    for i in range(5):
        k(f"ds_read_b64 {vr(X+4*i,2)}, v{t} offset:{64*i}")
        k(f"ds_read_b64 {vr(X+4*i+2,2)}, v{t} offset:{64*i+32}")
    k(f"v_lshrrev_b32 v{t+1}, 2, v{V_L15}")
    k(f"v_lshl_add_u32 v{t+1}, v{V_SLAB}, 2, v{t+1}")
    k(f"v_lshlrev_b32 v{t+1}, 7, v{t+1}")
    k(f"v_and_b32 v{t+2}, 3, v{V_L15}")
    k(f"v_lshl_add_u32 v{t+1}, v{t+2}, 3, v{t+1}")
    k(f"s_lshl_b32 s{S_TMP}, s{S_WAVE}, 5")
    k(f"s_add_u32 s{S_TMP}, s{S_TMP}, {L_W1P}")
    k(f"v_add_u32 v{t+1}, s{S_TMP}, v{t+1}")
    k(f"v_lshlrev_b32 v{t+2}, 4, v{V_L15}")
    k(f"s_lshl_b32 s{S_TMP}, s{S_H}, 2")
    k(f"s_add_u32 s{S_TMP}, s{S_TMP}, s{S_J}")
    k(f"s_lshl_b32 s{S_TMP}, s{S_TMP}, 10")
    k(f"s_lshl_b32 s{S_TMP+1}, s{S_WAVE}, 8")
    k(f"s_add_u32 s{S_TMP}, s{S_TMP}, s{S_TMP+1}")
    k(f"s_add_u32 s{S_TMP}, s{S_TMP}, {WS_HP}")
    k("s_waitcnt vmcnt(18)")
    k("s_barrier")
    for i in range(5):
        k(f"ds_read_b64_tr_b16 {vr(W+4*i,2)}, v{t+1} offset:{i*4096}")
        k(f"ds_read_b64_tr_b16 {vr(W+4*i+2,2)}, v{t+1} offset:{i*4096+2048}")
    k("s_waitcnt lgkmcnt(0)")
    for i in range(5):
        c = "0" if i == 0 else vr(D, 4)
        k(f"v_mfma_f32_16x16x32_bf16 {vr(D,4)}, {vr(X+4*i,4)}, {vr(W+4*i,4)}, {c}")
    k.nop(8)
    k(f"v_mov_b32 v{D+2}, s{S_T0}")
    k(f"v_mov_b32 v{D+3}, s{S_T1}")
    k(f"s_mov_b64 exec, 0xffff")
    k(f"buffer_store_dwordx4 {vr(D,4)}, v{t+2}, {srd(R_WS)}, s{S_TMP} offen sc1")
    k(f"s_mov_b64 exec, -1")


def p_weights_preread(k):
    t = PT
    k(f"v_lshrrev_b32 v{t}, 2, v{V_L15}")
    k(f"v_and_b32 v{t+1}, 3, v{V_L15}")
    k(f"v_lshl_add_u32 v{t+2}, v{V_SLAB}, 2, v{t}")
    k(f"v_and_b32 v{t+3}, 7, v{t+2}")
    k(f"v_lshlrev_b32 v{t+3}, 1, v{t+3}")
    k(f"v_lshrrev_b32 v{t+4}, 1, v{t+1}")
    k(f"v_and_b32 v{t+5}, 1, v{t+1}")
    k(f"s_lshl_b32 s{S_TMP}, s{S_WAVE}, 2")
    for d in range(2):
        k(f"v_add_u32 v{t+6}, s{S_TMP}, v{t+4}")
        if d:
            k(f"v_add_u32 v{t+6}, 2, v{t+6}")
        k(f"v_xor_b32 v{t+6}, v{t+6}, v{t+3}")
        k(f"v_lshlrev_b32 v{t+6}, 4, v{t+6}")
        k(f"v_lshl_add_u32 v{t+6}, v{t+5}, 3, v{t+6}")
        k(f"v_lshl_add_u32 v{PADR+6+d}, v{t+2}, 8, v{t+6}")
    for d in range(2):
        for kk in range(4):
            r = PWV + (d * 4 + kk) * 4
            k(f"ds_read_b64_tr_b16 {vr(r,2)}, v{PADR+6+d} offset:{L_WUV+kk*8192}")
            k(f"ds_read_b64_tr_b16 {vr(r+2,2)}, v{PADR+6+d} offset:{L_WUV+kk*8192+4096}")


def wo_issue(k):
    t = PT
    k(f"s_mul_i32 s{S_TMP}, s{S_H}, {128*1280}")
    k(f"s_mul_i32 s{S_TMP+1}, s{S_J}, 320")
    k(f"s_add_u32 s{S_TMP}, s{S_TMP}, s{S_TMP+1}")
    k(f"s_mul_i32 s{S_TMP+1}, s{S_WAVE}, 640")
    k(f"v_add_u32 v{t}, s{S_TMP+1}, v{V_LANE}")
    k(f"s_mul_i32 s{S_TMP+1}, s{S_WAVE}, 10240")
    k(f"s_add_u32 s{S_TMP+1}, s{S_TMP+1}, {L_WO5}")
    k(f"s_movk_i32 s{S_TMP+2}, 3277")
    k(f"s_movk_i32 s{S_TMP+3}, 960")
    for ii in range(10):
        k(f"v_mul_u32_u24 v{t+1}, s{S_TMP+2}, v{t}")
        k(f"v_lshrrev_b32 v{t+1}, 16, v{t+1}")
        k(f"v_mul_u32_u24 v{t+1}, s{S_TMP+3}, v{t+1}")
        k(f"v_lshl_add_u32 v{t+2+(ii&1)}, v{t}, 4, v{t+1}")
        k(f"s_mov_b32 m0, s{S_TMP+1}")
        k(f"s_add_u32 s{S_TMP+1}, s{S_TMP+1}, 1024")
        k(f"buffer_load_dwordx4 v{t+2+(ii&1)}, {srd(R_C)}, s{S_TMP} offen lds")
        k(f"v_add_u32 v{t}, 64, v{t}")


def wo_preread(k):
    t = PT
    k(f"v_lshrrev_b32 v{t}, 2, v{V_L15}")
    k(f"v_and_b32 v{t+1}, 3, v{V_L15}")
    k(f"v_lshl_add_u32 v{t+2}, v{V_SLAB}, 2, v{t}")
    k(f"s_lshl_b32 s{S_TMP}, s{S_WAVE}, 5")
    k(f"v_add_u32 v{t+6}, s{S_TMP}, v{t+2}")
    k(f"v_mul_u32_u24 v{t+6}, 320, v{t+6}")
    k(f"v_lshl_add_u32 v{PADR+8}, v{t+1}, 3, v{t+6}")
    k(f"v_add_u32 v{PADR+8}, {L_WO5}, v{PADR+8}")
    for ct in range(10):
        r = PWO + 4 * ct
        k(f"ds_read_b64_tr_b16 {vr(r,2)}, v{PADR+8} offset:{32*ct}")
        k(f"ds_read_b64_tr_b16 {vr(r+2,2)}, v{PADR+8} offset:{32*ct+5120}")


def reduce_bits(k, op, v, tmp):
    for mod in ("quad_perm:[1,0,3,2]", "quad_perm:[2,3,0,1]", "row_half_mirror"):
        k.nop(2)
        k(f"{op}_dpp v{v}, v{v}, v{v} {mod} row_mask:0xf bank_mask:0xf")
    for sw in ("v_permlane16_swap_b32", "v_permlane32_swap_b32"):
        k(f"v_mov_b32 v{tmp}, v{v}")
        k.nop(2)
        k(f"{sw} v{v}, v{tmp}")
        k.nop(1)
        k(f"{op} v{v}, v{v}, v{tmp}")


def stage4_setup(k):
    t = PT
    k(f"v_bfe_u32 v{t}, v{V_LANE}, 3, 1")
    k(f"v_bfe_u32 v{t+1}, v{V_LANE}, 2, 1")
    k(f"v_and_b32 v{t+2}, 3, v{V_LANE}")
    k(f"v_lshlrev_b32 v{t+1}, 4, v{t+1}")
    k(f"v_lshl_add_u32 v{t+1}, v{V_SLAB}, 2, v{t+1}")
    k(f"v_add_u32 v{t+1}, v{t+1}, v{t+2}")
    k(f"v_lshl_add_u32 v{t+1}, v{t}, 5, v{t+1}")
    k(f"v_lshlrev_b32 v{PADR+9}, 3, v{t+1}")
    k(f"v_and_b32 v{t+1}, 1, v{V_LANE}")
    k(f"v_cmp_eq_u32 vcc, 1, v{t+1}")
    k(f"v_mov_b32 v{t+2}, 0xffff")
    k(f"v_mov_b32 v{t+3}, 0xffff0000")
    k(f"v_cndmask_b32 v{t+2}, v{t+2}, v{t+3}, vcc")
    k(f"v_bfe_u32 v{t+1}, v{V_LANE}, 1, 2")
    k(f"v_lshl_add_u32 v{t+1}, v{t}, 2, v{t+1}")
    for i in range(8):
        k(f"v_cmp_eq_u32 vcc, {i}, v{t+1}")
        k.nop(2)
        k(f"v_cndmask_b32 v{PM+i}, 0, v{t+2}, vcc")
    k(f"v_lshlrev_b32 v{PADR+10}, 4, v0")
    k(f"v_lshrrev_b32 v{t}, 4, v0")
    k(f"v_and_b32 v{t+1}, 7, v{t}")
    k(f"v_lshlrev_b32 v{t+1}, 1, v{t+1}")
    k(f"v_xor_b32 v{t+1}, v{t+1}, v{V_L15}")
    k(f"v_lshlrev_b32 v{t+1}, 4, v{t+1}")
    k(f"v_lshl_add_u32 v{t+1}, v{t}, 8, v{t+1}")
    k(f"v_add_u32 v{PADR+11}, {L_AOB}, v{t+1}")
    k(f"v_lshrrev_b32 v{t}, 2, v{V_L15}")
    k(f"v_lshl_add_u32 v{t}, v{V_SLAB}, 2, v{t}")
    k(f"v_and_b32 v{t+1}, 7, v{t}")
    k(f"v_lshlrev_b32 v{t+1}, 1, v{t+1}")
    k(f"v_bfe_u32 v{t+2}, v{V_L15}, 1, 1")
    k(f"v_and_b32 v{t+3}, 1, v{V_L15}")
    k(f"s_lshl_b32 s{S_TMP}, s{S_WAVE}, 2")
    for d in range(2):
        k(f"v_add_u32 v{t+4}, s{S_TMP}, v{t+2}")
        if d:
            k(f"v_add_u32 v{t+4}, 2, v{t+4}")
        k(f"v_xor_b32 v{t+4}, v{t+4}, v{t+1}")
        k(f"v_lshlrev_b32 v{t+4}, 4, v{t+4}")
        k(f"v_lshl_add_u32 v{t+4}, v{t+3}, 3, v{t+4}")
        k(f"v_lshl_add_u32 v{t+4}, v{t}, 8, v{t+4}")
        k(f"v_add_u32 v{PADR+12+d}, {L_AOB}, v{t+4}")
    k(f"v_lshrrev_b32 v{t}, 1, v{V_SLAB}")
    k(f"v_and_b32 v{t+1}, 1, v{V_SLAB}")
    k(f"v_lshlrev_b32 v{t}, 7, v{t}")
    k(f"v_lshl_add_u32 v{t}, v{t+1}, 4, v{t}")
    k(f"v_add_u32 v{t}, v{t}, v{V_L15}")
    k(f"s_lshl_b32 s{S_TMP}, s{S_WAVE}, 5")
    k(f"v_add_u32 v{t}, s{S_TMP}, v{t}")
    k(f"v_lshlrev_b32 v{t}, 1, v{t}")
    k(f"v_add_u32 v{PADR+14}, {L_CTX}, v{t}")
    k(f"v_and_b32 v{t}, 1, v{V_LANE}")
    k(f"v_lshlrev_b32 v{t}, 8, v{t}")
    k(f"v_lshl_add_u32 v{t}, v{V_SLAB}, 4, v{t}")
    k(f"v_add_u32 v{PADR+15}, {L_CTX}, v{t}")


def stage4(k):
    t = PT
    G = PG
    ST = 26
    k(f"s_lshl_b32 s{S_TMP}, s{S_H}, 9")
    k(f"s_add_u32 s{S_TMP}, s{S_TMP}, {WS_ST}")
    k(f"s_lshl_b32 s{S_TMP+1}, s{S_H}, 2")
    k(f"s_add_u32 s{S_TMP+1}, s{S_TMP+1}, s{S_J}")
    k(f"s_lshl_b32 s{S_TMP+2}, s{S_TMP+1}, 14")
    k(f"s_add_u32 s{S_TMP+2}, s{S_TMP+2}, {WS_AO}")
    for n in range(1, 4):
        k(f"s_add_u32 s{S_TMP+2+n}, s{S_TMP+2}, {4096*n}")
    sk = k.label("stw")
    k(f"v_lshlrev_b32 v{t+12}, 3, v{V_LANE}")
    k(f"v_add_u32 v{t+12}, {L_STX}, v{t+12}")
    k(f"s_cmp_eq_u32 s{S_WAVE}, 0")
    k(f"s_cbranch_scc0 {sk}")
    gather_check_loop(k, "st", [f"buffer_load_dwordx2 {vr(ST,2)}, v{PADR+9}, {srd(R_WS)}, s{S_TMP} offen sc1"], [ST, ST + 1], None)
    k(f"ds_write_b64 v{t+12}, {vr(ST,2)}")
    k("s_waitcnt lgkmcnt(0)")
    k(f"{sk}:")
    k("s_barrier")
    k.stamp(7)
    loads = [f"buffer_load_dwordx4 {vr(G+4*n,4)}, v{PADR+10}, {srd(R_WS)}, s{S_TMP+2+n} offen sc1" for n in range(4)]
    for l in loads:
        k(l)
    k(f"ds_read_b64 {vr(ST,2)}, v{t+12}")
    k("s_waitcnt lgkmcnt(0)")
    M = t + 8
    k(f"v_mov_b32 v{M}, v{ST}")
    reduce_bits(k, "v_max_f32", M, t + 9)
    k(f"v_sub_f32 v{t}, v{ST}, v{M}")
    k(f"v_exp_f32 v{t}, v{t}")
    k.nop(1)
    k(f"v_cvt_pk_bf16_f32 v{t}, v{t}, v{t}")
    for i in range(8):
        k(f"v_and_b32 v{PA+i}, v{t}, v{PM+i}")
    k(f"v_and_b32 v{t+1}, 0xffff0000, v{t}")
    k(f"v_mul_f32 v{t+1}, v{t+1}, v{ST+1}")
    reduce_bits(k, "v_add_f32", t + 1, t + 9)
    k(f"v_rcp_f32 v{t+1}, v{t+1}")
    k.nop(1)
    k(f"v_readlane_b32 s{S_TMP+6}, v{t+1}, 0")
    k(f"v_readlane_b32 s{S_TMP+7}, v{t+1}, 8")
    k(f"v_cmp_le_u32 vcc, 32, v{V_LANE}")
    k.nop(1)
    k(f"v_mov_b32 v{t+2}, s{S_TMP+6}")
    k(f"v_mov_b32 v{t+3}, s{S_TMP+7}")
    k(f"v_cndmask_b32 v{t+2}, v{t+2}, v{t+3}, vcc")
    gather_check_loop(k, "ao", loads, list(range(G, G + 16)), 8, preissued=True)
    for n in range(4):
        k(f"ds_write_b128 v{PADR+11}, {vr(G+4*n,4)} offset:{4096*n}")
    k("s_waitcnt lgkmcnt(0)")
    k("s_barrier")
    B = PD + 8
    for d in range(2):
        for bb in range(2):
            r = B + (d * 2 + bb) * 4
            k(f"ds_read_b64_tr_b16 {vr(r,2)}, v{PADR+12+d} offset:{bb*8192}")
            k(f"ds_read_b64_tr_b16 {vr(r+2,2)}, v{PADR+12+d} offset:{bb*8192+4096}")
    for d in range(2):
        k(f"s_waitcnt lgkmcnt({4-4*d})")
        k(f"v_mfma_f32_16x16x32_bf16 {vr(PD+4*d,4)}, {vr(PA,4)}, {vr(B+(d*2)*4,4)}, 0")
        k(f"v_mfma_f32_16x16x32_bf16 {vr(PD+4*d,4)}, {vr(PA+4,4)}, {vr(B+(d*2+1)*4,4)}, {vr(PD+4*d,4)}")
    k.nop(8)
    for d in range(2):
        k(f"v_add_f32 v{PD+4*d}, v{PD+4*d}, v{PD+4*d+1}")
        k(f"v_add_f32 v{PD+4*d+2}, v{PD+4*d+2}, v{PD+4*d+3}")
    for d in range(2):
        k(f"v_add_f32 v{PD+4*d}, v{PD+4*d}, v{PD+4*d+2}")
    k.nop(2)
    k(f"v_permlane16_swap_b32 v{PD}, v{PD+4}")
    k.nop(1)
    k(f"v_add_f32 v{PD}, v{PD}, v{PD+4}")
    k(f"v_mul_f32 v{PD}, v{PD}, v{t+2}")
    k(f"v_cvt_pk_bf16_f32 v{PD}, v{PD}, v{PD}")
    k(f"ds_write_b16 v{PADR+14}, v{PD}")
    k("s_waitcnt lgkmcnt(0)")
    k("s_barrier")
    for kk in range(4):
        k(f"ds_read_b128 {vr(PA+4*kk,4)}, v{PADR+15} offset:{64*kk}")
    k(f"v_lshrrev_b32 v{t}, 2, v{V_L15}")
    k(f"v_lshlrev_b32 v{t}, 3, v{t}")
    k(f"v_and_b32 v{t+1}, 1, v{V_SLAB}")
    k(f"v_lshl_add_u32 v{t}, v{t+1}, 2, v{t}")
    k(f"v_and_b32 v{t+1}, 2, v{V_L15}")
    k(f"v_add_u32 v{t}, v{t}, v{t+1}")
    k(f"v_lshrrev_b32 v{t+1}, 1, v{V_SLAB}")
    k(f"v_lshl_add_u32 v{t}, v{t+1}, 7, v{t}")
    k(f"v_lshlrev_b32 v{t}, 1, v{t}")
    k(f"s_lshl_b32 s{S_TMP}, s{S_H}, 2")
    k(f"s_add_u32 s{S_TMP}, s{S_TMP}, s{S_J}")
    k(f"s_lshl_b32 s{S_TMP}, s{S_TMP}, 9")
    k(f"s_lshl_b32 s{S_TMP+1}, s{S_WAVE}, 6")
    k(f"s_add_u32 s{S_TMP}, s{S_TMP}, s{S_TMP+1}")
    k(f"s_add_u32 s{S_TMP}, s{S_TMP}, {WS_CP}")
    k(f"s_add_u32 s{S_TMP+1}, s{S_TMP}, {WS_CF - WS_CP}")
    k(f"s_mov_b32 s{S_M+2}, 0xffff0000")
    k(f"s_mov_b32 s{S_M+3}, 0xffff0000")
    k(f"s_mov_b32 s{S_M+4}, 0")
    k(f"s_mov_b32 s{S_M+5}, -1")
    k(f"s_mov_b32 s{S_M+6}, 0x55555555")
    k(f"s_mov_b32 s{S_M+7}, 0x55555555")
    for kk in range(4):
        k(f"s_waitcnt lgkmcnt({3-kk})")
        for d in range(2):
            c = "0" if kk == 0 else vr(PD + 4 * d, 4)
            k(f"v_mfma_f32_16x16x32_bf16 {vr(PD+4*d,4)}, {vr(PA+4*kk,4)}, {vr(PWV+(d*4+kk)*4,4)}, {c}")
    k.nop(8)
    k(f"v_cndmask_b32 v{t+2}, v{PD}, v{PD+4}, s[{S_M+2}:{S_M+3}]")
    k(f"v_cndmask_b32 v{t+3}, v{PD+1}, v{PD+5}, s[{S_M+2}:{S_M+3}]")
    k(f"v_cndmask_b32 v{t+2}, v{t+2}, v{t+3}, s[{S_M+4}:{S_M+5}]")
    k.nop(2)
    k(f"v_mov_b32_dpp v{t+3}, v{t+2} quad_perm:[1,0,3,2] row_mask:0xf bank_mask:0xf")
    k(f"v_cvt_pk_bf16_f32 v{t+2}, v{t+2}, v{t+3}")
    if use_fast():
        k(f"v_mov_b32 v{PKEEP}, v{t+2}")
        k(f"v_mov_b32 v{PKEEP+1}, v{t}")
        k(f"s_mov_b32 s{S_KEEP}, s{S_TMP}")
    k(f"s_mov_b64 exec, s[{S_M+6}:{S_M+7}]")
    if use_fast():
        k(f"buffer_store_dword v{t+2}, v{t}, {srd(R_WS)}, s{S_TMP+1} offen")
    else:
        k(f"buffer_store_dword v{t+2}, v{t}, {srd(R_WS)}, s{S_TMP} offen sc1")
    k(f"s_mov_b64 exec, -1")
    k.stamp(9)


def stage5(k):
    t = PT
    k(f"v_and_b32 v{t}, 3, v{V_L15}")
    k(f"v_lshlrev_b32 v{t}, 9, v{t}")
    k(f"v_bfe_u32 v{t+1}, v{V_L15}, 2, 1")
    k(f"v_lshl_add_u32 v{t}, v{t+1}, 8, v{t}")
    k(f"v_lshl_add_u32 v{PADR}, v{V_SLAB}, 4, v{t}")
    k(f"s_lshl_b32 s{S_TMP}, s{S_H}, 11")
    k(f"s_lshl_b32 s{S_TMP+1}, s{S_WAVE}, 6")
    k(f"s_add_u32 s{S_TMP}, s{S_TMP}, s{S_TMP+1}")
    k(f"s_add_u32 s{S_TMP}, s{S_TMP}, {WS_CP}")
    k(f"v_lshrrev_b32 v{t}, 1, v{V_SLAB}")
    k(f"v_lshlrev_b32 v{t}, 4, v{t}")
    k(f"v_add_u32 v{t}, v{t}, v{V_L15}")
    k(f"v_lshlrev_b32 v{t}, 3, v{t}")
    k(f"v_and_b32 v{t+1}, 1, v{V_SLAB}")
    k(f"v_lshl_add_u32 v{PADR+1}, v{t+1}, 2, v{t}")
    k(f"s_mul_i32 s{S_TMP+1}, s{S_H}, 5120")
    k(f"s_mul_i32 s{S_TMP+2}, s{S_J}, 1280")
    k(f"s_add_u32 s{S_TMP+1}, s{S_TMP+1}, s{S_TMP+2}")
    k(f"s_add_u32 s{S_TMP+1}, s{S_TMP+1}, {WS_SP}")
    k(f"s_lshl_b32 s{S_TMP+2}, s{S_WAVE}, 8")
    k(f"s_add_u32 s{S_TMP+2}, s{S_TMP+2}, s{S_TMP+1}")
    k(f"s_add_u32 s{S_TMP+1}, s{S_TMP+1}, 1024")
    k(f"v_lshlrev_b32 v{t}, 2, v{V_LANE}")
    k(f"s_mul_i32 s{S_TMP+3}, s{S_WAVE}, 1280")
    k(f"s_add_u32 s{S_TMP+3}, s{S_TMP+3}, {L_RED5}")
    k(f"v_add_u32 v{PADR+3}, s{S_TMP+3}, v{t}")
    k(f"s_lshl_b32 s{S_TMP+3}, s{S_WAVE}, 8")
    k(f"s_add_u32 s{S_TMP+3}, s{S_TMP+3}, {L_RED5}")
    k(f"v_add_u32 v{PADR+2}, s{S_TMP+3}, v{t}")
    k(f"v_add_u32 v{PADR+4}, {L_RED5+1024}, v{t}")
    k(f"s_mov_b32 s{S_M+4}, 0")
    k(f"s_mov_b32 s{S_M+5}, -1")
    loads = [f"buffer_load_dwordx4 {vr(PG,4)}, v{PADR}, {srd(R_WS)}, s{S_TMP} offen sc1"]
    k(f"s_add_u32 s{S_TMP+5}, s{S_TMP}, {WS_CF - WS_CP}")
    floads = [f"buffer_load_dwordx4 {vr(PG,4)}, v{PADR}, {srd(R_WS)}, s{S_TMP+5} offen sc1"]
    def send_cp(kk):
        kk(f"s_mov_b32 exec_lo, 0x55555555")
        kk(f"s_mov_b32 exec_hi, 0x55555555")
        kk(f"buffer_store_dword v{PKEEP}, v{PKEEP+1}, {srd(R_WS)}, s{S_KEEP} offen sc1")
        kk(f"s_mov_b64 exec, -1")
    gather_loop(k, "cp", loads, lambda kk: sentinel_check(kk, [PG, PG + 1, PG + 2, PG + 3]), 10,
                fast=(floads, 16) if use_fast() else None, after_fast=send_cp if use_fast() else None)
    for ct in range(10):
        k(f"v_mfma_f32_16x16x32_bf16 {vr(PD+4*ct,4)}, {vr(PG,4)}, {vr(PWO+4*ct,4)}, 0")
    for ct in range(10):
        k(f"v_add_f32 v{PD+4*ct}, v{PD+4*ct}, v{PD+4*ct+1}")
        k(f"v_add_f32 v{PD+4*ct+2}, v{PD+4*ct+2}, v{PD+4*ct+3}")
        k(f"v_add_f32 v{PD+4*ct}, v{PD+4*ct}, v{PD+4*ct+2}")
    for u in range(5):
        k(f"v_cndmask_b32 v{PY+u}, v{PD+8*u}, v{PD+8*u+4}, s[{S_M+4}:{S_M+5}]")
    k(f"ds_write2st64_b32 v{PADR+3}, v{PY}, v{PY+1} offset0:0 offset1:1")
    k(f"ds_write2st64_b32 v{PADR+3}, v{PY+2}, v{PY+3} offset0:2 offset1:3")
    k(f"ds_write_b32 v{PADR+3}, v{PY+4} offset:1024")
    k("s_waitcnt lgkmcnt(0)")
    k("s_barrier")
    k(f"ds_read2st64_b32 {vr(t,2)}, v{PADR+2} offset0:0 offset1:5")
    k(f"ds_read2st64_b32 {vr(t+2,2)}, v{PADR+2} offset0:10 offset1:15")
    k(f"ds_read2st64_b32 {vr(t+4,2)}, v{PADR+4} offset0:0 offset1:5")
    k(f"ds_read2st64_b32 {vr(t+6,2)}, v{PADR+4} offset0:10 offset1:15")
    k("s_waitcnt lgkmcnt(2)")
    k(f"v_add_f32 v{t}, v{t}, v{t+1}")
    k(f"v_add_f32 v{t+2}, v{t+2}, v{t+3}")
    k(f"v_add_f32 v{t}, v{t}, v{t+2}")
    k(f"buffer_store_dword v{t}, v{PADR+1}, {srd(R_WS)}, s{S_TMP+2} offen sc1")
    skip = k.label("s5skip")
    k(f"s_cmp_eq_u32 s{S_WAVE}, 0")
    k(f"s_cbranch_scc0 {skip}")
    k("s_waitcnt lgkmcnt(0)")
    k(f"v_add_f32 v{t+4}, v{t+4}, v{t+5}")
    k(f"v_add_f32 v{t+6}, v{t+6}, v{t+7}")
    k(f"v_add_f32 v{t+4}, v{t+4}, v{t+6}")
    k(f"buffer_store_dword v{t+4}, v{PADR+1}, {srd(R_WS)}, s{S_TMP+1} offen sc1")
    k(f"{skip}:")
    k.stamp(11)


S_U = 73 + 7
BQ = 10
BG = 74
BD = 90
BS = 122
BP = 130
BL = 146
BADR = 150
BT = 166
BONE = 186
BAC = 190
BTR = 192
BWF = 194
BA2 = 236
BROW = 240
BWR = 196
S_WFL, S_WFO, S_WFS = 17, 22, 23
AOT_RS = 272
L_AOT = 98304
S_FLG = 14
S_AC = 14 + 2
FIRSTWAIT_AC = 1
S_B, S_G, S_UU = 66, 67, 68


def b_roles(k):
    k(f"s_sub_u32 s{S_JP}, s{S_J}, 4")
    k(f"s_and_b32 s{S_G}, s{S_JP}, 1")
    k(f"s_lshr_b32 s{S_B}, s{S_JP}, 1")
    k(f"s_lshl_b32 s{S_UU}, s{S_JP}, 5")
    k(f"s_add_u32 s{S_UU}, s{S_UU}, s{S_H}")
    k(f"s_and_b32 s{S_F}, s{S_UU}, 63")
    k(f"s_lshr_b32 s{S_TMP}, s{S_UU}, 6")
    k(f"s_add_u32 s{S_ROLE}, s{S_TMP}, 1")
    k(f"s_cmp_lt_u32 s{S_F}, {NF}")
    k(f"s_cselect_b32 s{S_ROLE}, s{S_ROLE}, 3")
    k(f"s_mul_i32 s{S_TMP}, s{S_TMP}, 10")
    k(f"s_add_u32 s{S_Z}, s{S_F}, s{S_TMP}")
    k(f"s_sub_u32 s{S_Z}, s{S_Z}, {NF}")


def clears_B(k):
    t = V_T + 4
    neg = vr(V_NEG1, 4)
    k(f"v_lshlrev_b32 v{t}, 4, v{V_LANE}")
    k(f"s_lshl_b32 s{S_TMP}, s{S_H}, 2")
    k(f"s_add_u32 s{S_TMP}, s{S_TMP}, s{S_JP}")
    k(f"s_lshl_b32 s{S_TMP}, s{S_TMP}, 14")
    k(f"s_add_u32 s{S_TMP}, s{S_TMP}, {WS_AO}")
    k(f"s_mul_i32 s{S_TMP+1}, s{S_WAVE}, 5120")
    k(f"s_add_u32 s{S_TMP}, s{S_TMP}, s{S_TMP+1}")
    k(f"s_sub_u32 s{S_TMP}, s{S_TMP}, 4096")
    for i in range(5):
        off = i * 1024
        if i == 4:
            k(f"s_add_u32 s{S_TMP}, s{S_TMP}, 4096")
            off = 0
        k(f"buffer_store_dwordx4 {neg}, v{t}, {srd(R_WS)}, s{S_TMP} offen offset:{off} sc1")
    sk = k.label("cb")
    k(f"s_cmp_eq_u32 s{S_WAVE}, 1")
    k(f"s_cbranch_scc0 {sk}_2")
    k(f"s_sub_u32 s{S_TMP}, s{S_TMP}, 5120")
    k(f"buffer_store_dwordx4 {neg}, v{t}, {srd(R_WS)}, s{S_TMP} offen sc1")
    k(f"s_branch {sk}")
    k(f"{sk}_2:")
    k(f"s_cmp_eq_u32 s{S_WAVE}, 2")
    k(f"s_cbranch_scc0 {sk}")
    k(f"s_cmp_eq_u32 s{S_ROLE}, 2")
    k(f"s_cbranch_scc0 {sk}")
    k(f"s_mul_i32 s{S_TMP}, s{S_F}, 5120")
    k(f"s_add_u32 s{S_TMP}, s{S_TMP}, {WS_FP}")
    for i in range(5):
        off = i * 1024
        if i == 4:
            k(f"s_add_u32 s{S_TMP}, s{S_TMP}, 4096")
            off = 0
        k(f"buffer_store_dwordx4 {neg}, v{t}, {srd(R_WS)}, s{S_TMP} offen offset:{off} sc1")
    k(f"{sk}:")


def tag_store(k, base, shift, treg, only_wave=None):
    k(f"s_lshl_b32 s{S_TMP+3}, s{S_H}, 2")
    k(f"s_add_u32 s{S_TMP+3}, s{S_TMP+3}, s{S_JP}")
    k(f"s_lshl_b32 s{S_TMP+3}, s{S_TMP+3}, {shift}")
    k(f"s_add_u32 s{S_TMP+3}, s{S_TMP+3}, {base}")
    if only_wave is not None:
        k(f"s_cmp_eq_u32 s{S_WAVE}, {only_wave}")
        k(f"s_cselect_b32 s{S_TMP+3}, s{S_TMP+3}, 0x7f000000")
    k(f"v_mov_b32 v{treg}, s{S_T0}")
    k(f"v_mov_b32 v{treg+1}, s{S_T1}")
    k(f"v_mov_b32 v{treg+2}, 0")
    k(f"s_mov_b64 exec, 1")
    k(f"buffer_store_dwordx2 {vr(treg,2)}, v{treg+2}, {srd(R_WS)}, s{S_TMP+3} offen sc1")
    k(f"s_mov_b64 exec, -1")


def ac_publish(k):
    sk = k.label("acp")
    k(f"s_cmp_eq_u32 s{S_WAVE}, 1")
    k(f"s_cbranch_scc0 {sk}")
    tag_store(k, WS_AC, 3, BT + 2)
    k(f"{sk}:")


S_RO, S_RL = 24, 25


def ckv_setup(k):
    k(f"s_lshl_b32 s{S_RO}, s{S_B}, 12")
    k(f"s_lshl_b32 s{S_TMP+1}, s{S_H}, 7")
    k(f"s_add_u32 s{S_RO}, s{S_RO}, s{S_TMP+1}")
    k(f"s_lshl_b32 s{S_TMP+1}, s{S_WAVE}, 5")
    k(f"s_add_u32 s{S_RO}, s{S_RO}, s{S_TMP+1}")
    k(f"s_lshl_b32 s{S_RO}, s{S_RO}, 10")
    k(f"s_mul_i32 s{S_RL}, s{S_WAVE}, {32*RS}")
    k(f"s_add_u32 s{S_RL}, s{S_RL}, {L_CKV}")
    k(f"v_lshlrev_b32 v{BROW}, 4, v{V_LANE}")
    k(f"s_mul_i32 s{S_TMP+3}, s{S_G}, {16*1024}")
    k(f"s_add_u32 s{S_RO}, s{S_RO}, s{S_TMP+3}")
    k(f"s_mul_i32 s{S_TMP+3}, s{S_G}, {16*RS}")
    k(f"s_add_u32 s{S_RL}, s{S_RL}, s{S_TMP+3}")
    if K.opt.get("g1skip"):
        k(f"s_cmp_eq_u32 s{S_G}, 1")
        k(f"s_cselect_b32 s{R_A+2}, 0, s{R_A+2}")


def flags_setup(k):
    t = V_T + 4
    k(f"v_lshrrev_b32 v{t+1}, 2, v{V_LANE}")
    k(f"v_lshlrev_b32 v{t+1}, 13, v{t+1}")
    k(f"v_and_b32 v{BT}, 3, v{V_LANE}")
    k(f"v_lshl_add_u32 v{BADR+14}, v{BT}, 10, v{t+1}")
    k(f"s_lshl_b32 s{S_FLG}, s{S_G}, 17")
    k(f"s_add_u32 s{S_FLG}, s{S_FLG}, {WS_QP}")
    k(f"v_lshlrev_b32 v{BADR+15}, 3, v{V_LANE}")
    k(f"s_lshl_b32 s{S_AC}, s{S_G}, 9")
    k(f"s_add_u32 s{S_AC}, s{S_AC}, {WS_AC}")


def ckv_rows(k, r0, r1):
    for r in range(r0, r1):
        if r == 8:
            sk = k.label("acw")
            k(f"s_cmp_eq_u32 s{S_WAVE}, 0")
            k(f"s_cbranch_scc1 {sk}")
            k("s_waitcnt vmcnt(8)")
            epoch_tags(k, VE)
            k(f"{sk}:")
            k("s_barrier")
            ac_publish(k)
            flags_setup(k)
        if r == flag_row():
            k(flag_load())
            k(ac_load())
        if r == 16 and K.opt.get("halfstamp"):
            k.stamp(15)
        if r == 24 and K.opt.get("halfstamp"):
            k.stamp(16)
        if r == 16:
            k(f"s_mul_i32 s{S_TMP+3}, s{S_G}, {32*1024}")
            k(f"s_sub_u32 s{S_RO}, s{S_RO}, s{S_TMP+3}")
            k(f"s_mul_i32 s{S_TMP+3}, s{S_G}, {32*RS}")
            k(f"s_sub_u32 s{S_RL}, s{S_RL}, s{S_TMP+3}")
        nin = int(K.opt.get("infl", 8))
        if nin and r >= nin and r != 8:
            k(f"s_waitcnt vmcnt({nin - 1 + (2 if flag_row() <= r < flag_row() + nin else 0)})")
        k(f"s_mov_b32 m0, s{S_RL}")
        k(f"s_add_u32 s{S_RL}, s{S_RL}, {RS}")
        k(f"buffer_load_dwordx4 v{BROW}, {srd(R_A)}, s{S_RO} offen lds")
        k(f"s_add_u32 s{S_RO}, s{S_RO}, 1024")
        if K.opt.get("g1skip") and r == r0 and r0 == 0:
            pass


def early_rows():
    return int(K.opt.get("erows", 0))


def flag_row():
    return int(K.opt.get("frow", FLAG_ROW))


def ntr():
    return 1 if K.opt.get("trig", "0") == "1" else 0


def flag_load():
    return f"buffer_load_dwordx4 {vr(BG,4)}, v{BADR+14}, {srd(R_WS)}, s{S_FLG} offen sc1"


def ac_load():
    return f"buffer_load_dwordx2 {vr(BAC,2)}, v{BADR+15}, {srd(R_WS)}, s{S_AC} offen sc1"


def flags_poll(k):
    gather_loop(k, "fl", [flag_load(), ac_load()], lambda kk: tag_check(kk, [(BG+2, BG+3), (BAC, BAC+1)]), 14, preissued=True, firstwait=32 - flag_row() + ntr())


def wf_load(k, i):
    if K.opt.get("nowf"):
        return
    if i >= int(K.opt.get("wfn", 10)):
        return
    k(f"buffer_load_dwordx4 {vr(BWR+4*i,4)}, v{BWF}, {srd(R_B)}, s{S_WFO} offen")
    if i < 9:
        k(f"s_add_u32 s{S_WFO}, s{S_WFO}, s{S_WFS}")


def attention_setup(k):
    t = BT
    k(f"s_lshl_b32 s{S_TMP}, s{S_WAVE}, 5")
    k(f"v_add_u32 v{t}, s{S_TMP}, v{V_L15}")
    k(f"v_mul_u32_u24 v{t}, {RS}, v{t}")
    k(f"v_lshl_add_u32 v{t}, v{V_SLAB}, 8, v{t}")
    k(f"v_and_b32 v{t+1}, 1, v{V_SLAB}")
    k(f"v_lshlrev_b32 v{t+1}, 4, v{t+1}")
    k(f"s_mul_i32 s{S_TMP}, s{S_G}, {16*RS}")
    k(f"s_sub_u32 s{S_TMP+1}, {16*RS}, s{S_TMP}")
    k(f"v_add_u32 v{BADR}, v{t}, v{t+1}")
    k(f"v_sub_u32 v{BADR+1}, v{t}, v{t+1}")
    k(f"v_add_u32 v{BA2}, s{S_TMP+1}, v{BADR}")
    k(f"v_add_u32 v{BA2+1}, s{S_TMP+1}, v{BADR+1}")
    k(f"v_add_u32 v{BADR}, s{S_TMP}, v{BADR}")
    k(f"v_add_u32 v{BADR+1}, s{S_TMP}, v{BADR+1}")
    k(f"v_mul_u32_u24 v{t}, {RS}, v{V_L15}")
    k(f"v_lshl_add_u32 v{t}, v{V_SLAB}, 8, v{t}")
    k(f"v_add_u32 v{t}, {L_QB}, v{t}")
    k(f"v_add_u32 v{BADR+2}, v{t}, v{t+1}")
    k(f"v_sub_u32 v{BADR+3}, v{t}, v{t+1}")
    k(f"v_lshrrev_b32 v{t}, 2, v{V_L15}")
    k(f"v_lshl_add_u32 v{t}, v{V_SLAB}, 2, v{t}")
    k(f"v_mul_u32_u24 v{t}, {RS}, v{t}")
    k(f"v_and_b32 v{t+1}, 3, v{V_L15}")
    k(f"v_lshl_add_u32 v{t}, v{t+1}, 3, v{t}")
    k(f"s_lshl_b32 s{S_TMP}, s{S_WAVE}, 8")
    k(f"v_add_u32 v{t}, s{S_TMP}, v{t}")
    k(f"s_mul_i32 s{S_TMP}, s{S_G}, {16*RS}")
    k(f"s_sub_u32 s{S_TMP+1}, {16*RS}, s{S_TMP}")
    k(f"v_add_u32 v{BADR+4}, s{S_TMP}, v{t}")
    k(f"v_add_u32 v{BADR+5}, {64*RS}, v{BADR+4}")
    k(f"v_add_u32 v{BA2+2}, s{S_TMP+1}, v{t}")
    k(f"v_add_u32 v{BA2+3}, {64*RS}, v{BA2+2}")
    k(f"v_lshlrev_b32 v{BADR+6}, 4, v0")
    k(f"s_mul_i32 s{S_TMP}, s{S_WAVE}, {RS}")
    k(f"s_add_u32 s{S_TMP}, s{S_TMP}, {L_QB}")
    k(f"v_lshlrev_b32 v{t}, 4, v{V_LANE}")
    k(f"v_add_u32 v{BADR+7}, s{S_TMP}, v{t}")
    k(f"v_lshlrev_b32 v{t+1}, 2, v{V_LANE}")
    k(f"s_lshl_b32 s{S_TMP}, s{S_WAVE}, 8")
    k(f"s_add_u32 s{S_TMP}, s{S_TMP}, {L_MX}")
    k(f"v_add_u32 v{BADR+8}, s{S_TMP}, v{t+1}")
    k(f"v_add_u32 v{BADR+9}, {L_MX}, v{t+1}")
    k(f"s_lshl_b32 s{S_TMP}, s{S_WAVE}, 10")
    k(f"s_add_u32 s{S_TMP}, s{S_TMP}, {L_PB}")
    k(f"v_add_u32 v{BADR+10}, s{S_TMP}, v{t}")
    k(f"v_add_u32 v{BADR+11}, {L_PB}, v{t}")
    k(f"s_mul_i32 s{S_TMP}, s{S_WAVE}, {16*AOT_RS}")
    k(f"s_add_u32 s{S_TMP}, s{S_TMP}, {L_AOT}")
    k(f"v_mul_u32_u24 v{t}, {AOT_RS}, v{V_L15}")
    k(f"v_lshl_add_u32 v{t}, v{V_SLAB}, 4, v{t}")
    k(f"v_add_u32 v{BADR+12}, s{S_TMP}, v{t}")
    k(f"v_lshrrev_b32 v{t}, 3, v{V_LANE}")
    k(f"v_mul_u32_u24 v{t}, {AOT_RS}, v{t}")
    k(f"v_and_b32 v{t+1}, 7, v{V_LANE}")
    k(f"v_lshl_add_u32 v{t}, v{t+1}, 4, v{t}")
    k(f"v_add_u32 v{BTR}, s{S_TMP}, v{t}")
    k(f"v_lshrrev_b32 v{t}, 3, v{V_LANE}")
    k(f"v_lshlrev_b32 v{t}, 16, v{t}")
    k(f"v_lshl_add_u32 v{BTR+1}, v{t+1}, 4, v{t}")
    k(f"v_lshlrev_b32 v{BADR+13}, 9, v{V_L15}")
    for i in range(4):
        k(f"v_mov_b32 v{BONE+i}, 0x3f803f80")


def attention(k):
    t = BT

    def pv_read(tt, u, half):
        r = 128 + (tt * 4 + u) * 4 + 2 * half
        base = (BADR + 4 if half == 0 else BA2 + 2) + (u >> 1)
        k(f"ds_read_b64_tr_b16 {ar(r,2)}, v{base} offset:{L_CKV + (u & 1) * 32 * RS + 32 * tt}")

    def a_read(p):
        for i in range(16):
            base = (BADR if p == 0 else BA2) + (i & 1)
            k(f"ds_read_b128 {ar((p*16+i)*4,4)}, v{base} offset:{L_CKV+i*16}")

    k(f"s_waitcnt vmcnt({18 + ntr()})")
    a_read(0)
    k("s_barrier")
    for tt in range(8):
        for u in range(4):
            pv_read(tt, u, 0)
    if K.opt.get("noflags"):
        k(f"s_waitcnt vmcnt({4 + ntr()})")
    else:
        flags_poll(k)
    k(f"s_lshl_b32 s{S_TMP}, s{S_B}, 15")
    k(f"s_lshl_b32 s{S_TMP+1}, s{S_G}, 14")
    k(f"s_add_u32 s{S_TMP}, s{S_TMP}, s{S_TMP+1}")
    k(f"s_add_u32 s{S_TMP}, s{S_TMP}, {WS_QA}")
    for n in range(1, 4):
        k(f"s_add_u32 s{S_TMP+n}, s{S_TMP}, {4096*n}")
    loads = [f"buffer_load_dwordx4 {vr(BG+4*n,4)}, v{BADR+6}, {srd(R_WS)}, s{S_TMP+n} offen sc1" for n in range(4)]
    for l in loads:
        k(l)
    k(f"s_waitcnt vmcnt({4 + ntr()})")
    k.stamp(4)
    if K.opt.get("bstop"):
        k("s_branch L_done")
    a_read(1)
    gather_check_loop(k, "qa", loads, list(range(BG, BG + 16)), 5, preissued=True)
    for n in range(4):
        k(f"ds_write_b128 v{BADR+7}, {vr(BG+4*n,4)} offset:{4*n*RS}")
    k("s_waitcnt lgkmcnt(0)")
    k("s_barrier")
    for i in range(16):
        k(f"ds_read_b128 {vr(BQ+4*i,4)}, v{BADR+2+(i&1)} offset:{i*16}")
    for i in range(16):
        if i < 8:
            k(f"s_waitcnt lgkmcnt({15-i})")
        elif i == 8:
            k("s_waitcnt lgkmcnt(0)")
        for p in range(2):
            c = "0" if i == 0 else vr(BS + 4 * p, 4)
            k(f"v_mfma_f32_16x16x32_bf16 {vr(BS+4*p,4)}, {ar((p*16+i)*4,4)}, {vr(BQ+4*i,4)}, {c}")
        if i >= 8:
            for u in range(4):
                pv_read(i - 8, u, 1)
        if (i & 1) and (i >> 1) < NWF_EARLY:
            wf_load(k, i >> 1)
    k.nop(8)
    k.stamp(6)
    k(f"v_max3_f32 v{t}, v{BS}, v{BS+1}, v{BS+2}")
    k(f"v_max3_f32 v{t+1}, v{BS+3}, v{BS+4}, v{BS+5}")
    k(f"v_max3_f32 v{t}, v{t}, v{BS+6}, v{BS+7}")
    k(f"v_max_f32 v{t}, v{t}, v{t+1}")
    for sw in ("v_permlane16_swap_b32", "v_permlane32_swap_b32"):
        k(f"v_mov_b32 v{t+1}, v{t}")
        k.nop(2)
        k(f"{sw} v{t}, v{t+1}")
        k.nop(1)
        k(f"v_max_f32 v{t}, v{t}, v{t+1}")
    k(f"ds_write_b32 v{BADR+8}, v{t}")
    k("s_waitcnt lgkmcnt(0)")
    k("s_barrier")
    k(f"ds_read2st64_b32 {vr(t,2)}, v{BADR+9} offset0:0 offset1:1")
    k(f"ds_read2st64_b32 {vr(t+2,2)}, v{BADR+9} offset0:2 offset1:3")
    k("s_waitcnt lgkmcnt(0)")
    k(f"v_max3_f32 v{t}, v{t}, v{t+1}, v{t+2}")
    k(f"v_max_f32 v{t+4}, v{t}, v{t+3}")
    for i in range(8):
        k(f"v_sub_f32 v{BS+i}, v{BS+i}, v{t+4}")
    for i in range(8):
        k(f"v_exp_f32 v{BS+i}, v{BS+i}")
    k.nop(1)
    for i in range(4):
        k(f"v_cvt_pk_bf16_f32 v{t+i}, v{BS+2*i}, v{BS+2*i+1}")
    k(f"ds_write_b128 v{BADR+10}, {vr(t,4)}")
    k("s_waitcnt lgkmcnt(0)")
    k("s_barrier")
    k.stamp(7)
    for u in range(4):
        k(f"ds_read_b128 {vr(BP+4*u,4)}, v{BADR+11} offset:{1024*u}")
    k(f"s_lshl_b32 s{S_TMP}, s{S_G}, 20")
    k(f"s_lshl_b32 s{S_TMP+1}, s{S_WAVE}, 14")
    k(f"s_add_u32 s{S_TMP}, s{S_TMP}, s{S_TMP+1}")
    k(f"s_lshl_b32 s{S_TMP+1}, s{S_B}, 5")
    k(f"s_add_u32 s{S_TMP+1}, s{S_TMP+1}, s{S_H}")
    k(f"s_lshl_b32 s{S_TMP+2}, s{S_TMP+1}, 8")
    k(f"s_add_u32 s{S_TMP}, s{S_TMP}, s{S_TMP+2}")
    k(f"s_add_u32 s{S_TMP}, s{S_TMP}, {WS_AO}")
    k(f"s_lshl_b32 s{S_TMP+1}, s{S_TMP+1}, 3")
    k(f"s_lshl_b32 s{S_TMP+2}, s{S_G}, 13")
    k(f"s_add_u32 s{S_TMP+1}, s{S_TMP+1}, s{S_TMP+2}")
    k(f"s_add_u32 s{S_TMP+1}, s{S_TMP+1}, {WS_ST}")
    def conv(up):
        r = BQ + 4 * up
        return [f"v_cvt_pk_bf16_f32 v{r}, v{BD+8*up}, v{BD+8*up+1}",
                f"v_cvt_pk_bf16_f32 v{r+1}, v{BD+8*up+2}, v{BD+8*up+3}",
                f"v_cvt_pk_bf16_f32 v{r+2}, v{BD+8*up+4}, v{BD+8*up+5}",
                f"v_cvt_pk_bf16_f32 v{r+3}, v{BD+8*up+6}, v{BD+8*up+7}",
                f"ds_write_b128 v{BADR+12}, {vr(r,4)} offset:{64*up}"]

    def half_read(y):
        return [f"ds_read_b128 {vr(BQ+16+8*y+4*x,4)}, v{BTR} offset:{x*8*AOT_RS + y*128}" for x in range(2)]

    def half_store(y, x):
        return f"buffer_store_dwordx4 {vr(BQ+16+8*y+4*x,4)}, v{BTR+1}, {srd(R_WS)}, s{S_TMP+2*x} offen offset:{y*128} sc1"

    k(f"s_add_u32 s{S_TMP+2}, s{S_TMP}, {8*65536}")
    k(f"s_cmp_eq_u32 s{S_WAVE}, 0")
    k(f"s_cselect_b32 s{S_TMP+1}, s{S_TMP+1}, 0x7f000000")
    for u in range(4):
        k(f"s_waitcnt lgkmcnt({3-u})")
        c = "0" if u == 0 else vr(BL, 4)
        k(f"v_mfma_f32_16x16x32_bf16 {vr(BL,4)}, {vr(BONE,4)}, {vr(BP+4*u,4)}, {c}")
    for up in range(4):
        extra = conv(up - 2) if up >= 2 else []
        if up == 1:
            extra = [f"v_mov_b32 v{t+5}, v{BL}",
                     f"s_mov_b64 exec, 0xffff\nbuffer_store_dwordx2 {vr(t+4,2)}, v{BADR+13}, {srd(R_WS)}, s{S_TMP+1} offen sc1\ns_mov_b64 exec, -1\ns_nop 3"]
        for u in range(4):
            for tt in (2 * up, 2 * up + 1):
                c = "0" if u == 0 else vr(BD + 4 * tt, 4)
                k(f"v_mfma_f32_16x16x32_bf16 {vr(BD+4*tt,4)}, {ar(128+(tt*4+u)*4,4)}, {vr(BP+4*u,4)}, {c}")
                if extra:
                    k(extra.pop(0))
    k("s_waitcnt lgkmcnt(0)")
    for l in half_read(0):
        k(l)
    for l in conv(2):
        k(l)
    k.nop(1)
    for l in conv(3):
        k(l)
    k("s_waitcnt lgkmcnt(3)")
    k(half_store(0, 0))
    k("s_waitcnt lgkmcnt(2)")
    k(half_store(0, 1))
    k("s_waitcnt lgkmcnt(0)")
    for l in half_read(1):
        k(l)
    k("s_waitcnt lgkmcnt(1)")
    k(half_store(1, 0))
    k("s_waitcnt lgkmcnt(0)")
    k(half_store(1, 1))
    for i in range(NWF_EARLY, 10):
        wf_load(k, i)
    k.stamp(8)
    if K.opt.get("aoack"):
        k("s_waitcnt vmcnt(0)")
        k.stamp(17)


def silu(k, v, t):
    k(f"v_mul_f32 v{t}, 0xbfb8aa3b, v{v}")
    k(f"v_exp_f32 v{t}, v{t}")
    k.nop(1)
    k(f"v_add_f32 v{t}, 1.0, v{t}")
    k(f"v_rcp_f32 v{t}, v{t}")
    k.nop(1)
    k(f"v_mul_f32 v{v}, v{v}, v{t}")


def round_bf16(k, v):
    k(f"v_cvt_pk_bf16_f32 v{v}, v{v}, v{v}")
    k(f"v_and_b32 v{v}, 0xffff0000, v{v}")


FW1 = 10
FW2 = 50
FX = 90
FD = 110
FH = 150
FADR = 176
FT = 166


def wf_setup(k):
    k(f"s_mul_i32 s{S_WFL}, s{S_WAVE}, 10240")
    k(f"s_add_u32 s{S_WFL}, s{S_WFL}, {L_WF}")
    k.srd(R_B, S_W2, 1728 * 640 * 2)
    k(f"s_cmp_eq_u32 s{S_ROLE}, 2")
    k(f"s_cselect_b32 s{R_B+2}, {1728 * 640 * 2}, 0")
    k(f"v_lshlrev_b32 v{BWF}, 4, v{V_LANE}")
    k(f"s_mul_i32 s{S_WFO}, s{S_F}, 40960")
    k(f"s_mul_i32 s{S_TMP}, s{S_WAVE}, 10240")
    k(f"s_add_u32 s{S_WFO}, s{S_WFO}, s{S_TMP}")
    k(f"s_mov_b32 s{S_WFS}, 1024")


def ffn1(k):
    t = FT
    k(f"v_and_b32 v{t}, 1, v{V_LANE}")
    k(f"v_mul_u32_u24 v{t}, 1280, v{t}")
    k(f"v_lshl_add_u32 v{t}, v{V_SLAB}, 3, v{t}")
    k(f"s_mul_i32 s{S_TMP}, s{S_WAVE}, 320")
    k(f"s_add_u32 s{S_TMP}, s{S_TMP}, {L_XN}")
    k(f"v_add_u32 v{FADR}, s{S_TMP}, v{t}")
    for i in range(5):
        k(f"ds_read_b64 {vr(FX+4*i,2)}, v{FADR} offset:{64*i}")
        k(f"ds_read_b64 {vr(FX+4*i+2,2)}, v{FADR} offset:{64*i+32}")
    k(f"v_lshrrev_b32 v{t}, 2, v{V_L15}")
    k(f"v_lshl_add_u32 v{t}, v{V_SLAB}, 2, v{t}")
    k(f"v_and_b32 v{t+1}, 3, v{V_L15}")
    k(f"v_lshlrev_b32 v{t+2}, 6, v{t}")
    k(f"v_lshl_add_u32 v{t+2}, v{t+1}, 3, v{t+2}")
    k(f"s_mul_i32 s{S_TMP}, s{S_WAVE}, 10240")
    k(f"s_add_u32 s{S_TMP}, s{S_TMP}, {L_WF}")
    k(f"v_add_u32 v{FADR+1}, s{S_TMP}, v{t+2}")
    k(f"v_lshlrev_b32 v{t+2}, 2, v{V_LANE}")
    k(f"s_lshl_b32 s{S_TMP}, s{S_WAVE}, 8")
    k(f"s_add_u32 s{S_TMP}, s{S_TMP}, {L_FRED}")
    k(f"v_add_u32 v{FADR+3}, s{S_TMP}, v{t+2}")
    k(f"v_add_u32 v{FADR+4}, {L_FRED}, v{t+2}")
    k(f"v_lshrrev_b32 v{t+2}, 2, v{V_L15}")
    k(f"v_lshlrev_b32 v{t+2}, 1, v{t+2}")
    k(f"v_lshrrev_b32 v{t+3}, 1, v{V_SLAB}")
    k(f"v_add_u32 v{t+2}, v{t+2}, v{t+3}")
    k(f"v_and_b32 v{t+3}, 1, v{V_SLAB}")
    k(f"v_lshl_add_u32 v{t+2}, v{t+3}, 3, v{t+2}")
    k(f"v_lshlrev_b32 v{FADR+5}, 4, v{t+2}")
    k(f"s_lshl_b32 s{S_TMP+2}, s{S_F}, 8")
    k(f"s_add_u32 s{S_TMP+2}, s{S_TMP+2}, {WS_HO}")
    k(f"s_mov_b32 s{S_M+2}, 0xffff0000")
    k(f"s_mov_b32 s{S_M+3}, 0xffff0000")
    k(f"s_mov_b32 s{S_M+4}, 0")
    k(f"s_mov_b32 s{S_M+5}, -1")
    k("s_waitcnt vmcnt(5)")
    k(f"v_lshlrev_b32 v{t+9}, 4, v{V_LANE}")
    k(f"v_add_u32 v{t+9}, s{S_WFL}, v{t+9}")
    for i in range(10):
        k(f"ds_write_b128 v{t+9}, {vr(BWR+4*i,4)} offset:{1024*i}")
    k("s_waitcnt lgkmcnt(0)")
    k.stamp(9)
    for i in range(5):
        for ct in range(2):
            r = FW1 + (i * 2 + ct) * 4
            k(f"ds_read_b64_tr_b16 {vr(r,2)}, v{FADR+1} offset:{i*2048+32*ct}")
            k(f"ds_read_b64_tr_b16 {vr(r+2,2)}, v{FADR+1} offset:{i*2048+32*ct+1024}")
    k("s_waitcnt lgkmcnt(0)")
    for i in range(5):
        for ct in range(2):
            c = "0" if i == 0 else vr(FD + 4 * ct, 4)
            k(f"v_mfma_f32_16x16x32_bf16 {vr(FD+4*ct,4)}, {vr(FX+4*i,4)}, {vr(FW1+(i*2+ct)*4,4)}, {c}")
    k.nop(8)
    k(f"v_cndmask_b32 v{t}, v{FD}, v{FD+1}, s[{S_M+2}:{S_M+3}]")
    k(f"v_cndmask_b32 v{t+1}, v{FD+4}, v{FD+5}, s[{S_M+2}:{S_M+3}]")
    k(f"v_cndmask_b32 v{t}, v{t}, v{t+1}, s[{S_M+4}:{S_M+5}]")
    k(f"ds_write_b32 v{FADR+3}, v{t}")
    k("s_waitcnt lgkmcnt(0)")
    k("s_barrier")
    sk = k.label("f1")
    k(f"s_cmp_eq_u32 s{S_WAVE}, 0")
    k(f"s_cbranch_scc0 {sk}")
    k(f"ds_read2st64_b32 {vr(t,2)}, v{FADR+4} offset0:0 offset1:1")
    k(f"ds_read2st64_b32 {vr(t+2,2)}, v{FADR+4} offset0:2 offset1:3")
    k("s_waitcnt lgkmcnt(0)")
    k(f"v_add_f32 v{t}, v{t}, v{t+1}")
    k(f"v_add_f32 v{t+2}, v{t+2}, v{t+3}")
    k(f"v_add_f32 v{t}, v{t}, v{t+2}")
    round_bf16(k, t)
    silu(k, t, t + 1)
    k(f"v_cvt_pk_bf16_f32 v{t}, v{t}, v{t}")
    k(f"v_and_b32 v{t}, 0xffff, v{t}")
    k.nop(2)
    k(f"v_mov_b32_dpp v{t+1}, v{t} quad_perm:[1,0,3,2] row_mask:0xf bank_mask:0xf")
    k(f"v_lshl_or_b32 v{t+2}, v{t+1}, 16, v{t}")
    k.nop(2)
    k(f"v_mov_b32_dpp v{t+3}, v{t+2} quad_perm:[2,3,0,1] row_mask:0xf bank_mask:0xf")
    k(f"v_mov_b32 v{t+4}, s{S_T0}")
    k(f"v_mov_b32 v{t+5}, s{S_T1}")
    k(f"s_mov_b32 exec_lo, 0x11111111")
    k(f"s_mov_b32 exec_hi, 0x11111111")
    k(f"buffer_store_dwordx4 {vr(t+2,4)}, v{FADR+5}, {srd(R_WS)}, s{S_TMP+2} offen sc1")
    k(f"s_mov_b64 exec, -1")
    k(f"{sk}:")
    k.stamp(10)


def ffn2(k):
    t = FT
    k(f"v_lshrrev_b32 v{t}, 2, v{V_L15}")
    k(f"v_lshl_add_u32 v{t}, v{V_SLAB}, 2, v{t}")
    k(f"v_and_b32 v{t+1}, 3, v{V_L15}")
    k(f"v_mul_u32_u24 v{t+2}, {W2RS}, v{t}")
    k(f"v_lshl_add_u32 v{t+2}, v{t+1}, 3, v{t+2}")
    k(f"s_mul_i32 s{S_TMP}, s{S_WAVE}, 320")
    k(f"s_add_u32 s{S_TMP}, s{S_TMP}, {L_WF}")
    k(f"v_add_u32 v{FADR+2}, s{S_TMP}, v{t+2}")
    k(f"v_lshrrev_b32 v{t+2}, 5, v{V_LANE}")
    k(f"v_lshlrev_b32 v{t+2}, 10, v{t+2}")
    k(f"v_and_b32 v{t+3}, 31, v{V_LANE}")
    k(f"v_lshl_add_u32 v{FADR+6}, v{t+3}, 4, v{t+2}")
    k(f"s_lshr_b32 s{S_TMP+3}, s{S_F}, 1")
    k(f"s_lshl_b32 s{S_TMP+3}, s{S_TMP+3}, 12")
    k(f"s_and_b32 s{S_TMP+4}, s{S_F}, 1")
    k(f"s_lshl_b32 s{S_TMP+4}, s{S_TMP+4}, 9")
    k(f"s_add_u32 s{S_TMP+3}, s{S_TMP+3}, s{S_TMP+4}")
    k(f"s_add_u32 s{S_TMP+3}, s{S_TMP+3}, {WS_HP}")
    k(f"v_bfe_u32 v{t+2}, v{V_LANE}, 2, 2")
    k(f"v_lshlrev_b32 v{t+2}, 3, v{t+2}")
    k(f"v_bfe_u32 v{t+3}, v{V_LANE}, 4, 1")
    k(f"v_lshl_add_u32 v{t+2}, v{t+3}, 2, v{t+2}")
    k(f"v_and_b32 v{t+3}, 3, v{V_LANE}")
    k(f"v_add_u32 v{t+2}, v{t+2}, v{t+3}")
    k(f"v_lshrrev_b32 v{t+3}, 5, v{V_LANE}")
    k(f"v_lshl_add_u32 v{t+2}, v{t+3}, 5, v{t+2}")
    k(f"v_lshlrev_b32 v{t+2}, 1, v{t+2}")
    k(f"s_lshl_b32 s{S_TMP+4}, s{S_WAVE}, 7")
    k(f"s_add_u32 s{S_TMP+4}, s{S_TMP+4}, {L_FRED}")
    k(f"v_add_u32 v{FADR+3}, s{S_TMP+4}, v{t+2}")
    k(f"v_and_b32 v{t+2}, 1, v{V_LANE}")
    k(f"v_lshlrev_b32 v{t+2}, 6, v{t+2}")
    k(f"v_lshl_add_u32 v{t+2}, v{V_SLAB}, 4, v{t+2}")
    k(f"v_add_u32 v{FADR+4}, s{S_TMP+4}, v{t+2}")
    k(f"v_lshlrev_b32 v{FADR+7}, 3, v{V_LANE}")
    k(f"s_mul_i32 s{S_TMP+2}, s{S_F}, 5120")
    k(f"s_mul_i32 s{S_TMP+1}, s{S_WAVE}, 1280")
    k(f"s_add_u32 s{S_TMP+2}, s{S_TMP+2}, s{S_TMP+1}")
    k(f"s_add_u32 s{S_TMP+2}, s{S_TMP+2}, {WS_FP}")
    k(f"s_mov_b32 s{S_M+2}, 0xffff0000")
    k(f"s_mov_b32 s{S_M+3}, 0xffff0000")
    k(f"s_mov_b32 s{S_M+4}, 0")
    k(f"s_mov_b32 s{S_M+5}, -1")
    H = FH + 2
    loads = [f"buffer_load_dwordx4 {vr(H,4)}, v{FADR+6}, {srd(R_WS)}, s{S_TMP+3} offen sc1",
             f"buffer_load_dwordx4 {vr(H+4,4)}, v{FADR+6}, {srd(R_WS)}, s{S_TMP+3} offen offset:2048 sc1"]
    for l in loads:
        k(l)
    k(f"s_mul_i32 s{S_TMP+4}, s{S_WAVE}, {8*W2RS}")
    k(f"s_add_u32 s{S_TMP+4}, s{S_TMP+4}, {L_WF}")
    k(f"s_movk_i32 s{S_TMP+1}, 205")
    for i in range(10):
        k(f"v_add_u32 v{t+8}, {64*i}, v{V_LANE}")
        k(f"v_mul_u32_u24 v{t+9}, s{S_TMP+1}, v{t+8}")
        k(f"v_lshrrev_b32 v{t+9}, 14, v{t+9}")
        k(f"v_lshlrev_b32 v{t+9}, 5, v{t+9}")
        k(f"v_lshl_add_u32 v{t+9}, v{t+8}, 4, v{t+9}")
        k(f"v_add_u32 v{FX+i}, s{S_TMP+4}, v{t+9}")
    k("s_waitcnt vmcnt(11)")
    for i in range(NWF_EARLY):
        k(f"ds_write_b128 v{FX+i}, {vr(BWR+4*i,4)}")
    k("s_waitcnt vmcnt(2)")
    for i in range(NWF_EARLY, 10):
        k(f"ds_write_b128 v{FX+i}, {vr(BWR+4*i,4)}")
    gather_loop(k, "ho", loads, lambda kk: tag_check(kk, [(H+2, H+3), (H+6, H+7)]), 10, preissued=True)
    k(f"v_add_f32 v{H}, v{H}, v{H+4}")
    k(f"v_add_f32 v{H+1}, v{H+1}, v{H+5}")
    k.nop(2)
    k(f"v_permlane32_swap_b32 v{H}, v{H+1}")
    k.nop(1)
    k(f"v_add_f32 v{H}, v{H}, v{H+1}")
    round_bf16(k, H)
    silu(k, H, H + 1)
    k(f"v_cvt_pk_bf16_f32 v{H}, v{H}, v{H}")
    k(f"ds_write_b16 v{FADR+3}, v{H}")
    k("s_waitcnt lgkmcnt(0)")
    k("s_barrier")
    k.stamp(9)
    k(f"ds_read_b128 {vr(H,4)}, v{FADR+4}")
    for ct in range(10):
        r = FW2 + 4 * ct
        k(f"ds_read_b64_tr_b16 {vr(r,2)}, v{FADR+2} offset:{32*ct}")
        k(f"ds_read_b64_tr_b16 {vr(r+2,2)}, v{FADR+2} offset:{32*ct+16*W2RS}")
    k("s_waitcnt lgkmcnt(0)")
    for ct in range(10):
        k(f"v_mfma_f32_16x16x32_bf16 {vr(FD+4*ct,4)}, {vr(H,4)}, {vr(FW2+4*ct,4)}, 0")
    k.nop(8)
    for q in range(3):
        for bb in range(2):
            a0, a1 = FD + 16 * q + bb, FD + 16 * q + 4 + bb
            k(f"v_cndmask_b32 v{t+2*q+bb}, v{a0}, v{a1}, s[{S_M+2}:{S_M+3}]")
            if q < 2:
                a2, a3 = FD + 16 * q + 8 + bb, FD + 16 * q + 12 + bb
                k(f"v_cndmask_b32 v{t+8}, v{a2}, v{a3}, s[{S_M+2}:{S_M+3}]")
                k(f"v_cndmask_b32 v{t+2*q+bb}, v{t+2*q+bb}, v{t+8}, s[{S_M+4}:{S_M+5}]")
    k(f"buffer_store_dwordx2 {vr(t,2)}, v{FADR+7}, {srd(R_WS)}, s{S_TMP+2} offen sc1")
    k(f"buffer_store_dwordx2 {vr(t+2,2)}, v{FADR+7}, {srd(R_WS)}, s{S_TMP+2} offen offset:512 sc1")
    k(f"s_mov_b32 exec_hi, 0")
    k(f"buffer_store_dwordx2 {vr(t+4,2)}, v{FADR+7}, {srd(R_WS)}, s{S_TMP+2} offen offset:1024 sc1")
    k(f"s_mov_b64 exec, -1")
    k.stamp(11)


ZG = 10
ZT = 44


def tree_reduce4(k, g, t):
    k.nop(2)
    k(f"v_permlane32_swap_b32 v{g}, v{g+2}")
    k(f"v_permlane32_swap_b32 v{g+1}, v{g+3}")
    k.nop(1)
    k(f"v_add_f32 v{g}, v{g}, v{g+2}")
    k(f"v_add_f32 v{g+1}, v{g+1}, v{g+3}")
    k.nop(2)
    k(f"v_permlane16_swap_b32 v{g}, v{g+1}")
    k.nop(1)
    k(f"v_add_f32 v{t}, v{g}, v{g+1}")
    k.nop(2)
    k(f"v_add_f32_dpp v{t}, v{t}, v{t} row_ror:8 row_mask:0xf bank_mask:0xf")


def final(k):
    t = ZT
    k(f"s_lshl_b32 s{S_TMP}, s{S_Z}, 1")
    k(f"s_and_b32 s{S_TMP+1}, s{S_WAVE}, 1")
    k(f"s_add_u32 s{S_TMP}, s{S_TMP}, s{S_TMP+1}")
    k(f"s_lshl_b32 s{S_TMP+1}, s{S_TMP+1}, 8")
    k(f"s_add_u32 s{S_TMP+1}, s{S_TMP+1}, {L_FRED}")
    k(f"v_lshlrev_b32 v{t+11}, 2, v{V_LANE}")
    k(f"v_add_u32 v{t+11}, s{S_TMP+1}, v{t+11}")
    k(f"v_and_b32 v{t}, 7, v{V_LANE}")
    k(f"v_lshrrev_b32 v{t+1}, 1, v{V_SLAB}")
    k(f"v_lshl_add_u32 v{t}, v{t}, 1, v{t+1}")
    k(f"v_and_b32 v{t+1}, 1, v{V_SLAB}")
    k(f"v_mul_u32_u24 v{t+1}, 640, v{t+1}")
    k(f"v_add_u32 v{t}, v{t}, v{t+1}")
    k(f"v_lshlrev_b32 v{t}, 1, v{t}")
    k(f"s_lshl_b32 s{S_TMP+1}, s{S_TMP}, 5")
    k(f"buffer_load_ushort v{t+2}, v{t}, {srd(R_X)}, s{S_TMP+1} offen")
    k(f"v_and_b32 v{t+3}, 7, v{V_LANE}")
    k(f"v_lshlrev_b32 v{t+3}, 2, v{t+3}")
    k(f"v_and_b32 v{t+4}, 1, v{V_SLAB}")
    k(f"v_mul_u32_u24 v{t+4}, 1280, v{t+4}")
    k(f"v_add_u32 v{t+3}, v{t+3}, v{t+4}")
    k(f"v_lshrrev_b32 v{t+4}, 3, v{V_LANE}")
    k(f"v_mul_u32_u24 v{t+4}, 5120, v{t+4}")
    k(f"v_and_b32 v{t+5}, 7, v{V_LANE}")
    k(f"v_lshl_add_u32 v{t+4}, v{t+5}, 4, v{t+4}")
    k(f"s_lshl_b32 s{S_TMP+2}, s{S_TMP}, 7")
    k(f"v_lshrrev_b32 v{t+5}, 2, v{V_LANE}")
    k(f"v_lshlrev_b32 v{t+5}, 13, v{t+5}")
    k(f"v_and_b32 v{t+6}, 3, v{V_LANE}")
    k(f"v_lshl_add_u32 v{t+5}, v{t+6}, 10, v{t+5}")
    loads = []
    for i in range(2):
        k(f"s_mov_b32 s{4+i}, {WS_QP + i*16*8192}")
        loads.append(f"buffer_load_dwordx4 {vr(ZG+4*i,4)}, v{t+5}, {srd(R_WS)}, s{4+i} offen sc1")
    gather_loop(k, "zf", loads, lambda kk: tag_check(kk, [(ZG+4*i+2, ZG+4*i+3) for i in range(2)]))
    k(f"s_cmp_ge_u32 s{S_WAVE}, 2")
    k(f"s_cbranch_scc1 L_Z_s")
    k(f"v_cmp_gt_u32 vcc, {NF}, v{V_LANE}")
    k.nop(2)
    k(f"v_cndmask_b32 v{t+5}, 0, v{V_LANE}, vcc")
    k(f"v_bfe_u32 v{t+6}, v{t+5}, 5, 1")
    k(f"v_lshlrev_b32 v{t+6}, 13, v{t+6}")
    k(f"v_and_b32 v{t+5}, 31, v{t+5}")
    k(f"v_lshl_add_u32 v{t+5}, v{t+5}, 3, v{t+6}")
    k(f"s_mov_b32 s4, {WS_ST + 256}")
    gather_check_loop(k, "zs", [f"buffer_load_dwordx2 {vr(ZG,2)}, v{t+5}, {srd(R_WS)}, s4 offen sc1"], [ZG, ZG + 1])
    k(f"s_add_u32 s{S_TMP+3}, s{S_TMP+2}, {WS_FP}")
    k(f"v_add_u32 v{t+5}, s{S_TMP+3}, v{t+4}")
    k(f"v_add_u32 v{t+6}, {48*5120}, v{t+5}")
    k(f"v_cmp_gt_u32 vcc, 48, v{V_LANE}")
    k(f"s_mov_b64 s[{S_M+2}:{S_M+3}], vcc")
    k.nop(2)
    k(f"v_cndmask_b32 v{t+6}, v{t+5}, v{t+6}, vcc")
    loads = []
    for i in range(6):
        k(f"s_mov_b32 s{4+i}, {i*8*5120}")
        loads.append(f"buffer_load_dwordx4 {vr(ZG+4*i,4)}, v{t+5}, {srd(R_WS)}, s{4+i} offen sc1")
    last = f"buffer_load_dwordx4 {vr(ZG+24,4)}, v{t+6}, {srd(R_WS)}, 0 offen sc1"
    gather_check_loop(k, "fp", loads + [last], list(range(ZG, ZG + 28)), 14)
    for c in range(4):
        k(f"v_cndmask_b32 v{ZG+24+c}, 0, v{ZG+24+c}, s[{S_M+2}:{S_M+3}]")
    for c in range(4):
        k(f"v_add_f32 v{ZG+c}, v{ZG+c}, v{ZG+4+c}")
        k(f"v_add_f32 v{ZG+8+c}, v{ZG+8+c}, v{ZG+12+c}")
        k(f"v_add_f32 v{ZG+16+c}, v{ZG+16+c}, v{ZG+20+c}")
    for c in range(4):
        k(f"v_add_f32 v{ZG+c}, v{ZG+c}, v{ZG+8+c}")
        k(f"v_add_f32 v{ZG+16+c}, v{ZG+16+c}, v{ZG+24+c}")
    for c in range(4):
        k(f"v_add_f32 v{ZG+c}, v{ZG+c}, v{ZG+16+c}")
    tree_reduce4(k, ZG, t + 8)
    round_bf16(k, t + 8)
    silu(k, t + 8, t + 9)
    round_bf16(k, t + 8)
    k(f"ds_write_b32 v{t+11}, v{t+8}")
    k("s_waitcnt lgkmcnt(0)")
    k("s_barrier")
    k("s_branch L_done")
    k("L_Z_s:")
    k(f"v_lshlrev_b32 v{t+2}, 16, v{t+2}")
    k(f"s_add_u32 s{S_TMP+3}, s{S_TMP+2}, {WS_SP}")
    k(f"v_add_u32 v{t+5}, s{S_TMP+3}, v{t+4}")
    loads = []
    for i in range(4):
        k(f"s_mov_b32 s{4+i}, {i*8*5120}")
        loads.append(f"buffer_load_dwordx4 {vr(ZG+4*i,4)}, v{t+5}, {srd(R_WS)}, s{4+i} offen sc1")
    gather_check_loop(k, "sp", loads, list(range(ZG, ZG + 16)), 15)
    skip = k.label("ep")
    k(f"s_cmp_eq_u32 s{S_TMP}, 0")
    k(f"s_cbranch_scc0 {skip}")
    k(f"v_mov_b32 v{t}, 0")
    k(f"v_mov_b32 v{t+1}, s{S_T0}")
    k(f"s_mov_b64 exec, 1")
    k(f"buffer_store_dword v{t+1}, v{t}, {srd(R_WS)}, 0 offen offset:{WS_EPOCH}")
    k(f"s_mov_b64 exec, -1")
    k(f"{skip}:")
    for c in range(4):
        k(f"v_add_f32 v{ZG+c}, v{ZG+c}, v{ZG+4+c}")
        k(f"v_add_f32 v{ZG+8+c}, v{ZG+8+c}, v{ZG+12+c}")
    for c in range(4):
        k(f"v_add_f32 v{ZG+c}, v{ZG+c}, v{ZG+8+c}")
    tree_reduce4(k, ZG, t + 9)
    round_bf16(k, t + 9)
    k("s_barrier")
    k(f"ds_read_b32 v{t+8}, v{t+11}")
    k("s_waitcnt lgkmcnt(0)")
    k(f"v_mul_f32 v{t+9}, v{t+9}, v{t+8}")
    round_bf16(k, t + 9)
    k(f"v_add_f32 v{t+9}, v{t+9}, v{t+2}")
    k(f"v_cvt_pk_bf16_f32 v{t+9}, v{t+9}, v{t+9}")
    k(f"v_mov_b32 v{t+10}, v{t+9}")
    k.nop(2)
    k(f"v_permlane32_swap_b32 v{t+9}, v{t+10}")
    k.nop(1)
    k(f"v_and_b32 v{t+9}, 0xffff, v{t+9}")
    k(f"v_lshl_or_b32 v{t+9}, v{t+10}, 16, v{t+9}")
    k(f"s_mov_b32 exec_lo, 0x00ff00ff")
    k(f"s_mov_b32 exec_hi, 0")
    k(f"s_lshl_b32 s{S_TMP+1}, s{S_TMP}, 5")
    k(f"buffer_store_dword v{t+9}, v{t+3}, {srd(R_OUT)}, s{S_TMP+1} offen")
    k(f"s_mov_b64 exec, -1")
    k.stamp(16)
    if K.opt.get("diag"):
        sk = k.label("dg")
        k(f"s_cmp_eq_u32 s{S_TMP}, 0")
        k(f"s_cbranch_scc0 {sk}")
        k(f"v_mov_b32 v{t}, 0")
        k(f"buffer_load_dword v{t+1}, v{t}, s[92:95], 0 offen sc1")
        k("s_waitcnt vmcnt(0)")
        k(f"v_readfirstlane_b32 s96, v{t+1}")
        k("s_memrealtime s[98:99]")
        k("s_waitcnt lgkmcnt(0)")
        k("s_not_b32 s96, s96")
        k("s_sub_u32 s97, s98, s96")
        mode = K.opt["diag"]
        if mode == "k0":
            k("s_mov_b32 s97, 0")
        elif mode == "k1":
            pass
        elif mode == "t1000":
            k("s_mov_b32 s97, 1000")
        if mode.startswith("cyc"):
            n = int(mode[3:])
            k(f"s_mov_b32 s97, {n}")
            lp = k.label("cy")
            k(f"{lp}:")
            k("s_nop 15")
            k("s_nop 15")
            k("s_sub_u32 s97, s97, 1")
            k("s_cmp_lg_u32 s97, 0")
            k(f"s_cbranch_scc1 {lp}")
        else:
            k("s_min_u32 s97, s97, 20000")
            k("s_add_u32 s97, s97, s98")
            lp = k.label("sp")
            k(f"{lp}:")
            k("s_memrealtime s[98:99]")
            k("s_waitcnt lgkmcnt(0)")
            k("s_sub_u32 s96, s97, s98")
            k("s_cmp_gt_i32 s96, 0")
            k(f"s_cbranch_scc1 {lp}")
        k(f"{sk}:")


def dump_stamps(k):
    if not k.stamps:
        return
    k("s_waitcnt vmcnt(0) lgkmcnt(0)")
    k.stamp(19)
    k(f"s_lshl_b32 s{S_TMP}, s2, 2")
    k(f"s_add_u32 s{S_TMP}, s{S_TMP}, s{S_WAVE}")
    k(f"s_lshl_b32 s{S_TMP}, s{S_TMP}, 7")
    k(f"s_add_u32 s{S_TMP}, s{S_TMP}, {WS_STAMP}")
    for i in range(20):
        k(f"v_mov_b32 v{10+i}, s{S_STAMP+i}")
    k(f"s_getreg_b32 s{S_TMP+1}, hwreg(HW_REG_XCC_ID)")
    k(f"v_mov_b32 v30, s{S_TMP+1}")
    k(f"v_mov_b32 v31, s{S_CNT}")
    k(f"v_mov_b32 v4, 0")
    k(f"s_mov_b64 exec, 1")
    for i in range(6):
        k(f"buffer_store_dwordx4 {vr(10+4*i,4)}, v4, {srd(R_WS)}, s{S_TMP} offen offset:{16*i}")
    k(f"s_mov_b64 exec, -1")


def build(stamps=False):
    k = K(stamps)
    hdr = open("recurrent_scan__compressed_kv_cla__dense_activation_silu__decode.s.ref").read()
    comments = [l for l in hdr.split("\n") if l.startswith(";") and "@launch" not in l and "Override" not in l and "grid=ceil" not in l]
    out = "\n".join(comments) + "\n"
    out += f"; @launch grid=(256,1,1) block=(256,1,1) lds={LDS_BYTES}\n"
    out += f""".amdgcn_target "amdgcn-amd-amdhsa--gfx950"
.text
.globl {NAME}
.p2align 8
.type {NAME},@function
{NAME}:
"""
    if stamps:
        for i in range(20):
            k(f"s_mov_b32 s{S_STAMP+i}, 0")
    if K.opt.get("diag"):
        k("s_memrealtime s[100:101]")
    prologue(k)
    if K.opt.get("diag"):
        k.srd(92, S_DBG, 256)
        k("s_cmp_lt_u32 s2, 8")
        k("s_cbranch_scc0 L_nodiag")
        k("s_not_b32 s100, s100")
        k("v_mov_b32 v8, s100")
        k("v_mov_b32 v9, 0")
        k("s_mov_b64 exec, 1")
        k("buffer_atomic_umax v8, v9, s[92:95], 0 offen")
        k("s_mov_b64 exec, -1")
        k("L_nodiag:")
    if K.opt.get("bdirect"):
        k(f"s_cmp_ge_u32 s{S_J}, 4")
        k(f"s_cbranch_scc0 L_done")
        k(f"s_mov_b32 s{S_T0}, 0")
        k(f"s_mov_b32 s{S_T1}, 0")
        k(f"v_mov_b32 v{VE}, 0")
        k("s_branch L_B")
    if K.opt.get("pnone"):
        k(f"s_cmp_lt_u32 s{S_J}, 4")
        k(f"s_cbranch_scc1 L_done")
    k(f"s_cmp_eq_u32 s{S_WAVE}, 0")
    k(f"s_cbranch_scc0 L_w123")
    stage1_issue(k)
    k("s_barrier")
    k("s_branch L_w0")
    k("L_w123:")
    k(f"v_mov_b32 v{V_T}, 0")
    k(f"buffer_load_dword v{VE}, v{V_T}, {srd(R_WS)}, 0 offen offset:{WS_EPOCH} sc1")
    if K.opt.get("tlb", "1") == "1":
        sk = k.label("tlb")
        k(f"s_cmp_eq_u32 s{S_WAVE}, 3")
        k(f"s_cbranch_scc0 {sk}")
        k(f"v_lshlrev_b32 v{V_T+1}, 20, v{V_LANE}")
        for ptr, size in ((S_CKV, 2*4096*512*2), (S_WUV, 512*4096*2), (S_WO, 4096*640*2), (S_W1, 640*1728*2), (S_W2, 1728*640*2)):
            k.srd(R_B, ptr, size)
            k(f"buffer_load_dword v252, v{V_T+1}, {srd(R_B)}, 0 offen")
        k(f"{sk}:")
    k(f"s_cmp_ge_u32 s{S_J}, 4")
    k(f"s_cbranch_scc1 L_Bw123")
    k.srd(R_A, S_WUK, 512 * 4096 * 2)
    clears_P(k)
    k("s_barrier")
    if not K.opt.get("nowuk"):
        wuk_issue(k)
    npf = int(K.opt.get("cpf", 0))
    if npf:
        k.srd(R_B, S_CKV, 2 * 4096 * 512 * 2)
        k(f"s_lshr_b32 s{S_TMP}, s{S_J}, 1")
        k(f"s_lshl_b32 s{S_TMP}, s{S_TMP}, 12")
        k(f"s_lshl_b32 s{S_TMP+1}, s{S_H}, 7")
        k(f"s_add_u32 s{S_TMP}, s{S_TMP}, s{S_TMP+1}")
        k(f"s_and_b32 s{S_TMP+1}, s{S_J}, 1")
        k(f"s_lshl_b32 s{S_TMP+1}, s{S_TMP+1}, 4")
        k(f"s_add_u32 s{S_TMP}, s{S_TMP}, s{S_TMP+1}")
        k(f"s_add_u32 s{S_TMP}, s{S_TMP}, {16 - npf}")
        k(f"s_lshl_b32 s{S_TMP}, s{S_TMP}, 10")
        k(f"v_lshlrev_b32 v{V_T+1}, 4, v{V_LANE}")
        k(f"s_lshl_b32 s{S_TMP+1}, s{S_WAVE}, 15")
        k(f"s_add_u32 s{S_TMP+1}, s{S_TMP+1}, s{S_TMP}")
        for i in range(npf):
            k(f"buffer_load_dwordx4 v[248:251], v{V_T+1}, {srd(R_B)}, s{S_TMP+1} offen")
            k(f"s_add_u32 s{S_TMP+1}, s{S_TMP+1}, 1024")
        k(f"s_cmp_eq_u32 s{S_WAVE}, 1")
        k(f"s_cselect_b32 s{S_TMP}, s{S_TMP}, 0x7f000000")
        for i in range(npf):
            k(f"buffer_load_dwordx4 v[248:251], v{V_T+1}, {srd(R_B)}, s{S_TMP} offen")
            k(f"s_add_u32 s{S_TMP}, s{S_TMP}, 1024")
    k(f"s_waitcnt vmcnt({11 + 2 * npf})" if not K.opt.get("nowuk") else "s_waitcnt vmcnt(0)")
    epoch_tags(k, VE)
    k("s_barrier")
    k("s_branch L_P_join")
    k("L_Bw123:")
    b_roles(k)
    k.srd(R_A, S_CKV, 2 * 4096 * 512 * 2)
    ckv_setup(k)
    k("s_barrier")
    if not K.opt.get("noclr"):
        clears_B(k)
    ne = early_rows()
    if ne:
        k(f"s_cmp_ge_u32 s{S_WAVE}, 2")
        k(f"s_cbranch_scc0 L_Bw1")
        ckv_rows(k, 0, ne)
        k("s_barrier")
        k("s_branch L_B_rowsE")
        k("L_Bw1:")
    k("s_barrier")
    k("s_branch L_B_rows0")
    k("L_w0:")
    stage1_selectors(k)
    layernorm(k, 1 + 20)
    k(f"s_waitcnt vmcnt(20)")
    epoch_tags(k, VE)
    stage1_publish_addr(k)
    k.stamp(2)
    stage1_mfma(k, 0)
    k("s_barrier")
    stage1_publish(k, 0)
    k(f"s_cmp_ge_u32 s{S_J}, 4")
    k(f"s_cbranch_scc1 L_B")
    k("L_P_join:")
    k.srd(R_B, S_WUV, 512 * 4096 * 2)
    k.srd(R_C, S_WO, 4096 * 640 * 2)
    stage2(k)
    if K.opt.get("pexit"):
        k("s_branch L_done")
    k(f"s_cmp_lt_u32 s{S_H}, 27")
    k(f"s_cbranch_scc0 L_P_nof1")
    w1p_issue(k)
    k("L_P_nof1:")
    p_weights_issue(k)
    wo_issue(k)
    stage4_setup(k)
    k(f"s_cmp_lt_u32 s{S_H}, 27")
    k(f"s_cbranch_scc0 L_P_nof2")
    ffn1p(k)
    k("s_waitcnt vmcnt(1)")
    k("s_branch L_P_wl")
    k("L_P_nof2:")
    k("s_waitcnt vmcnt(0)")
    k("L_P_wl:")
    k("s_barrier")
    k.stamp(6)
    p_weights_preread(k)
    wo_preread(k)
    stage4(k)
    stage5(k)
    k("s_branch L_done")
    k("L_B:")
    b_roles(k)
    k.srd(R_A, S_CKV, 2 * 4096 * 512 * 2)
    ckv_setup(k)
    k("L_B_rows0:")
    k.stamp(12)
    ckv_rows(k, 0, early_rows())
    k("L_B_rowsE:")
    ckv_rows(k, early_rows(), 32)
    if K.opt.get("trig", "0") == "1":
        tag_store(k, WS_TR, 6, BT + 2, only_wave=3)
    k.stamp(13)
    if K.opt.get("bdirect"):
        k("s_waitcnt vmcnt(0)")
        k.stamp(4)
        k("s_branch L_done")
    k.srd(R_OUT, S_OUT, 2560)
    wf_setup(k)
    attention_setup(k)
    attention(k)
    k("L_B_r2:")
    k(f"s_cmp_eq_u32 s{S_ROLE}, 2")
    k(f"s_cbranch_scc0 L_B_r3")
    ffn2(k)
    k("s_branch L_done")
    k("L_B_r3:")
    k(f"s_cmp_eq_u32 s{S_ROLE}, 3")
    k(f"s_cbranch_scc0 L_done")
    final(k)
    k("L_done:")
    dump_stamps(k)
    k("L_exit:")
    k("s_endpgm")
    out += k.text()
    out += f""".section .rodata,"a"
.p2align 6
.amdhsa_kernel {NAME}
  .amdhsa_next_free_vgpr 512
  .amdhsa_next_free_sgpr 102
  .amdhsa_accum_offset 256
  .amdhsa_group_segment_fixed_size 0
  .amdhsa_kernarg_size 96
  .amdhsa_user_sgpr_count 2
  .amdhsa_user_sgpr_kernarg_segment_ptr 1
  .amdhsa_system_sgpr_workgroup_id_x 1
.end_amdhsa_kernel
"""
    return out


if __name__ == "__main__":
    for a in sys.argv[1:]:
        if a.startswith("--spin="):
            SPIN_LIMIT = int(a[7:])
    stamps = "--stamps" in sys.argv
    for a in sys.argv[1:]:
        if a.startswith("--") and "=" in a:
            kk, vv = a[2:].split("=")
            K.opt[kk] = vv
    outp = [a for a in sys.argv[1:] if not a.startswith("--")]
    open(outp[0] if outp else "k.s", "w").write(build(stamps))
```

```python
import sys

NAME = "recurrent_scan__compressed_kv_cla__dense_activation_silu__decode_kernel"

WS_EPOCH = 0
WS_QP = 0x1000
WS_QA = 0x41000
WS_ST = 0x51000
WS_CP = 0x55000
WS_SP = 0x65000
WS_FP = 0x8D000
WS_AC = 0xE0000
WS_PC = 0xE2000
WS_HO = 0xE4000
WS_TR = 0xF0000
WS_CF = 0xE8000
WS_QF = 0x340000
WS_HP = 0x300000
WS_AO = 0x100000
WS_SIZE = 0x380000
WS_STAMP = 0x380000
NF = 54
S_JP = 10
S_F = 11
S_Z = 12
S_ROLE = 13

L_WUV = 0
L_WO = 32768
L_AOB = 107520
L_RED = 123904
L_CTX = 129024
L_STX = 129536
L_W1P = 130560
L_XNP = 95744
L_CKV = 0
RS = 1056
L_QB = 128 * RS
L_XN = L_QB + 16 * RS
L_MX = L_XN + 2560
L_PB = L_MX + 1024
L_END = L_PB + 4096
L_WF = 0
L_WO5 = 66560
L_FRED = 81920
L_RED5 = 123904
LDS_BYTES = 163840

SPIN_LIMIT = 100000
FLAG_ROW = 28
NWF_EARLY = 6
W2RS = 1312
QWAIT = [15 - i if i <= 8 else min(15, 15 - i) for i in range(16)]

S_X, S_CKV, S_WQ, S_WUK, S_WUV, S_WO, S_W1, S_W2, S_OUT, S_DBG, S_WSP = 4, 6, 8, 10, 12, 14, 18, 20, 22, 24, 26
R_X, R_WQ, R_WS, R_A, R_B, R_C, R_OUT = 28, 32, 36, 40, 44, 48, 52
S_WAVE, S_H, S_J, S_T0, S_T1 = 56, 57, 58, 59, 60
S_TMP = 61
S_PUB = 69
S_OFF = 70
S_CNT = 71
S_M = 72
S_STAMP = 80


CNT_SLOT = {'qp': 13, 'tr': 14, 'st': 15, 'ao': 16, 'qa': 17, 'cp': 18, 'fl': 18}


class K:
    opt = {}
    def __init__(self, stamps=False):
        self.lines = []
        self.nl = 0
        self.stamps = stamps
        self.nstamp = 0

    def __call__(self, s):
        for l in s.split("\n"):
            self.lines.append("    " + l.strip() if l.strip() and not l.strip().endswith(":") else l.strip())

    def label(self, stem):
        self.nl += 1
        return f"L_{stem}_{self.nl}"

    def nop(self, n):
        while n > 0:
            k = min(n, 16)
            self(f"s_nop {k-1}")
            n -= k

    def stamp(self, idx):
        if self.stamps:
            self(f"s_memrealtime s[100:101]")
            self("s_waitcnt lgkmcnt(0)")
            self(f"s_mov_b32 s{S_STAMP+idx}, s100")

    def srd(self, d, base, nbytes):
        self(f"s_mov_b32 s{d}, s{base}")
        self(f"s_and_b32 s{d+1}, s{base+1}, 0xffff")
        self(f"s_mov_b32 s{d+2}, {nbytes}")
        self(f"s_mov_b32 s{d+3}, 0x00020000")

    def text(self):
        return "\n".join(self.lines) + "\n"


def srd(d):
    return f"s[{d}:{d+3}]"


def vr(a, n=1):
    return f"v{a}" if n == 1 else f"v[{a}:{a+n-1}]"


def ar(a, n=1):
    return f"a{a}" if n == 1 else f"a[{a}:{a+n-1}]"


V_TID, V_LANE, V_L15, V_SLAB = 0, 1, 2, 3
V_T = 4
V_ONES = 242
V_NEG1 = 244


def spin_begin(k, cnt=S_CNT):
    k(f"s_mov_b32 s{cnt}, 0")


def spin_retry(k, top, cnt=S_CNT):
    k(f"s_add_u32 s{cnt}, s{cnt}, 1")
    k(f"s_cmp_lt_u32 s{cnt}, {SPIN_LIMIT}")
    k(f"s_cbranch_scc1 {top}")


NCH = 28


def prologue(k):
    k(f"s_cmp_ge_u32 s2, 256")
    k(f"s_cbranch_scc1 L_exit")
    if K.opt.get("perm"):
        k("s_and_b32 s3, s2, 7")
        k("s_lshl_b32 s3, s3, 5")
        k("s_lshr_b32 s2, s2, 3")
        k("s_or_b32 s2, s2, s3")
    k(f"s_load_dwordx16 s[4:19], s[0:1], 0")
    k(f"s_load_dwordx8 s[20:27], s[0:1], 64")
    k(f"v_lshrrev_b32 v{V_T}, 6, v0")
    k(f"v_and_b32 v{V_LANE}, 63, v0")
    k(f"v_readfirstlane_b32 s{S_WAVE}, v{V_T}")
    if K.opt.get("pf", "1") == "1":
        k(f"s_getpc_b64 s[{S_TMP+1}:{S_TMP+2}]")
        k(f"L_pc:")
        k(f"s_lshr_b32 s{S_TMP}, s2, 3")
        k(f"s_lshl_b32 s{S_TMP}, s{S_TMP}, 2")
        k(f"s_add_u32 s{S_TMP}, s{S_TMP}, s{S_WAVE}")
        k(f"s_cmp_lt_u32 s{S_TMP}, (L_exit-L_pc+1023)/1024")
        k(f"s_cbranch_scc0 L_nopf")
        k(f"s_lshl_b32 s{S_TMP}, s{S_TMP}, 10")
        k(f"s_min_u32 s{S_TMP}, s{S_TMP}, L_exit-L_pc-1024")
        k(f"v_lshl_add_u32 v{V_T+1}, v{V_LANE}, 4, s{S_TMP}")
        k(f"global_load_dwordx4 v[248:251], v{V_T+1}, s[{S_TMP+1}:{S_TMP+2}]")
        k(f"L_nopf:")
    k(f"v_and_b32 v{V_L15}, 15, v0")
    k(f"v_bfe_u32 v{V_SLAB}, v0, 4, 2")
    k(f"s_and_b32 s{S_H}, s2, 31")
    k(f"s_lshr_b32 s{S_J}, s2, 5")
    for i in range(4):
        k(f"v_mov_b32 v{V_NEG1+i}, -1")
    k.stamp(0)
    k(f"s_waitcnt lgkmcnt(0)")
    k.srd(R_X, S_X, 2560)
    k.srd(R_WS, S_WSP, WS_SIZE + (0x100000 if k.stamps else 0))
    k.srd(R_WQ, S_WQ, 640 * 4096 * 2)


VX = 10
VW = 20
VA = 100
VSEL = 180
VD1 = 188
VXR = 192
VE = 202
VS1 = 204
VWUK = 210


def stage1_issue(k):
    k(f"v_lshrrev_b32 v{V_T}, 5, v{V_LANE}")
    k(f"v_and_b32 v{V_T+1}, 31, v{V_LANE}")
    k(f"v_mul_u32_u24 v{V_T}, 1280, v{V_T}")
    k(f"v_mul_u32_u24 v{V_T+1}, 40, v{V_T+1}")
    k(f"v_add_u32 v{V_T}, v{V_T}, v{V_T+1}")
    k(f"v_mov_b32 v{V_T+2}, 0")
    k(f"buffer_load_dwordx4 {vr(VX,4)}, v{V_T}, {srd(R_X)}, 0 offen")
    k(f"buffer_load_dwordx4 {vr(VX+4,4)}, v{V_T}, {srd(R_X)}, 0 offen offset:16")
    k(f"buffer_load_dwordx2 {vr(VX+8,2)}, v{V_T}, {srd(R_X)}, 0 offen offset:32")
    k(f"buffer_load_dword v{VE}, v{V_T+2}, {srd(R_WS)}, 0 offen offset:{WS_EPOCH} sc1")
    k(f"s_mul_i32 s{S_TMP}, s{S_J}, {80*8192}")
    k(f"s_lshl_b32 s{S_TMP+1}, s{S_H}, 8")
    k(f"s_add_u32 s{S_TMP}, s{S_TMP}, s{S_TMP+1}")
    k(f"v_mul_u32_u24 v{V_T+3}, {20*8192}, v{V_SLAB}")
    k(f"v_lshl_add_u32 v{V_T+3}, v{V_L15}, 4, v{V_T+3}")
    k(f"v_add_u32 v{V_T+3}, s{S_TMP}, v{V_T+3}")
    k(f"s_mov_b32 s{S_OFF}, 0")
    k(f"s_movk_i32 s{S_TMP}, 0x2000")
    for t in range(20):
        k(f"buffer_load_dwordx4 {vr(VW+4*t,4)}, v{V_T+3}, {srd(R_WQ)}, s{S_OFF} offen")
        if t < 19:
            k(f"s_add_u32 s{S_OFF}, s{S_OFF}, s{S_TMP}")


def epoch_tags(k, ve):
    k(f"v_readfirstlane_b32 s{S_T0}, v{ve}")
    k.nop(4)
    k(f"s_add_u32 s{S_T0}, s{S_T0}, 1")
    k(f"s_mul_i32 s{S_T1}, s{S_T0}, 0x9e3779b1")
    k(f"s_xor_b32 s{S_T1}, s{S_T1}, 0x5bd1e995")


def stage1_selectors(k):
    t = VS1
    k(f"v_and_b32 v{t}, 1, v{V_LANE}")
    k(f"v_bfe_u32 v{t+1}, v{V_LANE}, 1, 2")
    k(f"v_cmp_eq_u32 vcc, 1, v{t}")
    k(f"v_mov_b32 v{t+2}, 0x0c0c0504")
    k(f"v_mov_b32 v{t+3}, 0x05040c0c")
    k(f"v_cndmask_b32 v{t+4}, v{t+2}, v{t+3}, vcc")
    k(f"v_mov_b32 v{t+2}, 0x0c0c0706")
    k(f"v_mov_b32 v{t+3}, 0x07060c0c")
    k(f"v_cndmask_b32 v{t+5}, v{t+2}, v{t+3}, vcc")
    k(f"v_mov_b32 v{t+2}, 0x0c0c0c0c")
    for r in range(4):
        k(f"v_cmp_eq_u32 vcc, {r}, v{t+1}")
        k.nop(2)
        k(f"v_cndmask_b32 v{VSEL+2*r}, v{t+2}, v{t+4}, vcc")
        k(f"v_cndmask_b32 v{VSEL+2*r+1}, v{t+2}, v{t+5}, vcc")


def layernorm(k, nafter):
    t = VS1
    k(f"s_mov_b32 s{S_TMP}, 0x3f803f80")
    k(f"v_mov_b32 v{t}, 0")
    k(f"v_mov_b32 v{t+1}, 0")
    k(f"v_mov_b32 v{t+2}, 0")
    k(f"v_mov_b32 v{t+3}, 0")
    k(f"s_waitcnt vmcnt({nafter})")
    k.stamp(1)
    for i in range(10):
        a = t + (i & 1)
        q = t + 2 + (i & 1)
        k(f"v_dot2_f32_bf16 v{a}, v{VX+i}, s{S_TMP}, v{a}")
        k(f"v_dot2_f32_bf16 v{q}, v{VX+i}, v{VX+i}, v{q}")
    k.nop(3)
    k(f"v_add_f32 v{t}, v{t}, v{t+1}")
    k(f"v_add_f32 v{t+2}, v{t+2}, v{t+3}")
    k.nop(1)
    for rot in (8, 4, 2, 1):
        k(f"v_add_f32_dpp v{t}, v{t}, v{t} row_ror:{rot} row_mask:0xf bank_mask:0xf")
        k(f"v_add_f32_dpp v{t+2}, v{t+2}, v{t+2} row_ror:{rot} row_mask:0xf bank_mask:0xf")
        k.nop(1)
    k.nop(1)
    k(f"v_permlane16_swap_b32 v{t}, v{t+2}")
    k.nop(1)
    k(f"v_add_f32 v{t}, v{t}, v{t+2}")
    k.nop(1)
    k(f"v_mov_b32 v{t+2}, v{t}")
    k.nop(2)
    k(f"v_permlane16_swap_b32 v{t}, v{t+2}")
    k.nop(1)
    k(f"v_mul_f32 v{t}, 0x3acccccd, v{t}")
    k(f"v_mul_f32 v{t+2}, 0x3acccccd, v{t+2}")
    k(f"v_fma_f32 v{t+2}, -v{t}, v{t}, v{t+2}")
    k(f"v_max_f32 v{t+2}, 0, v{t+2}")
    k(f"v_cvt_pk_bf16_f32 v{t+1}, v{t}, v{t+2}")
    k(f"v_lshlrev_b32 v{t}, 16, v{t+1}")
    k(f"v_and_b32 v{t+2}, 0xffff0000, v{t+1}")
    k(f"v_add_f32 v{t+2}, 0x3727c5ac, v{t+2}")
    k(f"v_cvt_pk_bf16_f32 v{t+2}, v{t+2}, v{t+2}")
    k(f"v_and_b32 v{t+2}, 0xffff0000, v{t+2}")
    k(f"v_sqrt_f32 v{t+2}, v{t+2}")
    k.nop(1)
    k(f"v_cvt_pk_bf16_f32 v{t+2}, v{t+2}, v{t+2}")
    k(f"v_and_b32 v{t+2}, 0xffff0000, v{t+2}")
    k(f"v_rcp_f32 v{t+2}, v{t+2}")
    k.nop(1)
    k(f"v_mul_f32 v{t}, v{t}, v{t+2}")
    k(f"v_sub_f32 v{t}, 0, v{t}")
    for i in range(10):
        k(f"v_lshlrev_b32 v{t+3}, 16, v{VX+i}")
        k(f"v_and_b32 v{t+4}, 0xffff0000, v{VX+i}")
        k(f"v_fma_f32 v{t+3}, v{t+3}, v{t+2}, v{t}")
        k(f"v_fma_f32 v{t+4}, v{t+4}, v{t+2}, v{t}")
        k(f"v_cvt_pk_bf16_f32 v{VX+i}, v{t+3}, v{t+4}")
    k(f"v_add_u32 v{t+3}, {L_XN}, v{V_T}")
    for i in range(5):
        k(f"ds_write_b64 v{t+3}, {vr(VX+2*i,2)} offset:{8*i}")
    k(f"v_bfe_u32 v{t}, v{V_LANE}, 3, 1")
    k(f"v_mul_u32_u24 v{t}, 1280, v{t}")
    k(f"v_mul_u32_u24 v{t+1}, 40, v{V_SLAB}")
    k(f"s_mul_i32 s{S_TMP}, s{S_J}, 160")
    k(f"s_add_u32 s{S_TMP}, s{S_TMP}, {L_XN}")
    k(f"v_add3_u32 v{t}, v{t}, v{t+1}, s{S_TMP}")
    k(f"s_waitcnt lgkmcnt(0)")
    for i in range(5):
        k(f"ds_read_b64 {vr(VXR+2*i,2)}, v{t} offset:{8*i}")
    k(f"s_waitcnt lgkmcnt(0)")
    for st in range(20):
        for r in range(4):
            k(f"v_perm_b32 v{VA+4*st+r}, v{VXR+(st>>1)}, v{VXR+(st>>1)}, v{VSEL+2*r+(st&1)}")


def stage1_mfma(k, nafter):
    for st in range(20):
        k(f"s_waitcnt vmcnt({19-st+nafter})")
        c = "0" if st == 0 else vr(VD1, 4)
        k(f"v_mfma_f32_16x16x32_bf16 {vr(VD1,4)}, {vr(VA+4*st,4)}, {vr(VW+4*st,4)}, {c}")


VPUB = 206


def stage1_publish_addr(k):
    t = VS1 + 4
    k(f"v_lshrrev_b32 v{t}, 1, v{V_SLAB}")
    k(f"v_and_b32 v{t+1}, 1, v{V_SLAB}")
    k(f"v_lshlrev_b32 v{t}, 5, v{t}")
    k(f"v_lshl_add_u32 v{t}, v{V_L15}, 1, v{t}")
    k(f"v_add_u32 v{t}, v{t}, v{t+1}")
    k(f"v_lshlrev_b32 v{VPUB}, 4, v{t}")
    k(f"s_lshl_b32 s{S_PUB}, s{S_H}, 3")
    k(f"s_add_u32 s{S_PUB}, s{S_PUB}, s{S_J}")
    k(f"s_lshl_b32 s{S_PUB}, s{S_PUB}, 10")
    k(f"s_add_u32 s{S_PUB}, s{S_PUB}, {WS_QP}")
    k(f"v_mov_b32 v{VD1+6}, s{S_T0}")
    k(f"v_mov_b32 v{VD1+7}, s{S_T1}")


def stage1_publish(k, nkeep):
    k.nop(8)
    k(f"v_cvt_pk_bf16_f32 v{VD1+4}, v{VD1}, v{VD1+1}")
    k(f"v_cvt_pk_bf16_f32 v{VD1+5}, v{VD1+2}, v{VD1+3}")
    k(f"s_waitcnt vmcnt({nkeep})")
    if use_fast1():
        sk = k.label("qps")
        k(f"s_add_u32 s{S_TMP}, s{S_PUB}, {WS_QF - WS_QP}")
        k(f"buffer_store_dwordx4 {vr(VD1+4,4)}, v{VPUB}, {srd(R_WS)}, s{S_TMP} offen")
        k(f"s_cmp_ge_u32 s{S_J}, 4")
        k(f"s_cbranch_scc0 {sk}")
        k(f"buffer_store_dwordx4 {vr(VD1+4,4)}, v{VPUB}, {srd(R_WS)}, s{S_PUB} offen sc1")
        k(f"{sk}:")
    else:
        k(f"buffer_store_dwordx4 {vr(VD1+4,4)}, v{VPUB}, {srd(R_WS)}, s{S_PUB} offen sc1")
    k.stamp(3)


def sentinel_check(k, regs):
    t = V_T
    rs = list(regs)
    if len(rs) == 1:
        k(f"v_cmp_eq_u32 vcc, -1, v{rs[0]}")
        return
    if len(rs) == 2:
        k(f"v_max_u32 v{t}, v{rs[0]}, v{rs[1]}")
        rs = []
    else:
        k(f"v_max3_u32 v{t}, v{rs[0]}, v{rs[1]}, v{rs[2]}")
        rs = rs[3:]
    while len(rs) >= 2:
        k(f"v_max3_u32 v{t}, v{t}, v{rs[0]}, v{rs[1]}")
        rs = rs[2:]
    if rs:
        k(f"v_max_u32 v{t}, v{t}, v{rs[0]}")
    k(f"v_cmp_eq_u32 vcc, -1, v{t}")


def tag_check(k, pairs):
    t = V_T
    first = True
    for a, b in pairs:
        k(f"v_xor_b32 v{t+1}, s{S_T0}, v{a}")
        k(f"v_xor_b32 v{t+2}, s{S_T1}, v{b}")
        if first:
            k(f"v_or_b32 v{t}, v{t+1}, v{t+2}")
        else:
            k(f"v_or3_b32 v{t}, v{t}, v{t+1}, v{t+2}")
        first = False
    k(f"v_cmp_ne_u32 vcc, 0, v{t}")


def gather_loop(k, name, loads, check, stampidx=None, preissued=False, firstwait=0, fast=None, after_fast=None):
    chk = k.label(name)
    done = k.label(name + "d")
    spin_begin(k)
    k(f"s_mov_b64 s[{S_M}:{S_M+1}], exec")
    if fast is not None:
        floads, nfast = fast
        fchk = k.label(name + "f")
        if not preissued:
            for l in floads:
                k(l)
        k(f"{fchk}:")
        k("s_waitcnt vmcnt(0)")
        check(k)
        k(f"s_and_b64 exec, exec, vcc")
        k(f"s_cbranch_execz {done}_fast")
        k(f"s_add_u32 s{S_CNT}, s{S_CNT}, 1")
        k(f"s_cmp_ge_u32 s{S_CNT}, {nfast}")
        k(f"s_cbranch_scc1 {chk}_slow")
        for l in floads:
            k(l)
        k(f"s_branch {fchk}")
        k(f"{done}_fast:")
        k(f"s_mov_b64 exec, s[{S_M}:{S_M+1}]")
        if after_fast:
            after_fast(k)
        k(f"s_branch {done}")
        k(f"{chk}_slow:")
        if after_fast:
            k(f"s_mov_b64 s[4:5], exec")
            k(f"s_mov_b64 exec, s[{S_M}:{S_M+1}]")
            after_fast(k)
            k(f"s_mov_b64 exec, s[4:5]")
        for l in loads:
            k(l)
    elif not preissued:
        for l in loads:
            k(l)
    if firstwait:
        k(f"s_waitcnt vmcnt({firstwait})")
        k(f"s_branch {chk}_c")
    k(f"{chk}:")
    k("s_waitcnt vmcnt(0)")
    if firstwait:
        k(f"{chk}_c:")
    check(k)
    k(f"s_and_b64 exec, exec, vcc")
    k(f"s_cbranch_execz {done}")
    k(f"s_add_u32 s{S_CNT}, s{S_CNT}, 1")
    k(f"s_cmp_ge_u32 s{S_CNT}, {SPIN_LIMIT}")
    k(f"s_cbranch_scc1 {done}")
    for l in loads:
        k(l)
    k(f"s_branch {chk}")
    k(f"{done}:")
    k(f"s_mov_b64 exec, s[{S_M}:{S_M+1}]")
    if stampidx is not None:
        k.stamp(stampidx)
    if k.stamps and name in CNT_SLOT and not (K.opt.get("aoack") and name == "qa"):
        k(f"s_add_u32 s{S_STAMP+CNT_SLOT[name]}, s{S_CNT}, 1")


def use_fast():
    return K.opt.get("fast", "1") == "1"


def use_fast1():
    return K.opt.get("fast1", "1") == "1"


def gather_check_loop(k, name, loads, regs, stampidx=None, preissued=False):
    gather_loop(k, name, loads, lambda kk: sentinel_check(kk, regs), stampidx, preissued)


def clears_P(k):
    t = V_T + 4
    neg = vr(V_NEG1, 4)
    k(f"v_lshlrev_b32 v{t}, 4, v{V_LANE}")
    k(f"s_mul_i32 s{S_TMP+1}, s{S_H}, 5120")
    k(f"s_mul_i32 s{S_TMP+2}, s{S_J}, 1280")
    k(f"s_add_u32 s{S_TMP+1}, s{S_TMP+1}, s{S_TMP+2}")
    k(f"s_add_u32 s{S_TMP+1}, s{S_TMP+1}, {WS_SP}")
    k(f"buffer_store_dwordx4 {neg}, v{t}, {srd(R_WS)}, s{S_TMP+1} offen sc1")
    k(f"v_lshlrev_b32 v{t+1}, 4, v{V_L15}")
    k(f"buffer_store_dwordx4 {neg}, v{t+1}, {srd(R_WS)}, s{S_TMP+1} offen offset:1024 sc1")
    k(f"v_and_b32 v{t}, 1, v{V_SLAB}")
    k(f"v_lshlrev_b32 v{t}, 15, v{t}")
    k(f"v_lshl_add_u32 v{t}, v{V_L15}, 4, v{t}")
    k(f"s_lshl_b32 s{S_TMP+1}, s{S_H}, 10")
    k(f"s_lshl_b32 s{S_TMP+2}, s{S_J}, 8")
    k(f"s_add_u32 s{S_TMP+1}, s{S_TMP+1}, s{S_TMP+2}")
    k(f"s_add_u32 s{S_TMP+1}, s{S_TMP+1}, {WS_QA}")
    k(f"buffer_store_dwordx4 {neg}, v{t}, {srd(R_WS)}, s{S_TMP+1} offen sc1")
    k(f"s_lshl_b32 s{S_TMP}, s{S_H}, 2")
    k(f"s_add_u32 s{S_TMP}, s{S_TMP}, s{S_J}")
    k(f"v_and_b32 v{t}, 31, v{V_LANE}")
    k(f"v_lshlrev_b32 v{t}, 4, v{t}")
    k(f"s_lshl_b32 s{S_TMP+1}, s{S_TMP}, 9")
    k(f"s_add_u32 s{S_TMP+1}, s{S_TMP+1}, {WS_CP}")
    k(f"buffer_store_dwordx4 {neg}, v{t}, {srd(R_WS)}, s{S_TMP+1} offen sc1")
    if use_fast():
        k(f"s_add_u32 s{S_TMP+1}, s{S_TMP+1}, {WS_CF - WS_CP}")
        k(f"buffer_store_dwordx4 {neg}, v{t}, {srd(R_WS)}, s{S_TMP+1} offen sc1")
    k(f"s_lshl_b32 s{S_TMP+1}, s{S_H}, 9")
    k(f"s_add_u32 s{S_TMP+1}, s{S_TMP+1}, {WS_ST}")
    k(f"buffer_store_dwordx4 {neg}, v{t}, {srd(R_WS)}, s{S_TMP+1} offen sc1")


L_WUK = 32768


def wuk_issue(k):
    t = V_T + 4
    k(f"s_sub_u32 s{S_TMP+2}, s{S_WAVE}, 1")
    k(f"s_mul_i32 s{S_TMP+2}, s{S_TMP+2}, 11")
    k(f"s_mul_i32 s{S_TMP}, s{S_J}, {128*8192}")
    k(f"s_lshl_b32 s{S_TMP+1}, s{S_H}, 8")
    k(f"s_add_u32 s{S_TMP}, s{S_TMP}, s{S_TMP+1}")
    k(f"s_lshl_b32 s{S_TMP+1}, s{S_TMP+2}, 15")
    k(f"s_add_u32 s{S_TMP}, s{S_TMP}, s{S_TMP+1}")
    k(f"s_lshl_b32 s{S_TMP+1}, s{S_TMP+2}, 10")
    k(f"s_add_u32 s{S_TMP+1}, s{S_TMP+1}, {L_WUK}")
    k(f"v_lshlrev_b32 v{t+1}, 13, v{V_SLAB}")
    lp = k.label("wuk")
    k(f"s_add_u32 s{S_TMP+4}, s{S_TMP+2}, 11")
    k(f"{lp}:")
    k(f"s_and_b32 s{S_TMP+3}, s{S_TMP+2}, 3")
    k(f"s_lshl_b32 s{S_TMP+3}, s{S_TMP+3}, 2")
    k(f"v_add_u32 v{t}, s{S_TMP+3}, v{V_SLAB}")
    k(f"v_xor_b32 v{t}, v{t}, v{V_L15}")
    k(f"v_lshl_add_u32 v{t}, v{t}, 4, v{t+1}")
    k(f"s_mov_b32 m0, s{S_TMP+1}")
    k(f"s_add_u32 s{S_TMP+1}, s{S_TMP+1}, 1024")
    k(f"buffer_load_dwordx4 v{t}, {srd(R_A)}, s{S_TMP} offen lds")
    k(f"s_add_u32 s{S_TMP}, s{S_TMP}, {4*8192}")
    k(f"s_add_u32 s{S_TMP+2}, s{S_TMP+2}, 1")
    k(f"s_cmp_lt_u32 s{S_TMP+2}, s{S_TMP+4}")
    k(f"s_cbranch_scc1 {lp}")


def wuk_preread(k):
    t = V_T + 4
    k(f"s_lshl_b32 s{S_TMP+4}, s{S_WAVE}, 2")
    k(f"v_add_u32 v{t}, s{S_TMP+4}, v{V_SLAB}")
    k(f"v_xor_b32 v{t}, v{t}, v{V_L15}")
    k(f"v_lshlrev_b32 v{t}, 4, v{t}")
    k(f"v_lshl_add_u32 v{t}, v{V_L15}, 8, v{t}")
    for i in range(8):
        k(f"ds_read_b128 {vr(VWUK+4*i,4)}, v{t} offset:{L_WUK+i*4096}")


PG = 10
PD = 28
PY = 68
PWV = 76
PWO = 108
PA = 148
PADR = 164
PM = 180
PT = 188
PKEEP = 206
S_KEEP = 16


def stage2(k):
    t = PT
    k(f"v_and_b32 v{t}, 7, v{V_L15}")
    k(f"v_lshlrev_b32 v{t}, 10, v{t}")
    k(f"v_lshrrev_b32 v{t+1}, 3, v{V_L15}")
    k(f"v_lshl_add_u32 v{t}, v{t+1}, 9, v{t}")
    k(f"v_lshl_add_u32 v{PADR}, v{V_SLAB}, 5, v{t}")
    k(f"s_lshl_b32 s{S_TMP}, s{S_H}, 13")
    k(f"s_lshl_b32 s{S_TMP+1}, s{S_WAVE}, 7")
    k(f"s_add_u32 s{S_TMP}, s{S_TMP}, s{S_TMP+1}")
    k(f"s_add_u32 s{S_TMP}, s{S_TMP}, {WS_QP}")
    k(f"v_lshrrev_b32 v{t}, 1, v{V_SLAB}")
    k(f"v_lshlrev_b32 v{t}, 15, v{t}")
    k(f"v_and_b32 v{t+1}, 1, v{V_SLAB}")
    k(f"v_lshl_add_u32 v{t}, v{t+1}, 5, v{t}")
    k(f"v_lshl_add_u32 v{PADR+1}, v{V_L15}, 1, v{t}")
    k(f"s_lshl_b32 s{S_TMP+2}, s{S_H}, 10")
    k(f"s_lshl_b32 s{S_TMP+3}, s{S_J}, 8")
    k(f"s_add_u32 s{S_TMP+2}, s{S_TMP+2}, s{S_TMP+3}")
    k(f"s_lshl_b32 s{S_TMP+3}, s{S_WAVE}, 6")
    k(f"s_add_u32 s{S_TMP+2}, s{S_TMP+2}, s{S_TMP+3}")
    k(f"s_add_u32 s{S_TMP+2}, s{S_TMP+2}, {WS_QA}")
    k(f"v_lshlrev_b32 v{PADR+2}, 2, v{V_LANE}")
    k(f"s_lshl_b32 s{S_TMP+3}, s{S_WAVE}, 10")
    k(f"s_add_u32 s{S_TMP+3}, s{S_TMP+3}, {L_RED}")
    k(f"v_add_u32 v{PADR+3}, s{S_TMP+3}, v{PADR+2}")
    k(f"s_lshl_b32 s{S_TMP+3}, s{S_WAVE}, 8")
    k(f"s_add_u32 s{S_TMP+3}, s{S_TMP+3}, {L_RED}")
    k(f"v_add_u32 v{PADR+2}, s{S_TMP+3}, v{PADR+2}")
    k(f"s_mov_b32 s{S_M+2}, 0x55555555")
    k(f"s_mov_b32 s{S_M+3}, 0x55555555")
    loads = [f"buffer_load_dwordx4 {vr(PG,4)}, v{PADR}, {srd(R_WS)}, s{S_TMP} offen sc1",
             f"buffer_load_dwordx4 {vr(PG+4,4)}, v{PADR}, {srd(R_WS)}, s{S_TMP} offen offset:16 sc1"]
    floads = [l.replace(f"s{S_TMP} offen", f"s{S_TMP+5} offen") for l in loads]
    k(f"s_add_u32 s{S_TMP+5}, s{S_TMP}, {WS_QF - WS_QP}")
    if not use_fast1():
        for l in loads:
            k(l)
    if K.opt.get("wukstamp"):
        k("s_waitcnt vmcnt(2)")
        k.stamp(12)
    k("s_waitcnt vmcnt(0)")
    k("s_barrier")
    wuk_preread(k)
    def send_qp(kk):
        sk = kk.label("qpw")
        kk(f"s_cmp_eq_u32 s{S_WAVE}, 0")
        kk(f"s_cbranch_scc0 {sk}")
        kk(f"buffer_store_dwordx4 {vr(VD1+4,4)}, v{VPUB}, {srd(R_WS)}, s{S_PUB} offen sc1")
        kk(f"{sk}:")
    gather_loop(k, "qp", loads, lambda kk: tag_check(kk, [(PG+2, PG+3), (PG+6, PG+7)]), 4, preissued=not use_fast1(),
                fast=(floads, 24) if use_fast1() else None, after_fast=send_qp if use_fast1() else None)
    k("s_waitcnt lgkmcnt(0)")
    k(f"v_mov_b32 v{PG+2}, v{PG+4}")
    k(f"v_mov_b32 v{PG+3}, v{PG+5}")
    k.nop(2)
    for i in range(8):
        k(f"v_mfma_f32_16x16x32_bf16 {vr(PD+4*i,4)}, {vr(PG,4)}, {vr(VWUK+4*i,4)}, 0")
    k.nop(1)
    for i in range(8):
        if i == 7:
            pass
        k(f"v_add_f32 v{PD+4*i}, v{PD+4*i}, v{PD+4*i+1}")
        k(f"v_add_f32 v{PD+4*i+2}, v{PD+4*i+2}, v{PD+4*i+3}")
        k(f"v_add_f32 v{PD+4*i}, v{PD+4*i}, v{PD+4*i+2}")
    k.nop(2)
    for u in range(4):
        k(f"v_permlane16_swap_b32 v{PD+8*u}, v{PD+8*u+4}")
    k.nop(1)
    for u in range(4):
        k(f"v_add_f32 v{PY+u}, v{PD+8*u}, v{PD+8*u+4}")
    k(f"ds_write2st64_b32 v{PADR+3}, v{PY}, v{PY+1} offset0:0 offset1:1")
    k(f"ds_write2st64_b32 v{PADR+3}, v{PY+2}, v{PY+3} offset0:2 offset1:3")
    k("s_waitcnt lgkmcnt(0)")
    k("s_barrier")
    k(f"ds_read2st64_b32 {vr(t,2)}, v{PADR+2} offset0:0 offset1:4")
    k(f"ds_read2st64_b32 {vr(t+2,2)}, v{PADR+2} offset0:8 offset1:12")
    k("s_waitcnt lgkmcnt(0)")
    k(f"v_add_f32 v{t}, v{t}, v{t+1}")
    k(f"v_add_f32 v{t+2}, v{t+2}, v{t+3}")
    k(f"v_add_f32 v{t}, v{t}, v{t+2}")
    k(f"v_mul_f32 v{t}, 0x3e0293ee, v{t}")
    k.nop(2)
    k(f"v_mov_b32_dpp v{t+1}, v{t} quad_perm:[1,0,3,2] row_mask:0xf bank_mask:0xf")
    k(f"v_cvt_pk_bf16_f32 v{t}, v{t}, v{t+1}")
    k(f"s_mov_b64 exec, s[{S_M+2}:{S_M+3}]")
    k(f"buffer_store_dword v{t}, v{PADR+1}, {srd(R_WS)}, s{S_TMP+2} offen sc1")
    k(f"s_mov_b64 exec, -1")
    k.stamp(5)


def p_weights_issue(k):
    t = PT
    if K.opt.get("trig", "0") == "1":
        k(f"s_and_b32 s{S_TMP}, s{S_H}, 7")
        k(f"s_lshl_b32 s{S_TMP}, s{S_TMP}, 8")
        k(f"s_add_u32 s{S_TMP}, s{S_TMP}, {WS_TR}")
        k(f"v_lshrrev_b32 v{t}, 2, v{V_L15}")
        k(f"v_lshlrev_b32 v{t}, 11, v{t}")
        k(f"v_and_b32 v{t+1}, 3, v{V_L15}")
        k(f"v_lshl_add_u32 v{t}, v{t+1}, 6, v{t}")
        sk = k.label("trw")
        k(f"s_cmp_eq_u32 s{S_WAVE}, 0")
        k(f"s_cbranch_scc0 {sk}")
        k(f"s_mov_b64 exec, 0xffff")
        gather_loop(k, "tr", [f"buffer_load_dwordx2 {vr(t+2,2)}, v{t}, {srd(R_WS)}, s{S_TMP} offen sc1"], lambda kk: tag_check(kk, [(t+2, t+3)]), 12)
        k(f"s_mov_b64 exec, -1")
        k(f"{sk}:")
        k("s_barrier")
    for par in range(2):
        k(f"v_add_u32 v{t}, {4*par}, v{V_SLAB}")
        k(f"v_lshlrev_b32 v{t}, 1, v{t}")
        k(f"v_xor_b32 v{t}, v{t}, v{V_L15}")
        k(f"v_lshlrev_b32 v{t}, 4, v{t}")
        k(f"v_lshl_add_u32 v{PADR+4+par}, v{V_SLAB}, 13, v{t}")
    k(f"s_mul_i32 s{S_TMP}, s{S_J}, {128*8192}")
    k(f"s_lshl_b32 s{S_TMP+1}, s{S_H}, 8")
    k(f"s_add_u32 s{S_TMP}, s{S_TMP}, s{S_TMP+1}")
    k(f"s_lshl_b32 s{S_TMP+1}, s{S_WAVE}, 18")
    k(f"s_add_u32 s{S_TMP}, s{S_TMP}, s{S_TMP+1}")
    k(f"s_lshl_b32 s{S_TMP+1}, s{S_WAVE}, 13")
    k(f"s_add_u32 s{S_TMP+1}, s{S_TMP+1}, {L_WUV}")
    for ii in range(8):
        k(f"s_mov_b32 m0, s{S_TMP+1}")
        k(f"s_add_u32 s{S_TMP+1}, s{S_TMP+1}, 1024")
        k(f"buffer_load_dwordx4 v{PADR+4+(ii&1)}, {srd(R_B)}, s{S_TMP} offen lds")
        k(f"s_add_u32 s{S_TMP}, s{S_TMP}, {4*8192}")


def w1p_issue(k):
    t = PT
    k.srd(R_WQ, S_W1, 640 * 1728 * 2)
    k(f"v_lshrrev_b32 v{t}, 3, v{V_LANE}")
    k(f"v_mul_u32_u24 v{t}, 3456, v{t}")
    k(f"v_and_b32 v{t+1}, 7, v{V_LANE}")
    k(f"v_lshl_add_u32 v{t}, v{t+1}, 4, v{t}")
    k(f"s_mul_i32 s{S_TMP}, s{S_J}, {160*3456}")
    k(f"s_mul_i32 s{S_TMP+1}, s{S_WAVE}, {40*3456}")
    k(f"s_add_u32 s{S_TMP}, s{S_TMP}, s{S_TMP+1}")
    k(f"s_lshl_b32 s{S_TMP+1}, s{S_H}, 7")
    k(f"s_add_u32 s{S_TMP}, s{S_TMP}, s{S_TMP+1}")
    k(f"s_mul_i32 s{S_TMP+1}, s{S_WAVE}, 5120")
    k(f"s_add_u32 s{S_TMP+1}, s{S_TMP+1}, {L_W1P}")
    for i in range(5):
        k(f"s_mov_b32 m0, s{S_TMP+1}")
        k(f"s_add_u32 s{S_TMP+1}, s{S_TMP+1}, 1024")
        k(f"buffer_load_dwordx4 v{t}, {srd(R_WQ)}, s{S_TMP} offen lds")
        k(f"s_add_u32 s{S_TMP}, s{S_TMP}, {8*3456}")


def ffn1p(k):
    t = PT
    X, W, D = 28, 48, 68
    k(f"v_and_b32 v{t}, 1, v{V_LANE}")
    k(f"v_mul_u32_u24 v{t}, 1280, v{t}")
    k(f"v_lshl_add_u32 v{t}, v{V_SLAB}, 3, v{t}")
    k(f"s_mul_i32 s{S_TMP}, s{S_J}, 320")
    k(f"s_add_u32 s{S_TMP}, s{S_TMP}, {L_XN}")
    k(f"v_add_u32 v{t}, s{S_TMP}, v{t}")
    for i in range(5):
        k(f"ds_read_b64 {vr(X+4*i,2)}, v{t} offset:{64*i}")
        k(f"ds_read_b64 {vr(X+4*i+2,2)}, v{t} offset:{64*i+32}")
    k(f"v_lshrrev_b32 v{t+1}, 2, v{V_L15}")
    k(f"v_lshl_add_u32 v{t+1}, v{V_SLAB}, 2, v{t+1}")
    k(f"v_lshlrev_b32 v{t+1}, 7, v{t+1}")
    k(f"v_and_b32 v{t+2}, 3, v{V_L15}")
    k(f"v_lshl_add_u32 v{t+1}, v{t+2}, 3, v{t+1}")
    k(f"s_lshl_b32 s{S_TMP}, s{S_WAVE}, 5")
    k(f"s_add_u32 s{S_TMP}, s{S_TMP}, {L_W1P}")
    k(f"v_add_u32 v{t+1}, s{S_TMP}, v{t+1}")
    k(f"v_lshlrev_b32 v{t+2}, 4, v{V_L15}")
    k(f"s_lshl_b32 s{S_TMP}, s{S_H}, 2")
    k(f"s_add_u32 s{S_TMP}, s{S_TMP}, s{S_J}")
    k(f"s_lshl_b32 s{S_TMP}, s{S_TMP}, 10")
    k(f"s_lshl_b32 s{S_TMP+1}, s{S_WAVE}, 8")
    k(f"s_add_u32 s{S_TMP}, s{S_TMP}, s{S_TMP+1}")
    k(f"s_add_u32 s{S_TMP}, s{S_TMP}, {WS_HP}")
    k("s_waitcnt vmcnt(18)")
    k("s_barrier")
    for i in range(5):
        k(f"ds_read_b64_tr_b16 {vr(W+4*i,2)}, v{t+1} offset:{i*4096}")
        k(f"ds_read_b64_tr_b16 {vr(W+4*i+2,2)}, v{t+1} offset:{i*4096+2048}")
    k("s_waitcnt lgkmcnt(0)")
    for i in range(5):
        c = "0" if i == 0 else vr(D, 4)
        k(f"v_mfma_f32_16x16x32_bf16 {vr(D,4)}, {vr(X+4*i,4)}, {vr(W+4*i,4)}, {c}")
    k.nop(8)
    k(f"v_mov_b32 v{D+2}, s{S_T0}")
    k(f"v_mov_b32 v{D+3}, s{S_T1}")
    k(f"s_mov_b64 exec, 0xffff")
    k(f"buffer_store_dwordx4 {vr(D,4)}, v{t+2}, {srd(R_WS)}, s{S_TMP} offen sc1")
    k(f"s_mov_b64 exec, -1")


def p_weights_preread(k):
    t = PT
    k(f"v_lshrrev_b32 v{t}, 2, v{V_L15}")
    k(f"v_and_b32 v{t+1}, 3, v{V_L15}")
    k(f"v_lshl_add_u32 v{t+2}, v{V_SLAB}, 2, v{t}")
    k(f"v_and_b32 v{t+3}, 7, v{t+2}")
    k(f"v_lshlrev_b32 v{t+3}, 1, v{t+3}")
    k(f"v_lshrrev_b32 v{t+4}, 1, v{t+1}")
    k(f"v_and_b32 v{t+5}, 1, v{t+1}")
    k(f"s_lshl_b32 s{S_TMP}, s{S_WAVE}, 2")
    for d in range(2):
        k(f"v_add_u32 v{t+6}, s{S_TMP}, v{t+4}")
        if d:
            k(f"v_add_u32 v{t+6}, 2, v{t+6}")
        k(f"v_xor_b32 v{t+6}, v{t+6}, v{t+3}")
        k(f"v_lshlrev_b32 v{t+6}, 4, v{t+6}")
        k(f"v_lshl_add_u32 v{t+6}, v{t+5}, 3, v{t+6}")
        k(f"v_lshl_add_u32 v{PADR+6+d}, v{t+2}, 8, v{t+6}")
    for d in range(2):
        for kk in range(4):
            r = PWV + (d * 4 + kk) * 4
            k(f"ds_read_b64_tr_b16 {vr(r,2)}, v{PADR+6+d} offset:{L_WUV+kk*8192}")
            k(f"ds_read_b64_tr_b16 {vr(r+2,2)}, v{PADR+6+d} offset:{L_WUV+kk*8192+4096}")


def wo_issue(k):
    t = PT
    k(f"s_mul_i32 s{S_TMP}, s{S_H}, {128*1280}")
    k(f"s_mul_i32 s{S_TMP+1}, s{S_J}, 320")
    k(f"s_add_u32 s{S_TMP}, s{S_TMP}, s{S_TMP+1}")
    k(f"s_mul_i32 s{S_TMP+1}, s{S_WAVE}, 640")
    k(f"v_add_u32 v{t}, s{S_TMP+1}, v{V_LANE}")
    k(f"s_mul_i32 s{S_TMP+1}, s{S_WAVE}, 10240")
    k(f"s_add_u32 s{S_TMP+1}, s{S_TMP+1}, {L_WO5}")
    k(f"s_movk_i32 s{S_TMP+2}, 3277")
    k(f"s_movk_i32 s{S_TMP+3}, 960")
    for ii in range(10):
        k(f"v_mul_u32_u24 v{t+1}, s{S_TMP+2}, v{t}")
        k(f"v_lshrrev_b32 v{t+1}, 16, v{t+1}")
        k(f"v_mul_u32_u24 v{t+1}, s{S_TMP+3}, v{t+1}")
        k(f"v_lshl_add_u32 v{t+2+(ii&1)}, v{t}, 4, v{t+1}")
        k(f"s_mov_b32 m0, s{S_TMP+1}")
        k(f"s_add_u32 s{S_TMP+1}, s{S_TMP+1}, 1024")
        k(f"buffer_load_dwordx4 v{t+2+(ii&1)}, {srd(R_C)}, s{S_TMP} offen lds")
        k(f"v_add_u32 v{t}, 64, v{t}")


def wo_preread(k):
    t = PT
    k(f"v_lshrrev_b32 v{t}, 2, v{V_L15}")
    k(f"v_and_b32 v{t+1}, 3, v{V_L15}")
    k(f"v_lshl_add_u32 v{t+2}, v{V_SLAB}, 2, v{t}")
    k(f"s_lshl_b32 s{S_TMP}, s{S_WAVE}, 5")
    k(f"v_add_u32 v{t+6}, s{S_TMP}, v{t+2}")
    k(f"v_mul_u32_u24 v{t+6}, 320, v{t+6}")
    k(f"v_lshl_add_u32 v{PADR+8}, v{t+1}, 3, v{t+6}")
    k(f"v_add_u32 v{PADR+8}, {L_WO5}, v{PADR+8}")
    for ct in range(10):
        r = PWO + 4 * ct
        k(f"ds_read_b64_tr_b16 {vr(r,2)}, v{PADR+8} offset:{32*ct}")
        k(f"ds_read_b64_tr_b16 {vr(r+2,2)}, v{PADR+8} offset:{32*ct+5120}")


def reduce_bits(k, op, v, tmp):
    for mod in ("quad_perm:[1,0,3,2]", "quad_perm:[2,3,0,1]", "row_half_mirror"):
        k.nop(2)
        k(f"{op}_dpp v{v}, v{v}, v{v} {mod} row_mask:0xf bank_mask:0xf")
    for sw in ("v_permlane16_swap_b32", "v_permlane32_swap_b32"):
        k(f"v_mov_b32 v{tmp}, v{v}")
        k.nop(2)
        k(f"{sw} v{v}, v{tmp}")
        k.nop(1)
        k(f"{op} v{v}, v{v}, v{tmp}")


def stage4_setup(k):
    t = PT
    k(f"v_bfe_u32 v{t}, v{V_LANE}, 3, 1")
    k(f"v_bfe_u32 v{t+1}, v{V_LANE}, 2, 1")
    k(f"v_and_b32 v{t+2}, 3, v{V_LANE}")
    k(f"v_lshlrev_b32 v{t+1}, 4, v{t+1}")
    k(f"v_lshl_add_u32 v{t+1}, v{V_SLAB}, 2, v{t+1}")
    k(f"v_add_u32 v{t+1}, v{t+1}, v{t+2}")
    k(f"v_lshl_add_u32 v{t+1}, v{t}, 5, v{t+1}")
    k(f"v_lshlrev_b32 v{PADR+9}, 3, v{t+1}")
    k(f"v_and_b32 v{t+1}, 1, v{V_LANE}")
    k(f"v_cmp_eq_u32 vcc, 1, v{t+1}")
    k(f"v_mov_b32 v{t+2}, 0xffff")
    k(f"v_mov_b32 v{t+3}, 0xffff0000")
    k(f"v_cndmask_b32 v{t+2}, v{t+2}, v{t+3}, vcc")
    k(f"v_bfe_u32 v{t+1}, v{V_LANE}, 1, 2")
    k(f"v_lshl_add_u32 v{t+1}, v{t}, 2, v{t+1}")
    for i in range(8):
        k(f"v_cmp_eq_u32 vcc, {i}, v{t+1}")
        k.nop(2)
        k(f"v_cndmask_b32 v{PM+i}, 0, v{t+2}, vcc")
    k(f"v_lshlrev_b32 v{PADR+10}, 4, v0")
    k(f"v_lshrrev_b32 v{t}, 4, v0")
    k(f"v_and_b32 v{t+1}, 7, v{t}")
    k(f"v_lshlrev_b32 v{t+1}, 1, v{t+1}")
    k(f"v_xor_b32 v{t+1}, v{t+1}, v{V_L15}")
    k(f"v_lshlrev_b32 v{t+1}, 4, v{t+1}")
    k(f"v_lshl_add_u32 v{t+1}, v{t}, 8, v{t+1}")
    k(f"v_add_u32 v{PADR+11}, {L_AOB}, v{t+1}")
    k(f"v_lshrrev_b32 v{t}, 2, v{V_L15}")
    k(f"v_lshl_add_u32 v{t}, v{V_SLAB}, 2, v{t}")
    k(f"v_and_b32 v{t+1}, 7, v{t}")
    k(f"v_lshlrev_b32 v{t+1}, 1, v{t+1}")
    k(f"v_bfe_u32 v{t+2}, v{V_L15}, 1, 1")
    k(f"v_and_b32 v{t+3}, 1, v{V_L15}")
    k(f"s_lshl_b32 s{S_TMP}, s{S_WAVE}, 2")
    for d in range(2):
        k(f"v_add_u32 v{t+4}, s{S_TMP}, v{t+2}")
        if d:
            k(f"v_add_u32 v{t+4}, 2, v{t+4}")
        k(f"v_xor_b32 v{t+4}, v{t+4}, v{t+1}")
        k(f"v_lshlrev_b32 v{t+4}, 4, v{t+4}")
        k(f"v_lshl_add_u32 v{t+4}, v{t+3}, 3, v{t+4}")
        k(f"v_lshl_add_u32 v{t+4}, v{t}, 8, v{t+4}")
        k(f"v_add_u32 v{PADR+12+d}, {L_AOB}, v{t+4}")
    k(f"v_lshrrev_b32 v{t}, 1, v{V_SLAB}")
    k(f"v_and_b32 v{t+1}, 1, v{V_SLAB}")
    k(f"v_lshlrev_b32 v{t}, 7, v{t}")
    k(f"v_lshl_add_u32 v{t}, v{t+1}, 4, v{t}")
    k(f"v_add_u32 v{t}, v{t}, v{V_L15}")
    k(f"s_lshl_b32 s{S_TMP}, s{S_WAVE}, 5")
    k(f"v_add_u32 v{t}, s{S_TMP}, v{t}")
    k(f"v_lshlrev_b32 v{t}, 1, v{t}")
    k(f"v_add_u32 v{PADR+14}, {L_CTX}, v{t}")
    k(f"v_and_b32 v{t}, 1, v{V_LANE}")
    k(f"v_lshlrev_b32 v{t}, 8, v{t}")
    k(f"v_lshl_add_u32 v{t}, v{V_SLAB}, 4, v{t}")
    k(f"v_add_u32 v{PADR+15}, {L_CTX}, v{t}")


def stage4(k):
    t = PT
    G = PG
    ST = 26
    k(f"s_lshl_b32 s{S_TMP}, s{S_H}, 9")
    k(f"s_add_u32 s{S_TMP}, s{S_TMP}, {WS_ST}")
    k(f"s_lshl_b32 s{S_TMP+1}, s{S_H}, 2")
    k(f"s_add_u32 s{S_TMP+1}, s{S_TMP+1}, s{S_J}")
    k(f"s_lshl_b32 s{S_TMP+2}, s{S_TMP+1}, 14")
    k(f"s_add_u32 s{S_TMP+2}, s{S_TMP+2}, {WS_AO}")
    for n in range(1, 4):
        k(f"s_add_u32 s{S_TMP+2+n}, s{S_TMP+2}, {4096*n}")
    sk = k.label("stw")
    k(f"v_lshlrev_b32 v{t+12}, 3, v{V_LANE}")
    k(f"v_add_u32 v{t+12}, {L_STX}, v{t+12}")
    k(f"s_cmp_eq_u32 s{S_WAVE}, 0")
    k(f"s_cbranch_scc0 {sk}")
    gather_check_loop(k, "st", [f"buffer_load_dwordx2 {vr(ST,2)}, v{PADR+9}, {srd(R_WS)}, s{S_TMP} offen sc1"], [ST, ST + 1], None)
    k(f"ds_write_b64 v{t+12}, {vr(ST,2)}")
    k("s_waitcnt lgkmcnt(0)")
    k(f"{sk}:")
    k("s_barrier")
    k.stamp(7)
    loads = [f"buffer_load_dwordx4 {vr(G+4*n,4)}, v{PADR+10}, {srd(R_WS)}, s{S_TMP+2+n} offen sc1" for n in range(4)]
    aopos = K.opt.get("aopos", "mid")
    if aopos == "pre":
        for l in loads:
            k(l)
    k(f"ds_read_b64 {vr(ST,2)}, v{t+12}")
    k("s_waitcnt lgkmcnt(0)")
    M = t + 8
    k(f"v_mov_b32 v{M}, v{ST}")
    reduce_bits(k, "v_max_f32", M, t + 9)
    k(f"v_sub_f32 v{t}, v{ST}, v{M}")
    k(f"v_exp_f32 v{t}, v{t}")
    k.nop(1)
    k(f"v_cvt_pk_bf16_f32 v{t}, v{t}, v{t}")
    for i in range(8):
        k(f"v_and_b32 v{PA+i}, v{t}, v{PM+i}")
    k(f"v_and_b32 v{t+1}, 0xffff0000, v{t}")
    k(f"v_mul_f32 v{t+1}, v{t+1}, v{ST+1}")
    if aopos == "mid":
        for l in loads:
            k(l)
    reduce_bits(k, "v_add_f32", t + 1, t + 9)
    k(f"v_rcp_f32 v{t+1}, v{t+1}")
    k.nop(1)
    k(f"v_readlane_b32 s{S_TMP+6}, v{t+1}, 0")
    k(f"v_readlane_b32 s{S_TMP+7}, v{t+1}, 8")
    k(f"v_cmp_le_u32 vcc, 32, v{V_LANE}")
    k.nop(1)
    k(f"v_mov_b32 v{t+2}, s{S_TMP+6}")
    k(f"v_mov_b32 v{t+3}, s{S_TMP+7}")
    k(f"v_cndmask_b32 v{t+2}, v{t+2}, v{t+3}, vcc")
    if aopos == "post":
        for l in loads:
            k(l)
    gather_check_loop(k, "ao", loads, list(range(G, G + 16)), 8, preissued=True)
    for n in range(4):
        k(f"ds_write_b128 v{PADR+11}, {vr(G+4*n,4)} offset:{4096*n}")
    k("s_waitcnt lgkmcnt(0)")
    k("s_barrier")
    B = PD + 8
    for d in range(2):
        for bb in range(2):
            r = B + (d * 2 + bb) * 4
            k(f"ds_read_b64_tr_b16 {vr(r,2)}, v{PADR+12+d} offset:{bb*8192}")
            k(f"ds_read_b64_tr_b16 {vr(r+2,2)}, v{PADR+12+d} offset:{bb*8192+4096}")
    for d in range(2):
        k(f"s_waitcnt lgkmcnt({4-4*d})")
        k(f"v_mfma_f32_16x16x32_bf16 {vr(PD+4*d,4)}, {vr(PA,4)}, {vr(B+(d*2)*4,4)}, 0")
        k(f"v_mfma_f32_16x16x32_bf16 {vr(PD+4*d,4)}, {vr(PA+4,4)}, {vr(B+(d*2+1)*4,4)}, {vr(PD+4*d,4)}")
    k.nop(8)
    for d in range(2):
        k(f"v_add_f32 v{PD+4*d}, v{PD+4*d}, v{PD+4*d+1}")
        k(f"v_add_f32 v{PD+4*d+2}, v{PD+4*d+2}, v{PD+4*d+3}")
    for d in range(2):
        k(f"v_add_f32 v{PD+4*d}, v{PD+4*d}, v{PD+4*d+2}")
    k.nop(2)
    k(f"v_permlane16_swap_b32 v{PD}, v{PD+4}")
    k.nop(1)
    k(f"v_add_f32 v{PD}, v{PD}, v{PD+4}")
    k(f"v_mul_f32 v{PD}, v{PD}, v{t+2}")
    k(f"v_cvt_pk_bf16_f32 v{PD}, v{PD}, v{PD}")
    k(f"ds_write_b16 v{PADR+14}, v{PD}")
    k("s_waitcnt lgkmcnt(0)")
    k("s_barrier")
    for kk in range(4):
        k(f"ds_read_b128 {vr(PA+4*kk,4)}, v{PADR+15} offset:{64*kk}")
    k(f"v_lshrrev_b32 v{t}, 2, v{V_L15}")
    k(f"v_lshlrev_b32 v{t}, 3, v{t}")
    k(f"v_and_b32 v{t+1}, 1, v{V_SLAB}")
    k(f"v_lshl_add_u32 v{t}, v{t+1}, 2, v{t}")
    k(f"v_and_b32 v{t+1}, 2, v{V_L15}")
    k(f"v_add_u32 v{t}, v{t}, v{t+1}")
    k(f"v_lshrrev_b32 v{t+1}, 1, v{V_SLAB}")
    k(f"v_lshl_add_u32 v{t}, v{t+1}, 7, v{t}")
    k(f"v_lshlrev_b32 v{t}, 1, v{t}")
    k(f"s_lshl_b32 s{S_TMP}, s{S_H}, 2")
    k(f"s_add_u32 s{S_TMP}, s{S_TMP}, s{S_J}")
    k(f"s_lshl_b32 s{S_TMP}, s{S_TMP}, 9")
    k(f"s_lshl_b32 s{S_TMP+1}, s{S_WAVE}, 6")
    k(f"s_add_u32 s{S_TMP}, s{S_TMP}, s{S_TMP+1}")
    k(f"s_add_u32 s{S_TMP}, s{S_TMP}, {WS_CP}")
    k(f"s_add_u32 s{S_TMP+1}, s{S_TMP}, {WS_CF - WS_CP}")
    k(f"s_mov_b32 s{S_M+2}, 0xffff0000")
    k(f"s_mov_b32 s{S_M+3}, 0xffff0000")
    k(f"s_mov_b32 s{S_M+4}, 0")
    k(f"s_mov_b32 s{S_M+5}, -1")
    k(f"s_mov_b32 s{S_M+6}, 0x55555555")
    k(f"s_mov_b32 s{S_M+7}, 0x55555555")
    for kk in range(4):
        k(f"s_waitcnt lgkmcnt({3-kk})")
        for d in range(2):
            c = "0" if kk == 0 else vr(PD + 4 * d, 4)
            k(f"v_mfma_f32_16x16x32_bf16 {vr(PD+4*d,4)}, {vr(PA+4*kk,4)}, {vr(PWV+(d*4+kk)*4,4)}, {c}")
    k.nop(8)
    k(f"v_cndmask_b32 v{t+2}, v{PD}, v{PD+4}, s[{S_M+2}:{S_M+3}]")
    k(f"v_cndmask_b32 v{t+3}, v{PD+1}, v{PD+5}, s[{S_M+2}:{S_M+3}]")
    k(f"v_cndmask_b32 v{t+2}, v{t+2}, v{t+3}, s[{S_M+4}:{S_M+5}]")
    k.nop(2)
    k(f"v_mov_b32_dpp v{t+3}, v{t+2} quad_perm:[1,0,3,2] row_mask:0xf bank_mask:0xf")
    k(f"v_cvt_pk_bf16_f32 v{t+2}, v{t+2}, v{t+3}")
    if use_fast():
        k(f"v_mov_b32 v{PKEEP}, v{t+2}")
        k(f"v_mov_b32 v{PKEEP+1}, v{t}")
        k(f"s_mov_b32 s{S_KEEP}, s{S_TMP}")
    k(f"s_mov_b64 exec, s[{S_M+6}:{S_M+7}]")
    if use_fast():
        k(f"buffer_store_dword v{t+2}, v{t}, {srd(R_WS)}, s{S_TMP+1} offen")
    else:
        k(f"buffer_store_dword v{t+2}, v{t}, {srd(R_WS)}, s{S_TMP} offen sc1")
    k(f"s_mov_b64 exec, -1")
    k.stamp(9)


def stage5(k):
    t = PT
    k(f"v_and_b32 v{t}, 3, v{V_L15}")
    k(f"v_lshlrev_b32 v{t}, 9, v{t}")
    k(f"v_bfe_u32 v{t+1}, v{V_L15}, 2, 1")
    k(f"v_lshl_add_u32 v{t}, v{t+1}, 8, v{t}")
    k(f"v_lshl_add_u32 v{PADR}, v{V_SLAB}, 4, v{t}")
    k(f"s_lshl_b32 s{S_TMP}, s{S_H}, 11")
    k(f"s_lshl_b32 s{S_TMP+1}, s{S_WAVE}, 6")
    k(f"s_add_u32 s{S_TMP}, s{S_TMP}, s{S_TMP+1}")
    k(f"s_add_u32 s{S_TMP}, s{S_TMP}, {WS_CP}")
    k(f"v_lshrrev_b32 v{t}, 1, v{V_SLAB}")
    k(f"v_lshlrev_b32 v{t}, 4, v{t}")
    k(f"v_add_u32 v{t}, v{t}, v{V_L15}")
    k(f"v_lshlrev_b32 v{t}, 3, v{t}")
    k(f"v_and_b32 v{t+1}, 1, v{V_SLAB}")
    k(f"v_lshl_add_u32 v{PADR+1}, v{t+1}, 2, v{t}")
    k(f"s_mul_i32 s{S_TMP+1}, s{S_H}, 5120")
    k(f"s_mul_i32 s{S_TMP+2}, s{S_J}, 1280")
    k(f"s_add_u32 s{S_TMP+1}, s{S_TMP+1}, s{S_TMP+2}")
    k(f"s_add_u32 s{S_TMP+1}, s{S_TMP+1}, {WS_SP}")
    k(f"s_lshl_b32 s{S_TMP+2}, s{S_WAVE}, 8")
    k(f"s_add_u32 s{S_TMP+2}, s{S_TMP+2}, s{S_TMP+1}")
    k(f"s_add_u32 s{S_TMP+1}, s{S_TMP+1}, 1024")
    k(f"v_lshlrev_b32 v{t}, 2, v{V_LANE}")
    k(f"s_mul_i32 s{S_TMP+3}, s{S_WAVE}, 1280")
    k(f"s_add_u32 s{S_TMP+3}, s{S_TMP+3}, {L_RED5}")
    k(f"v_add_u32 v{PADR+3}, s{S_TMP+3}, v{t}")
    k(f"s_lshl_b32 s{S_TMP+3}, s{S_WAVE}, 8")
    k(f"s_add_u32 s{S_TMP+3}, s{S_TMP+3}, {L_RED5}")
    k(f"v_add_u32 v{PADR+2}, s{S_TMP+3}, v{t}")
    k(f"v_add_u32 v{PADR+4}, {L_RED5+1024}, v{t}")
    k(f"s_mov_b32 s{S_M+4}, 0")
    k(f"s_mov_b32 s{S_M+5}, -1")
    loads = [f"buffer_load_dwordx4 {vr(PG,4)}, v{PADR}, {srd(R_WS)}, s{S_TMP} offen sc1"]
    k(f"s_add_u32 s{S_TMP+5}, s{S_TMP}, {WS_CF - WS_CP}")
    floads = [f"buffer_load_dwordx4 {vr(PG,4)}, v{PADR}, {srd(R_WS)}, s{S_TMP+5} offen sc1"]
    def send_cp(kk):
        kk(f"s_mov_b32 exec_lo, 0x55555555")
        kk(f"s_mov_b32 exec_hi, 0x55555555")
        kk(f"buffer_store_dword v{PKEEP}, v{PKEEP+1}, {srd(R_WS)}, s{S_KEEP} offen sc1")
        kk(f"s_mov_b64 exec, -1")
    gather_loop(k, "cp", loads, lambda kk: sentinel_check(kk, [PG, PG + 1, PG + 2, PG + 3]), 10,
                fast=(floads, 16) if use_fast() else None, after_fast=send_cp if use_fast() else None)
    for ct in range(10):
        k(f"v_mfma_f32_16x16x32_bf16 {vr(PD+4*ct,4)}, {vr(PG,4)}, {vr(PWO+4*ct,4)}, 0")
    for ct in range(10):
        k(f"v_add_f32 v{PD+4*ct}, v{PD+4*ct}, v{PD+4*ct+1}")
        k(f"v_add_f32 v{PD+4*ct+2}, v{PD+4*ct+2}, v{PD+4*ct+3}")
        k(f"v_add_f32 v{PD+4*ct}, v{PD+4*ct}, v{PD+4*ct+2}")
    for u in range(5):
        k(f"v_cndmask_b32 v{PY+u}, v{PD+8*u}, v{PD+8*u+4}, s[{S_M+4}:{S_M+5}]")
    k(f"ds_write2st64_b32 v{PADR+3}, v{PY}, v{PY+1} offset0:0 offset1:1")
    k(f"ds_write2st64_b32 v{PADR+3}, v{PY+2}, v{PY+3} offset0:2 offset1:3")
    k(f"ds_write_b32 v{PADR+3}, v{PY+4} offset:1024")
    k("s_waitcnt lgkmcnt(0)")
    k("s_barrier")
    k(f"ds_read2st64_b32 {vr(t,2)}, v{PADR+2} offset0:0 offset1:5")
    k(f"ds_read2st64_b32 {vr(t+2,2)}, v{PADR+2} offset0:10 offset1:15")
    k(f"ds_read2st64_b32 {vr(t+4,2)}, v{PADR+4} offset0:0 offset1:5")
    k(f"ds_read2st64_b32 {vr(t+6,2)}, v{PADR+4} offset0:10 offset1:15")
    k("s_waitcnt lgkmcnt(2)")
    k(f"v_add_f32 v{t}, v{t}, v{t+1}")
    k(f"v_add_f32 v{t+2}, v{t+2}, v{t+3}")
    k(f"v_add_f32 v{t}, v{t}, v{t+2}")
    k(f"buffer_store_dword v{t}, v{PADR+1}, {srd(R_WS)}, s{S_TMP+2} offen sc1")
    skip = k.label("s5skip")
    k(f"s_cmp_eq_u32 s{S_WAVE}, 0")
    k(f"s_cbranch_scc0 {skip}")
    k("s_waitcnt lgkmcnt(0)")
    k(f"v_add_f32 v{t+4}, v{t+4}, v{t+5}")
    k(f"v_add_f32 v{t+6}, v{t+6}, v{t+7}")
    k(f"v_add_f32 v{t+4}, v{t+4}, v{t+6}")
    k(f"buffer_store_dword v{t+4}, v{PADR+1}, {srd(R_WS)}, s{S_TMP+1} offen sc1")
    k(f"{skip}:")
    k.stamp(11)


S_U = 73 + 7
BQ = 10
BG = 74
BD = 90
BS = 122
BP = 130
BL = 146
BADR = 150
BT = 166
BONE = 186
BAC = 190
BTR = 192
BWF = 194
BA2 = 236
BROW = 240
BWR = 196
S_WFL, S_WFO, S_WFS = 17, 22, 23
AOT_RS = 272
L_AOT = 98304
S_FLG = 14
S_AC = 14 + 2
FIRSTWAIT_AC = 1
S_B, S_G, S_UU = 66, 67, 68


def b_roles(k):
    k(f"s_sub_u32 s{S_JP}, s{S_J}, 4")
    k(f"s_and_b32 s{S_G}, s{S_JP}, 1")
    k(f"s_lshr_b32 s{S_B}, s{S_JP}, 1")
    k(f"s_lshl_b32 s{S_UU}, s{S_JP}, 5")
    k(f"s_add_u32 s{S_UU}, s{S_UU}, s{S_H}")
    k(f"s_and_b32 s{S_F}, s{S_UU}, 63")
    k(f"s_lshr_b32 s{S_TMP}, s{S_UU}, 6")
    k(f"s_add_u32 s{S_ROLE}, s{S_TMP}, 1")
    k(f"s_cmp_lt_u32 s{S_F}, {NF}")
    k(f"s_cselect_b32 s{S_ROLE}, s{S_ROLE}, 3")
    k(f"s_mul_i32 s{S_TMP}, s{S_TMP}, 10")
    k(f"s_add_u32 s{S_Z}, s{S_F}, s{S_TMP}")
    k(f"s_sub_u32 s{S_Z}, s{S_Z}, {NF}")


def clears_B(k):
    t = V_T + 4
    neg = vr(V_NEG1, 4)
    k(f"v_lshlrev_b32 v{t}, 4, v{V_LANE}")
    k(f"s_lshl_b32 s{S_TMP}, s{S_H}, 2")
    k(f"s_add_u32 s{S_TMP}, s{S_TMP}, s{S_JP}")
    k(f"s_lshl_b32 s{S_TMP}, s{S_TMP}, 14")
    k(f"s_add_u32 s{S_TMP}, s{S_TMP}, {WS_AO}")
    k(f"s_mul_i32 s{S_TMP+1}, s{S_WAVE}, 5120")
    k(f"s_add_u32 s{S_TMP}, s{S_TMP}, s{S_TMP+1}")
    k(f"s_sub_u32 s{S_TMP}, s{S_TMP}, 4096")
    for i in range(5):
        off = i * 1024
        if i == 4:
            k(f"s_add_u32 s{S_TMP}, s{S_TMP}, 4096")
            off = 0
        k(f"buffer_store_dwordx4 {neg}, v{t}, {srd(R_WS)}, s{S_TMP} offen offset:{off} sc1")
    sk = k.label("cb")
    k(f"s_cmp_eq_u32 s{S_WAVE}, 1")
    k(f"s_cbranch_scc0 {sk}_2")
    k(f"s_sub_u32 s{S_TMP}, s{S_TMP}, 5120")
    k(f"buffer_store_dwordx4 {neg}, v{t}, {srd(R_WS)}, s{S_TMP} offen sc1")
    k(f"s_branch {sk}")
    k(f"{sk}_2:")
    k(f"s_cmp_eq_u32 s{S_WAVE}, 2")
    k(f"s_cbranch_scc0 {sk}")
    k(f"s_cmp_eq_u32 s{S_ROLE}, 2")
    k(f"s_cbranch_scc0 {sk}")
    k(f"s_mul_i32 s{S_TMP}, s{S_F}, 5120")
    k(f"s_add_u32 s{S_TMP}, s{S_TMP}, {WS_FP}")
    for i in range(5):
        off = i * 1024
        if i == 4:
            k(f"s_add_u32 s{S_TMP}, s{S_TMP}, 4096")
            off = 0
        k(f"buffer_store_dwordx4 {neg}, v{t}, {srd(R_WS)}, s{S_TMP} offen offset:{off} sc1")
    k(f"{sk}:")


def tag_store(k, base, shift, treg, only_wave=None, jreg=None):
    k(f"s_lshl_b32 s{S_TMP+3}, s{S_H}, 2")
    k(f"s_add_u32 s{S_TMP+3}, s{S_TMP+3}, s{S_JP if jreg is None else jreg}")
    k(f"s_lshl_b32 s{S_TMP+3}, s{S_TMP+3}, {shift}")
    k(f"s_add_u32 s{S_TMP+3}, s{S_TMP+3}, {base}")
    if only_wave is not None:
        k(f"s_cmp_eq_u32 s{S_WAVE}, {only_wave}")
        k(f"s_cselect_b32 s{S_TMP+3}, s{S_TMP+3}, 0x7f000000")
    k(f"v_mov_b32 v{treg}, s{S_T0}")
    k(f"v_mov_b32 v{treg+1}, s{S_T1}")
    k(f"v_mov_b32 v{treg+2}, 0")
    k(f"s_mov_b64 exec, 1")
    k(f"buffer_store_dwordx2 {vr(treg,2)}, v{treg+2}, {srd(R_WS)}, s{S_TMP+3} offen sc1")
    k(f"s_mov_b64 exec, -1")


def ac_publish(k):
    sk = k.label("acp")
    k(f"s_cmp_eq_u32 s{S_WAVE}, 1")
    k(f"s_cbranch_scc0 {sk}")
    tag_store(k, WS_AC, 3, BT + 2)
    k(f"{sk}:")


S_RO, S_RL = 24, 25


def ckv_setup(k):
    k(f"s_lshl_b32 s{S_RO}, s{S_B}, 12")
    k(f"s_lshl_b32 s{S_TMP+1}, s{S_H}, 7")
    k(f"s_add_u32 s{S_RO}, s{S_RO}, s{S_TMP+1}")
    k(f"s_lshl_b32 s{S_TMP+1}, s{S_WAVE}, 5")
    k(f"s_add_u32 s{S_RO}, s{S_RO}, s{S_TMP+1}")
    k(f"s_lshl_b32 s{S_RO}, s{S_RO}, 10")
    k(f"s_mul_i32 s{S_RL}, s{S_WAVE}, {32*RS}")
    k(f"s_add_u32 s{S_RL}, s{S_RL}, {L_CKV}")
    k(f"v_lshlrev_b32 v{BROW}, 4, v{V_LANE}")
    k(f"s_mul_i32 s{S_TMP+3}, s{S_G}, {16*1024}")
    k(f"s_add_u32 s{S_RO}, s{S_RO}, s{S_TMP+3}")
    k(f"s_mul_i32 s{S_TMP+3}, s{S_G}, {16*RS}")
    k(f"s_add_u32 s{S_RL}, s{S_RL}, s{S_TMP+3}")
    if K.opt.get("g1skip"):
        k(f"s_cmp_eq_u32 s{S_G}, 1")
        k(f"s_cselect_b32 s{R_A+2}, 0, s{R_A+2}")


def flags_setup(k):
    k(f"v_lshlrev_b32 v{BADR+15}, 3, v{V_LANE}")
    k(f"s_lshl_b32 s{S_AC}, s{S_G}, 9")
    k(f"s_add_u32 s{S_FLG}, s{S_AC}, {WS_PC}")
    k(f"s_add_u32 s{S_AC}, s{S_AC}, {WS_AC}")


def ckv_rows(k, r0, r1):
    for r in range(r0, r1):
        if r == 8:
            sk = k.label("acw")
            k(f"s_cmp_eq_u32 s{S_WAVE}, 0")
            k(f"s_cbranch_scc1 {sk}")
            k("s_waitcnt vmcnt(8)")
            epoch_tags(k, VE)
            k(f"{sk}:")
            k("s_barrier")
            ac_publish(k)
            flags_setup(k)
        if r == flag_row():
            k(flag_load())
            k(ac_load())
        if r == 16 and K.opt.get("halfstamp"):
            k.stamp(15)
        if r == 24 and K.opt.get("halfstamp"):
            k.stamp(16)
        if r == 16:
            k(f"s_mul_i32 s{S_TMP+3}, s{S_G}, {32*1024}")
            k(f"s_sub_u32 s{S_RO}, s{S_RO}, s{S_TMP+3}")
            k(f"s_mul_i32 s{S_TMP+3}, s{S_G}, {32*RS}")
            k(f"s_sub_u32 s{S_RL}, s{S_RL}, s{S_TMP+3}")
        nin = int(K.opt.get("infl", 8))
        if nin and r >= nin and r != 8:
            k(f"s_waitcnt vmcnt({nin - 1 + (2 if flag_row() <= r < flag_row() + nin else 0)})")
        k(f"s_mov_b32 m0, s{S_RL}")
        k(f"s_add_u32 s{S_RL}, s{S_RL}, {RS}")
        k(f"buffer_load_dwordx4 v{BROW}, {srd(R_A)}, s{S_RO} offen lds")
        k(f"s_add_u32 s{S_RO}, s{S_RO}, 1024")
        if K.opt.get("g1skip") and r == r0 and r0 == 0:
            pass


def early_rows():
    return int(K.opt.get("erows", 0))


def flag_row():
    return int(K.opt.get("frow", FLAG_ROW))


def ntr():
    return 1 if K.opt.get("trig", "0") == "1" else 0


def flag_load():
    return f"buffer_load_dwordx2 {vr(BG,2)}, v{BADR+15}, {srd(R_WS)}, s{S_FLG} offen sc1"


def ac_load():
    return f"buffer_load_dwordx2 {vr(BAC,2)}, v{BADR+15}, {srd(R_WS)}, s{S_AC} offen sc1"


def flags_poll(k):
    gather_loop(k, "fl", [flag_load(), ac_load()], lambda kk: tag_check(kk, [(BG, BG+1), (BAC, BAC+1)]), 14, preissued=True, firstwait=32 - flag_row() + ntr())


def nwf_early():
    return int(K.opt.get("nwfe", NWF_EARLY))


def wf_load(k, i):
    if K.opt.get("nowf"):
        return
    if i >= int(K.opt.get("wfn", 10)):
        return
    k(f"buffer_load_dwordx4 {vr(BWR+4*i,4)}, v{BWF}, {srd(R_B)}, s{S_WFO} offen")
    if i < 9:
        k(f"s_add_u32 s{S_WFO}, s{S_WFO}, s{S_WFS}")


def attention_setup(k):
    t = BT
    k(f"s_lshl_b32 s{S_TMP}, s{S_WAVE}, 5")
    k(f"v_add_u32 v{t}, s{S_TMP}, v{V_L15}")
    k(f"v_mul_u32_u24 v{t}, {RS}, v{t}")
    k(f"v_lshl_add_u32 v{t}, v{V_SLAB}, 8, v{t}")
    k(f"v_and_b32 v{t+1}, 1, v{V_SLAB}")
    k(f"v_lshlrev_b32 v{t+1}, 4, v{t+1}")
    k(f"s_mul_i32 s{S_TMP}, s{S_G}, {16*RS}")
    k(f"s_sub_u32 s{S_TMP+1}, {16*RS}, s{S_TMP}")
    k(f"v_add_u32 v{BADR}, v{t}, v{t+1}")
    k(f"v_sub_u32 v{BADR+1}, v{t}, v{t+1}")
    k(f"v_add_u32 v{BA2}, s{S_TMP+1}, v{BADR}")
    k(f"v_add_u32 v{BA2+1}, s{S_TMP+1}, v{BADR+1}")
    k(f"v_add_u32 v{BADR}, s{S_TMP}, v{BADR}")
    k(f"v_add_u32 v{BADR+1}, s{S_TMP}, v{BADR+1}")
    k(f"v_mul_u32_u24 v{t}, {RS}, v{V_L15}")
    k(f"v_lshl_add_u32 v{t}, v{V_SLAB}, 8, v{t}")
    k(f"v_add_u32 v{t}, {L_QB}, v{t}")
    k(f"v_add_u32 v{BADR+2}, v{t}, v{t+1}")
    k(f"v_sub_u32 v{BADR+3}, v{t}, v{t+1}")
    k(f"v_lshrrev_b32 v{t}, 2, v{V_L15}")
    k(f"v_lshl_add_u32 v{t}, v{V_SLAB}, 2, v{t}")
    k(f"v_mul_u32_u24 v{t}, {RS}, v{t}")
    k(f"v_and_b32 v{t+1}, 3, v{V_L15}")
    k(f"v_lshl_add_u32 v{t}, v{t+1}, 3, v{t}")
    k(f"s_lshl_b32 s{S_TMP}, s{S_WAVE}, 8")
    k(f"v_add_u32 v{t}, s{S_TMP}, v{t}")
    k(f"s_mul_i32 s{S_TMP}, s{S_G}, {16*RS}")
    k(f"s_sub_u32 s{S_TMP+1}, {16*RS}, s{S_TMP}")
    k(f"v_add_u32 v{BADR+4}, s{S_TMP}, v{t}")
    k(f"v_add_u32 v{BADR+5}, {64*RS}, v{BADR+4}")
    k(f"v_add_u32 v{BA2+2}, s{S_TMP+1}, v{t}")
    k(f"v_add_u32 v{BA2+3}, {64*RS}, v{BA2+2}")
    k(f"v_lshlrev_b32 v{BADR+6}, 4, v0")
    k(f"s_mul_i32 s{S_TMP}, s{S_WAVE}, {RS}")
    k(f"s_add_u32 s{S_TMP}, s{S_TMP}, {L_QB}")
    k(f"v_lshlrev_b32 v{t}, 4, v{V_LANE}")
    k(f"v_add_u32 v{BADR+7}, s{S_TMP}, v{t}")
    k(f"v_lshlrev_b32 v{t+1}, 2, v{V_LANE}")
    k(f"s_lshl_b32 s{S_TMP}, s{S_WAVE}, 8")
    k(f"s_add_u32 s{S_TMP}, s{S_TMP}, {L_MX}")
    k(f"v_add_u32 v{BADR+8}, s{S_TMP}, v{t+1}")
    k(f"v_add_u32 v{BADR+9}, {L_MX}, v{t+1}")
    k(f"s_lshl_b32 s{S_TMP}, s{S_WAVE}, 10")
    k(f"s_add_u32 s{S_TMP}, s{S_TMP}, {L_PB}")
    k(f"v_add_u32 v{BADR+10}, s{S_TMP}, v{t}")
    k(f"v_add_u32 v{BADR+11}, {L_PB}, v{t}")
    k(f"s_mul_i32 s{S_TMP}, s{S_WAVE}, {16*AOT_RS}")
    k(f"s_add_u32 s{S_TMP}, s{S_TMP}, {L_AOT}")
    k(f"v_mul_u32_u24 v{t}, {AOT_RS}, v{V_L15}")
    k(f"v_lshl_add_u32 v{t}, v{V_SLAB}, 4, v{t}")
    k(f"v_add_u32 v{BADR+12}, s{S_TMP}, v{t}")
    k(f"v_lshrrev_b32 v{t}, 3, v{V_LANE}")
    k(f"v_mul_u32_u24 v{t}, {AOT_RS}, v{t}")
    k(f"v_and_b32 v{t+1}, 7, v{V_LANE}")
    k(f"v_lshl_add_u32 v{t}, v{t+1}, 4, v{t}")
    k(f"v_add_u32 v{BTR}, s{S_TMP}, v{t}")
    k(f"v_lshrrev_b32 v{t}, 3, v{V_LANE}")
    k(f"v_lshlrev_b32 v{t}, 16, v{t}")
    k(f"v_lshl_add_u32 v{BTR+1}, v{t+1}, 4, v{t}")
    k(f"v_lshlrev_b32 v{BADR+13}, 9, v{V_L15}")
    for i in range(4):
        k(f"v_mov_b32 v{BONE+i}, 0x3f803f80")


def attention(k):
    t = BT

    def pv_read(tt, u, half):
        r = 128 + (tt * 4 + u) * 4 + 2 * half
        base = (BADR + 4 if half == 0 else BA2 + 2) + (u >> 1)
        k(f"ds_read_b64_tr_b16 {ar(r,2)}, v{base} offset:{L_CKV + (u & 1) * 32 * RS + 32 * tt}")

    def a_read(p):
        for i in range(16):
            base = (BADR if p == 0 else BA2) + (i & 1)
            k(f"ds_read_b128 {ar((p*16+i)*4,4)}, v{base} offset:{L_CKV+i*16}")

    k(f"s_waitcnt vmcnt({18 + ntr()})")
    a_read(0)
    k("s_barrier")
    for tt in range(8):
        for u in range(4):
            pv_read(tt, u, 0)
    if K.opt.get("noflags"):
        k(f"s_waitcnt vmcnt({4 + ntr()})")
    else:
        flags_poll(k)
    k(f"s_lshl_b32 s{S_TMP}, s{S_B}, 15")
    k(f"s_lshl_b32 s{S_TMP+1}, s{S_G}, 14")
    k(f"s_add_u32 s{S_TMP}, s{S_TMP}, s{S_TMP+1}")
    k(f"s_add_u32 s{S_TMP}, s{S_TMP}, {WS_QA}")
    for n in range(1, 4):
        k(f"s_add_u32 s{S_TMP+n}, s{S_TMP}, {4096*n}")
    loads = [f"buffer_load_dwordx4 {vr(BG+4*n,4)}, v{BADR+6}, {srd(R_WS)}, s{S_TMP+n} offen sc1" for n in range(4)]
    for l in loads:
        k(l)
    k(f"s_waitcnt vmcnt({4 + ntr()})")
    k.stamp(4)
    if K.opt.get("bstop"):
        k("s_branch L_done")
    a_read(1)
    gather_check_loop(k, "qa", loads, list(range(BG, BG + 16)), 5, preissued=True)
    for n in range(4):
        k(f"ds_write_b128 v{BADR+7}, {vr(BG+4*n,4)} offset:{4*n*RS}")
    k("s_waitcnt lgkmcnt(0)")
    k("s_barrier")
    for i in range(16):
        k(f"ds_read_b128 {vr(BQ+4*i,4)}, v{BADR+2+(i&1)} offset:{i*16}")
    for i in range(16):
        if i < 8:
            k(f"s_waitcnt lgkmcnt({15-i})")
        elif i == 8:
            k("s_waitcnt lgkmcnt(0)")
        for p in range(2):
            c = "0" if i == 0 else vr(BS + 4 * p, 4)
            k(f"v_mfma_f32_16x16x32_bf16 {vr(BS+4*p,4)}, {ar((p*16+i)*4,4)}, {vr(BQ+4*i,4)}, {c}")
        if i >= 8:
            for u in range(4):
                pv_read(i - 8, u, 1)
        if (i & 1) and (i >> 1) < nwf_early():
            wf_load(k, i >> 1)
    k.nop(8)
    k.stamp(6)
    k(f"v_max3_f32 v{t}, v{BS}, v{BS+1}, v{BS+2}")
    k(f"v_max3_f32 v{t+1}, v{BS+3}, v{BS+4}, v{BS+5}")
    k(f"v_max3_f32 v{t}, v{t}, v{BS+6}, v{BS+7}")
    k(f"v_max_f32 v{t}, v{t}, v{t+1}")
    for sw in ("v_permlane16_swap_b32", "v_permlane32_swap_b32"):
        k(f"v_mov_b32 v{t+1}, v{t}")
        k.nop(2)
        k(f"{sw} v{t}, v{t+1}")
        k.nop(1)
        k(f"v_max_f32 v{t}, v{t}, v{t+1}")
    k(f"ds_write_b32 v{BADR+8}, v{t}")
    k("s_waitcnt lgkmcnt(0)")
    k("s_barrier")
    k(f"ds_read2st64_b32 {vr(t,2)}, v{BADR+9} offset0:0 offset1:1")
    k(f"ds_read2st64_b32 {vr(t+2,2)}, v{BADR+9} offset0:2 offset1:3")
    k("s_waitcnt lgkmcnt(0)")
    k(f"v_max3_f32 v{t}, v{t}, v{t+1}, v{t+2}")
    k(f"v_max_f32 v{t+4}, v{t}, v{t+3}")
    for i in range(8):
        k(f"v_sub_f32 v{BS+i}, v{BS+i}, v{t+4}")
    for i in range(8):
        k(f"v_exp_f32 v{BS+i}, v{BS+i}")
    k.nop(1)
    for i in range(4):
        k(f"v_cvt_pk_bf16_f32 v{t+i}, v{BS+2*i}, v{BS+2*i+1}")
    k(f"ds_write_b128 v{BADR+10}, {vr(t,4)}")
    k("s_waitcnt lgkmcnt(0)")
    k("s_barrier")
    k.stamp(7)
    for u in range(4):
        k(f"ds_read_b128 {vr(BP+4*u,4)}, v{BADR+11} offset:{1024*u}")
    k(f"s_lshl_b32 s{S_TMP}, s{S_G}, 20")
    k(f"s_lshl_b32 s{S_TMP+1}, s{S_WAVE}, 14")
    k(f"s_add_u32 s{S_TMP}, s{S_TMP}, s{S_TMP+1}")
    k(f"s_lshl_b32 s{S_TMP+1}, s{S_B}, 5")
    k(f"s_add_u32 s{S_TMP+1}, s{S_TMP+1}, s{S_H}")
    k(f"s_lshl_b32 s{S_TMP+2}, s{S_TMP+1}, 8")
    k(f"s_add_u32 s{S_TMP}, s{S_TMP}, s{S_TMP+2}")
    k(f"s_add_u32 s{S_TMP}, s{S_TMP}, {WS_AO}")
    k(f"s_lshl_b32 s{S_TMP+1}, s{S_TMP+1}, 3")
    k(f"s_lshl_b32 s{S_TMP+2}, s{S_G}, 13")
    k(f"s_add_u32 s{S_TMP+1}, s{S_TMP+1}, s{S_TMP+2}")
    k(f"s_add_u32 s{S_TMP+1}, s{S_TMP+1}, {WS_ST}")
    def conv(up):
        r = BQ + 4 * up
        return [f"v_cvt_pk_bf16_f32 v{r}, v{BD+8*up}, v{BD+8*up+1}",
                f"v_cvt_pk_bf16_f32 v{r+1}, v{BD+8*up+2}, v{BD+8*up+3}",
                f"v_cvt_pk_bf16_f32 v{r+2}, v{BD+8*up+4}, v{BD+8*up+5}",
                f"v_cvt_pk_bf16_f32 v{r+3}, v{BD+8*up+6}, v{BD+8*up+7}",
                f"ds_write_b128 v{BADR+12}, {vr(r,4)} offset:{64*up}"]

    def half_read(y):
        return [f"ds_read_b128 {vr(BQ+16+8*y+4*x,4)}, v{BTR} offset:{x*8*AOT_RS + y*128}" for x in range(2)]

    def half_store(y, x):
        return f"buffer_store_dwordx4 {vr(BQ+16+8*y+4*x,4)}, v{BTR+1}, {srd(R_WS)}, s{S_TMP+2*x} offen offset:{y*128} sc1"

    k(f"s_add_u32 s{S_TMP+2}, s{S_TMP}, {8*65536}")
    k(f"s_cmp_eq_u32 s{S_WAVE}, 0")
    k(f"s_cselect_b32 s{S_TMP+1}, s{S_TMP+1}, 0x7f000000")
    for u in range(4):
        k(f"s_waitcnt lgkmcnt({3-u})")
        c = "0" if u == 0 else vr(BL, 4)
        k(f"v_mfma_f32_16x16x32_bf16 {vr(BL,4)}, {vr(BONE,4)}, {vr(BP+4*u,4)}, {c}")
    for up in range(4):
        extra = conv(up - 2) if up >= 2 else []
        if up == 1:
            extra = [f"v_mov_b32 v{t+5}, v{BL}",
                     f"s_mov_b64 exec, 0xffff\nbuffer_store_dwordx2 {vr(t+4,2)}, v{BADR+13}, {srd(R_WS)}, s{S_TMP+1} offen sc1\ns_mov_b64 exec, -1\ns_nop 3"]
        for u in range(4):
            for tt in (2 * up, 2 * up + 1):
                c = "0" if u == 0 else vr(BD + 4 * tt, 4)
                k(f"v_mfma_f32_16x16x32_bf16 {vr(BD+4*tt,4)}, {ar(128+(tt*4+u)*4,4)}, {vr(BP+4*u,4)}, {c}")
                if extra:
                    k(extra.pop(0))
    k("s_waitcnt lgkmcnt(0)")
    for l in half_read(0):
        k(l)
    for l in conv(2):
        k(l)
    k.nop(1)
    for l in conv(3):
        k(l)
    k("s_waitcnt lgkmcnt(3)")
    k(half_store(0, 0))
    k("s_waitcnt lgkmcnt(2)")
    k(half_store(0, 1))
    k("s_waitcnt lgkmcnt(0)")
    for l in half_read(1):
        k(l)
    k("s_waitcnt lgkmcnt(1)")
    k(half_store(1, 0))
    k("s_waitcnt lgkmcnt(0)")
    k(half_store(1, 1))
    for i in range(nwf_early(), 10):
        wf_load(k, i)
    k.stamp(8)
    if K.opt.get("aoack"):
        k("s_waitcnt vmcnt(0)")
        k.stamp(17)


def silu(k, v, t):
    k(f"v_mul_f32 v{t}, 0xbfb8aa3b, v{v}")
    k(f"v_exp_f32 v{t}, v{t}")
    k.nop(1)
    k(f"v_add_f32 v{t}, 1.0, v{t}")
    k(f"v_rcp_f32 v{t}, v{t}")
    k.nop(1)
    k(f"v_mul_f32 v{v}, v{v}, v{t}")


def round_bf16(k, v):
    k(f"v_cvt_pk_bf16_f32 v{v}, v{v}, v{v}")
    k(f"v_and_b32 v{v}, 0xffff0000, v{v}")


FW1 = 10
FW2 = 50
FX = 90
FD = 110
FH = 150
FADR = 176
FT = 166


def wf_setup(k):
    k(f"s_mul_i32 s{S_WFL}, s{S_WAVE}, 10240")
    k(f"s_add_u32 s{S_WFL}, s{S_WFL}, {L_WF}")
    k.srd(R_B, S_W2, 1728 * 640 * 2)
    k(f"s_cmp_eq_u32 s{S_ROLE}, 2")
    k(f"s_cselect_b32 s{R_B+2}, {1728 * 640 * 2}, 0")
    k(f"v_lshlrev_b32 v{BWF}, 4, v{V_LANE}")
    k(f"s_mul_i32 s{S_WFO}, s{S_F}, 40960")
    k(f"s_mul_i32 s{S_TMP}, s{S_WAVE}, 10240")
    k(f"s_add_u32 s{S_WFO}, s{S_WFO}, s{S_TMP}")
    k(f"s_mov_b32 s{S_WFS}, 1024")


def ffn1(k):
    t = FT
    k(f"v_and_b32 v{t}, 1, v{V_LANE}")
    k(f"v_mul_u32_u24 v{t}, 1280, v{t}")
    k(f"v_lshl_add_u32 v{t}, v{V_SLAB}, 3, v{t}")
    k(f"s_mul_i32 s{S_TMP}, s{S_WAVE}, 320")
    k(f"s_add_u32 s{S_TMP}, s{S_TMP}, {L_XN}")
    k(f"v_add_u32 v{FADR}, s{S_TMP}, v{t}")
    for i in range(5):
        k(f"ds_read_b64 {vr(FX+4*i,2)}, v{FADR} offset:{64*i}")
        k(f"ds_read_b64 {vr(FX+4*i+2,2)}, v{FADR} offset:{64*i+32}")
    k(f"v_lshrrev_b32 v{t}, 2, v{V_L15}")
    k(f"v_lshl_add_u32 v{t}, v{V_SLAB}, 2, v{t}")
    k(f"v_and_b32 v{t+1}, 3, v{V_L15}")
    k(f"v_lshlrev_b32 v{t+2}, 6, v{t}")
    k(f"v_lshl_add_u32 v{t+2}, v{t+1}, 3, v{t+2}")
    k(f"s_mul_i32 s{S_TMP}, s{S_WAVE}, 10240")
    k(f"s_add_u32 s{S_TMP}, s{S_TMP}, {L_WF}")
    k(f"v_add_u32 v{FADR+1}, s{S_TMP}, v{t+2}")
    k(f"v_lshlrev_b32 v{t+2}, 2, v{V_LANE}")
    k(f"s_lshl_b32 s{S_TMP}, s{S_WAVE}, 8")
    k(f"s_add_u32 s{S_TMP}, s{S_TMP}, {L_FRED}")
    k(f"v_add_u32 v{FADR+3}, s{S_TMP}, v{t+2}")
    k(f"v_add_u32 v{FADR+4}, {L_FRED}, v{t+2}")
    k(f"v_lshrrev_b32 v{t+2}, 2, v{V_L15}")
    k(f"v_lshlrev_b32 v{t+2}, 1, v{t+2}")
    k(f"v_lshrrev_b32 v{t+3}, 1, v{V_SLAB}")
    k(f"v_add_u32 v{t+2}, v{t+2}, v{t+3}")
    k(f"v_and_b32 v{t+3}, 1, v{V_SLAB}")
    k(f"v_lshl_add_u32 v{t+2}, v{t+3}, 3, v{t+2}")
    k(f"v_lshlrev_b32 v{FADR+5}, 4, v{t+2}")
    k(f"s_lshl_b32 s{S_TMP+2}, s{S_F}, 8")
    k(f"s_add_u32 s{S_TMP+2}, s{S_TMP+2}, {WS_HO}")
    k(f"s_mov_b32 s{S_M+2}, 0xffff0000")
    k(f"s_mov_b32 s{S_M+3}, 0xffff0000")
    k(f"s_mov_b32 s{S_M+4}, 0")
    k(f"s_mov_b32 s{S_M+5}, -1")
    k("s_waitcnt vmcnt(5)")
    k(f"v_lshlrev_b32 v{t+9}, 4, v{V_LANE}")
    k(f"v_add_u32 v{t+9}, s{S_WFL}, v{t+9}")
    for i in range(10):
        k(f"ds_write_b128 v{t+9}, {vr(BWR+4*i,4)} offset:{1024*i}")
    k("s_waitcnt lgkmcnt(0)")
    k.stamp(9)
    for i in range(5):
        for ct in range(2):
            r = FW1 + (i * 2 + ct) * 4
            k(f"ds_read_b64_tr_b16 {vr(r,2)}, v{FADR+1} offset:{i*2048+32*ct}")
            k(f"ds_read_b64_tr_b16 {vr(r+2,2)}, v{FADR+1} offset:{i*2048+32*ct+1024}")
    k("s_waitcnt lgkmcnt(0)")
    for i in range(5):
        for ct in range(2):
            c = "0" if i == 0 else vr(FD + 4 * ct, 4)
            k(f"v_mfma_f32_16x16x32_bf16 {vr(FD+4*ct,4)}, {vr(FX+4*i,4)}, {vr(FW1+(i*2+ct)*4,4)}, {c}")
    k.nop(8)
    k(f"v_cndmask_b32 v{t}, v{FD}, v{FD+1}, s[{S_M+2}:{S_M+3}]")
    k(f"v_cndmask_b32 v{t+1}, v{FD+4}, v{FD+5}, s[{S_M+2}:{S_M+3}]")
    k(f"v_cndmask_b32 v{t}, v{t}, v{t+1}, s[{S_M+4}:{S_M+5}]")
    k(f"ds_write_b32 v{FADR+3}, v{t}")
    k("s_waitcnt lgkmcnt(0)")
    k("s_barrier")
    sk = k.label("f1")
    k(f"s_cmp_eq_u32 s{S_WAVE}, 0")
    k(f"s_cbranch_scc0 {sk}")
    k(f"ds_read2st64_b32 {vr(t,2)}, v{FADR+4} offset0:0 offset1:1")
    k(f"ds_read2st64_b32 {vr(t+2,2)}, v{FADR+4} offset0:2 offset1:3")
    k("s_waitcnt lgkmcnt(0)")
    k(f"v_add_f32 v{t}, v{t}, v{t+1}")
    k(f"v_add_f32 v{t+2}, v{t+2}, v{t+3}")
    k(f"v_add_f32 v{t}, v{t}, v{t+2}")
    round_bf16(k, t)
    silu(k, t, t + 1)
    k(f"v_cvt_pk_bf16_f32 v{t}, v{t}, v{t}")
    k(f"v_and_b32 v{t}, 0xffff, v{t}")
    k.nop(2)
    k(f"v_mov_b32_dpp v{t+1}, v{t} quad_perm:[1,0,3,2] row_mask:0xf bank_mask:0xf")
    k(f"v_lshl_or_b32 v{t+2}, v{t+1}, 16, v{t}")
    k.nop(2)
    k(f"v_mov_b32_dpp v{t+3}, v{t+2} quad_perm:[2,3,0,1] row_mask:0xf bank_mask:0xf")
    k(f"v_mov_b32 v{t+4}, s{S_T0}")
    k(f"v_mov_b32 v{t+5}, s{S_T1}")
    k(f"s_mov_b32 exec_lo, 0x11111111")
    k(f"s_mov_b32 exec_hi, 0x11111111")
    k(f"buffer_store_dwordx4 {vr(t+2,4)}, v{FADR+5}, {srd(R_WS)}, s{S_TMP+2} offen sc1")
    k(f"s_mov_b64 exec, -1")
    k(f"{sk}:")
    k.stamp(10)


def ffn2(k):
    t = FT
    k(f"v_lshrrev_b32 v{t}, 2, v{V_L15}")
    k(f"v_lshl_add_u32 v{t}, v{V_SLAB}, 2, v{t}")
    k(f"v_and_b32 v{t+1}, 3, v{V_L15}")
    k(f"v_mul_u32_u24 v{t+2}, {W2RS}, v{t}")
    k(f"v_lshl_add_u32 v{t+2}, v{t+1}, 3, v{t+2}")
    k(f"s_mul_i32 s{S_TMP}, s{S_WAVE}, 320")
    k(f"s_add_u32 s{S_TMP}, s{S_TMP}, {L_WF}")
    k(f"v_add_u32 v{FADR+2}, s{S_TMP}, v{t+2}")
    k(f"v_lshrrev_b32 v{t+2}, 5, v{V_LANE}")
    k(f"v_lshlrev_b32 v{t+2}, 10, v{t+2}")
    k(f"v_and_b32 v{t+3}, 31, v{V_LANE}")
    k(f"v_lshl_add_u32 v{FADR+6}, v{t+3}, 4, v{t+2}")
    k(f"s_lshr_b32 s{S_TMP+3}, s{S_F}, 1")
    k(f"s_lshl_b32 s{S_TMP+3}, s{S_TMP+3}, 12")
    k(f"s_and_b32 s{S_TMP+4}, s{S_F}, 1")
    k(f"s_lshl_b32 s{S_TMP+4}, s{S_TMP+4}, 9")
    k(f"s_add_u32 s{S_TMP+3}, s{S_TMP+3}, s{S_TMP+4}")
    k(f"s_add_u32 s{S_TMP+3}, s{S_TMP+3}, {WS_HP}")
    k(f"v_bfe_u32 v{t+2}, v{V_LANE}, 2, 2")
    k(f"v_lshlrev_b32 v{t+2}, 3, v{t+2}")
    k(f"v_bfe_u32 v{t+3}, v{V_LANE}, 4, 1")
    k(f"v_lshl_add_u32 v{t+2}, v{t+3}, 2, v{t+2}")
    k(f"v_and_b32 v{t+3}, 3, v{V_LANE}")
    k(f"v_add_u32 v{t+2}, v{t+2}, v{t+3}")
    k(f"v_lshrrev_b32 v{t+3}, 5, v{V_LANE}")
    k(f"v_lshl_add_u32 v{t+2}, v{t+3}, 5, v{t+2}")
    k(f"v_lshlrev_b32 v{t+2}, 1, v{t+2}")
    k(f"s_lshl_b32 s{S_TMP+4}, s{S_WAVE}, 7")
    k(f"s_add_u32 s{S_TMP+4}, s{S_TMP+4}, {L_FRED}")
    k(f"v_add_u32 v{FADR+3}, s{S_TMP+4}, v{t+2}")
    k(f"v_and_b32 v{t+2}, 1, v{V_LANE}")
    k(f"v_lshlrev_b32 v{t+2}, 6, v{t+2}")
    k(f"v_lshl_add_u32 v{t+2}, v{V_SLAB}, 4, v{t+2}")
    k(f"v_add_u32 v{FADR+4}, s{S_TMP+4}, v{t+2}")
    k(f"v_lshlrev_b32 v{FADR+7}, 3, v{V_LANE}")
    k(f"s_mul_i32 s{S_TMP+2}, s{S_F}, 5120")
    k(f"s_mul_i32 s{S_TMP+1}, s{S_WAVE}, 1280")
    k(f"s_add_u32 s{S_TMP+2}, s{S_TMP+2}, s{S_TMP+1}")
    k(f"s_add_u32 s{S_TMP+2}, s{S_TMP+2}, {WS_FP}")
    k(f"s_mov_b32 s{S_M+2}, 0xffff0000")
    k(f"s_mov_b32 s{S_M+3}, 0xffff0000")
    k(f"s_mov_b32 s{S_M+4}, 0")
    k(f"s_mov_b32 s{S_M+5}, -1")
    H = FH + 2
    loads = [f"buffer_load_dwordx4 {vr(H,4)}, v{FADR+6}, {srd(R_WS)}, s{S_TMP+3} offen sc1",
             f"buffer_load_dwordx4 {vr(H+4,4)}, v{FADR+6}, {srd(R_WS)}, s{S_TMP+3} offen offset:2048 sc1"]
    for l in loads:
        k(l)
    k(f"s_mul_i32 s{S_TMP+4}, s{S_WAVE}, {8*W2RS}")
    k(f"s_add_u32 s{S_TMP+4}, s{S_TMP+4}, {L_WF}")
    k(f"s_movk_i32 s{S_TMP+1}, 205")
    for i in range(10):
        k(f"v_add_u32 v{t+8}, {64*i}, v{V_LANE}")
        k(f"v_mul_u32_u24 v{t+9}, s{S_TMP+1}, v{t+8}")
        k(f"v_lshrrev_b32 v{t+9}, 14, v{t+9}")
        k(f"v_lshlrev_b32 v{t+9}, 5, v{t+9}")
        k(f"v_lshl_add_u32 v{t+9}, v{t+8}, 4, v{t+9}")
        k(f"v_add_u32 v{FX+i}, s{S_TMP+4}, v{t+9}")
    k(f"s_waitcnt vmcnt({5 + 10 - nwf_early() + 2})")
    for i in range(nwf_early()):
        k(f"ds_write_b128 v{FX+i}, {vr(BWR+4*i,4)}")
    k("s_waitcnt vmcnt(2)")
    for i in range(nwf_early(), 10):
        k(f"ds_write_b128 v{FX+i}, {vr(BWR+4*i,4)}")
    gather_loop(k, "ho", loads, lambda kk: tag_check(kk, [(H+2, H+3), (H+6, H+7)]), 10, preissued=True)
    k(f"v_add_f32 v{H}, v{H}, v{H+4}")
    k(f"v_add_f32 v{H+1}, v{H+1}, v{H+5}")
    k.nop(2)
    k(f"v_permlane32_swap_b32 v{H}, v{H+1}")
    k.nop(1)
    k(f"v_add_f32 v{H}, v{H}, v{H+1}")
    round_bf16(k, H)
    silu(k, H, H + 1)
    k(f"v_cvt_pk_bf16_f32 v{H}, v{H}, v{H}")
    k(f"ds_write_b16 v{FADR+3}, v{H}")
    k("s_waitcnt lgkmcnt(0)")
    k("s_barrier")
    k.stamp(9)
    k(f"ds_read_b128 {vr(H,4)}, v{FADR+4}")
    for ct in range(10):
        r = FW2 + 4 * ct
        k(f"ds_read_b64_tr_b16 {vr(r,2)}, v{FADR+2} offset:{32*ct}")
        k(f"ds_read_b64_tr_b16 {vr(r+2,2)}, v{FADR+2} offset:{32*ct+16*W2RS}")
    k("s_waitcnt lgkmcnt(0)")
    for ct in range(10):
        k(f"v_mfma_f32_16x16x32_bf16 {vr(FD+4*ct,4)}, {vr(H,4)}, {vr(FW2+4*ct,4)}, 0")
    k.nop(8)
    for q in range(3):
        for bb in range(2):
            a0, a1 = FD + 16 * q + bb, FD + 16 * q + 4 + bb
            k(f"v_cndmask_b32 v{t+2*q+bb}, v{a0}, v{a1}, s[{S_M+2}:{S_M+3}]")
            if q < 2:
                a2, a3 = FD + 16 * q + 8 + bb, FD + 16 * q + 12 + bb
                k(f"v_cndmask_b32 v{t+8}, v{a2}, v{a3}, s[{S_M+2}:{S_M+3}]")
                k(f"v_cndmask_b32 v{t+2*q+bb}, v{t+2*q+bb}, v{t+8}, s[{S_M+4}:{S_M+5}]")
    k(f"buffer_store_dwordx2 {vr(t,2)}, v{FADR+7}, {srd(R_WS)}, s{S_TMP+2} offen sc1")
    k(f"buffer_store_dwordx2 {vr(t+2,2)}, v{FADR+7}, {srd(R_WS)}, s{S_TMP+2} offen offset:512 sc1")
    k(f"s_mov_b32 exec_hi, 0")
    k(f"buffer_store_dwordx2 {vr(t+4,2)}, v{FADR+7}, {srd(R_WS)}, s{S_TMP+2} offen offset:1024 sc1")
    k(f"s_mov_b64 exec, -1")
    k.stamp(11)


ZG = 10
ZT = 44


def tree_reduce4(k, g, t):
    k.nop(2)
    k(f"v_permlane32_swap_b32 v{g}, v{g+2}")
    k(f"v_permlane32_swap_b32 v{g+1}, v{g+3}")
    k.nop(1)
    k(f"v_add_f32 v{g}, v{g}, v{g+2}")
    k(f"v_add_f32 v{g+1}, v{g+1}, v{g+3}")
    k.nop(2)
    k(f"v_permlane16_swap_b32 v{g}, v{g+1}")
    k.nop(1)
    k(f"v_add_f32 v{t}, v{g}, v{g+1}")
    k.nop(2)
    k(f"v_add_f32_dpp v{t}, v{t}, v{t} row_ror:8 row_mask:0xf bank_mask:0xf")


def final(k):
    t = ZT
    k(f"s_lshl_b32 s{S_TMP}, s{S_Z}, 1")
    k(f"s_and_b32 s{S_TMP+1}, s{S_WAVE}, 1")
    k(f"s_add_u32 s{S_TMP}, s{S_TMP}, s{S_TMP+1}")
    k(f"s_lshl_b32 s{S_TMP+1}, s{S_TMP+1}, 8")
    k(f"s_add_u32 s{S_TMP+1}, s{S_TMP+1}, {L_FRED}")
    k(f"v_lshlrev_b32 v{t+11}, 2, v{V_LANE}")
    k(f"v_add_u32 v{t+11}, s{S_TMP+1}, v{t+11}")
    k(f"v_and_b32 v{t}, 7, v{V_LANE}")
    k(f"v_lshrrev_b32 v{t+1}, 1, v{V_SLAB}")
    k(f"v_lshl_add_u32 v{t}, v{t}, 1, v{t+1}")
    k(f"v_and_b32 v{t+1}, 1, v{V_SLAB}")
    k(f"v_mul_u32_u24 v{t+1}, 640, v{t+1}")
    k(f"v_add_u32 v{t}, v{t}, v{t+1}")
    k(f"v_lshlrev_b32 v{t}, 1, v{t}")
    k(f"s_lshl_b32 s{S_TMP+1}, s{S_TMP}, 5")
    k(f"buffer_load_ushort v{t+2}, v{t}, {srd(R_X)}, s{S_TMP+1} offen")
    k(f"v_and_b32 v{t+3}, 7, v{V_LANE}")
    k(f"v_lshlrev_b32 v{t+3}, 2, v{t+3}")
    k(f"v_and_b32 v{t+4}, 1, v{V_SLAB}")
    k(f"v_mul_u32_u24 v{t+4}, 1280, v{t+4}")
    k(f"v_add_u32 v{t+3}, v{t+3}, v{t+4}")
    k(f"v_lshrrev_b32 v{t+4}, 3, v{V_LANE}")
    k(f"v_mul_u32_u24 v{t+4}, 5120, v{t+4}")
    k(f"v_and_b32 v{t+5}, 7, v{V_LANE}")
    k(f"v_lshl_add_u32 v{t+4}, v{t+5}, 4, v{t+4}")
    k(f"s_lshl_b32 s{S_TMP+2}, s{S_TMP}, 7")
    k(f"v_lshlrev_b32 v{t+5}, 3, v{V_LANE}")
    loads = []
    for i in range(2):
        k(f"s_mov_b32 s{4+i}, {WS_PC + i*512}")
        loads.append(f"buffer_load_dwordx2 {vr(ZG+2*i,2)}, v{t+5}, {srd(R_WS)}, s{4+i} offen sc1")
    gather_loop(k, "zf", loads, lambda kk: tag_check(kk, [(ZG+2*i, ZG+2*i+1) for i in range(2)]))
    k(f"s_cmp_ge_u32 s{S_WAVE}, 2")
    k(f"s_cbranch_scc1 L_Z_s")
    k(f"v_cmp_gt_u32 vcc, {NF}, v{V_LANE}")
    k.nop(2)
    k(f"v_cndmask_b32 v{t+5}, 0, v{V_LANE}, vcc")
    k(f"v_bfe_u32 v{t+6}, v{t+5}, 5, 1")
    k(f"v_lshlrev_b32 v{t+6}, 13, v{t+6}")
    k(f"v_and_b32 v{t+5}, 31, v{t+5}")
    k(f"v_lshl_add_u32 v{t+5}, v{t+5}, 3, v{t+6}")
    k(f"s_mov_b32 s4, {WS_ST + 256}")
    gather_check_loop(k, "zs", [f"buffer_load_dwordx2 {vr(ZG,2)}, v{t+5}, {srd(R_WS)}, s4 offen sc1"], [ZG, ZG + 1])
    k(f"s_add_u32 s{S_TMP+3}, s{S_TMP+2}, {WS_FP}")
    k(f"v_add_u32 v{t+5}, s{S_TMP+3}, v{t+4}")
    k(f"v_add_u32 v{t+6}, {48*5120}, v{t+5}")
    k(f"v_cmp_gt_u32 vcc, 48, v{V_LANE}")
    k(f"s_mov_b64 s[{S_M+2}:{S_M+3}], vcc")
    k.nop(2)
    k(f"v_cndmask_b32 v{t+6}, v{t+5}, v{t+6}, vcc")
    loads = []
    for i in range(6):
        k(f"s_mov_b32 s{4+i}, {i*8*5120}")
        loads.append(f"buffer_load_dwordx4 {vr(ZG+4*i,4)}, v{t+5}, {srd(R_WS)}, s{4+i} offen sc1")
    last = f"buffer_load_dwordx4 {vr(ZG+24,4)}, v{t+6}, {srd(R_WS)}, 0 offen sc1"
    gather_check_loop(k, "fp", loads + [last], list(range(ZG, ZG + 28)), 14)
    for c in range(4):
        k(f"v_cndmask_b32 v{ZG+24+c}, 0, v{ZG+24+c}, s[{S_M+2}:{S_M+3}]")
    for c in range(4):
        k(f"v_add_f32 v{ZG+c}, v{ZG+c}, v{ZG+4+c}")
        k(f"v_add_f32 v{ZG+8+c}, v{ZG+8+c}, v{ZG+12+c}")
        k(f"v_add_f32 v{ZG+16+c}, v{ZG+16+c}, v{ZG+20+c}")
    for c in range(4):
        k(f"v_add_f32 v{ZG+c}, v{ZG+c}, v{ZG+8+c}")
        k(f"v_add_f32 v{ZG+16+c}, v{ZG+16+c}, v{ZG+24+c}")
    for c in range(4):
        k(f"v_add_f32 v{ZG+c}, v{ZG+c}, v{ZG+16+c}")
    tree_reduce4(k, ZG, t + 8)
    round_bf16(k, t + 8)
    silu(k, t + 8, t + 9)
    round_bf16(k, t + 8)
    k(f"ds_write_b32 v{t+11}, v{t+8}")
    k("s_waitcnt lgkmcnt(0)")
    k("s_barrier")
    k("s_branch L_done")
    k("L_Z_s:")
    k(f"v_lshlrev_b32 v{t+2}, 16, v{t+2}")
    k(f"s_add_u32 s{S_TMP+3}, s{S_TMP+2}, {WS_SP}")
    k(f"v_add_u32 v{t+5}, s{S_TMP+3}, v{t+4}")
    loads = []
    for i in range(4):
        k(f"s_mov_b32 s{4+i}, {i*8*5120}")
        loads.append(f"buffer_load_dwordx4 {vr(ZG+4*i,4)}, v{t+5}, {srd(R_WS)}, s{4+i} offen sc1")
    gather_check_loop(k, "sp", loads, list(range(ZG, ZG + 16)), 15)
    skip = k.label("ep")
    k(f"s_cmp_eq_u32 s{S_TMP}, 0")
    k(f"s_cbranch_scc0 {skip}")
    k(f"v_mov_b32 v{t}, 0")
    k(f"v_mov_b32 v{t+1}, s{S_T0}")
    k(f"s_mov_b64 exec, 1")
    k(f"buffer_store_dword v{t+1}, v{t}, {srd(R_WS)}, 0 offen offset:{WS_EPOCH}")
    k(f"s_mov_b64 exec, -1")
    k(f"{skip}:")
    for c in range(4):
        k(f"v_add_f32 v{ZG+c}, v{ZG+c}, v{ZG+4+c}")
        k(f"v_add_f32 v{ZG+8+c}, v{ZG+8+c}, v{ZG+12+c}")
    for c in range(4):
        k(f"v_add_f32 v{ZG+c}, v{ZG+c}, v{ZG+8+c}")
    tree_reduce4(k, ZG, t + 9)
    round_bf16(k, t + 9)
    k("s_barrier")
    k(f"ds_read_b32 v{t+8}, v{t+11}")
    k("s_waitcnt lgkmcnt(0)")
    k(f"v_mul_f32 v{t+9}, v{t+9}, v{t+8}")
    round_bf16(k, t + 9)
    k(f"v_add_f32 v{t+9}, v{t+9}, v{t+2}")
    k(f"v_cvt_pk_bf16_f32 v{t+9}, v{t+9}, v{t+9}")
    k(f"v_mov_b32 v{t+10}, v{t+9}")
    k.nop(2)
    k(f"v_permlane32_swap_b32 v{t+9}, v{t+10}")
    k.nop(1)
    k(f"v_and_b32 v{t+9}, 0xffff, v{t+9}")
    k(f"v_lshl_or_b32 v{t+9}, v{t+10}, 16, v{t+9}")
    k(f"s_mov_b32 exec_lo, 0x00ff00ff")
    k(f"s_mov_b32 exec_hi, 0")
    k(f"s_lshl_b32 s{S_TMP+1}, s{S_TMP}, 5")
    k(f"buffer_store_dword v{t+9}, v{t+3}, {srd(R_OUT)}, s{S_TMP+1} offen")
    k(f"s_mov_b64 exec, -1")
    k.stamp(16)
    if K.opt.get("diag"):
        sk = k.label("dg")
        k(f"s_cmp_eq_u32 s{S_TMP}, 0")
        k(f"s_cbranch_scc0 {sk}")
        k(f"v_mov_b32 v{t}, 0")
        k(f"buffer_load_dword v{t+1}, v{t}, s[92:95], 0 offen sc1")
        k("s_waitcnt vmcnt(0)")
        k(f"v_readfirstlane_b32 s96, v{t+1}")
        k("s_memrealtime s[98:99]")
        k("s_waitcnt lgkmcnt(0)")
        k("s_not_b32 s96, s96")
        k("s_sub_u32 s97, s98, s96")
        mode = K.opt["diag"]
        if mode == "k0":
            k("s_mov_b32 s97, 0")
        elif mode == "k1":
            pass
        elif mode == "t1000":
            k("s_mov_b32 s97, 1000")
        if mode.startswith("cyc"):
            n = int(mode[3:])
            k(f"s_mov_b32 s97, {n}")
            lp = k.label("cy")
            k(f"{lp}:")
            k("s_nop 15")
            k("s_nop 15")
            k("s_sub_u32 s97, s97, 1")
            k("s_cmp_lg_u32 s97, 0")
            k(f"s_cbranch_scc1 {lp}")
        else:
            k("s_min_u32 s97, s97, 20000")
            k("s_add_u32 s97, s97, s98")
            lp = k.label("sp")
            k(f"{lp}:")
            k("s_memrealtime s[98:99]")
            k("s_waitcnt lgkmcnt(0)")
            k("s_sub_u32 s96, s97, s98")
            k("s_cmp_gt_i32 s96, 0")
            k(f"s_cbranch_scc1 {lp}")
        k(f"{sk}:")


def dump_stamps(k):
    if not k.stamps:
        return
    k("s_waitcnt vmcnt(0) lgkmcnt(0)")
    k.stamp(19)
    k(f"s_lshl_b32 s{S_TMP}, s2, 2")
    k(f"s_add_u32 s{S_TMP}, s{S_TMP}, s{S_WAVE}")
    k(f"s_lshl_b32 s{S_TMP}, s{S_TMP}, 7")
    k(f"s_add_u32 s{S_TMP}, s{S_TMP}, {WS_STAMP}")
    for i in range(20):
        k(f"v_mov_b32 v{10+i}, s{S_STAMP+i}")
    k(f"s_getreg_b32 s{S_TMP+1}, hwreg(HW_REG_XCC_ID)")
    k(f"v_mov_b32 v30, s{S_TMP+1}")
    k(f"v_mov_b32 v31, s{S_CNT}")
    k(f"v_mov_b32 v4, 0")
    k(f"s_mov_b64 exec, 1")
    for i in range(6):
        k(f"buffer_store_dwordx4 {vr(10+4*i,4)}, v4, {srd(R_WS)}, s{S_TMP} offen offset:{16*i}")
    k(f"s_mov_b64 exec, -1")


def build(stamps=False):
    k = K(stamps)
    hdr = open("recurrent_scan__compressed_kv_cla__dense_activation_silu__decode.s.ref").read()
    comments = [l for l in hdr.split("\n") if l.startswith(";") and "@launch" not in l and "Override" not in l and "grid=ceil" not in l]
    out = "\n".join(comments) + "\n"
    out += f"; @launch grid=(256,1,1) block=(256,1,1) lds={LDS_BYTES}\n"
    out += f""".amdgcn_target "amdgcn-amd-amdhsa--gfx950"
.text
.globl {NAME}
.p2align 8
.type {NAME},@function
{NAME}:
"""
    if stamps:
        for i in range(20):
            k(f"s_mov_b32 s{S_STAMP+i}, 0")
    if K.opt.get("diag"):
        k("s_memrealtime s[100:101]")
    prologue(k)
    if K.opt.get("diag"):
        k.srd(92, S_DBG, 256)
        k("s_cmp_lt_u32 s2, 8")
        k("s_cbranch_scc0 L_nodiag")
        k("s_not_b32 s100, s100")
        k("v_mov_b32 v8, s100")
        k("v_mov_b32 v9, 0")
        k("s_mov_b64 exec, 1")
        k("buffer_atomic_umax v8, v9, s[92:95], 0 offen")
        k("s_mov_b64 exec, -1")
        k("L_nodiag:")
    if K.opt.get("bdirect"):
        k(f"s_cmp_ge_u32 s{S_J}, 4")
        k(f"s_cbranch_scc0 L_done")
        k(f"s_mov_b32 s{S_T0}, 0")
        k(f"s_mov_b32 s{S_T1}, 0")
        k(f"v_mov_b32 v{VE}, 0")
        k("s_branch L_B")
    if K.opt.get("pnone"):
        k(f"s_cmp_lt_u32 s{S_J}, 4")
        k(f"s_cbranch_scc1 L_done")
    k(f"s_cmp_eq_u32 s{S_WAVE}, 0")
    k(f"s_cbranch_scc0 L_w123")
    stage1_issue(k)
    k("s_barrier")
    k("s_branch L_w0")
    k("L_w123:")
    k(f"v_mov_b32 v{V_T}, 0")
    k(f"buffer_load_dword v{VE}, v{V_T}, {srd(R_WS)}, 0 offen offset:{WS_EPOCH} sc1")
    if K.opt.get("tlb", "1") == "1":
        sk = k.label("tlb")
        k(f"s_cmp_eq_u32 s{S_WAVE}, 2")
        k(f"s_cbranch_scc0 {sk}")
        k(f"v_lshlrev_b32 v{V_T+1}, 20, v{V_LANE}")
        for ptr, size in ((S_CKV, 2*4096*512*2), (S_WUV, 512*4096*2), (S_WO, 4096*640*2), (S_W1, 640*1728*2), (S_W2, 1728*640*2)):
            k.srd(R_B, ptr, size)
            k(f"buffer_load_dword v252, v{V_T+1}, {srd(R_B)}, 0 offen")
        k(f"{sk}:")
    k(f"s_cmp_ge_u32 s{S_J}, 4")
    k(f"s_cbranch_scc1 L_Bw123")
    k(f"v_mov_b32 v{VPUB}, 0")
    for i in range(4):
        k(f"v_mov_b32 v{VD1+4+i}, 0")
    k(f"s_mov_b32 s{S_PUB}, 0x7f000000")
    k.srd(R_A, S_WUK, 512 * 4096 * 2)
    skc = k.label("pcl")
    k(f"s_cmp_eq_u32 s{S_WAVE}, 3")
    k(f"s_cbranch_scc0 {skc}")
    clears_P(k)
    k(f"{skc}:")
    k("s_barrier")
    wuk_issue(k)
    if K.opt.get("wukstamp"):
        k.stamp(2)
    k("s_waitcnt vmcnt(11)")
    epoch_tags(k, VE)
    skp = k.label("pcf")
    k(f"s_cmp_eq_u32 s{S_WAVE}, 3")
    k(f"s_cbranch_scc0 {skp}")
    tag_store(k, WS_PC, 3, PT + 2, jreg=S_J)
    k(f"{skp}:")
    k("s_branch L_P_join")
    k("L_Bw123:")
    b_roles(k)
    k.srd(R_A, S_CKV, 2 * 4096 * 512 * 2)
    ckv_setup(k)
    k("s_barrier")
    if not K.opt.get("noclr"):
        clears_B(k)
    ne = early_rows()
    if ne:
        k(f"s_cmp_ge_u32 s{S_WAVE}, 2")
        k(f"s_cbranch_scc0 L_Bw1")
        ckv_rows(k, 0, ne)
        k("s_barrier")
        k("s_branch L_B_rowsE")
        k("L_Bw1:")
    k("s_barrier")
    k("s_branch L_B_rows0")
    k("L_w0:")
    stage1_selectors(k)
    layernorm(k, 1 + 20)
    k(f"s_waitcnt vmcnt(20)")
    epoch_tags(k, VE)
    stage1_publish_addr(k)
    k.stamp(2)
    stage1_mfma(k, 0)
    skb = k.label("nb")
    k(f"s_cmp_ge_u32 s{S_J}, 4")
    k(f"s_cbranch_scc0 {skb}")
    k("s_barrier")
    k(f"{skb}:")
    stage1_publish(k, 0)
    k(f"s_cmp_ge_u32 s{S_J}, 4")
    k(f"s_cbranch_scc1 L_B")
    k("L_P_join:")
    k.srd(R_B, S_WUV, 512 * 4096 * 2)
    k.srd(R_C, S_WO, 4096 * 640 * 2)
    stage2(k)
    if K.opt.get("pexit"):
        k("s_branch L_done")
    k(f"s_cmp_lt_u32 s{S_H}, 27")
    k(f"s_cbranch_scc0 L_P_nof1")
    w1p_issue(k)
    k("L_P_nof1:")
    p_weights_issue(k)
    wo_issue(k)
    stage4_setup(k)
    k(f"s_cmp_lt_u32 s{S_H}, 27")
    k(f"s_cbranch_scc0 L_P_nof2")
    ffn1p(k)
    k("s_waitcnt vmcnt(1)")
    k("s_branch L_P_wl")
    k("L_P_nof2:")
    k("s_waitcnt vmcnt(0)")
    k("L_P_wl:")
    k("s_barrier")
    k.stamp(6)
    p_weights_preread(k)
    wo_preread(k)
    stage4(k)
    stage5(k)
    k("s_branch L_done")
    k("L_B:")
    b_roles(k)
    k.srd(R_A, S_CKV, 2 * 4096 * 512 * 2)
    ckv_setup(k)
    k("L_B_rows0:")
    k.stamp(12)
    ckv_rows(k, 0, early_rows())
    k("L_B_rowsE:")
    ckv_rows(k, early_rows(), 32)
    if K.opt.get("trig", "0") == "1":
        tag_store(k, WS_TR, 6, BT + 2, only_wave=3)
    k.stamp(13)
    if K.opt.get("bdirect"):
        k("s_waitcnt vmcnt(0)")
        k.stamp(4)
        k("s_branch L_done")
    k.srd(R_OUT, S_OUT, 2560)
    wf_setup(k)
    attention_setup(k)
    attention(k)
    k("L_B_r2:")
    k(f"s_cmp_eq_u32 s{S_ROLE}, 2")
    k(f"s_cbranch_scc0 L_B_r3")
    ffn2(k)
    k("s_branch L_done")
    k("L_B_r3:")
    k(f"s_cmp_eq_u32 s{S_ROLE}, 3")
    k(f"s_cbranch_scc0 L_done")
    final(k)
    k("L_done:")
    dump_stamps(k)
    k("L_exit:")
    k("s_endpgm")
    out += k.text()
    out += f""".section .rodata,"a"
.p2align 6
.amdhsa_kernel {NAME}
  .amdhsa_next_free_vgpr 512
  .amdhsa_next_free_sgpr 102
  .amdhsa_accum_offset 256
  .amdhsa_group_segment_fixed_size 0
  .amdhsa_kernarg_size 96
  .amdhsa_user_sgpr_count 2
  .amdhsa_user_sgpr_kernarg_segment_ptr 1
  .amdhsa_system_sgpr_workgroup_id_x 1
.end_amdhsa_kernel
"""
    return out


if __name__ == "__main__":
    for a in sys.argv[1:]:
        if a.startswith("--spin="):
            SPIN_LIMIT = int(a[7:])
    stamps = "--stamps" in sys.argv
    for a in sys.argv[1:]:
        if a.startswith("--") and "=" in a:
            kk, vv = a[2:].split("=")
            K.opt[kk] = vv
    outp = [a for a in sys.argv[1:] if not a.startswith("--")]
    open(outp[0] if outp else "k.s", "w").write(build(stamps))
```

```python
import sys

NAME = "recurrent_scan__compressed_kv_cla__dense_activation_silu__decode_kernel"

WS_EPOCH = 0
WS_QP = 0x1000
WS_QA = 0x41000
WS_ST = 0x51000
WS_CP = 0x55000
WS_SP = 0x65000
WS_FP = 0x8D000
WS_AC = 0xE0000
WS_PC = 0xE2000
WS_HO = 0xE4000
WS_TR = 0xF0000
WS_CF = 0xE8000
WS_QF = 0x340000
WS_HP = 0x300000
WS_AO = 0x100000
WS_SIZE = 0x380000
WS_STAMP = 0x380000
NF = 54
S_JP = 10
S_F = 11
S_Z = 12
S_ROLE = 13

L_WUV = 0
L_WO = 32768
L_AOB = 107520
L_RED = 123904
L_CTX = 129024
L_STX = 129536
L_W1P = 130560
L_XNP = 95744
L_CKV = 0
RS = 1056
L_QB = 128 * RS
L_XN = L_QB + 16 * RS
L_MX = L_XN + 2560
L_PB = L_MX + 1024
L_END = L_PB + 4096
L_WF = 0
L_WO5 = 66560
L_FRED = 81920
L_RED5 = 123904
LDS_BYTES = 163840

SPIN_LIMIT = 100000
FLAG_ROW = 28
NWF_EARLY = 6
W2RS = 1312
QWAIT = [15 - i if i <= 8 else min(15, 15 - i) for i in range(16)]

S_X, S_CKV, S_WQ, S_WUK, S_WUV, S_WO, S_W1, S_W2, S_OUT, S_DBG, S_WSP = 4, 6, 8, 10, 12, 14, 18, 20, 22, 24, 26
R_X, R_WQ, R_WS, R_A, R_B, R_C, R_OUT = 28, 32, 36, 40, 44, 48, 52
S_WAVE, S_H, S_J, S_T0, S_T1 = 56, 57, 58, 59, 60
S_TMP = 61
S_PUB = 69
S_OFF = 70
S_CNT = 71
S_M = 72
S_STAMP = 80


CNT_SLOT = {'qp': 13, 'tr': 14, 'st': 15, 'ao': 16, 'qa': 17, 'cp': 18, 'fl': 18}


class K:
    opt = {}
    def __init__(self, stamps=False):
        self.lines = []
        self.nl = 0
        self.stamps = stamps
        self.nstamp = 0

    def __call__(self, s):
        for l in s.split("\n"):
            self.lines.append("    " + l.strip() if l.strip() and not l.strip().endswith(":") else l.strip())

    def label(self, stem):
        self.nl += 1
        return f"L_{stem}_{self.nl}"

    def nop(self, n):
        while n > 0:
            k = min(n, 16)
            self(f"s_nop {k-1}")
            n -= k

    def stamp(self, idx):
        if self.stamps:
            self(f"s_memrealtime s[100:101]")
            self("s_waitcnt lgkmcnt(0)")
            self(f"s_mov_b32 s{S_STAMP+idx}, s100")

    def srd(self, d, base, nbytes):
        self(f"s_mov_b32 s{d}, s{base}")
        self(f"s_and_b32 s{d+1}, s{base+1}, 0xffff")
        self(f"s_mov_b32 s{d+2}, {nbytes}")
        self(f"s_mov_b32 s{d+3}, 0x00020000")

    def text(self):
        return "\n".join(self.lines) + "\n"


def srd(d):
    return f"s[{d}:{d+3}]"


def vr(a, n=1):
    return f"v{a}" if n == 1 else f"v[{a}:{a+n-1}]"


def ar(a, n=1):
    return f"a{a}" if n == 1 else f"a[{a}:{a+n-1}]"


V_TID, V_LANE, V_L15, V_SLAB = 0, 1, 2, 3
V_T = 4
V_ONES = 242
V_NEG1 = 244


def spin_begin(k, cnt=S_CNT):
    k(f"s_mov_b32 s{cnt}, 0")


def spin_retry(k, top, cnt=S_CNT):
    k(f"s_add_u32 s{cnt}, s{cnt}, 1")
    k(f"s_cmp_lt_u32 s{cnt}, {SPIN_LIMIT}")
    k(f"s_cbranch_scc1 {top}")


NCH = 28


def prologue(k):
    k(f"s_cmp_ge_u32 s2, 256")
    k(f"s_cbranch_scc1 L_exit")
    if K.opt.get("perm"):
        k("s_and_b32 s3, s2, 7")
        k("s_lshl_b32 s3, s3, 5")
        k("s_lshr_b32 s2, s2, 3")
        k("s_or_b32 s2, s2, s3")
    k(f"s_load_dwordx16 s[4:19], s[0:1], 0")
    k(f"s_load_dwordx8 s[20:27], s[0:1], 64")
    k(f"v_lshrrev_b32 v{V_T}, 6, v0")
    k(f"v_and_b32 v{V_LANE}, 63, v0")
    k(f"v_readfirstlane_b32 s{S_WAVE}, v{V_T}")
    if K.opt.get("pf", "1") == "1":
        k(f"s_getpc_b64 s[{S_TMP+1}:{S_TMP+2}]")
        k(f"L_pc:")
        k(f"s_lshr_b32 s{S_TMP}, s2, 3")
        k(f"s_lshl_b32 s{S_TMP}, s{S_TMP}, 2")
        k(f"s_add_u32 s{S_TMP}, s{S_TMP}, s{S_WAVE}")
        k(f"s_cmp_lt_u32 s{S_TMP}, (L_exit-L_pc+1023)/1024")
        k(f"s_cbranch_scc0 L_nopf")
        k(f"s_lshl_b32 s{S_TMP}, s{S_TMP}, 10")
        k(f"s_min_u32 s{S_TMP}, s{S_TMP}, L_exit-L_pc-1024")
        k(f"v_lshl_add_u32 v{V_T+1}, v{V_LANE}, 4, s{S_TMP}")
        k(f"global_load_dwordx4 v[248:251], v{V_T+1}, s[{S_TMP+1}:{S_TMP+2}]")
        k(f"L_nopf:")
    k(f"v_and_b32 v{V_L15}, 15, v0")
    k(f"v_bfe_u32 v{V_SLAB}, v0, 4, 2")
    k(f"s_and_b32 s{S_H}, s2, 31")
    k(f"s_lshr_b32 s{S_J}, s2, 5")
    for i in range(4):
        k(f"v_mov_b32 v{V_NEG1+i}, -1")
    k.stamp(0)
    k(f"s_waitcnt lgkmcnt(0)")
    k.srd(R_X, S_X, 2560)
    k.srd(R_WS, S_WSP, WS_SIZE + (0x100000 if k.stamps else 0))
    k.srd(R_WQ, S_WQ, 640 * 4096 * 2)


VX = 10
VW = 20
VA = 100
VSEL = 180
VD1 = 188
VXR = 192
VE = 202
VS1 = 204
VWUK = 210


def stage1_issue(k):
    k(f"v_lshrrev_b32 v{V_T}, 5, v{V_LANE}")
    k(f"v_and_b32 v{V_T+1}, 31, v{V_LANE}")
    k(f"v_mul_u32_u24 v{V_T}, 1280, v{V_T}")
    k(f"v_mul_u32_u24 v{V_T+1}, 40, v{V_T+1}")
    k(f"v_add_u32 v{V_T}, v{V_T}, v{V_T+1}")
    k(f"v_mov_b32 v{V_T+2}, 0")
    k(f"buffer_load_dwordx4 {vr(VX,4)}, v{V_T}, {srd(R_X)}, 0 offen")
    k(f"buffer_load_dwordx4 {vr(VX+4,4)}, v{V_T}, {srd(R_X)}, 0 offen offset:16")
    k(f"buffer_load_dwordx2 {vr(VX+8,2)}, v{V_T}, {srd(R_X)}, 0 offen offset:32")
    k(f"buffer_load_dword v{VE}, v{V_T+2}, {srd(R_WS)}, 0 offen offset:{WS_EPOCH} sc1")
    k(f"s_mul_i32 s{S_TMP}, s{S_J}, {80*8192}")
    k(f"s_lshl_b32 s{S_TMP+1}, s{S_H}, 8")
    k(f"s_add_u32 s{S_TMP}, s{S_TMP}, s{S_TMP+1}")
    k(f"v_mul_u32_u24 v{V_T+3}, {20*8192}, v{V_SLAB}")
    k(f"v_lshl_add_u32 v{V_T+3}, v{V_L15}, 4, v{V_T+3}")
    k(f"v_add_u32 v{V_T+3}, s{S_TMP}, v{V_T+3}")
    k(f"s_mov_b32 s{S_OFF}, 0")
    k(f"s_movk_i32 s{S_TMP}, 0x2000")
    for t in range(20):
        k(f"buffer_load_dwordx4 {vr(VW+4*t,4)}, v{V_T+3}, {srd(R_WQ)}, s{S_OFF} offen{nt('q')}")
        if t < 19:
            k(f"s_add_u32 s{S_OFF}, s{S_OFF}, s{S_TMP}")


def epoch_tags(k, ve):
    k(f"v_readfirstlane_b32 s{S_T0}, v{ve}")
    k.nop(4)
    k(f"s_add_u32 s{S_T0}, s{S_T0}, 1")
    k(f"s_mul_i32 s{S_T1}, s{S_T0}, 0x9e3779b1")
    k(f"s_xor_b32 s{S_T1}, s{S_T1}, 0x5bd1e995")


def stage1_selectors(k):
    t = VS1
    k(f"v_and_b32 v{t}, 1, v{V_LANE}")
    k(f"v_bfe_u32 v{t+1}, v{V_LANE}, 1, 2")
    k(f"v_cmp_eq_u32 vcc, 1, v{t}")
    k(f"v_mov_b32 v{t+2}, 0x0c0c0504")
    k(f"v_mov_b32 v{t+3}, 0x05040c0c")
    k(f"v_cndmask_b32 v{t+4}, v{t+2}, v{t+3}, vcc")
    k(f"v_mov_b32 v{t+2}, 0x0c0c0706")
    k(f"v_mov_b32 v{t+3}, 0x07060c0c")
    k(f"v_cndmask_b32 v{t+5}, v{t+2}, v{t+3}, vcc")
    k(f"v_mov_b32 v{t+2}, 0x0c0c0c0c")
    for r in range(4):
        k(f"v_cmp_eq_u32 vcc, {r}, v{t+1}")
        k.nop(2)
        k(f"v_cndmask_b32 v{VSEL+2*r}, v{t+2}, v{t+4}, vcc")
        k(f"v_cndmask_b32 v{VSEL+2*r+1}, v{t+2}, v{t+5}, vcc")


def layernorm(k, nafter):
    t = VS1
    k(f"s_mov_b32 s{S_TMP}, 0x3f803f80")
    k(f"v_mov_b32 v{t}, 0")
    k(f"v_mov_b32 v{t+1}, 0")
    k(f"v_mov_b32 v{t+2}, 0")
    k(f"v_mov_b32 v{t+3}, 0")
    k(f"s_waitcnt vmcnt({nafter})")
    k.stamp(1)
    for i in range(10):
        a = t + (i & 1)
        q = t + 2 + (i & 1)
        k(f"v_dot2_f32_bf16 v{a}, v{VX+i}, s{S_TMP}, v{a}")
        k(f"v_dot2_f32_bf16 v{q}, v{VX+i}, v{VX+i}, v{q}")
    k.nop(3)
    k(f"v_add_f32 v{t}, v{t}, v{t+1}")
    k(f"v_add_f32 v{t+2}, v{t+2}, v{t+3}")
    k.nop(1)
    for rot in (8, 4, 2, 1):
        k(f"v_add_f32_dpp v{t}, v{t}, v{t} row_ror:{rot} row_mask:0xf bank_mask:0xf")
        k(f"v_add_f32_dpp v{t+2}, v{t+2}, v{t+2} row_ror:{rot} row_mask:0xf bank_mask:0xf")
        k.nop(1)
    k.nop(1)
    k(f"v_permlane16_swap_b32 v{t}, v{t+2}")
    k.nop(1)
    k(f"v_add_f32 v{t}, v{t}, v{t+2}")
    k.nop(1)
    k(f"v_mov_b32 v{t+2}, v{t}")
    k.nop(2)
    k(f"v_permlane16_swap_b32 v{t}, v{t+2}")
    k.nop(1)
    k(f"v_mul_f32 v{t}, 0x3acccccd, v{t}")
    k(f"v_mul_f32 v{t+2}, 0x3acccccd, v{t+2}")
    k(f"v_fma_f32 v{t+2}, -v{t}, v{t}, v{t+2}")
    k(f"v_max_f32 v{t+2}, 0, v{t+2}")
    k(f"v_cvt_pk_bf16_f32 v{t+1}, v{t}, v{t+2}")
    k(f"v_lshlrev_b32 v{t}, 16, v{t+1}")
    k(f"v_and_b32 v{t+2}, 0xffff0000, v{t+1}")
    k(f"v_add_f32 v{t+2}, 0x3727c5ac, v{t+2}")
    k(f"v_cvt_pk_bf16_f32 v{t+2}, v{t+2}, v{t+2}")
    k(f"v_and_b32 v{t+2}, 0xffff0000, v{t+2}")
    k(f"v_sqrt_f32 v{t+2}, v{t+2}")
    k.nop(1)
    k(f"v_cvt_pk_bf16_f32 v{t+2}, v{t+2}, v{t+2}")
    k(f"v_and_b32 v{t+2}, 0xffff0000, v{t+2}")
    k(f"v_rcp_f32 v{t+2}, v{t+2}")
    k.nop(1)
    k(f"v_mul_f32 v{t}, v{t}, v{t+2}")
    k(f"v_sub_f32 v{t}, 0, v{t}")
    for i in range(10):
        k(f"v_lshlrev_b32 v{t+3}, 16, v{VX+i}")
        k(f"v_and_b32 v{t+4}, 0xffff0000, v{VX+i}")
        k(f"v_fma_f32 v{t+3}, v{t+3}, v{t+2}, v{t}")
        k(f"v_fma_f32 v{t+4}, v{t+4}, v{t+2}, v{t}")
        k(f"v_cvt_pk_bf16_f32 v{VX+i}, v{t+3}, v{t+4}")
    k(f"v_add_u32 v{t+3}, {L_XN}, v{V_T}")
    for i in range(5):
        k(f"ds_write_b64 v{t+3}, {vr(VX+2*i,2)} offset:{8*i}")
    k(f"v_bfe_u32 v{t}, v{V_LANE}, 3, 1")
    k(f"v_mul_u32_u24 v{t}, 1280, v{t}")
    k(f"v_mul_u32_u24 v{t+1}, 40, v{V_SLAB}")
    k(f"s_mul_i32 s{S_TMP}, s{S_J}, 160")
    k(f"s_add_u32 s{S_TMP}, s{S_TMP}, {L_XN}")
    k(f"v_add3_u32 v{t}, v{t}, v{t+1}, s{S_TMP}")
    k(f"s_waitcnt lgkmcnt(0)")
    for i in range(5):
        k(f"ds_read_b64 {vr(VXR+2*i,2)}, v{t} offset:{8*i}")
    k(f"s_waitcnt lgkmcnt(0)")
    for st in range(20):
        for r in range(4):
            k(f"v_perm_b32 v{VA+4*st+r}, v{VXR+(st>>1)}, v{VXR+(st>>1)}, v{VSEL+2*r+(st&1)}")


def stage1_mfma(k, nafter):
    for st in range(20):
        k(f"s_waitcnt vmcnt({19-st+nafter})")
        c = "0" if st == 0 else vr(VD1, 4)
        k(f"v_mfma_f32_16x16x32_bf16 {vr(VD1,4)}, {vr(VA+4*st,4)}, {vr(VW+4*st,4)}, {c}")


VPUB = 206


def stage1_publish_addr(k):
    t = VS1 + 4
    k(f"v_lshrrev_b32 v{t}, 1, v{V_SLAB}")
    k(f"v_and_b32 v{t+1}, 1, v{V_SLAB}")
    k(f"v_lshlrev_b32 v{t}, 5, v{t}")
    k(f"v_lshl_add_u32 v{t}, v{V_L15}, 1, v{t}")
    k(f"v_add_u32 v{t}, v{t}, v{t+1}")
    k(f"v_lshlrev_b32 v{VPUB}, 4, v{t}")
    k(f"s_lshl_b32 s{S_PUB}, s{S_H}, 3")
    k(f"s_add_u32 s{S_PUB}, s{S_PUB}, s{S_J}")
    k(f"s_lshl_b32 s{S_PUB}, s{S_PUB}, 10")
    k(f"s_add_u32 s{S_PUB}, s{S_PUB}, {WS_QP}")
    k(f"v_mov_b32 v{VD1+6}, s{S_T0}")
    k(f"v_mov_b32 v{VD1+7}, s{S_T1}")


def stage1_publish(k, nkeep):
    k.nop(8)
    k(f"v_cvt_pk_bf16_f32 v{VD1+4}, v{VD1}, v{VD1+1}")
    k(f"v_cvt_pk_bf16_f32 v{VD1+5}, v{VD1+2}, v{VD1+3}")
    k(f"s_waitcnt vmcnt({nkeep})")
    if use_fast1():
        sk = k.label("qps")
        k(f"s_add_u32 s{S_TMP}, s{S_PUB}, {WS_QF - WS_QP}")
        k(f"buffer_store_dwordx4 {vr(VD1+4,4)}, v{VPUB}, {srd(R_WS)}, s{S_TMP} offen")
        k(f"s_cmp_ge_u32 s{S_J}, 4")
        k(f"s_cbranch_scc0 {sk}")
        k(f"buffer_store_dwordx4 {vr(VD1+4,4)}, v{VPUB}, {srd(R_WS)}, s{S_PUB} offen sc1")
        k(f"{sk}:")
    else:
        k(f"buffer_store_dwordx4 {vr(VD1+4,4)}, v{VPUB}, {srd(R_WS)}, s{S_PUB} offen sc1")
    k.stamp(3)


def sentinel_check(k, regs):
    t = V_T
    rs = list(regs)
    if len(rs) == 1:
        k(f"v_cmp_eq_u32 vcc, -1, v{rs[0]}")
        return
    if len(rs) == 2:
        k(f"v_max_u32 v{t}, v{rs[0]}, v{rs[1]}")
        rs = []
    else:
        k(f"v_max3_u32 v{t}, v{rs[0]}, v{rs[1]}, v{rs[2]}")
        rs = rs[3:]
    while len(rs) >= 2:
        k(f"v_max3_u32 v{t}, v{t}, v{rs[0]}, v{rs[1]}")
        rs = rs[2:]
    if rs:
        k(f"v_max_u32 v{t}, v{t}, v{rs[0]}")
    k(f"v_cmp_eq_u32 vcc, -1, v{t}")


def tag_check(k, pairs):
    t = V_T
    first = True
    for a, b in pairs:
        k(f"v_xor_b32 v{t+1}, s{S_T0}, v{a}")
        k(f"v_xor_b32 v{t+2}, s{S_T1}, v{b}")
        if first:
            k(f"v_or_b32 v{t}, v{t+1}, v{t+2}")
        else:
            k(f"v_or3_b32 v{t}, v{t}, v{t+1}, v{t+2}")
        first = False
    k(f"v_cmp_ne_u32 vcc, 0, v{t}")


def gather_loop(k, name, loads, check, stampidx=None, preissued=False, firstwait=0, fast=None, after_fast=None):
    chk = k.label(name)
    done = k.label(name + "d")
    spin_begin(k)
    k(f"s_mov_b64 s[{S_M}:{S_M+1}], exec")
    if fast is not None:
        floads, nfast = fast
        fchk = k.label(name + "f")
        if not preissued:
            for l in floads:
                k(l)
        k(f"{fchk}:")
        k("s_waitcnt vmcnt(0)")
        check(k)
        k(f"s_and_b64 exec, exec, vcc")
        k(f"s_cbranch_execz {done}_fast")
        k(f"s_add_u32 s{S_CNT}, s{S_CNT}, 1")
        k(f"s_cmp_ge_u32 s{S_CNT}, {nfast}")
        k(f"s_cbranch_scc1 {chk}_slow")
        for l in floads:
            k(l)
        k(f"s_branch {fchk}")
        k(f"{done}_fast:")
        k(f"s_mov_b64 exec, s[{S_M}:{S_M+1}]")
        if after_fast:
            after_fast(k)
        k(f"s_branch {done}")
        k(f"{chk}_slow:")
        if after_fast:
            k(f"s_mov_b64 s[4:5], exec")
            k(f"s_mov_b64 exec, s[{S_M}:{S_M+1}]")
            after_fast(k)
            k(f"s_mov_b64 exec, s[4:5]")
        for l in loads:
            k(l)
    elif not preissued:
        for l in loads:
            k(l)
    if firstwait:
        k(f"s_waitcnt vmcnt({firstwait})")
        k(f"s_branch {chk}_c")
    k(f"{chk}:")
    k("s_waitcnt vmcnt(0)")
    if firstwait:
        k(f"{chk}_c:")
    check(k)
    k(f"s_and_b64 exec, exec, vcc")
    k(f"s_cbranch_execz {done}")
    k(f"s_add_u32 s{S_CNT}, s{S_CNT}, 1")
    k(f"s_cmp_ge_u32 s{S_CNT}, {SPIN_LIMIT}")
    k(f"s_cbranch_scc1 {done}")
    for l in loads:
        k(l)
    k(f"s_branch {chk}")
    k(f"{done}:")
    k(f"s_mov_b64 exec, s[{S_M}:{S_M+1}]")
    if stampidx is not None:
        k.stamp(stampidx)
    if k.stamps and name in CNT_SLOT and not (K.opt.get("aoack") and name == "qa"):
        k(f"s_add_u32 s{S_STAMP+CNT_SLOT[name]}, s{S_CNT}, 1")


def nt(key):
    return " nt" if key in K.opt.get("nt", "") else ""


def use_fast():
    return K.opt.get("fast", "1") == "1"


def use_fast1():
    return K.opt.get("fast1", "1") == "1"


def gather_check_loop(k, name, loads, regs, stampidx=None, preissued=False):
    gather_loop(k, name, loads, lambda kk: sentinel_check(kk, regs), stampidx, preissued)


def clears_P(k):
    t = V_T + 4
    neg = vr(V_NEG1, 4)
    k(f"v_lshlrev_b32 v{t}, 4, v{V_LANE}")
    k(f"s_mul_i32 s{S_TMP+1}, s{S_H}, 5120")
    k(f"s_mul_i32 s{S_TMP+2}, s{S_J}, 1280")
    k(f"s_add_u32 s{S_TMP+1}, s{S_TMP+1}, s{S_TMP+2}")
    k(f"s_add_u32 s{S_TMP+1}, s{S_TMP+1}, {WS_SP}")
    k(f"buffer_store_dwordx4 {neg}, v{t}, {srd(R_WS)}, s{S_TMP+1} offen sc1")
    k(f"v_lshlrev_b32 v{t+1}, 4, v{V_L15}")
    k(f"buffer_store_dwordx4 {neg}, v{t+1}, {srd(R_WS)}, s{S_TMP+1} offen offset:1024 sc1")
    k(f"v_and_b32 v{t}, 1, v{V_SLAB}")
    k(f"v_lshlrev_b32 v{t}, 15, v{t}")
    k(f"v_lshl_add_u32 v{t}, v{V_L15}, 4, v{t}")
    k(f"s_lshl_b32 s{S_TMP+1}, s{S_H}, 10")
    k(f"s_lshl_b32 s{S_TMP+2}, s{S_J}, 8")
    k(f"s_add_u32 s{S_TMP+1}, s{S_TMP+1}, s{S_TMP+2}")
    k(f"s_add_u32 s{S_TMP+1}, s{S_TMP+1}, {WS_QA}")
    k(f"buffer_store_dwordx4 {neg}, v{t}, {srd(R_WS)}, s{S_TMP+1} offen sc1")
    k(f"s_lshl_b32 s{S_TMP}, s{S_H}, 2")
    k(f"s_add_u32 s{S_TMP}, s{S_TMP}, s{S_J}")
    k(f"v_and_b32 v{t}, 31, v{V_LANE}")
    k(f"v_lshlrev_b32 v{t}, 4, v{t}")
    k(f"s_lshl_b32 s{S_TMP+1}, s{S_TMP}, 9")
    k(f"s_add_u32 s{S_TMP+1}, s{S_TMP+1}, {WS_CP}")
    k(f"buffer_store_dwordx4 {neg}, v{t}, {srd(R_WS)}, s{S_TMP+1} offen sc1")
    if use_fast():
        k(f"s_add_u32 s{S_TMP+1}, s{S_TMP+1}, {WS_CF - WS_CP}")
        k(f"buffer_store_dwordx4 {neg}, v{t}, {srd(R_WS)}, s{S_TMP+1} offen sc1")
    k(f"s_lshl_b32 s{S_TMP+1}, s{S_H}, 9")
    k(f"s_add_u32 s{S_TMP+1}, s{S_TMP+1}, {WS_ST}")
    k(f"buffer_store_dwordx4 {neg}, v{t}, {srd(R_WS)}, s{S_TMP+1} offen sc1")


L_WUK = 32768


def wuk_issue(k):
    t = V_T + 4
    k(f"s_sub_u32 s{S_TMP+2}, s{S_WAVE}, 1")
    k(f"s_mul_i32 s{S_TMP+2}, s{S_TMP+2}, 11")
    k(f"s_mul_i32 s{S_TMP}, s{S_J}, {128*8192}")
    k(f"s_lshl_b32 s{S_TMP+1}, s{S_H}, 8")
    k(f"s_add_u32 s{S_TMP}, s{S_TMP}, s{S_TMP+1}")
    k(f"s_lshl_b32 s{S_TMP+1}, s{S_TMP+2}, 15")
    k(f"s_add_u32 s{S_TMP}, s{S_TMP}, s{S_TMP+1}")
    k(f"s_lshl_b32 s{S_TMP+1}, s{S_TMP+2}, 10")
    k(f"s_add_u32 s{S_TMP+1}, s{S_TMP+1}, {L_WUK}")
    k(f"v_lshlrev_b32 v{t+1}, 13, v{V_SLAB}")
    lp = k.label("wuk")
    k(f"s_add_u32 s{S_TMP+4}, s{S_TMP+2}, 11")
    k(f"{lp}:")
    k(f"s_and_b32 s{S_TMP+3}, s{S_TMP+2}, 3")
    k(f"s_lshl_b32 s{S_TMP+3}, s{S_TMP+3}, 2")
    k(f"v_add_u32 v{t}, s{S_TMP+3}, v{V_SLAB}")
    k(f"v_xor_b32 v{t}, v{t}, v{V_L15}")
    k(f"v_lshl_add_u32 v{t}, v{t}, 4, v{t+1}")
    k(f"s_mov_b32 m0, s{S_TMP+1}")
    k(f"s_add_u32 s{S_TMP+1}, s{S_TMP+1}, 1024")
    k(f"buffer_load_dwordx4 v{t}, {srd(R_A)}, s{S_TMP} offen{nt('k')} lds")
    k(f"s_add_u32 s{S_TMP}, s{S_TMP}, {4*8192}")
    k(f"s_add_u32 s{S_TMP+2}, s{S_TMP+2}, 1")
    k(f"s_cmp_lt_u32 s{S_TMP+2}, s{S_TMP+4}")
    k(f"s_cbranch_scc1 {lp}")


def wuk_preread(k):
    t = V_T + 4
    k(f"s_lshl_b32 s{S_TMP+4}, s{S_WAVE}, 2")
    k(f"v_add_u32 v{t}, s{S_TMP+4}, v{V_SLAB}")
    k(f"v_xor_b32 v{t}, v{t}, v{V_L15}")
    k(f"v_lshlrev_b32 v{t}, 4, v{t}")
    k(f"v_lshl_add_u32 v{t}, v{V_L15}, 8, v{t}")
    for i in range(8):
        k(f"ds_read_b128 {vr(VWUK+4*i,4)}, v{t} offset:{L_WUK+i*4096}")


PG = 10
PD = 28
PY = 68
PWV = 76
PWO = 108
PA = 148
PADR = 164
PM = 180
PT = 188
PKEEP = 206
S_KEEP = 16


def stage2(k):
    t = PT
    k(f"v_and_b32 v{t}, 7, v{V_L15}")
    k(f"v_lshlrev_b32 v{t}, 10, v{t}")
    k(f"v_lshrrev_b32 v{t+1}, 3, v{V_L15}")
    k(f"v_lshl_add_u32 v{t}, v{t+1}, 9, v{t}")
    k(f"v_lshl_add_u32 v{PADR}, v{V_SLAB}, 5, v{t}")
    k(f"s_lshl_b32 s{S_TMP}, s{S_H}, 13")
    k(f"s_lshl_b32 s{S_TMP+1}, s{S_WAVE}, 7")
    k(f"s_add_u32 s{S_TMP}, s{S_TMP}, s{S_TMP+1}")
    k(f"s_add_u32 s{S_TMP}, s{S_TMP}, {WS_QP}")
    k(f"v_lshrrev_b32 v{t}, 1, v{V_SLAB}")
    k(f"v_lshlrev_b32 v{t}, 15, v{t}")
    k(f"v_and_b32 v{t+1}, 1, v{V_SLAB}")
    k(f"v_lshl_add_u32 v{t}, v{t+1}, 5, v{t}")
    k(f"v_lshl_add_u32 v{PADR+1}, v{V_L15}, 1, v{t}")
    k(f"s_lshl_b32 s{S_TMP+2}, s{S_H}, 10")
    k(f"s_lshl_b32 s{S_TMP+3}, s{S_J}, 8")
    k(f"s_add_u32 s{S_TMP+2}, s{S_TMP+2}, s{S_TMP+3}")
    k(f"s_lshl_b32 s{S_TMP+3}, s{S_WAVE}, 6")
    k(f"s_add_u32 s{S_TMP+2}, s{S_TMP+2}, s{S_TMP+3}")
    k(f"s_add_u32 s{S_TMP+2}, s{S_TMP+2}, {WS_QA}")
    k(f"v_lshlrev_b32 v{PADR+2}, 2, v{V_LANE}")
    k(f"s_lshl_b32 s{S_TMP+3}, s{S_WAVE}, 10")
    k(f"s_add_u32 s{S_TMP+3}, s{S_TMP+3}, {L_RED}")
    k(f"v_add_u32 v{PADR+3}, s{S_TMP+3}, v{PADR+2}")
    k(f"s_lshl_b32 s{S_TMP+3}, s{S_WAVE}, 8")
    k(f"s_add_u32 s{S_TMP+3}, s{S_TMP+3}, {L_RED}")
    k(f"v_add_u32 v{PADR+2}, s{S_TMP+3}, v{PADR+2}")
    k(f"s_mov_b32 s{S_M+2}, 0x55555555")
    k(f"s_mov_b32 s{S_M+3}, 0x55555555")
    loads = [f"buffer_load_dwordx4 {vr(PG,4)}, v{PADR}, {srd(R_WS)}, s{S_TMP} offen sc1",
             f"buffer_load_dwordx4 {vr(PG+4,4)}, v{PADR}, {srd(R_WS)}, s{S_TMP} offen offset:16 sc1"]
    floads = [l.replace(f"s{S_TMP} offen", f"s{S_TMP+5} offen") for l in loads]
    k(f"s_add_u32 s{S_TMP+5}, s{S_TMP}, {WS_QF - WS_QP}")
    if not use_fast1():
        for l in loads:
            k(l)
    if K.opt.get("wukstamp"):
        k("s_waitcnt vmcnt(2)")
        k.stamp(12)
    k("s_waitcnt vmcnt(0)")
    k("s_barrier")
    wuk_preread(k)
    def send_qp(kk):
        sk = kk.label("qpw")
        kk(f"s_cmp_eq_u32 s{S_WAVE}, 0")
        kk(f"s_cbranch_scc0 {sk}")
        kk(f"buffer_store_dwordx4 {vr(VD1+4,4)}, v{VPUB}, {srd(R_WS)}, s{S_PUB} offen sc1")
        kk(f"{sk}:")
    gather_loop(k, "qp", loads, lambda kk: tag_check(kk, [(PG+2, PG+3), (PG+6, PG+7)]), 4, preissued=not use_fast1(),
                fast=(floads, 24) if use_fast1() else None, after_fast=send_qp if use_fast1() else None)
    k("s_waitcnt lgkmcnt(0)")
    k(f"v_mov_b32 v{PG+2}, v{PG+4}")
    k(f"v_mov_b32 v{PG+3}, v{PG+5}")
    k.nop(2)
    for i in range(8):
        k(f"v_mfma_f32_16x16x32_bf16 {vr(PD+4*i,4)}, {vr(PG,4)}, {vr(VWUK+4*i,4)}, 0")
    k.nop(1)
    for i in range(8):
        if i == 7:
            pass
        k(f"v_add_f32 v{PD+4*i}, v{PD+4*i}, v{PD+4*i+1}")
        k(f"v_add_f32 v{PD+4*i+2}, v{PD+4*i+2}, v{PD+4*i+3}")
        k(f"v_add_f32 v{PD+4*i}, v{PD+4*i}, v{PD+4*i+2}")
    k.nop(2)
    for u in range(4):
        k(f"v_permlane16_swap_b32 v{PD+8*u}, v{PD+8*u+4}")
    k.nop(1)
    for u in range(4):
        k(f"v_add_f32 v{PY+u}, v{PD+8*u}, v{PD+8*u+4}")
    k(f"ds_write2st64_b32 v{PADR+3}, v{PY}, v{PY+1} offset0:0 offset1:1")
    k(f"ds_write2st64_b32 v{PADR+3}, v{PY+2}, v{PY+3} offset0:2 offset1:3")
    k("s_waitcnt lgkmcnt(0)")
    k("s_barrier")
    k(f"ds_read2st64_b32 {vr(t,2)}, v{PADR+2} offset0:0 offset1:4")
    k(f"ds_read2st64_b32 {vr(t+2,2)}, v{PADR+2} offset0:8 offset1:12")
    k("s_waitcnt lgkmcnt(0)")
    k(f"v_add_f32 v{t}, v{t}, v{t+1}")
    k(f"v_add_f32 v{t+2}, v{t+2}, v{t+3}")
    k(f"v_add_f32 v{t}, v{t}, v{t+2}")
    k(f"v_mul_f32 v{t}, 0x3e0293ee, v{t}")
    k.nop(2)
    k(f"v_mov_b32_dpp v{t+1}, v{t} quad_perm:[1,0,3,2] row_mask:0xf bank_mask:0xf")
    k(f"v_cvt_pk_bf16_f32 v{t}, v{t}, v{t+1}")
    k(f"s_mov_b64 exec, s[{S_M+2}:{S_M+3}]")
    k(f"buffer_store_dword v{t}, v{PADR+1}, {srd(R_WS)}, s{S_TMP+2} offen sc1")
    k(f"s_mov_b64 exec, -1")
    k.stamp(5)


def p_weights_issue(k):
    t = PT
    if K.opt.get("trig", "0") == "1":
        k(f"s_and_b32 s{S_TMP}, s{S_H}, 7")
        k(f"s_lshl_b32 s{S_TMP}, s{S_TMP}, 8")
        k(f"s_add_u32 s{S_TMP}, s{S_TMP}, {WS_TR}")
        k(f"v_lshrrev_b32 v{t}, 2, v{V_L15}")
        k(f"v_lshlrev_b32 v{t}, 11, v{t}")
        k(f"v_and_b32 v{t+1}, 3, v{V_L15}")
        k(f"v_lshl_add_u32 v{t}, v{t+1}, 6, v{t}")
        sk = k.label("trw")
        k(f"s_cmp_eq_u32 s{S_WAVE}, 0")
        k(f"s_cbranch_scc0 {sk}")
        k(f"s_mov_b64 exec, 0xffff")
        gather_loop(k, "tr", [f"buffer_load_dwordx2 {vr(t+2,2)}, v{t}, {srd(R_WS)}, s{S_TMP} offen sc1"], lambda kk: tag_check(kk, [(t+2, t+3)]), 12)
        k(f"s_mov_b64 exec, -1")
        k(f"{sk}:")
        k("s_barrier")
    for par in range(2):
        k(f"v_add_u32 v{t}, {4*par}, v{V_SLAB}")
        k(f"v_lshlrev_b32 v{t}, 1, v{t}")
        k(f"v_xor_b32 v{t}, v{t}, v{V_L15}")
        k(f"v_lshlrev_b32 v{t}, 4, v{t}")
        k(f"v_lshl_add_u32 v{PADR+4+par}, v{V_SLAB}, 13, v{t}")
    k(f"s_mul_i32 s{S_TMP}, s{S_J}, {128*8192}")
    k(f"s_lshl_b32 s{S_TMP+1}, s{S_H}, 8")
    k(f"s_add_u32 s{S_TMP}, s{S_TMP}, s{S_TMP+1}")
    k(f"s_lshl_b32 s{S_TMP+1}, s{S_WAVE}, 18")
    k(f"s_add_u32 s{S_TMP}, s{S_TMP}, s{S_TMP+1}")
    k(f"s_lshl_b32 s{S_TMP+1}, s{S_WAVE}, 13")
    k(f"s_add_u32 s{S_TMP+1}, s{S_TMP+1}, {L_WUV}")
    for ii in range(8):
        k(f"s_mov_b32 m0, s{S_TMP+1}")
        k(f"s_add_u32 s{S_TMP+1}, s{S_TMP+1}, 1024")
        k(f"buffer_load_dwordx4 v{PADR+4+(ii&1)}, {srd(R_B)}, s{S_TMP} offen{nt('v')} lds")
        k(f"s_add_u32 s{S_TMP}, s{S_TMP}, {4*8192}")


def w1p_issue(k):
    t = PT
    k.srd(R_WQ, S_W1, 640 * 1728 * 2)
    k(f"v_lshrrev_b32 v{t}, 3, v{V_LANE}")
    k(f"v_mul_u32_u24 v{t}, 3456, v{t}")
    k(f"v_and_b32 v{t+1}, 7, v{V_LANE}")
    k(f"v_lshl_add_u32 v{t}, v{t+1}, 4, v{t}")
    k(f"s_mul_i32 s{S_TMP}, s{S_J}, {160*3456}")
    k(f"s_mul_i32 s{S_TMP+1}, s{S_WAVE}, {40*3456}")
    k(f"s_add_u32 s{S_TMP}, s{S_TMP}, s{S_TMP+1}")
    k(f"s_lshl_b32 s{S_TMP+1}, s{S_H}, 7")
    k(f"s_add_u32 s{S_TMP}, s{S_TMP}, s{S_TMP+1}")
    k(f"s_mul_i32 s{S_TMP+1}, s{S_WAVE}, 5120")
    k(f"s_add_u32 s{S_TMP+1}, s{S_TMP+1}, {L_W1P}")
    for i in range(5):
        k(f"s_mov_b32 m0, s{S_TMP+1}")
        k(f"s_add_u32 s{S_TMP+1}, s{S_TMP+1}, 1024")
        k(f"buffer_load_dwordx4 v{t}, {srd(R_WQ)}, s{S_TMP} offen{nt('1')} lds")
        k(f"s_add_u32 s{S_TMP}, s{S_TMP}, {8*3456}")


def ffn1p(k):
    t = PT
    X, W, D = 28, 48, 68
    k(f"v_and_b32 v{t}, 1, v{V_LANE}")
    k(f"v_mul_u32_u24 v{t}, 1280, v{t}")
    k(f"v_lshl_add_u32 v{t}, v{V_SLAB}, 3, v{t}")
    k(f"s_mul_i32 s{S_TMP}, s{S_J}, 320")
    k(f"s_add_u32 s{S_TMP}, s{S_TMP}, {L_XN}")
    k(f"v_add_u32 v{t}, s{S_TMP}, v{t}")
    for i in range(5):
        k(f"ds_read_b64 {vr(X+4*i,2)}, v{t} offset:{64*i}")
        k(f"ds_read_b64 {vr(X+4*i+2,2)}, v{t} offset:{64*i+32}")
    k(f"v_lshrrev_b32 v{t+1}, 2, v{V_L15}")
    k(f"v_lshl_add_u32 v{t+1}, v{V_SLAB}, 2, v{t+1}")
    k(f"v_lshlrev_b32 v{t+1}, 7, v{t+1}")
    k(f"v_and_b32 v{t+2}, 3, v{V_L15}")
    k(f"v_lshl_add_u32 v{t+1}, v{t+2}, 3, v{t+1}")
    k(f"s_lshl_b32 s{S_TMP}, s{S_WAVE}, 5")
    k(f"s_add_u32 s{S_TMP}, s{S_TMP}, {L_W1P}")
    k(f"v_add_u32 v{t+1}, s{S_TMP}, v{t+1}")
    k(f"v_lshlrev_b32 v{t+2}, 4, v{V_L15}")
    k(f"s_lshl_b32 s{S_TMP}, s{S_H}, 2")
    k(f"s_add_u32 s{S_TMP}, s{S_TMP}, s{S_J}")
    k(f"s_lshl_b32 s{S_TMP}, s{S_TMP}, 10")
    k(f"s_lshl_b32 s{S_TMP+1}, s{S_WAVE}, 8")
    k(f"s_add_u32 s{S_TMP}, s{S_TMP}, s{S_TMP+1}")
    k(f"s_add_u32 s{S_TMP}, s{S_TMP}, {WS_HP}")
    k("s_waitcnt vmcnt(18)")
    k("s_barrier")
    for i in range(5):
        k(f"ds_read_b64_tr_b16 {vr(W+4*i,2)}, v{t+1} offset:{i*4096}")
        k(f"ds_read_b64_tr_b16 {vr(W+4*i+2,2)}, v{t+1} offset:{i*4096+2048}")
    k("s_waitcnt lgkmcnt(0)")
    for i in range(5):
        c = "0" if i == 0 else vr(D, 4)
        k(f"v_mfma_f32_16x16x32_bf16 {vr(D,4)}, {vr(X+4*i,4)}, {vr(W+4*i,4)}, {c}")
    k.nop(8)
    k(f"v_mov_b32 v{D+2}, s{S_T0}")
    k(f"v_mov_b32 v{D+3}, s{S_T1}")
    k(f"s_mov_b64 exec, 0xffff")
    k(f"buffer_store_dwordx4 {vr(D,4)}, v{t+2}, {srd(R_WS)}, s{S_TMP} offen sc1")
    k(f"s_mov_b64 exec, -1")


def p_weights_preread(k):
    t = PT
    k(f"v_lshrrev_b32 v{t}, 2, v{V_L15}")
    k(f"v_and_b32 v{t+1}, 3, v{V_L15}")
    k(f"v_lshl_add_u32 v{t+2}, v{V_SLAB}, 2, v{t}")
    k(f"v_and_b32 v{t+3}, 7, v{t+2}")
    k(f"v_lshlrev_b32 v{t+3}, 1, v{t+3}")
    k(f"v_lshrrev_b32 v{t+4}, 1, v{t+1}")
    k(f"v_and_b32 v{t+5}, 1, v{t+1}")
    k(f"s_lshl_b32 s{S_TMP}, s{S_WAVE}, 2")
    for d in range(2):
        k(f"v_add_u32 v{t+6}, s{S_TMP}, v{t+4}")
        if d:
            k(f"v_add_u32 v{t+6}, 2, v{t+6}")
        k(f"v_xor_b32 v{t+6}, v{t+6}, v{t+3}")
        k(f"v_lshlrev_b32 v{t+6}, 4, v{t+6}")
        k(f"v_lshl_add_u32 v{t+6}, v{t+5}, 3, v{t+6}")
        k(f"v_lshl_add_u32 v{PADR+6+d}, v{t+2}, 8, v{t+6}")
    for d in range(2):
        for kk in range(4):
            r = PWV + (d * 4 + kk) * 4
            k(f"ds_read_b64_tr_b16 {vr(r,2)}, v{PADR+6+d} offset:{L_WUV+kk*8192}")
            k(f"ds_read_b64_tr_b16 {vr(r+2,2)}, v{PADR+6+d} offset:{L_WUV+kk*8192+4096}")


def wo_issue(k):
    t = PT
    k(f"s_mul_i32 s{S_TMP}, s{S_H}, {128*1280}")
    k(f"s_mul_i32 s{S_TMP+1}, s{S_J}, 320")
    k(f"s_add_u32 s{S_TMP}, s{S_TMP}, s{S_TMP+1}")
    k(f"s_mul_i32 s{S_TMP+1}, s{S_WAVE}, 640")
    k(f"v_add_u32 v{t}, s{S_TMP+1}, v{V_LANE}")
    k(f"s_mul_i32 s{S_TMP+1}, s{S_WAVE}, 10240")
    k(f"s_add_u32 s{S_TMP+1}, s{S_TMP+1}, {L_WO5}")
    k(f"s_movk_i32 s{S_TMP+2}, 3277")
    k(f"s_movk_i32 s{S_TMP+3}, 960")
    for ii in range(10):
        k(f"v_mul_u32_u24 v{t+1}, s{S_TMP+2}, v{t}")
        k(f"v_lshrrev_b32 v{t+1}, 16, v{t+1}")
        k(f"v_mul_u32_u24 v{t+1}, s{S_TMP+3}, v{t+1}")
        k(f"v_lshl_add_u32 v{t+2+(ii&1)}, v{t}, 4, v{t+1}")
        k(f"s_mov_b32 m0, s{S_TMP+1}")
        k(f"s_add_u32 s{S_TMP+1}, s{S_TMP+1}, 1024")
        k(f"buffer_load_dwordx4 v{t+2+(ii&1)}, {srd(R_C)}, s{S_TMP} offen{nt('o')} lds")
        k(f"v_add_u32 v{t}, 64, v{t}")


def wo_preread(k):
    t = PT
    k(f"v_lshrrev_b32 v{t}, 2, v{V_L15}")
    k(f"v_and_b32 v{t+1}, 3, v{V_L15}")
    k(f"v_lshl_add_u32 v{t+2}, v{V_SLAB}, 2, v{t}")
    k(f"s_lshl_b32 s{S_TMP}, s{S_WAVE}, 5")
    k(f"v_add_u32 v{t+6}, s{S_TMP}, v{t+2}")
    k(f"v_mul_u32_u24 v{t+6}, 320, v{t+6}")
    k(f"v_lshl_add_u32 v{PADR+8}, v{t+1}, 3, v{t+6}")
    k(f"v_add_u32 v{PADR+8}, {L_WO5}, v{PADR+8}")
    for ct in range(10):
        r = PWO + 4 * ct
        k(f"ds_read_b64_tr_b16 {vr(r,2)}, v{PADR+8} offset:{32*ct}")
        k(f"ds_read_b64_tr_b16 {vr(r+2,2)}, v{PADR+8} offset:{32*ct+5120}")


def reduce_bits(k, op, v, tmp):
    for mod in ("quad_perm:[1,0,3,2]", "quad_perm:[2,3,0,1]", "row_half_mirror"):
        k.nop(2)
        k(f"{op}_dpp v{v}, v{v}, v{v} {mod} row_mask:0xf bank_mask:0xf")
    for sw in ("v_permlane16_swap_b32", "v_permlane32_swap_b32"):
        k(f"v_mov_b32 v{tmp}, v{v}")
        k.nop(2)
        k(f"{sw} v{v}, v{tmp}")
        k.nop(1)
        k(f"{op} v{v}, v{v}, v{tmp}")


def stage4_setup(k):
    t = PT
    k(f"v_bfe_u32 v{t}, v{V_LANE}, 3, 1")
    k(f"v_bfe_u32 v{t+1}, v{V_LANE}, 2, 1")
    k(f"v_and_b32 v{t+2}, 3, v{V_LANE}")
    k(f"v_lshlrev_b32 v{t+1}, 4, v{t+1}")
    k(f"v_lshl_add_u32 v{t+1}, v{V_SLAB}, 2, v{t+1}")
    k(f"v_add_u32 v{t+1}, v{t+1}, v{t+2}")
    k(f"v_lshl_add_u32 v{t+1}, v{t}, 5, v{t+1}")
    k(f"v_lshlrev_b32 v{PADR+9}, 3, v{t+1}")
    k(f"v_and_b32 v{t+1}, 1, v{V_LANE}")
    k(f"v_cmp_eq_u32 vcc, 1, v{t+1}")
    k(f"v_mov_b32 v{t+2}, 0xffff")
    k(f"v_mov_b32 v{t+3}, 0xffff0000")
    k(f"v_cndmask_b32 v{t+2}, v{t+2}, v{t+3}, vcc")
    k(f"v_bfe_u32 v{t+1}, v{V_LANE}, 1, 2")
    k(f"v_lshl_add_u32 v{t+1}, v{t}, 2, v{t+1}")
    for i in range(8):
        k(f"v_cmp_eq_u32 vcc, {i}, v{t+1}")
        k.nop(2)
        k(f"v_cndmask_b32 v{PM+i}, 0, v{t+2}, vcc")
    k(f"v_lshlrev_b32 v{PADR+10}, 4, v0")
    k(f"v_lshrrev_b32 v{t}, 4, v0")
    k(f"v_and_b32 v{t+1}, 7, v{t}")
    k(f"v_lshlrev_b32 v{t+1}, 1, v{t+1}")
    k(f"v_xor_b32 v{t+1}, v{t+1}, v{V_L15}")
    k(f"v_lshlrev_b32 v{t+1}, 4, v{t+1}")
    k(f"v_lshl_add_u32 v{t+1}, v{t}, 8, v{t+1}")
    k(f"v_add_u32 v{PADR+11}, {L_AOB}, v{t+1}")
    k(f"v_lshrrev_b32 v{t}, 2, v{V_L15}")
    k(f"v_lshl_add_u32 v{t}, v{V_SLAB}, 2, v{t}")
    k(f"v_and_b32 v{t+1}, 7, v{t}")
    k(f"v_lshlrev_b32 v{t+1}, 1, v{t+1}")
    k(f"v_bfe_u32 v{t+2}, v{V_L15}, 1, 1")
    k(f"v_and_b32 v{t+3}, 1, v{V_L15}")
    k(f"s_lshl_b32 s{S_TMP}, s{S_WAVE}, 2")
    for d in range(2):
        k(f"v_add_u32 v{t+4}, s{S_TMP}, v{t+2}")
        if d:
            k(f"v_add_u32 v{t+4}, 2, v{t+4}")
        k(f"v_xor_b32 v{t+4}, v{t+4}, v{t+1}")
        k(f"v_lshlrev_b32 v{t+4}, 4, v{t+4}")
        k(f"v_lshl_add_u32 v{t+4}, v{t+3}, 3, v{t+4}")
        k(f"v_lshl_add_u32 v{t+4}, v{t}, 8, v{t+4}")
        k(f"v_add_u32 v{PADR+12+d}, {L_AOB}, v{t+4}")
    k(f"v_lshrrev_b32 v{t}, 1, v{V_SLAB}")
    k(f"v_and_b32 v{t+1}, 1, v{V_SLAB}")
    k(f"v_lshlrev_b32 v{t}, 7, v{t}")
    k(f"v_lshl_add_u32 v{t}, v{t+1}, 4, v{t}")
    k(f"v_add_u32 v{t}, v{t}, v{V_L15}")
    k(f"s_lshl_b32 s{S_TMP}, s{S_WAVE}, 5")
    k(f"v_add_u32 v{t}, s{S_TMP}, v{t}")
    k(f"v_lshlrev_b32 v{t}, 1, v{t}")
    k(f"v_add_u32 v{PADR+14}, {L_CTX}, v{t}")
    k(f"v_and_b32 v{t}, 1, v{V_LANE}")
    k(f"v_lshlrev_b32 v{t}, 8, v{t}")
    k(f"v_lshl_add_u32 v{t}, v{V_SLAB}, 4, v{t}")
    k(f"v_add_u32 v{PADR+15}, {L_CTX}, v{t}")


def stage4(k):
    t = PT
    G = PG
    ST = 26
    k(f"s_lshl_b32 s{S_TMP}, s{S_H}, 9")
    k(f"s_add_u32 s{S_TMP}, s{S_TMP}, {WS_ST}")
    k(f"s_lshl_b32 s{S_TMP+1}, s{S_H}, 2")
    k(f"s_add_u32 s{S_TMP+1}, s{S_TMP+1}, s{S_J}")
    k(f"s_lshl_b32 s{S_TMP+2}, s{S_TMP+1}, 14")
    k(f"s_add_u32 s{S_TMP+2}, s{S_TMP+2}, {WS_AO}")
    for n in range(1, 4):
        k(f"s_add_u32 s{S_TMP+2+n}, s{S_TMP+2}, {4096*n}")
    sk = k.label("stw")
    k(f"v_lshlrev_b32 v{t+12}, 3, v{V_LANE}")
    k(f"v_add_u32 v{t+12}, {L_STX}, v{t+12}")
    k(f"s_cmp_eq_u32 s{S_WAVE}, 0")
    k(f"s_cbranch_scc0 {sk}")
    gather_check_loop(k, "st", [f"buffer_load_dwordx2 {vr(ST,2)}, v{PADR+9}, {srd(R_WS)}, s{S_TMP} offen sc1"], [ST, ST + 1], None)
    k(f"ds_write_b64 v{t+12}, {vr(ST,2)}")
    k("s_waitcnt lgkmcnt(0)")
    k(f"{sk}:")
    k("s_barrier")
    k.stamp(7)
    loads = [f"buffer_load_dwordx4 {vr(G+4*n,4)}, v{PADR+10}, {srd(R_WS)}, s{S_TMP+2+n} offen sc1" for n in range(4)]
    aopos = K.opt.get("aopos", "mid")
    if aopos == "pre":
        for l in loads:
            k(l)
    k(f"ds_read_b64 {vr(ST,2)}, v{t+12}")
    k("s_waitcnt lgkmcnt(0)")
    M = t + 8
    k(f"v_mov_b32 v{M}, v{ST}")
    reduce_bits(k, "v_max_f32", M, t + 9)
    k(f"v_sub_f32 v{t}, v{ST}, v{M}")
    k(f"v_exp_f32 v{t}, v{t}")
    k.nop(1)
    k(f"v_cvt_pk_bf16_f32 v{t}, v{t}, v{t}")
    for i in range(8):
        k(f"v_and_b32 v{PA+i}, v{t}, v{PM+i}")
    k(f"v_and_b32 v{t+1}, 0xffff0000, v{t}")
    k(f"v_mul_f32 v{t+1}, v{t+1}, v{ST+1}")
    if aopos == "mid":
        for l in loads:
            k(l)
    reduce_bits(k, "v_add_f32", t + 1, t + 9)
    k(f"v_rcp_f32 v{t+1}, v{t+1}")
    k.nop(1)
    k(f"v_readlane_b32 s{S_TMP+6}, v{t+1}, 0")
    k(f"v_readlane_b32 s{S_TMP+7}, v{t+1}, 8")
    k(f"v_cmp_le_u32 vcc, 32, v{V_LANE}")
    k.nop(1)
    k(f"v_mov_b32 v{t+2}, s{S_TMP+6}")
    k(f"v_mov_b32 v{t+3}, s{S_TMP+7}")
    k(f"v_cndmask_b32 v{t+2}, v{t+2}, v{t+3}, vcc")
    if aopos == "post":
        for l in loads:
            k(l)
    gather_check_loop(k, "ao", loads, list(range(G, G + 16)), 8, preissued=True)
    for n in range(4):
        k(f"ds_write_b128 v{PADR+11}, {vr(G+4*n,4)} offset:{4096*n}")
    k("s_waitcnt lgkmcnt(0)")
    k("s_barrier")
    B = PD + 8
    for d in range(2):
        for bb in range(2):
            r = B + (d * 2 + bb) * 4
            k(f"ds_read_b64_tr_b16 {vr(r,2)}, v{PADR+12+d} offset:{bb*8192}")
            k(f"ds_read_b64_tr_b16 {vr(r+2,2)}, v{PADR+12+d} offset:{bb*8192+4096}")
    for d in range(2):
        k(f"s_waitcnt lgkmcnt({4-4*d})")
        k(f"v_mfma_f32_16x16x32_bf16 {vr(PD+4*d,4)}, {vr(PA,4)}, {vr(B+(d*2)*4,4)}, 0")
        k(f"v_mfma_f32_16x16x32_bf16 {vr(PD+4*d,4)}, {vr(PA+4,4)}, {vr(B+(d*2+1)*4,4)}, {vr(PD+4*d,4)}")
    k.nop(8)
    for d in range(2):
        k(f"v_add_f32 v{PD+4*d}, v{PD+4*d}, v{PD+4*d+1}")
        k(f"v_add_f32 v{PD+4*d+2}, v{PD+4*d+2}, v{PD+4*d+3}")
    for d in range(2):
        k(f"v_add_f32 v{PD+4*d}, v{PD+4*d}, v{PD+4*d+2}")
    k.nop(2)
    k(f"v_permlane16_swap_b32 v{PD}, v{PD+4}")
    k.nop(1)
    k(f"v_add_f32 v{PD}, v{PD}, v{PD+4}")
    k(f"v_mul_f32 v{PD}, v{PD}, v{t+2}")
    k(f"v_cvt_pk_bf16_f32 v{PD}, v{PD}, v{PD}")
    k(f"ds_write_b16 v{PADR+14}, v{PD}")
    k("s_waitcnt lgkmcnt(0)")
    k("s_barrier")
    for kk in range(4):
        k(f"ds_read_b128 {vr(PA+4*kk,4)}, v{PADR+15} offset:{64*kk}")
    k(f"v_lshrrev_b32 v{t}, 2, v{V_L15}")
    k(f"v_lshlrev_b32 v{t}, 3, v{t}")
    k(f"v_and_b32 v{t+1}, 1, v{V_SLAB}")
    k(f"v_lshl_add_u32 v{t}, v{t+1}, 2, v{t}")
    k(f"v_and_b32 v{t+1}, 2, v{V_L15}")
    k(f"v_add_u32 v{t}, v{t}, v{t+1}")
    k(f"v_lshrrev_b32 v{t+1}, 1, v{V_SLAB}")
    k(f"v_lshl_add_u32 v{t}, v{t+1}, 7, v{t}")
    k(f"v_lshlrev_b32 v{t}, 1, v{t}")
    k(f"s_lshl_b32 s{S_TMP}, s{S_H}, 2")
    k(f"s_add_u32 s{S_TMP}, s{S_TMP}, s{S_J}")
    k(f"s_lshl_b32 s{S_TMP}, s{S_TMP}, 9")
    k(f"s_lshl_b32 s{S_TMP+1}, s{S_WAVE}, 6")
    k(f"s_add_u32 s{S_TMP}, s{S_TMP}, s{S_TMP+1}")
    k(f"s_add_u32 s{S_TMP}, s{S_TMP}, {WS_CP}")
    k(f"s_add_u32 s{S_TMP+1}, s{S_TMP}, {WS_CF - WS_CP}")
    k(f"s_mov_b32 s{S_M+2}, 0xffff0000")
    k(f"s_mov_b32 s{S_M+3}, 0xffff0000")
    k(f"s_mov_b32 s{S_M+4}, 0")
    k(f"s_mov_b32 s{S_M+5}, -1")
    k(f"s_mov_b32 s{S_M+6}, 0x55555555")
    k(f"s_mov_b32 s{S_M+7}, 0x55555555")
    for kk in range(4):
        k(f"s_waitcnt lgkmcnt({3-kk})")
        for d in range(2):
            c = "0" if kk == 0 else vr(PD + 4 * d, 4)
            k(f"v_mfma_f32_16x16x32_bf16 {vr(PD+4*d,4)}, {vr(PA+4*kk,4)}, {vr(PWV+(d*4+kk)*4,4)}, {c}")
    k.nop(8)
    k(f"v_cndmask_b32 v{t+2}, v{PD}, v{PD+4}, s[{S_M+2}:{S_M+3}]")
    k(f"v_cndmask_b32 v{t+3}, v{PD+1}, v{PD+5}, s[{S_M+2}:{S_M+3}]")
    k(f"v_cndmask_b32 v{t+2}, v{t+2}, v{t+3}, s[{S_M+4}:{S_M+5}]")
    k.nop(2)
    k(f"v_mov_b32_dpp v{t+3}, v{t+2} quad_perm:[1,0,3,2] row_mask:0xf bank_mask:0xf")
    k(f"v_cvt_pk_bf16_f32 v{t+2}, v{t+2}, v{t+3}")
    if use_fast():
        k(f"v_mov_b32 v{PKEEP}, v{t+2}")
        k(f"v_mov_b32 v{PKEEP+1}, v{t}")
        k(f"s_mov_b32 s{S_KEEP}, s{S_TMP}")
    k(f"s_mov_b64 exec, s[{S_M+6}:{S_M+7}]")
    if use_fast():
        k(f"buffer_store_dword v{t+2}, v{t}, {srd(R_WS)}, s{S_TMP+1} offen")
    else:
        k(f"buffer_store_dword v{t+2}, v{t}, {srd(R_WS)}, s{S_TMP} offen sc1")
    k(f"s_mov_b64 exec, -1")
    k.stamp(9)


def stage5(k):
    t = PT
    k(f"v_and_b32 v{t}, 3, v{V_L15}")
    k(f"v_lshlrev_b32 v{t}, 9, v{t}")
    k(f"v_bfe_u32 v{t+1}, v{V_L15}, 2, 1")
    k(f"v_lshl_add_u32 v{t}, v{t+1}, 8, v{t}")
    k(f"v_lshl_add_u32 v{PADR}, v{V_SLAB}, 4, v{t}")
    k(f"s_lshl_b32 s{S_TMP}, s{S_H}, 11")
    k(f"s_lshl_b32 s{S_TMP+1}, s{S_WAVE}, 6")
    k(f"s_add_u32 s{S_TMP}, s{S_TMP}, s{S_TMP+1}")
    k(f"s_add_u32 s{S_TMP}, s{S_TMP}, {WS_CP}")
    k(f"v_lshrrev_b32 v{t}, 1, v{V_SLAB}")
    k(f"v_lshlrev_b32 v{t}, 4, v{t}")
    k(f"v_add_u32 v{t}, v{t}, v{V_L15}")
    k(f"v_lshlrev_b32 v{t}, 3, v{t}")
    k(f"v_and_b32 v{t+1}, 1, v{V_SLAB}")
    k(f"v_lshl_add_u32 v{PADR+1}, v{t+1}, 2, v{t}")
    k(f"s_mul_i32 s{S_TMP+1}, s{S_H}, 5120")
    k(f"s_mul_i32 s{S_TMP+2}, s{S_J}, 1280")
    k(f"s_add_u32 s{S_TMP+1}, s{S_TMP+1}, s{S_TMP+2}")
    k(f"s_add_u32 s{S_TMP+1}, s{S_TMP+1}, {WS_SP}")
    k(f"s_lshl_b32 s{S_TMP+2}, s{S_WAVE}, 8")
    k(f"s_add_u32 s{S_TMP+2}, s{S_TMP+2}, s{S_TMP+1}")
    k(f"s_add_u32 s{S_TMP+1}, s{S_TMP+1}, 1024")
    k(f"v_lshlrev_b32 v{t}, 2, v{V_LANE}")
    k(f"s_mul_i32 s{S_TMP+3}, s{S_WAVE}, 1280")
    k(f"s_add_u32 s{S_TMP+3}, s{S_TMP+3}, {L_RED5}")
    k(f"v_add_u32 v{PADR+3}, s{S_TMP+3}, v{t}")
    k(f"s_lshl_b32 s{S_TMP+3}, s{S_WAVE}, 8")
    k(f"s_add_u32 s{S_TMP+3}, s{S_TMP+3}, {L_RED5}")
    k(f"v_add_u32 v{PADR+2}, s{S_TMP+3}, v{t}")
    k(f"v_add_u32 v{PADR+4}, {L_RED5+1024}, v{t}")
    k(f"s_mov_b32 s{S_M+4}, 0")
    k(f"s_mov_b32 s{S_M+5}, -1")
    loads = [f"buffer_load_dwordx4 {vr(PG,4)}, v{PADR}, {srd(R_WS)}, s{S_TMP} offen sc1"]
    k(f"s_add_u32 s{S_TMP+5}, s{S_TMP}, {WS_CF - WS_CP}")
    floads = [f"buffer_load_dwordx4 {vr(PG,4)}, v{PADR}, {srd(R_WS)}, s{S_TMP+5} offen sc1"]
    def send_cp(kk):
        kk(f"s_mov_b32 exec_lo, 0x55555555")
        kk(f"s_mov_b32 exec_hi, 0x55555555")
        kk(f"buffer_store_dword v{PKEEP}, v{PKEEP+1}, {srd(R_WS)}, s{S_KEEP} offen sc1")
        kk(f"s_mov_b64 exec, -1")
    gather_loop(k, "cp", loads, lambda kk: sentinel_check(kk, [PG, PG + 1, PG + 2, PG + 3]), 10,
                fast=(floads, 16) if use_fast() else None, after_fast=send_cp if use_fast() else None)
    for ct in range(10):
        k(f"v_mfma_f32_16x16x32_bf16 {vr(PD+4*ct,4)}, {vr(PG,4)}, {vr(PWO+4*ct,4)}, 0")
    for ct in range(10):
        k(f"v_add_f32 v{PD+4*ct}, v{PD+4*ct}, v{PD+4*ct+1}")
        k(f"v_add_f32 v{PD+4*ct+2}, v{PD+4*ct+2}, v{PD+4*ct+3}")
        k(f"v_add_f32 v{PD+4*ct}, v{PD+4*ct}, v{PD+4*ct+2}")
    for u in range(5):
        k(f"v_cndmask_b32 v{PY+u}, v{PD+8*u}, v{PD+8*u+4}, s[{S_M+4}:{S_M+5}]")
    k(f"ds_write2st64_b32 v{PADR+3}, v{PY}, v{PY+1} offset0:0 offset1:1")
    k(f"ds_write2st64_b32 v{PADR+3}, v{PY+2}, v{PY+3} offset0:2 offset1:3")
    k(f"ds_write_b32 v{PADR+3}, v{PY+4} offset:1024")
    k("s_waitcnt lgkmcnt(0)")
    k("s_barrier")
    k(f"ds_read2st64_b32 {vr(t,2)}, v{PADR+2} offset0:0 offset1:5")
    k(f"ds_read2st64_b32 {vr(t+2,2)}, v{PADR+2} offset0:10 offset1:15")
    k(f"ds_read2st64_b32 {vr(t+4,2)}, v{PADR+4} offset0:0 offset1:5")
    k(f"ds_read2st64_b32 {vr(t+6,2)}, v{PADR+4} offset0:10 offset1:15")
    k("s_waitcnt lgkmcnt(2)")
    k(f"v_add_f32 v{t}, v{t}, v{t+1}")
    k(f"v_add_f32 v{t+2}, v{t+2}, v{t+3}")
    k(f"v_add_f32 v{t}, v{t}, v{t+2}")
    k(f"buffer_store_dword v{t}, v{PADR+1}, {srd(R_WS)}, s{S_TMP+2} offen sc1")
    skip = k.label("s5skip")
    k(f"s_cmp_eq_u32 s{S_WAVE}, 0")
    k(f"s_cbranch_scc0 {skip}")
    k("s_waitcnt lgkmcnt(0)")
    k(f"v_add_f32 v{t+4}, v{t+4}, v{t+5}")
    k(f"v_add_f32 v{t+6}, v{t+6}, v{t+7}")
    k(f"v_add_f32 v{t+4}, v{t+4}, v{t+6}")
    k(f"buffer_store_dword v{t+4}, v{PADR+1}, {srd(R_WS)}, s{S_TMP+1} offen sc1")
    k(f"{skip}:")
    k.stamp(11)


S_U = 73 + 7
BQ = 10
BG = 74
BD = 90
BS = 122
BP = 130
BL = 146
BADR = 150
BT = 166
BONE = 186
BAC = 190
BTR = 192
BWF = 194
BA2 = 236
BROW = 240
BWR = 196
S_WFL, S_WFO, S_WFS = 17, 22, 23
AOT_RS = 272
L_AOT = 98304
S_FLG = 14
S_AC = 14 + 2
FIRSTWAIT_AC = 1
S_B, S_G, S_UU = 66, 67, 68


def b_roles(k):
    k(f"s_sub_u32 s{S_JP}, s{S_J}, 4")
    k(f"s_and_b32 s{S_G}, s{S_JP}, 1")
    k(f"s_lshr_b32 s{S_B}, s{S_JP}, 1")
    k(f"s_lshl_b32 s{S_UU}, s{S_JP}, 5")
    k(f"s_add_u32 s{S_UU}, s{S_UU}, s{S_H}")
    k(f"s_and_b32 s{S_F}, s{S_UU}, 63")
    k(f"s_lshr_b32 s{S_TMP}, s{S_UU}, 6")
    k(f"s_add_u32 s{S_ROLE}, s{S_TMP}, 1")
    k(f"s_cmp_lt_u32 s{S_F}, {NF}")
    k(f"s_cselect_b32 s{S_ROLE}, s{S_ROLE}, 3")
    k(f"s_mul_i32 s{S_TMP}, s{S_TMP}, 10")
    k(f"s_add_u32 s{S_Z}, s{S_F}, s{S_TMP}")
    k(f"s_sub_u32 s{S_Z}, s{S_Z}, {NF}")


def clears_B(k):
    t = V_T + 4
    neg = vr(V_NEG1, 4)
    k(f"v_lshlrev_b32 v{t}, 4, v{V_LANE}")
    k(f"s_lshl_b32 s{S_TMP}, s{S_H}, 2")
    k(f"s_add_u32 s{S_TMP}, s{S_TMP}, s{S_JP}")
    k(f"s_lshl_b32 s{S_TMP}, s{S_TMP}, 14")
    k(f"s_add_u32 s{S_TMP}, s{S_TMP}, {WS_AO}")
    k(f"s_mul_i32 s{S_TMP+1}, s{S_WAVE}, 5120")
    k(f"s_add_u32 s{S_TMP}, s{S_TMP}, s{S_TMP+1}")
    k(f"s_sub_u32 s{S_TMP}, s{S_TMP}, 4096")
    for i in range(5):
        off = i * 1024
        if i == 4:
            k(f"s_add_u32 s{S_TMP}, s{S_TMP}, 4096")
            off = 0
        k(f"buffer_store_dwordx4 {neg}, v{t}, {srd(R_WS)}, s{S_TMP} offen offset:{off} sc1")
    sk = k.label("cb")
    k(f"s_cmp_eq_u32 s{S_WAVE}, 1")
    k(f"s_cbranch_scc0 {sk}_2")
    k(f"s_sub_u32 s{S_TMP}, s{S_TMP}, 5120")
    k(f"buffer_store_dwordx4 {neg}, v{t}, {srd(R_WS)}, s{S_TMP} offen sc1")
    k(f"s_branch {sk}")
    k(f"{sk}_2:")
    k(f"s_cmp_eq_u32 s{S_WAVE}, 2")
    k(f"s_cbranch_scc0 {sk}")
    k(f"s_cmp_eq_u32 s{S_ROLE}, 2")
    k(f"s_cbranch_scc0 {sk}")
    k(f"s_mul_i32 s{S_TMP}, s{S_F}, 5120")
    k(f"s_add_u32 s{S_TMP}, s{S_TMP}, {WS_FP}")
    for i in range(5):
        off = i * 1024
        if i == 4:
            k(f"s_add_u32 s{S_TMP}, s{S_TMP}, 4096")
            off = 0
        k(f"buffer_store_dwordx4 {neg}, v{t}, {srd(R_WS)}, s{S_TMP} offen offset:{off} sc1")
    k(f"{sk}:")


def tag_store(k, base, shift, treg, only_wave=None, jreg=None):
    k(f"s_lshl_b32 s{S_TMP+3}, s{S_H}, 2")
    k(f"s_add_u32 s{S_TMP+3}, s{S_TMP+3}, s{S_JP if jreg is None else jreg}")
    k(f"s_lshl_b32 s{S_TMP+3}, s{S_TMP+3}, {shift}")
    k(f"s_add_u32 s{S_TMP+3}, s{S_TMP+3}, {base}")
    if only_wave is not None:
        k(f"s_cmp_eq_u32 s{S_WAVE}, {only_wave}")
        k(f"s_cselect_b32 s{S_TMP+3}, s{S_TMP+3}, 0x7f000000")
    k(f"v_mov_b32 v{treg}, s{S_T0}")
    k(f"v_mov_b32 v{treg+1}, s{S_T1}")
    k(f"v_mov_b32 v{treg+2}, 0")
    k(f"s_mov_b64 exec, 1")
    k(f"buffer_store_dwordx2 {vr(treg,2)}, v{treg+2}, {srd(R_WS)}, s{S_TMP+3} offen sc1")
    k(f"s_mov_b64 exec, -1")


def ac_publish(k):
    sk = k.label("acp")
    k(f"s_cmp_eq_u32 s{S_WAVE}, 1")
    k(f"s_cbranch_scc0 {sk}")
    tag_store(k, WS_AC, 3, BT + 2)
    k(f"{sk}:")


S_RO, S_RL = 24, 25


def ckv_setup(k):
    k(f"s_lshl_b32 s{S_RO}, s{S_B}, 12")
    k(f"s_lshl_b32 s{S_TMP+1}, s{S_H}, 7")
    k(f"s_add_u32 s{S_RO}, s{S_RO}, s{S_TMP+1}")
    k(f"s_lshl_b32 s{S_TMP+1}, s{S_WAVE}, 5")
    k(f"s_add_u32 s{S_RO}, s{S_RO}, s{S_TMP+1}")
    k(f"s_lshl_b32 s{S_RO}, s{S_RO}, 10")
    k(f"s_mul_i32 s{S_RL}, s{S_WAVE}, {32*RS}")
    k(f"s_add_u32 s{S_RL}, s{S_RL}, {L_CKV}")
    k(f"v_lshlrev_b32 v{BROW}, 4, v{V_LANE}")
    k(f"s_mul_i32 s{S_TMP+3}, s{S_G}, {16*1024}")
    k(f"s_add_u32 s{S_RO}, s{S_RO}, s{S_TMP+3}")
    k(f"s_mul_i32 s{S_TMP+3}, s{S_G}, {16*RS}")
    k(f"s_add_u32 s{S_RL}, s{S_RL}, s{S_TMP+3}")
    if K.opt.get("g1skip"):
        k(f"s_cmp_eq_u32 s{S_G}, 1")
        k(f"s_cselect_b32 s{R_A+2}, 0, s{R_A+2}")


def flags_setup(k):
    k(f"v_lshlrev_b32 v{BADR+15}, 3, v{V_LANE}")
    k(f"s_lshl_b32 s{S_AC}, s{S_G}, 9")
    k(f"s_add_u32 s{S_FLG}, s{S_AC}, {WS_PC}")
    k(f"s_add_u32 s{S_AC}, s{S_AC}, {WS_AC}")


def ckv_rows(k, r0, r1):
    for r in range(r0, r1):
        if r == 8:
            sk = k.label("acw")
            k(f"s_cmp_eq_u32 s{S_WAVE}, 0")
            k(f"s_cbranch_scc1 {sk}")
            k("s_waitcnt vmcnt(8)")
            epoch_tags(k, VE)
            k(f"{sk}:")
            k("s_barrier")
            ac_publish(k)
            flags_setup(k)
        if r == flag_row():
            k(flag_load())
            k(ac_load())
        if r == 16 and K.opt.get("halfstamp"):
            k.stamp(15)
        if r == 24 and K.opt.get("halfstamp"):
            k.stamp(16)
        if r == 16:
            k(f"s_mul_i32 s{S_TMP+3}, s{S_G}, {32*1024}")
            k(f"s_sub_u32 s{S_RO}, s{S_RO}, s{S_TMP+3}")
            k(f"s_mul_i32 s{S_TMP+3}, s{S_G}, {32*RS}")
            k(f"s_sub_u32 s{S_RL}, s{S_RL}, s{S_TMP+3}")
        nin = int(K.opt.get("infl", 8))
        if nin and r >= nin and r != 8:
            k(f"s_waitcnt vmcnt({nin - 1 + (2 if flag_row() <= r < flag_row() + nin else 0)})")
        k(f"s_mov_b32 m0, s{S_RL}")
        k(f"s_add_u32 s{S_RL}, s{S_RL}, {RS}")
        k(f"buffer_load_dwordx4 v{BROW}, {srd(R_A)}, s{S_RO} offen{nt('c') if r < 16 else (nt('d'))} lds")
        k(f"s_add_u32 s{S_RO}, s{S_RO}, 1024")
        if K.opt.get("g1skip") and r == r0 and r0 == 0:
            pass


def early_rows():
    return int(K.opt.get("erows", 0))


def flag_row():
    return int(K.opt.get("frow", FLAG_ROW))


def ntr():
    return 1 if K.opt.get("trig", "0") == "1" else 0


def flag_load():
    return f"buffer_load_dwordx2 {vr(BG,2)}, v{BADR+15}, {srd(R_WS)}, s{S_FLG} offen sc1"


def ac_load():
    return f"buffer_load_dwordx2 {vr(BAC,2)}, v{BADR+15}, {srd(R_WS)}, s{S_AC} offen sc1"


def flags_poll(k):
    gather_loop(k, "fl", [flag_load(), ac_load()], lambda kk: tag_check(kk, [(BG, BG+1), (BAC, BAC+1)]), 14, preissued=True, firstwait=32 - flag_row() + ntr())


def nwf_early():
    return int(K.opt.get("nwfe", NWF_EARLY))


def wf_load(k, i):
    if K.opt.get("nowf"):
        return
    if i >= int(K.opt.get("wfn", 10)):
        return
    k(f"buffer_load_dwordx4 {vr(BWR+4*i,4)}, v{BWF}, {srd(R_B)}, s{S_WFO} offen{nt('2')}")
    if i < 9:
        k(f"s_add_u32 s{S_WFO}, s{S_WFO}, s{S_WFS}")


def attention_setup(k):
    t = BT
    k(f"s_lshl_b32 s{S_TMP}, s{S_WAVE}, 5")
    k(f"v_add_u32 v{t}, s{S_TMP}, v{V_L15}")
    k(f"v_mul_u32_u24 v{t}, {RS}, v{t}")
    k(f"v_lshl_add_u32 v{t}, v{V_SLAB}, 8, v{t}")
    k(f"v_and_b32 v{t+1}, 1, v{V_SLAB}")
    k(f"v_lshlrev_b32 v{t+1}, 4, v{t+1}")
    k(f"s_mul_i32 s{S_TMP}, s{S_G}, {16*RS}")
    k(f"s_sub_u32 s{S_TMP+1}, {16*RS}, s{S_TMP}")
    k(f"v_add_u32 v{BADR}, v{t}, v{t+1}")
    k(f"v_sub_u32 v{BADR+1}, v{t}, v{t+1}")
    k(f"v_add_u32 v{BA2}, s{S_TMP+1}, v{BADR}")
    k(f"v_add_u32 v{BA2+1}, s{S_TMP+1}, v{BADR+1}")
    k(f"v_add_u32 v{BADR}, s{S_TMP}, v{BADR}")
    k(f"v_add_u32 v{BADR+1}, s{S_TMP}, v{BADR+1}")
    k(f"v_mul_u32_u24 v{t}, {RS}, v{V_L15}")
    k(f"v_lshl_add_u32 v{t}, v{V_SLAB}, 8, v{t}")
    k(f"v_add_u32 v{t}, {L_QB}, v{t}")
    k(f"v_add_u32 v{BADR+2}, v{t}, v{t+1}")
    k(f"v_sub_u32 v{BADR+3}, v{t}, v{t+1}")
    k(f"v_lshrrev_b32 v{t}, 2, v{V_L15}")
    k(f"v_lshl_add_u32 v{t}, v{V_SLAB}, 2, v{t}")
    k(f"v_mul_u32_u24 v{t}, {RS}, v{t}")
    k(f"v_and_b32 v{t+1}, 3, v{V_L15}")
    k(f"v_lshl_add_u32 v{t}, v{t+1}, 3, v{t}")
    k(f"s_lshl_b32 s{S_TMP}, s{S_WAVE}, 8")
    k(f"v_add_u32 v{t}, s{S_TMP}, v{t}")
    k(f"s_mul_i32 s{S_TMP}, s{S_G}, {16*RS}")
    k(f"s_sub_u32 s{S_TMP+1}, {16*RS}, s{S_TMP}")
    k(f"v_add_u32 v{BADR+4}, s{S_TMP}, v{t}")
    k(f"v_add_u32 v{BADR+5}, {64*RS}, v{BADR+4}")
    k(f"v_add_u32 v{BA2+2}, s{S_TMP+1}, v{t}")
    k(f"v_add_u32 v{BA2+3}, {64*RS}, v{BA2+2}")
    k(f"v_lshlrev_b32 v{BADR+6}, 4, v0")
    k(f"s_mul_i32 s{S_TMP}, s{S_WAVE}, {RS}")
    k(f"s_add_u32 s{S_TMP}, s{S_TMP}, {L_QB}")
    k(f"v_lshlrev_b32 v{t}, 4, v{V_LANE}")
    k(f"v_add_u32 v{BADR+7}, s{S_TMP}, v{t}")
    k(f"v_lshlrev_b32 v{t+1}, 2, v{V_LANE}")
    k(f"s_lshl_b32 s{S_TMP}, s{S_WAVE}, 8")
    k(f"s_add_u32 s{S_TMP}, s{S_TMP}, {L_MX}")
    k(f"v_add_u32 v{BADR+8}, s{S_TMP}, v{t+1}")
    k(f"v_add_u32 v{BADR+9}, {L_MX}, v{t+1}")
    k(f"s_lshl_b32 s{S_TMP}, s{S_WAVE}, 10")
    k(f"s_add_u32 s{S_TMP}, s{S_TMP}, {L_PB}")
    k(f"v_add_u32 v{BADR+10}, s{S_TMP}, v{t}")
    k(f"v_add_u32 v{BADR+11}, {L_PB}, v{t}")
    k(f"s_mul_i32 s{S_TMP}, s{S_WAVE}, {16*AOT_RS}")
    k(f"s_add_u32 s{S_TMP}, s{S_TMP}, {L_AOT}")
    k(f"v_mul_u32_u24 v{t}, {AOT_RS}, v{V_L15}")
    k(f"v_lshl_add_u32 v{t}, v{V_SLAB}, 4, v{t}")
    k(f"v_add_u32 v{BADR+12}, s{S_TMP}, v{t}")
    k(f"v_lshrrev_b32 v{t}, 3, v{V_LANE}")
    k(f"v_mul_u32_u24 v{t}, {AOT_RS}, v{t}")
    k(f"v_and_b32 v{t+1}, 7, v{V_LANE}")
    k(f"v_lshl_add_u32 v{t}, v{t+1}, 4, v{t}")
    k(f"v_add_u32 v{BTR}, s{S_TMP}, v{t}")
    k(f"v_lshrrev_b32 v{t}, 3, v{V_LANE}")
    k(f"v_lshlrev_b32 v{t}, 16, v{t}")
    k(f"v_lshl_add_u32 v{BTR+1}, v{t+1}, 4, v{t}")
    k(f"v_lshlrev_b32 v{BADR+13}, 9, v{V_L15}")
    for i in range(4):
        k(f"v_mov_b32 v{BONE+i}, 0x3f803f80")


def attention(k):
    t = BT

    def pv_read(tt, u, half):
        r = 128 + (tt * 4 + u) * 4 + 2 * half
        base = (BADR + 4 if half == 0 else BA2 + 2) + (u >> 1)
        k(f"ds_read_b64_tr_b16 {ar(r,2)}, v{base} offset:{L_CKV + (u & 1) * 32 * RS + 32 * tt}")

    def a_read(p):
        for i in range(16):
            base = (BADR if p == 0 else BA2) + (i & 1)
            k(f"ds_read_b128 {ar((p*16+i)*4,4)}, v{base} offset:{L_CKV+i*16}")

    k(f"s_waitcnt vmcnt({18 + ntr()})")
    a_read(0)
    k("s_barrier")
    for tt in range(8):
        for u in range(4):
            pv_read(tt, u, 0)
    if K.opt.get("noflags"):
        k(f"s_waitcnt vmcnt({4 + ntr()})")
    else:
        flags_poll(k)
    k(f"s_lshl_b32 s{S_TMP}, s{S_B}, 15")
    k(f"s_lshl_b32 s{S_TMP+1}, s{S_G}, 14")
    k(f"s_add_u32 s{S_TMP}, s{S_TMP}, s{S_TMP+1}")
    k(f"s_add_u32 s{S_TMP}, s{S_TMP}, {WS_QA}")
    for n in range(1, 4):
        k(f"s_add_u32 s{S_TMP+n}, s{S_TMP}, {4096*n}")
    loads = [f"buffer_load_dwordx4 {vr(BG+4*n,4)}, v{BADR+6}, {srd(R_WS)}, s{S_TMP+n} offen sc1" for n in range(4)]
    for l in loads:
        k(l)
    k(f"s_waitcnt vmcnt({4 + ntr()})")
    k.stamp(4)
    if K.opt.get("bstop"):
        k("s_branch L_done")
    a_read(1)
    gather_check_loop(k, "qa", loads, list(range(BG, BG + 16)), 5, preissued=True)
    for n in range(4):
        k(f"ds_write_b128 v{BADR+7}, {vr(BG+4*n,4)} offset:{4*n*RS}")
    k("s_waitcnt lgkmcnt(0)")
    k("s_barrier")
    for i in range(16):
        k(f"ds_read_b128 {vr(BQ+4*i,4)}, v{BADR+2+(i&1)} offset:{i*16}")
    for i in range(16):
        if i < 8:
            k(f"s_waitcnt lgkmcnt({15-i})")
        elif i == 8:
            k("s_waitcnt lgkmcnt(0)")
        for p in range(2):
            c = "0" if i == 0 else vr(BS + 4 * p, 4)
            k(f"v_mfma_f32_16x16x32_bf16 {vr(BS+4*p,4)}, {ar((p*16+i)*4,4)}, {vr(BQ+4*i,4)}, {c}")
        if i >= 8:
            for u in range(4):
                pv_read(i - 8, u, 1)
        if (i & 1) and (i >> 1) < nwf_early():
            wf_load(k, i >> 1)
    k.nop(8)
    k.stamp(6)
    k(f"v_max3_f32 v{t}, v{BS}, v{BS+1}, v{BS+2}")
    k(f"v_max3_f32 v{t+1}, v{BS+3}, v{BS+4}, v{BS+5}")
    k(f"v_max3_f32 v{t}, v{t}, v{BS+6}, v{BS+7}")
    k(f"v_max_f32 v{t}, v{t}, v{t+1}")
    for sw in ("v_permlane16_swap_b32", "v_permlane32_swap_b32"):
        k(f"v_mov_b32 v{t+1}, v{t}")
        k.nop(2)
        k(f"{sw} v{t}, v{t+1}")
        k.nop(1)
        k(f"v_max_f32 v{t}, v{t}, v{t+1}")
    k(f"ds_write_b32 v{BADR+8}, v{t}")
    k("s_waitcnt lgkmcnt(0)")
    k("s_barrier")
    k(f"ds_read2st64_b32 {vr(t,2)}, v{BADR+9} offset0:0 offset1:1")
    k(f"ds_read2st64_b32 {vr(t+2,2)}, v{BADR+9} offset0:2 offset1:3")
    k("s_waitcnt lgkmcnt(0)")
    k(f"v_max3_f32 v{t}, v{t}, v{t+1}, v{t+2}")
    k(f"v_max_f32 v{t+4}, v{t}, v{t+3}")
    for i in range(8):
        k(f"v_sub_f32 v{BS+i}, v{BS+i}, v{t+4}")
    for i in range(8):
        k(f"v_exp_f32 v{BS+i}, v{BS+i}")
    k.nop(1)
    for i in range(4):
        k(f"v_cvt_pk_bf16_f32 v{t+i}, v{BS+2*i}, v{BS+2*i+1}")
    k(f"ds_write_b128 v{BADR+10}, {vr(t,4)}")
    k("s_waitcnt lgkmcnt(0)")
    k("s_barrier")
    k.stamp(7)
    for u in range(4):
        k(f"ds_read_b128 {vr(BP+4*u,4)}, v{BADR+11} offset:{1024*u}")
    k(f"s_lshl_b32 s{S_TMP}, s{S_G}, 20")
    k(f"s_lshl_b32 s{S_TMP+1}, s{S_WAVE}, 14")
    k(f"s_add_u32 s{S_TMP}, s{S_TMP}, s{S_TMP+1}")
    k(f"s_lshl_b32 s{S_TMP+1}, s{S_B}, 5")
    k(f"s_add_u32 s{S_TMP+1}, s{S_TMP+1}, s{S_H}")
    k(f"s_lshl_b32 s{S_TMP+2}, s{S_TMP+1}, 8")
    k(f"s_add_u32 s{S_TMP}, s{S_TMP}, s{S_TMP+2}")
    k(f"s_add_u32 s{S_TMP}, s{S_TMP}, {WS_AO}")
    k(f"s_lshl_b32 s{S_TMP+1}, s{S_TMP+1}, 3")
    k(f"s_lshl_b32 s{S_TMP+2}, s{S_G}, 13")
    k(f"s_add_u32 s{S_TMP+1}, s{S_TMP+1}, s{S_TMP+2}")
    k(f"s_add_u32 s{S_TMP+1}, s{S_TMP+1}, {WS_ST}")
    def conv(up):
        r = BQ + 4 * up
        return [f"v_cvt_pk_bf16_f32 v{r}, v{BD+8*up}, v{BD+8*up+1}",
                f"v_cvt_pk_bf16_f32 v{r+1}, v{BD+8*up+2}, v{BD+8*up+3}",
                f"v_cvt_pk_bf16_f32 v{r+2}, v{BD+8*up+4}, v{BD+8*up+5}",
                f"v_cvt_pk_bf16_f32 v{r+3}, v{BD+8*up+6}, v{BD+8*up+7}",
                f"ds_write_b128 v{BADR+12}, {vr(r,4)} offset:{64*up}"]

    def half_read(y):
        return [f"ds_read_b128 {vr(BQ+16+8*y+4*x,4)}, v{BTR} offset:{x*8*AOT_RS + y*128}" for x in range(2)]

    def half_store(y, x):
        return f"buffer_store_dwordx4 {vr(BQ+16+8*y+4*x,4)}, v{BTR+1}, {srd(R_WS)}, s{S_TMP+2*x} offen offset:{y*128} sc1"

    k(f"s_add_u32 s{S_TMP+2}, s{S_TMP}, {8*65536}")
    k(f"s_cmp_eq_u32 s{S_WAVE}, 0")
    k(f"s_cselect_b32 s{S_TMP+1}, s{S_TMP+1}, 0x7f000000")
    for u in range(4):
        k(f"s_waitcnt lgkmcnt({3-u})")
        c = "0" if u == 0 else vr(BL, 4)
        k(f"v_mfma_f32_16x16x32_bf16 {vr(BL,4)}, {vr(BONE,4)}, {vr(BP+4*u,4)}, {c}")
    for up in range(4):
        extra = conv(up - 2) if up >= 2 else []
        if up == 1:
            extra = [f"v_mov_b32 v{t+5}, v{BL}",
                     f"s_mov_b64 exec, 0xffff\nbuffer_store_dwordx2 {vr(t+4,2)}, v{BADR+13}, {srd(R_WS)}, s{S_TMP+1} offen sc1\ns_mov_b64 exec, -1\ns_nop 3"]
        for u in range(4):
            for tt in (2 * up, 2 * up + 1):
                c = "0" if u == 0 else vr(BD + 4 * tt, 4)
                k(f"v_mfma_f32_16x16x32_bf16 {vr(BD+4*tt,4)}, {ar(128+(tt*4+u)*4,4)}, {vr(BP+4*u,4)}, {c}")
                if extra:
                    k(extra.pop(0))
    k("s_waitcnt lgkmcnt(0)")
    for l in half_read(0):
        k(l)
    for l in conv(2):
        k(l)
    k.nop(1)
    for l in conv(3):
        k(l)
    k("s_waitcnt lgkmcnt(3)")
    k(half_store(0, 0))
    k("s_waitcnt lgkmcnt(2)")
    k(half_store(0, 1))
    k("s_waitcnt lgkmcnt(0)")
    for l in half_read(1):
        k(l)
    k("s_waitcnt lgkmcnt(1)")
    k(half_store(1, 0))
    k("s_waitcnt lgkmcnt(0)")
    k(half_store(1, 1))
    for i in range(nwf_early(), 10):
        wf_load(k, i)
    k.stamp(8)
    if K.opt.get("aoack"):
        k("s_waitcnt vmcnt(0)")
        k.stamp(17)


def silu(k, v, t):
    k(f"v_mul_f32 v{t}, 0xbfb8aa3b, v{v}")
    k(f"v_exp_f32 v{t}, v{t}")
    k.nop(1)
    k(f"v_add_f32 v{t}, 1.0, v{t}")
    k(f"v_rcp_f32 v{t}, v{t}")
    k.nop(1)
    k(f"v_mul_f32 v{v}, v{v}, v{t}")


def round_bf16(k, v):
    k(f"v_cvt_pk_bf16_f32 v{v}, v{v}, v{v}")
    k(f"v_and_b32 v{v}, 0xffff0000, v{v}")


FW1 = 10
FW2 = 50
FX = 90
FD = 110
FH = 150
FADR = 176
FT = 166


def wf_setup(k):
    k(f"s_mul_i32 s{S_WFL}, s{S_WAVE}, 10240")
    k(f"s_add_u32 s{S_WFL}, s{S_WFL}, {L_WF}")
    k.srd(R_B, S_W2, 1728 * 640 * 2)
    k(f"s_cmp_eq_u32 s{S_ROLE}, 2")
    k(f"s_cselect_b32 s{R_B+2}, {1728 * 640 * 2}, 0")
    k(f"v_lshlrev_b32 v{BWF}, 4, v{V_LANE}")
    k(f"s_mul_i32 s{S_WFO}, s{S_F}, 40960")
    k(f"s_mul_i32 s{S_TMP}, s{S_WAVE}, 10240")
    k(f"s_add_u32 s{S_WFO}, s{S_WFO}, s{S_TMP}")
    k(f"s_mov_b32 s{S_WFS}, 1024")


def ffn1(k):
    t = FT
    k(f"v_and_b32 v{t}, 1, v{V_LANE}")
    k(f"v_mul_u32_u24 v{t}, 1280, v{t}")
    k(f"v_lshl_add_u32 v{t}, v{V_SLAB}, 3, v{t}")
    k(f"s_mul_i32 s{S_TMP}, s{S_WAVE}, 320")
    k(f"s_add_u32 s{S_TMP}, s{S_TMP}, {L_XN}")
    k(f"v_add_u32 v{FADR}, s{S_TMP}, v{t}")
    for i in range(5):
        k(f"ds_read_b64 {vr(FX+4*i,2)}, v{FADR} offset:{64*i}")
        k(f"ds_read_b64 {vr(FX+4*i+2,2)}, v{FADR} offset:{64*i+32}")
    k(f"v_lshrrev_b32 v{t}, 2, v{V_L15}")
    k(f"v_lshl_add_u32 v{t}, v{V_SLAB}, 2, v{t}")
    k(f"v_and_b32 v{t+1}, 3, v{V_L15}")
    k(f"v_lshlrev_b32 v{t+2}, 6, v{t}")
    k(f"v_lshl_add_u32 v{t+2}, v{t+1}, 3, v{t+2}")
    k(f"s_mul_i32 s{S_TMP}, s{S_WAVE}, 10240")
    k(f"s_add_u32 s{S_TMP}, s{S_TMP}, {L_WF}")
    k(f"v_add_u32 v{FADR+1}, s{S_TMP}, v{t+2}")
    k(f"v_lshlrev_b32 v{t+2}, 2, v{V_LANE}")
    k(f"s_lshl_b32 s{S_TMP}, s{S_WAVE}, 8")
    k(f"s_add_u32 s{S_TMP}, s{S_TMP}, {L_FRED}")
    k(f"v_add_u32 v{FADR+3}, s{S_TMP}, v{t+2}")
    k(f"v_add_u32 v{FADR+4}, {L_FRED}, v{t+2}")
    k(f"v_lshrrev_b32 v{t+2}, 2, v{V_L15}")
    k(f"v_lshlrev_b32 v{t+2}, 1, v{t+2}")
    k(f"v_lshrrev_b32 v{t+3}, 1, v{V_SLAB}")
    k(f"v_add_u32 v{t+2}, v{t+2}, v{t+3}")
    k(f"v_and_b32 v{t+3}, 1, v{V_SLAB}")
    k(f"v_lshl_add_u32 v{t+2}, v{t+3}, 3, v{t+2}")
    k(f"v_lshlrev_b32 v{FADR+5}, 4, v{t+2}")
    k(f"s_lshl_b32 s{S_TMP+2}, s{S_F}, 8")
    k(f"s_add_u32 s{S_TMP+2}, s{S_TMP+2}, {WS_HO}")
    k(f"s_mov_b32 s{S_M+2}, 0xffff0000")
    k(f"s_mov_b32 s{S_M+3}, 0xffff0000")
    k(f"s_mov_b32 s{S_M+4}, 0")
    k(f"s_mov_b32 s{S_M+5}, -1")
    k("s_waitcnt vmcnt(5)")
    k(f"v_lshlrev_b32 v{t+9}, 4, v{V_LANE}")
    k(f"v_add_u32 v{t+9}, s{S_WFL}, v{t+9}")
    for i in range(10):
        k(f"ds_write_b128 v{t+9}, {vr(BWR+4*i,4)} offset:{1024*i}")
    k("s_waitcnt lgkmcnt(0)")
    k.stamp(9)
    for i in range(5):
        for ct in range(2):
            r = FW1 + (i * 2 + ct) * 4
            k(f"ds_read_b64_tr_b16 {vr(r,2)}, v{FADR+1} offset:{i*2048+32*ct}")
            k(f"ds_read_b64_tr_b16 {vr(r+2,2)}, v{FADR+1} offset:{i*2048+32*ct+1024}")
    k("s_waitcnt lgkmcnt(0)")
    for i in range(5):
        for ct in range(2):
            c = "0" if i == 0 else vr(FD + 4 * ct, 4)
            k(f"v_mfma_f32_16x16x32_bf16 {vr(FD+4*ct,4)}, {vr(FX+4*i,4)}, {vr(FW1+(i*2+ct)*4,4)}, {c}")
    k.nop(8)
    k(f"v_cndmask_b32 v{t}, v{FD}, v{FD+1}, s[{S_M+2}:{S_M+3}]")
    k(f"v_cndmask_b32 v{t+1}, v{FD+4}, v{FD+5}, s[{S_M+2}:{S_M+3}]")
    k(f"v_cndmask_b32 v{t}, v{t}, v{t+1}, s[{S_M+4}:{S_M+5}]")
    k(f"ds_write_b32 v{FADR+3}, v{t}")
    k("s_waitcnt lgkmcnt(0)")
    k("s_barrier")
    sk = k.label("f1")
    k(f"s_cmp_eq_u32 s{S_WAVE}, 0")
    k(f"s_cbranch_scc0 {sk}")
    k(f"ds_read2st64_b32 {vr(t,2)}, v{FADR+4} offset0:0 offset1:1")
    k(f"ds_read2st64_b32 {vr(t+2,2)}, v{FADR+4} offset0:2 offset1:3")
    k("s_waitcnt lgkmcnt(0)")
    k(f"v_add_f32 v{t}, v{t}, v{t+1}")
    k(f"v_add_f32 v{t+2}, v{t+2}, v{t+3}")
    k(f"v_add_f32 v{t}, v{t}, v{t+2}")
    round_bf16(k, t)
    silu(k, t, t + 1)
    k(f"v_cvt_pk_bf16_f32 v{t}, v{t}, v{t}")
    k(f"v_and_b32 v{t}, 0xffff, v{t}")
    k.nop(2)
    k(f"v_mov_b32_dpp v{t+1}, v{t} quad_perm:[1,0,3,2] row_mask:0xf bank_mask:0xf")
    k(f"v_lshl_or_b32 v{t+2}, v{t+1}, 16, v{t}")
    k.nop(2)
    k(f"v_mov_b32_dpp v{t+3}, v{t+2} quad_perm:[2,3,0,1] row_mask:0xf bank_mask:0xf")
    k(f"v_mov_b32 v{t+4}, s{S_T0}")
    k(f"v_mov_b32 v{t+5}, s{S_T1}")
    k(f"s_mov_b32 exec_lo, 0x11111111")
    k(f"s_mov_b32 exec_hi, 0x11111111")
    k(f"buffer_store_dwordx4 {vr(t+2,4)}, v{FADR+5}, {srd(R_WS)}, s{S_TMP+2} offen sc1")
    k(f"s_mov_b64 exec, -1")
    k(f"{sk}:")
    k.stamp(10)


def ffn2(k):
    t = FT
    k(f"v_lshrrev_b32 v{t}, 2, v{V_L15}")
    k(f"v_lshl_add_u32 v{t}, v{V_SLAB}, 2, v{t}")
    k(f"v_and_b32 v{t+1}, 3, v{V_L15}")
    k(f"v_mul_u32_u24 v{t+2}, {W2RS}, v{t}")
    k(f"v_lshl_add_u32 v{t+2}, v{t+1}, 3, v{t+2}")
    k(f"s_mul_i32 s{S_TMP}, s{S_WAVE}, 320")
    k(f"s_add_u32 s{S_TMP}, s{S_TMP}, {L_WF}")
    k(f"v_add_u32 v{FADR+2}, s{S_TMP}, v{t+2}")
    k(f"v_lshrrev_b32 v{t+2}, 5, v{V_LANE}")
    k(f"v_lshlrev_b32 v{t+2}, 10, v{t+2}")
    k(f"v_and_b32 v{t+3}, 31, v{V_LANE}")
    k(f"v_lshl_add_u32 v{FADR+6}, v{t+3}, 4, v{t+2}")
    k(f"s_lshr_b32 s{S_TMP+3}, s{S_F}, 1")
    k(f"s_lshl_b32 s{S_TMP+3}, s{S_TMP+3}, 12")
    k(f"s_and_b32 s{S_TMP+4}, s{S_F}, 1")
    k(f"s_lshl_b32 s{S_TMP+4}, s{S_TMP+4}, 9")
    k(f"s_add_u32 s{S_TMP+3}, s{S_TMP+3}, s{S_TMP+4}")
    k(f"s_add_u32 s{S_TMP+3}, s{S_TMP+3}, {WS_HP}")
    k(f"v_bfe_u32 v{t+2}, v{V_LANE}, 2, 2")
    k(f"v_lshlrev_b32 v{t+2}, 3, v{t+2}")
    k(f"v_bfe_u32 v{t+3}, v{V_LANE}, 4, 1")
    k(f"v_lshl_add_u32 v{t+2}, v{t+3}, 2, v{t+2}")
    k(f"v_and_b32 v{t+3}, 3, v{V_LANE}")
    k(f"v_add_u32 v{t+2}, v{t+2}, v{t+3}")
    k(f"v_lshrrev_b32 v{t+3}, 5, v{V_LANE}")
    k(f"v_lshl_add_u32 v{t+2}, v{t+3}, 5, v{t+2}")
    k(f"v_lshlrev_b32 v{t+2}, 1, v{t+2}")
    k(f"s_lshl_b32 s{S_TMP+4}, s{S_WAVE}, 7")
    k(f"s_add_u32 s{S_TMP+4}, s{S_TMP+4}, {L_FRED}")
    k(f"v_add_u32 v{FADR+3}, s{S_TMP+4}, v{t+2}")
    k(f"v_and_b32 v{t+2}, 1, v{V_LANE}")
    k(f"v_lshlrev_b32 v{t+2}, 6, v{t+2}")
    k(f"v_lshl_add_u32 v{t+2}, v{V_SLAB}, 4, v{t+2}")
    k(f"v_add_u32 v{FADR+4}, s{S_TMP+4}, v{t+2}")
    k(f"v_lshlrev_b32 v{FADR+7}, 3, v{V_LANE}")
    k(f"s_mul_i32 s{S_TMP+2}, s{S_F}, 5120")
    k(f"s_mul_i32 s{S_TMP+1}, s{S_WAVE}, 1280")
    k(f"s_add_u32 s{S_TMP+2}, s{S_TMP+2}, s{S_TMP+1}")
    k(f"s_add_u32 s{S_TMP+2}, s{S_TMP+2}, {WS_FP}")
    k(f"s_mov_b32 s{S_M+2}, 0xffff0000")
    k(f"s_mov_b32 s{S_M+3}, 0xffff0000")
    k(f"s_mov_b32 s{S_M+4}, 0")
    k(f"s_mov_b32 s{S_M+5}, -1")
    H = FH + 2
    loads = [f"buffer_load_dwordx4 {vr(H,4)}, v{FADR+6}, {srd(R_WS)}, s{S_TMP+3} offen sc1",
             f"buffer_load_dwordx4 {vr(H+4,4)}, v{FADR+6}, {srd(R_WS)}, s{S_TMP+3} offen offset:2048 sc1"]
    for l in loads:
        k(l)
    k(f"s_mul_i32 s{S_TMP+4}, s{S_WAVE}, {8*W2RS}")
    k(f"s_add_u32 s{S_TMP+4}, s{S_TMP+4}, {L_WF}")
    k(f"s_movk_i32 s{S_TMP+1}, 205")
    for i in range(10):
        k(f"v_add_u32 v{t+8}, {64*i}, v{V_LANE}")
        k(f"v_mul_u32_u24 v{t+9}, s{S_TMP+1}, v{t+8}")
        k(f"v_lshrrev_b32 v{t+9}, 14, v{t+9}")
        k(f"v_lshlrev_b32 v{t+9}, 5, v{t+9}")
        k(f"v_lshl_add_u32 v{t+9}, v{t+8}, 4, v{t+9}")
        k(f"v_add_u32 v{FX+i}, s{S_TMP+4}, v{t+9}")
    k(f"s_waitcnt vmcnt({5 + 10 - nwf_early() + 2})")
    for i in range(nwf_early()):
        k(f"ds_write_b128 v{FX+i}, {vr(BWR+4*i,4)}")
    k("s_waitcnt vmcnt(2)")
    for i in range(nwf_early(), 10):
        k(f"ds_write_b128 v{FX+i}, {vr(BWR+4*i,4)}")
    gather_loop(k, "ho", loads, lambda kk: tag_check(kk, [(H+2, H+3), (H+6, H+7)]), 10, preissued=True)
    k(f"v_add_f32 v{H}, v{H}, v{H+4}")
    k(f"v_add_f32 v{H+1}, v{H+1}, v{H+5}")
    k.nop(2)
    k(f"v_permlane32_swap_b32 v{H}, v{H+1}")
    k.nop(1)
    k(f"v_add_f32 v{H}, v{H}, v{H+1}")
    round_bf16(k, H)
    silu(k, H, H + 1)
    k(f"v_cvt_pk_bf16_f32 v{H}, v{H}, v{H}")
    k(f"ds_write_b16 v{FADR+3}, v{H}")
    k("s_waitcnt lgkmcnt(0)")
    k("s_barrier")
    k.stamp(9)
    k(f"ds_read_b128 {vr(H,4)}, v{FADR+4}")
    for ct in range(10):
        r = FW2 + 4 * ct
        k(f"ds_read_b64_tr_b16 {vr(r,2)}, v{FADR+2} offset:{32*ct}")
        k(f"ds_read_b64_tr_b16 {vr(r+2,2)}, v{FADR+2} offset:{32*ct+16*W2RS}")
    k("s_waitcnt lgkmcnt(0)")
    for ct in range(10):
        k(f"v_mfma_f32_16x16x32_bf16 {vr(FD+4*ct,4)}, {vr(H,4)}, {vr(FW2+4*ct,4)}, 0")
    k.nop(8)
    for q in range(3):
        for bb in range(2):
            a0, a1 = FD + 16 * q + bb, FD + 16 * q + 4 + bb
            k(f"v_cndmask_b32 v{t+2*q+bb}, v{a0}, v{a1}, s[{S_M+2}:{S_M+3}]")
            if q < 2:
                a2, a3 = FD + 16 * q + 8 + bb, FD + 16 * q + 12 + bb
                k(f"v_cndmask_b32 v{t+8}, v{a2}, v{a3}, s[{S_M+2}:{S_M+3}]")
                k(f"v_cndmask_b32 v{t+2*q+bb}, v{t+2*q+bb}, v{t+8}, s[{S_M+4}:{S_M+5}]")
    k(f"buffer_store_dwordx2 {vr(t,2)}, v{FADR+7}, {srd(R_WS)}, s{S_TMP+2} offen sc1")
    k(f"buffer_store_dwordx2 {vr(t+2,2)}, v{FADR+7}, {srd(R_WS)}, s{S_TMP+2} offen offset:512 sc1")
    k(f"s_mov_b32 exec_hi, 0")
    k(f"buffer_store_dwordx2 {vr(t+4,2)}, v{FADR+7}, {srd(R_WS)}, s{S_TMP+2} offen offset:1024 sc1")
    k(f"s_mov_b64 exec, -1")
    k.stamp(11)


ZG = 10
ZT = 44


def tree_reduce4(k, g, t):
    k.nop(2)
    k(f"v_permlane32_swap_b32 v{g}, v{g+2}")
    k(f"v_permlane32_swap_b32 v{g+1}, v{g+3}")
    k.nop(1)
    k(f"v_add_f32 v{g}, v{g}, v{g+2}")
    k(f"v_add_f32 v{g+1}, v{g+1}, v{g+3}")
    k.nop(2)
    k(f"v_permlane16_swap_b32 v{g}, v{g+1}")
    k.nop(1)
    k(f"v_add_f32 v{t}, v{g}, v{g+1}")
    k.nop(2)
    k(f"v_add_f32_dpp v{t}, v{t}, v{t} row_ror:8 row_mask:0xf bank_mask:0xf")


def final(k):
    t = ZT
    k(f"s_lshl_b32 s{S_TMP}, s{S_Z}, 1")
    k(f"s_and_b32 s{S_TMP+1}, s{S_WAVE}, 1")
    k(f"s_add_u32 s{S_TMP}, s{S_TMP}, s{S_TMP+1}")
    k(f"s_lshl_b32 s{S_TMP+1}, s{S_TMP+1}, 8")
    k(f"s_add_u32 s{S_TMP+1}, s{S_TMP+1}, {L_FRED}")
    k(f"v_lshlrev_b32 v{t+11}, 2, v{V_LANE}")
    k(f"v_add_u32 v{t+11}, s{S_TMP+1}, v{t+11}")
    k(f"v_and_b32 v{t}, 7, v{V_LANE}")
    k(f"v_lshrrev_b32 v{t+1}, 1, v{V_SLAB}")
    k(f"v_lshl_add_u32 v{t}, v{t}, 1, v{t+1}")
    k(f"v_and_b32 v{t+1}, 1, v{V_SLAB}")
    k(f"v_mul_u32_u24 v{t+1}, 640, v{t+1}")
    k(f"v_add_u32 v{t}, v{t}, v{t+1}")
    k(f"v_lshlrev_b32 v{t}, 1, v{t}")
    k(f"s_lshl_b32 s{S_TMP+1}, s{S_TMP}, 5")
    k(f"buffer_load_ushort v{t+2}, v{t}, {srd(R_X)}, s{S_TMP+1} offen")
    k(f"v_and_b32 v{t+3}, 7, v{V_LANE}")
    k(f"v_lshlrev_b32 v{t+3}, 2, v{t+3}")
    k(f"v_and_b32 v{t+4}, 1, v{V_SLAB}")
    k(f"v_mul_u32_u24 v{t+4}, 1280, v{t+4}")
    k(f"v_add_u32 v{t+3}, v{t+3}, v{t+4}")
    if K.opt.get("outtouch", "1") == "1":
        k(f"buffer_load_dword v252, v{t+3}, {srd(R_OUT)}, s{S_TMP+1} offen")
    k(f"v_lshrrev_b32 v{t+4}, 3, v{V_LANE}")
    k(f"v_mul_u32_u24 v{t+4}, 5120, v{t+4}")
    k(f"v_and_b32 v{t+5}, 7, v{V_LANE}")
    k(f"v_lshl_add_u32 v{t+4}, v{t+5}, 4, v{t+4}")
    k(f"s_lshl_b32 s{S_TMP+2}, s{S_TMP}, 7")
    k(f"v_lshlrev_b32 v{t+5}, 3, v{V_LANE}")
    loads = []
    for i in range(2):
        k(f"s_mov_b32 s{4+i}, {WS_PC + i*512}")
        loads.append(f"buffer_load_dwordx2 {vr(ZG+2*i,2)}, v{t+5}, {srd(R_WS)}, s{4+i} offen sc1")
    gather_loop(k, "zf", loads, lambda kk: tag_check(kk, [(ZG+2*i, ZG+2*i+1) for i in range(2)]))
    k(f"s_cmp_ge_u32 s{S_WAVE}, 2")
    k(f"s_cbranch_scc1 L_Z_s")
    k(f"v_cmp_gt_u32 vcc, {NF}, v{V_LANE}")
    k.nop(2)
    k(f"v_cndmask_b32 v{t+5}, 0, v{V_LANE}, vcc")
    k(f"v_bfe_u32 v{t+6}, v{t+5}, 5, 1")
    k(f"v_lshlrev_b32 v{t+6}, 13, v{t+6}")
    k(f"v_and_b32 v{t+5}, 31, v{t+5}")
    k(f"v_lshl_add_u32 v{t+5}, v{t+5}, 3, v{t+6}")
    k(f"s_mov_b32 s4, {WS_ST + 256}")
    gather_check_loop(k, "zs", [f"buffer_load_dwordx2 {vr(ZG,2)}, v{t+5}, {srd(R_WS)}, s4 offen sc1"], [ZG, ZG + 1])
    k(f"s_add_u32 s{S_TMP+3}, s{S_TMP+2}, {WS_FP}")
    k(f"v_add_u32 v{t+5}, s{S_TMP+3}, v{t+4}")
    k(f"v_add_u32 v{t+6}, {48*5120}, v{t+5}")
    k(f"v_cmp_gt_u32 vcc, 48, v{V_LANE}")
    k(f"s_mov_b64 s[{S_M+2}:{S_M+3}], vcc")
    k.nop(2)
    k(f"v_cndmask_b32 v{t+6}, v{t+5}, v{t+6}, vcc")
    loads = []
    for i in range(6):
        k(f"s_mov_b32 s{4+i}, {i*8*5120}")
        loads.append(f"buffer_load_dwordx4 {vr(ZG+4*i,4)}, v{t+5}, {srd(R_WS)}, s{4+i} offen sc1")
    last = f"buffer_load_dwordx4 {vr(ZG+24,4)}, v{t+6}, {srd(R_WS)}, 0 offen sc1"
    gather_check_loop(k, "fp", loads + [last], list(range(ZG, ZG + 28)), 14)
    for c in range(4):
        k(f"v_cndmask_b32 v{ZG+24+c}, 0, v{ZG+24+c}, s[{S_M+2}:{S_M+3}]")
    for c in range(4):
        k(f"v_add_f32 v{ZG+c}, v{ZG+c}, v{ZG+4+c}")
        k(f"v_add_f32 v{ZG+8+c}, v{ZG+8+c}, v{ZG+12+c}")
        k(f"v_add_f32 v{ZG+16+c}, v{ZG+16+c}, v{ZG+20+c}")
    for c in range(4):
        k(f"v_add_f32 v{ZG+c}, v{ZG+c}, v{ZG+8+c}")
        k(f"v_add_f32 v{ZG+16+c}, v{ZG+16+c}, v{ZG+24+c}")
    for c in range(4):
        k(f"v_add_f32 v{ZG+c}, v{ZG+c}, v{ZG+16+c}")
    tree_reduce4(k, ZG, t + 8)
    round_bf16(k, t + 8)
    silu(k, t + 8, t + 9)
    round_bf16(k, t + 8)
    k(f"ds_write_b32 v{t+11}, v{t+8}")
    k("s_waitcnt lgkmcnt(0)")
    k("s_barrier")
    k("s_branch L_done")
    k("L_Z_s:")
    k(f"v_lshlrev_b32 v{t+2}, 16, v{t+2}")
    k(f"s_add_u32 s{S_TMP+3}, s{S_TMP+2}, {WS_SP}")
    k(f"v_add_u32 v{t+5}, s{S_TMP+3}, v{t+4}")
    loads = []
    for i in range(4):
        k(f"s_mov_b32 s{4+i}, {i*8*5120}")
        loads.append(f"buffer_load_dwordx4 {vr(ZG+4*i,4)}, v{t+5}, {srd(R_WS)}, s{4+i} offen sc1")
    gather_check_loop(k, "sp", loads, list(range(ZG, ZG + 16)), 15)
    skip = k.label("ep")
    k(f"s_cmp_eq_u32 s{S_TMP}, 0")
    k(f"s_cbranch_scc0 {skip}")
    k(f"v_mov_b32 v{t}, 0")
    k(f"v_mov_b32 v{t+1}, s{S_T0}")
    k(f"s_mov_b64 exec, 1")
    k(f"buffer_store_dword v{t+1}, v{t}, {srd(R_WS)}, 0 offen offset:{WS_EPOCH}")
    k(f"s_mov_b64 exec, -1")
    k(f"{skip}:")
    for c in range(4):
        k(f"v_add_f32 v{ZG+c}, v{ZG+c}, v{ZG+4+c}")
        k(f"v_add_f32 v{ZG+8+c}, v{ZG+8+c}, v{ZG+12+c}")
    for c in range(4):
        k(f"v_add_f32 v{ZG+c}, v{ZG+c}, v{ZG+8+c}")
    tree_reduce4(k, ZG, t + 9)
    round_bf16(k, t + 9)
    k("s_barrier")
    k(f"ds_read_b32 v{t+8}, v{t+11}")
    k("s_waitcnt lgkmcnt(0)")
    k(f"v_mul_f32 v{t+9}, v{t+9}, v{t+8}")
    round_bf16(k, t + 9)
    k(f"v_add_f32 v{t+9}, v{t+9}, v{t+2}")
    k(f"v_cvt_pk_bf16_f32 v{t+9}, v{t+9}, v{t+9}")
    k(f"v_mov_b32 v{t+10}, v{t+9}")
    k.nop(2)
    k(f"v_permlane32_swap_b32 v{t+9}, v{t+10}")
    k.nop(1)
    k(f"v_and_b32 v{t+9}, 0xffff, v{t+9}")
    k(f"v_lshl_or_b32 v{t+9}, v{t+10}, 16, v{t+9}")
    k(f"s_mov_b32 exec_lo, 0x00ff00ff")
    k(f"s_mov_b32 exec_hi, 0")
    k(f"s_lshl_b32 s{S_TMP+1}, s{S_TMP}, 5")
    k(f"buffer_store_dword v{t+9}, v{t+3}, {srd(R_OUT)}, s{S_TMP+1} offen")
    k(f"s_mov_b64 exec, -1")
    k.stamp(16)
    if K.opt.get("diag"):
        sk = k.label("dg")
        k(f"s_cmp_eq_u32 s{S_TMP}, 0")
        k(f"s_cbranch_scc0 {sk}")
        k(f"v_mov_b32 v{t}, 0")
        k(f"buffer_load_dword v{t+1}, v{t}, s[92:95], 0 offen sc1")
        k("s_waitcnt vmcnt(0)")
        k(f"v_readfirstlane_b32 s96, v{t+1}")
        k("s_memrealtime s[98:99]")
        k("s_waitcnt lgkmcnt(0)")
        k("s_not_b32 s96, s96")
        k("s_sub_u32 s97, s98, s96")
        mode = K.opt["diag"]
        if mode == "k0":
            k("s_mov_b32 s97, 0")
        elif mode == "k1":
            pass
        elif mode == "t1000":
            k("s_mov_b32 s97, 1000")
        if mode.startswith("cyc"):
            n = int(mode[3:])
            k(f"s_mov_b32 s97, {n}")
            lp = k.label("cy")
            k(f"{lp}:")
            k("s_nop 15")
            k("s_nop 15")
            k("s_sub_u32 s97, s97, 1")
            k("s_cmp_lg_u32 s97, 0")
            k(f"s_cbranch_scc1 {lp}")
        else:
            k("s_min_u32 s97, s97, 20000")
            k("s_add_u32 s97, s97, s98")
            lp = k.label("sp")
            k(f"{lp}:")
            k("s_memrealtime s[98:99]")
            k("s_waitcnt lgkmcnt(0)")
            k("s_sub_u32 s96, s97, s98")
            k("s_cmp_gt_i32 s96, 0")
            k(f"s_cbranch_scc1 {lp}")
        k(f"{sk}:")


def dump_stamps(k):
    if not k.stamps:
        return
    k("s_waitcnt vmcnt(0) lgkmcnt(0)")
    k.stamp(19)
    k(f"s_lshl_b32 s{S_TMP}, s2, 2")
    k(f"s_add_u32 s{S_TMP}, s{S_TMP}, s{S_WAVE}")
    k(f"s_lshl_b32 s{S_TMP}, s{S_TMP}, 7")
    k(f"s_add_u32 s{S_TMP}, s{S_TMP}, {WS_STAMP}")
    for i in range(20):
        k(f"v_mov_b32 v{10+i}, s{S_STAMP+i}")
    k(f"s_getreg_b32 s{S_TMP+1}, hwreg(HW_REG_XCC_ID)")
    k(f"v_mov_b32 v30, s{S_TMP+1}")
    k(f"v_mov_b32 v31, s{S_CNT}")
    k(f"v_mov_b32 v4, 0")
    k(f"s_mov_b64 exec, 1")
    for i in range(6):
        k(f"buffer_store_dwordx4 {vr(10+4*i,4)}, v4, {srd(R_WS)}, s{S_TMP} offen offset:{16*i}")
    k(f"s_mov_b64 exec, -1")


def build(stamps=False):
    k = K(stamps)
    hdr = open("recurrent_scan__compressed_kv_cla__dense_activation_silu__decode.s.ref").read()
    comments = [l for l in hdr.split("\n") if l.startswith(";") and "@launch" not in l and "Override" not in l and "grid=ceil" not in l]
    out = "\n".join(comments) + "\n"
    out += f"; @launch grid=(256,1,1) block=(256,1,1) lds={LDS_BYTES}\n"
    out += f""".amdgcn_target "amdgcn-amd-amdhsa--gfx950"
.text
.globl {NAME}
.p2align 8
.type {NAME},@function
{NAME}:
"""
    if stamps:
        for i in range(20):
            k(f"s_mov_b32 s{S_STAMP+i}, 0")
    if K.opt.get("diag"):
        k("s_memrealtime s[100:101]")
    prologue(k)
    if K.opt.get("diag"):
        k.srd(92, S_DBG, 256)
        k("s_cmp_lt_u32 s2, 8")
        k("s_cbranch_scc0 L_nodiag")
        k("s_not_b32 s100, s100")
        k("v_mov_b32 v8, s100")
        k("v_mov_b32 v9, 0")
        k("s_mov_b64 exec, 1")
        k("buffer_atomic_umax v8, v9, s[92:95], 0 offen")
        k("s_mov_b64 exec, -1")
        k("L_nodiag:")
    if K.opt.get("bdirect"):
        k(f"s_cmp_ge_u32 s{S_J}, 4")
        k(f"s_cbranch_scc0 L_done")
        k(f"s_mov_b32 s{S_T0}, 0")
        k(f"s_mov_b32 s{S_T1}, 0")
        k(f"v_mov_b32 v{VE}, 0")
        k("s_branch L_B")
    if K.opt.get("pnone"):
        k(f"s_cmp_lt_u32 s{S_J}, 4")
        k(f"s_cbranch_scc1 L_done")
    k(f"s_cmp_eq_u32 s{S_WAVE}, 0")
    k(f"s_cbranch_scc0 L_w123")
    stage1_issue(k)
    k("s_barrier")
    k("s_branch L_w0")
    k("L_w123:")
    k(f"v_mov_b32 v{V_T}, 0")
    k(f"buffer_load_dword v{VE}, v{V_T}, {srd(R_WS)}, 0 offen offset:{WS_EPOCH} sc1")
    if K.opt.get("tlb", "1") == "1":
        sk = k.label("tlb")
        k(f"s_cmp_eq_u32 s{S_WAVE}, 2")
        k(f"s_cbranch_scc0 {sk}")
        k(f"v_lshlrev_b32 v{V_T+1}, 20, v{V_LANE}")
        for ptr, size in ((S_CKV, 2*4096*512*2), (S_WUV, 512*4096*2), (S_WO, 4096*640*2), (S_W1, 640*1728*2), (S_W2, 1728*640*2)):
            k.srd(R_B, ptr, size)
            k(f"buffer_load_dword v252, v{V_T+1}, {srd(R_B)}, 0 offen")
        k(f"{sk}:")
    k(f"s_cmp_ge_u32 s{S_J}, 4")
    k(f"s_cbranch_scc1 L_Bw123")
    k(f"v_mov_b32 v{VPUB}, 0")
    for i in range(4):
        k(f"v_mov_b32 v{VD1+4+i}, 0")
    k(f"s_mov_b32 s{S_PUB}, 0x7f000000")
    k.srd(R_A, S_WUK, 512 * 4096 * 2)
    skc = k.label("pcl")
    k(f"s_cmp_eq_u32 s{S_WAVE}, 3")
    k(f"s_cbranch_scc0 {skc}")
    clears_P(k)
    k(f"{skc}:")
    k("s_barrier")
    wuk_issue(k)
    if K.opt.get("wukstamp"):
        k.stamp(2)
    k("s_waitcnt vmcnt(11)")
    epoch_tags(k, VE)
    skp = k.label("pcf")
    k(f"s_cmp_eq_u32 s{S_WAVE}, 3")
    k(f"s_cbranch_scc0 {skp}")
    tag_store(k, WS_PC, 3, PT + 2, jreg=S_J)
    k(f"{skp}:")
    k("s_branch L_P_join")
    k("L_Bw123:")
    b_roles(k)
    k.srd(R_A, S_CKV, 2 * 4096 * 512 * 2)
    ckv_setup(k)
    k("s_barrier")
    if not K.opt.get("noclr"):
        clears_B(k)
    ne = early_rows()
    if ne:
        k(f"s_cmp_ge_u32 s{S_WAVE}, 2")
        k(f"s_cbranch_scc0 L_Bw1")
        ckv_rows(k, 0, ne)
        k("s_barrier")
        k("s_branch L_B_rowsE")
        k("L_Bw1:")
    k("s_barrier")
    k("s_branch L_B_rows0")
    k("L_w0:")
    stage1_selectors(k)
    layernorm(k, 1 + 20)
    k(f"s_waitcnt vmcnt(20)")
    epoch_tags(k, VE)
    stage1_publish_addr(k)
    k.stamp(2)
    stage1_mfma(k, 0)
    skb = k.label("nb")
    k(f"s_cmp_ge_u32 s{S_J}, 4")
    k(f"s_cbranch_scc0 {skb}")
    k("s_barrier")
    k(f"{skb}:")
    stage1_publish(k, 0)
    k(f"s_cmp_ge_u32 s{S_J}, 4")
    k(f"s_cbranch_scc1 L_B")
    k("L_P_join:")
    k.srd(R_B, S_WUV, 512 * 4096 * 2)
    k.srd(R_C, S_WO, 4096 * 640 * 2)
    stage2(k)
    if K.opt.get("pexit"):
        k("s_branch L_done")
    k(f"s_cmp_lt_u32 s{S_H}, 27")
    k(f"s_cbranch_scc0 L_P_nof1")
    w1p_issue(k)
    k("L_P_nof1:")
    p_weights_issue(k)
    wo_issue(k)
    stage4_setup(k)
    k(f"s_cmp_lt_u32 s{S_H}, 27")
    k(f"s_cbranch_scc0 L_P_nof2")
    ffn1p(k)
    k("s_waitcnt vmcnt(1)")
    k("s_branch L_P_wl")
    k("L_P_nof2:")
    k("s_waitcnt vmcnt(0)")
    k("L_P_wl:")
    k("s_barrier")
    k.stamp(6)
    p_weights_preread(k)
    wo_preread(k)
    stage4(k)
    stage5(k)
    k("s_branch L_done")
    k("L_B:")
    b_roles(k)
    k.srd(R_A, S_CKV, 2 * 4096 * 512 * 2)
    ckv_setup(k)
    k("L_B_rows0:")
    k.stamp(12)
    ckv_rows(k, 0, early_rows())
    k("L_B_rowsE:")
    ckv_rows(k, early_rows(), 32)
    if K.opt.get("trig", "0") == "1":
        tag_store(k, WS_TR, 6, BT + 2, only_wave=3)
    k.stamp(13)
    if K.opt.get("bdirect"):
        k("s_waitcnt vmcnt(0)")
        k.stamp(4)
        k("s_branch L_done")
    k.srd(R_OUT, S_OUT, 2560)
    wf_setup(k)
    attention_setup(k)
    attention(k)
    k("L_B_r2:")
    k(f"s_cmp_eq_u32 s{S_ROLE}, 2")
    k(f"s_cbranch_scc0 L_B_r3")
    ffn2(k)
    k("s_branch L_done")
    k("L_B_r3:")
    k(f"s_cmp_eq_u32 s{S_ROLE}, 3")
    k(f"s_cbranch_scc0 L_done")
    final(k)
    k("L_done:")
    dump_stamps(k)
    k("L_exit:")
    k("s_endpgm")
    out += k.text()
    out += f""".section .rodata,"a"
.p2align 6
.amdhsa_kernel {NAME}
  .amdhsa_next_free_vgpr 512
  .amdhsa_next_free_sgpr 102
  .amdhsa_accum_offset 256
  .amdhsa_group_segment_fixed_size 0
  .amdhsa_kernarg_size 96
  .amdhsa_user_sgpr_count 2
  .amdhsa_user_sgpr_kernarg_segment_ptr 1
  .amdhsa_system_sgpr_workgroup_id_x 1
.end_amdhsa_kernel
"""
    return out


if __name__ == "__main__":
    for a in sys.argv[1:]:
        if a.startswith("--spin="):
            SPIN_LIMIT = int(a[7:])
    stamps = "--stamps" in sys.argv
    for a in sys.argv[1:]:
        if a.startswith("--") and "=" in a:
            kk, vv = a[2:].split("=")
            K.opt[kk] = vv
    outp = [a for a in sys.argv[1:] if not a.startswith("--")]
    open(outp[0] if outp else "k.s", "w").write(build(stamps))
```

```python
import sys

NAME = "recurrent_scan__compressed_kv_cla__dense_activation_silu__decode_kernel"

WS_EPOCH = 0
WS_QP = 0x1000
WS_QA = 0x41000
WS_ST = 0x51000
WS_CP = 0x55000
WS_SP = 0x65000
WS_FP = 0x8D000
WS_AC = 0xE0000
WS_PC = 0xE2000
WS_HO = 0xE4000
WS_TR = 0xF0000
WS_CF = 0xE8000
WS_QF = 0x340000
WS_HP = 0x300000
WS_AO = 0x100000
WS_SIZE = 0x380000
WS_STAMP = 0x380000
NF = 54
S_JP = 10
S_F = 11
S_Z = 12
S_ROLE = 13

L_WUV = 0
L_WO = 32768
L_AOB = 107520
L_RED = 123904
L_CTX = 129024
L_STX = 129536
L_W1P = 130560
L_XNP = 95744
L_CKV = 0
RS = 1056
L_QB = 128 * RS
L_XN = L_QB + 16 * RS
L_MX = L_XN + 2560
L_PB = L_MX + 1024
L_END = L_PB + 4096
L_WF = 0
L_WO5 = 66560
L_FRED = 81920
L_RED5 = 123904
LDS_BYTES = 163840

SPIN_LIMIT = 100000
FLAG_ROW = 28
NWF_EARLY = 6
W2RS = 1312
QWAIT = [15 - i if i <= 8 else min(15, 15 - i) for i in range(16)]

S_X, S_CKV, S_WQ, S_WUK, S_WUV, S_WO, S_W1, S_W2, S_OUT, S_DBG, S_WSP = 4, 6, 8, 10, 12, 14, 18, 20, 22, 24, 26
R_X, R_WQ, R_WS, R_A, R_B, R_C, R_OUT = 28, 32, 36, 40, 44, 48, 52
S_WAVE, S_H, S_J, S_T0, S_T1 = 56, 57, 58, 59, 60
S_TMP = 61
S_PUB = 69
S_OFF = 70
S_CNT = 71
S_M = 72
S_STAMP = 80


CNT_SLOT = {'qp': 13, 'tr': 14, 'st': 15, 'ao': 16, 'qa': 17, 'cp': 18, 'fl': 18}


class K:
    opt = {}
    def __init__(self, stamps=False):
        self.lines = []
        self.nl = 0
        self.stamps = stamps
        self.nstamp = 0

    def __call__(self, s):
        for l in s.split("\n"):
            self.lines.append("    " + l.strip() if l.strip() and not l.strip().endswith(":") else l.strip())

    def label(self, stem):
        self.nl += 1
        return f"L_{stem}_{self.nl}"

    def nop(self, n):
        while n > 0:
            k = min(n, 16)
            self(f"s_nop {k-1}")
            n -= k

    def stamp(self, idx):
        if self.stamps:
            self(f"s_memrealtime s[100:101]")
            self("s_waitcnt lgkmcnt(0)")
            self(f"s_mov_b32 s{S_STAMP+idx}, s100")

    def srd(self, d, base, nbytes):
        self(f"s_mov_b32 s{d}, s{base}")
        self(f"s_and_b32 s{d+1}, s{base+1}, 0xffff")
        self(f"s_mov_b32 s{d+2}, {nbytes}")
        self(f"s_mov_b32 s{d+3}, 0x00020000")

    def text(self):
        return "\n".join(self.lines) + "\n"


def srd(d):
    return f"s[{d}:{d+3}]"


def vr(a, n=1):
    return f"v{a}" if n == 1 else f"v[{a}:{a+n-1}]"


def ar(a, n=1):
    return f"a{a}" if n == 1 else f"a[{a}:{a+n-1}]"


V_TID, V_LANE, V_L15, V_SLAB = 0, 1, 2, 3
V_T = 4
V_ONES = 242
V_NEG1 = 244


def spin_begin(k, cnt=S_CNT):
    k(f"s_mov_b32 s{cnt}, 0")


def spin_retry(k, top, cnt=S_CNT):
    k(f"s_add_u32 s{cnt}, s{cnt}, 1")
    k(f"s_cmp_lt_u32 s{cnt}, {SPIN_LIMIT}")
    k(f"s_cbranch_scc1 {top}")


NCH = 28


def prologue(k):
    k(f"s_cmp_ge_u32 s2, 256")
    k(f"s_cbranch_scc1 L_exit")
    if K.opt.get("perm"):
        k("s_and_b32 s3, s2, 7")
        k("s_lshl_b32 s3, s3, 5")
        k("s_lshr_b32 s2, s2, 3")
        k("s_or_b32 s2, s2, s3")
    k(f"s_load_dwordx16 s[4:19], s[0:1], 0")
    k(f"s_load_dwordx8 s[20:27], s[0:1], 64")
    k(f"v_lshrrev_b32 v{V_T}, 6, v0")
    k(f"v_and_b32 v{V_LANE}, 63, v0")
    k(f"v_readfirstlane_b32 s{S_WAVE}, v{V_T}")
    if K.opt.get("pf", "1") == "1":
        k(f"s_getpc_b64 s[{S_TMP+1}:{S_TMP+2}]")
        k(f"L_pc:")
        k(f"s_lshr_b32 s{S_TMP}, s2, 3")
        k(f"s_lshl_b32 s{S_TMP}, s{S_TMP}, 2")
        k(f"s_add_u32 s{S_TMP}, s{S_TMP}, s{S_WAVE}")
        k(f"s_cmp_lt_u32 s{S_TMP}, (L_exit-L_pc+1023)/1024")
        k(f"s_cbranch_scc0 L_nopf")
        k(f"s_lshl_b32 s{S_TMP}, s{S_TMP}, 10")
        k(f"s_min_u32 s{S_TMP}, s{S_TMP}, L_exit-L_pc-1024")
        k(f"v_lshl_add_u32 v{V_T+1}, v{V_LANE}, 4, s{S_TMP}")
        k(f"global_load_dwordx4 v[248:251], v{V_T+1}, s[{S_TMP+1}:{S_TMP+2}]")
        k(f"L_nopf:")
    k(f"v_and_b32 v{V_L15}, 15, v0")
    k(f"v_bfe_u32 v{V_SLAB}, v0, 4, 2")
    k(f"s_and_b32 s{S_H}, s2, 31")
    k(f"s_lshr_b32 s{S_J}, s2, 5")
    for i in range(4):
        k(f"v_mov_b32 v{V_NEG1+i}, -1")
    k.stamp(0)
    k(f"s_waitcnt lgkmcnt(0)")
    k.srd(R_X, S_X, 2560)
    k.srd(R_WS, S_WSP, WS_SIZE + (0x100000 if k.stamps else 0))
    k.srd(R_WQ, S_WQ, 640 * 4096 * 2)


VX = 10
VW = 20
VA = 100
VSEL = 180
VD1 = 188
VXR = 192
VE = 202
VS1 = 204
VWUK = 210


def stage1_issue(k):
    k(f"v_lshrrev_b32 v{V_T}, 5, v{V_LANE}")
    k(f"v_and_b32 v{V_T+1}, 31, v{V_LANE}")
    k(f"v_mul_u32_u24 v{V_T}, 1280, v{V_T}")
    k(f"v_mul_u32_u24 v{V_T+1}, 40, v{V_T+1}")
    k(f"v_add_u32 v{V_T}, v{V_T}, v{V_T+1}")
    k(f"v_mov_b32 v{V_T+2}, 0")
    k(f"buffer_load_dwordx4 {vr(VX,4)}, v{V_T}, {srd(R_X)}, 0 offen")
    k(f"buffer_load_dwordx4 {vr(VX+4,4)}, v{V_T}, {srd(R_X)}, 0 offen offset:16")
    k(f"buffer_load_dwordx2 {vr(VX+8,2)}, v{V_T}, {srd(R_X)}, 0 offen offset:32")
    k(f"buffer_load_dword v{VE}, v{V_T+2}, {srd(R_WS)}, 0 offen offset:{WS_EPOCH} sc1")
    k(f"s_mul_i32 s{S_TMP}, s{S_J}, {80*8192}")
    k(f"s_lshl_b32 s{S_TMP+1}, s{S_H}, 8")
    k(f"s_add_u32 s{S_TMP}, s{S_TMP}, s{S_TMP+1}")
    k(f"v_mul_u32_u24 v{V_T+3}, {20*8192}, v{V_SLAB}")
    k(f"v_lshl_add_u32 v{V_T+3}, v{V_L15}, 4, v{V_T+3}")
    k(f"v_add_u32 v{V_T+3}, s{S_TMP}, v{V_T+3}")
    k(f"s_mov_b32 s{S_OFF}, 0")
    k(f"s_movk_i32 s{S_TMP}, 0x2000")
    for t in range(20):
        k(f"buffer_load_dwordx4 {vr(VW+4*t,4)}, v{V_T+3}, {srd(R_WQ)}, s{S_OFF} offen{nt('q')}")
        if t < 19:
            k(f"s_add_u32 s{S_OFF}, s{S_OFF}, s{S_TMP}")


def epoch_tags(k, ve):
    k(f"v_readfirstlane_b32 s{S_T0}, v{ve}")
    k.nop(4)
    k(f"s_add_u32 s{S_T0}, s{S_T0}, 1")
    k(f"s_mul_i32 s{S_T1}, s{S_T0}, 0x9e3779b1")
    k(f"s_xor_b32 s{S_T1}, s{S_T1}, 0x5bd1e995")


def stage1_selectors(k):
    t = VS1
    k(f"v_and_b32 v{t}, 1, v{V_LANE}")
    k(f"v_bfe_u32 v{t+1}, v{V_LANE}, 1, 2")
    k(f"v_cmp_eq_u32 vcc, 1, v{t}")
    k(f"v_mov_b32 v{t+2}, 0x0c0c0504")
    k(f"v_mov_b32 v{t+3}, 0x05040c0c")
    k(f"v_cndmask_b32 v{t+4}, v{t+2}, v{t+3}, vcc")
    k(f"v_mov_b32 v{t+2}, 0x0c0c0706")
    k(f"v_mov_b32 v{t+3}, 0x07060c0c")
    k(f"v_cndmask_b32 v{t+5}, v{t+2}, v{t+3}, vcc")
    k(f"v_mov_b32 v{t+2}, 0x0c0c0c0c")
    for r in range(4):
        k(f"v_cmp_eq_u32 vcc, {r}, v{t+1}")
        k.nop(2)
        k(f"v_cndmask_b32 v{VSEL+2*r}, v{t+2}, v{t+4}, vcc")
        k(f"v_cndmask_b32 v{VSEL+2*r+1}, v{t+2}, v{t+5}, vcc")


def layernorm(k, nafter):
    t = VS1
    k(f"s_mov_b32 s{S_TMP}, 0x3f803f80")
    k(f"v_mov_b32 v{t}, 0")
    k(f"v_mov_b32 v{t+1}, 0")
    k(f"v_mov_b32 v{t+2}, 0")
    k(f"v_mov_b32 v{t+3}, 0")
    k(f"s_waitcnt vmcnt({nafter})")
    k.stamp(1)
    for i in range(10):
        a = t + (i & 1)
        q = t + 2 + (i & 1)
        k(f"v_dot2_f32_bf16 v{a}, v{VX+i}, s{S_TMP}, v{a}")
        k(f"v_dot2_f32_bf16 v{q}, v{VX+i}, v{VX+i}, v{q}")
    k.nop(3)
    k(f"v_add_f32 v{t}, v{t}, v{t+1}")
    k(f"v_add_f32 v{t+2}, v{t+2}, v{t+3}")
    k.nop(1)
    for rot in (8, 4, 2, 1):
        k(f"v_add_f32_dpp v{t}, v{t}, v{t} row_ror:{rot} row_mask:0xf bank_mask:0xf")
        k(f"v_add_f32_dpp v{t+2}, v{t+2}, v{t+2} row_ror:{rot} row_mask:0xf bank_mask:0xf")
        k.nop(1)
    k.nop(1)
    k(f"v_permlane16_swap_b32 v{t}, v{t+2}")
    k.nop(1)
    k(f"v_add_f32 v{t}, v{t}, v{t+2}")
    k.nop(1)
    k(f"v_mov_b32 v{t+2}, v{t}")
    k.nop(2)
    k(f"v_permlane16_swap_b32 v{t}, v{t+2}")
    k.nop(1)
    k(f"v_mul_f32 v{t}, 0x3acccccd, v{t}")
    k(f"v_mul_f32 v{t+2}, 0x3acccccd, v{t+2}")
    k(f"v_fma_f32 v{t+2}, -v{t}, v{t}, v{t+2}")
    k(f"v_max_f32 v{t+2}, 0, v{t+2}")
    k(f"v_cvt_pk_bf16_f32 v{t+1}, v{t}, v{t+2}")
    k(f"v_lshlrev_b32 v{t}, 16, v{t+1}")
    k(f"v_and_b32 v{t+2}, 0xffff0000, v{t+1}")
    k(f"v_add_f32 v{t+2}, 0x3727c5ac, v{t+2}")
    k(f"v_cvt_pk_bf16_f32 v{t+2}, v{t+2}, v{t+2}")
    k(f"v_and_b32 v{t+2}, 0xffff0000, v{t+2}")
    k(f"v_sqrt_f32 v{t+2}, v{t+2}")
    k.nop(1)
    k(f"v_cvt_pk_bf16_f32 v{t+2}, v{t+2}, v{t+2}")
    k(f"v_and_b32 v{t+2}, 0xffff0000, v{t+2}")
    k(f"v_rcp_f32 v{t+2}, v{t+2}")
    k.nop(1)
    k(f"v_mul_f32 v{t}, v{t}, v{t+2}")
    k(f"v_sub_f32 v{t}, 0, v{t}")
    for i in range(10):
        k(f"v_lshlrev_b32 v{t+3}, 16, v{VX+i}")
        k(f"v_and_b32 v{t+4}, 0xffff0000, v{VX+i}")
        k(f"v_fma_f32 v{t+3}, v{t+3}, v{t+2}, v{t}")
        k(f"v_fma_f32 v{t+4}, v{t+4}, v{t+2}, v{t}")
        k(f"v_cvt_pk_bf16_f32 v{VX+i}, v{t+3}, v{t+4}")
    k(f"v_add_u32 v{t+3}, {L_XN}, v{V_T}")
    for i in range(5):
        k(f"ds_write_b64 v{t+3}, {vr(VX+2*i,2)} offset:{8*i}")
    k(f"v_bfe_u32 v{t}, v{V_LANE}, 3, 1")
    k(f"v_mul_u32_u24 v{t}, 1280, v{t}")
    k(f"v_mul_u32_u24 v{t+1}, 40, v{V_SLAB}")
    k(f"s_mul_i32 s{S_TMP}, s{S_J}, 160")
    k(f"s_add_u32 s{S_TMP}, s{S_TMP}, {L_XN}")
    k(f"v_add3_u32 v{t}, v{t}, v{t+1}, s{S_TMP}")
    k(f"s_waitcnt lgkmcnt(0)")
    for i in range(5):
        k(f"ds_read_b64 {vr(VXR+2*i,2)}, v{t} offset:{8*i}")
    k(f"s_waitcnt lgkmcnt(0)")
    for st in range(20):
        for r in range(4):
            k(f"v_perm_b32 v{VA+4*st+r}, v{VXR+(st>>1)}, v{VXR+(st>>1)}, v{VSEL+2*r+(st&1)}")


def stage1_mfma(k, nafter):
    for st in range(20):
        k(f"s_waitcnt vmcnt({19-st+nafter})")
        c = "0" if st == 0 else vr(VD1, 4)
        k(f"v_mfma_f32_16x16x32_bf16 {vr(VD1,4)}, {vr(VA+4*st,4)}, {vr(VW+4*st,4)}, {c}")


VPUB = 206


def stage1_publish_addr(k):
    t = VS1 + 4
    k(f"v_lshrrev_b32 v{t}, 1, v{V_SLAB}")
    k(f"v_and_b32 v{t+1}, 1, v{V_SLAB}")
    k(f"v_lshlrev_b32 v{t}, 5, v{t}")
    k(f"v_lshl_add_u32 v{t}, v{V_L15}, 1, v{t}")
    k(f"v_add_u32 v{t}, v{t}, v{t+1}")
    k(f"v_lshlrev_b32 v{VPUB}, 4, v{t}")
    k(f"s_lshl_b32 s{S_PUB}, s{S_H}, 3")
    k(f"s_add_u32 s{S_PUB}, s{S_PUB}, s{S_J}")
    k(f"s_lshl_b32 s{S_PUB}, s{S_PUB}, 10")
    k(f"s_add_u32 s{S_PUB}, s{S_PUB}, {WS_QP}")
    k(f"v_mov_b32 v{VD1+6}, s{S_T0}")
    k(f"v_mov_b32 v{VD1+7}, s{S_T1}")


def stage1_publish(k, nkeep):
    k.nop(8)
    k(f"v_cvt_pk_bf16_f32 v{VD1+4}, v{VD1}, v{VD1+1}")
    k(f"v_cvt_pk_bf16_f32 v{VD1+5}, v{VD1+2}, v{VD1+3}")
    k(f"s_waitcnt vmcnt({nkeep})")
    if use_fast1():
        sk = k.label("qps")
        k(f"s_add_u32 s{S_TMP}, s{S_PUB}, {WS_QF - WS_QP}")
        k(f"buffer_store_dwordx4 {vr(VD1+4,4)}, v{VPUB}, {srd(R_WS)}, s{S_TMP} offen")
        k(f"s_cmp_ge_u32 s{S_J}, 4")
        k(f"s_cbranch_scc0 {sk}")
        k(f"buffer_store_dwordx4 {vr(VD1+4,4)}, v{VPUB}, {srd(R_WS)}, s{S_PUB} offen sc1")
        k(f"{sk}:")
    else:
        k(f"buffer_store_dwordx4 {vr(VD1+4,4)}, v{VPUB}, {srd(R_WS)}, s{S_PUB} offen sc1")
    k.stamp(3)


def sentinel_check(k, regs):
    t = V_T
    rs = list(regs)
    if len(rs) == 1:
        k(f"v_cmp_eq_u32 vcc, -1, v{rs[0]}")
        return
    if len(rs) == 2:
        k(f"v_max_u32 v{t}, v{rs[0]}, v{rs[1]}")
        rs = []
    else:
        k(f"v_max3_u32 v{t}, v{rs[0]}, v{rs[1]}, v{rs[2]}")
        rs = rs[3:]
    while len(rs) >= 2:
        k(f"v_max3_u32 v{t}, v{t}, v{rs[0]}, v{rs[1]}")
        rs = rs[2:]
    if rs:
        k(f"v_max_u32 v{t}, v{t}, v{rs[0]}")
    k(f"v_cmp_eq_u32 vcc, -1, v{t}")


def tag_check(k, pairs):
    t = V_T
    first = True
    for a, b in pairs:
        k(f"v_xor_b32 v{t+1}, s{S_T0}, v{a}")
        k(f"v_xor_b32 v{t+2}, s{S_T1}, v{b}")
        if first:
            k(f"v_or_b32 v{t}, v{t+1}, v{t+2}")
        else:
            k(f"v_or3_b32 v{t}, v{t}, v{t+1}, v{t+2}")
        first = False
    k(f"v_cmp_ne_u32 vcc, 0, v{t}")


def gather_loop(k, name, loads, check, stampidx=None, preissued=False, firstwait=0, fast=None, after_fast=None):
    chk = k.label(name)
    done = k.label(name + "d")
    spin_begin(k)
    k(f"s_mov_b64 s[{S_M}:{S_M+1}], exec")
    if fast is not None:
        floads, nfast = fast
        fchk = k.label(name + "f")
        if not preissued:
            for l in floads:
                k(l)
        k(f"{fchk}:")
        k("s_waitcnt vmcnt(0)")
        check(k)
        k(f"s_and_b64 exec, exec, vcc")
        k(f"s_cbranch_execz {done}_fast")
        k(f"s_add_u32 s{S_CNT}, s{S_CNT}, 1")
        k(f"s_cmp_ge_u32 s{S_CNT}, {nfast}")
        k(f"s_cbranch_scc1 {chk}_slow")
        for l in floads:
            k(l)
        k(f"s_branch {fchk}")
        k(f"{done}_fast:")
        k(f"s_mov_b64 exec, s[{S_M}:{S_M+1}]")
        if after_fast:
            after_fast(k)
        k(f"s_branch {done}")
        k(f"{chk}_slow:")
        if after_fast:
            k(f"s_mov_b64 s[4:5], exec")
            k(f"s_mov_b64 exec, s[{S_M}:{S_M+1}]")
            after_fast(k)
            k(f"s_mov_b64 exec, s[4:5]")
        for l in loads:
            k(l)
    elif not preissued:
        for l in loads:
            k(l)
    if firstwait:
        k(f"s_waitcnt vmcnt({firstwait})")
        k(f"s_branch {chk}_c")
    k(f"{chk}:")
    k("s_waitcnt vmcnt(0)")
    if firstwait:
        k(f"{chk}_c:")
    check(k)
    k(f"s_and_b64 exec, exec, vcc")
    k(f"s_cbranch_execz {done}")
    k(f"s_add_u32 s{S_CNT}, s{S_CNT}, 1")
    k(f"s_cmp_ge_u32 s{S_CNT}, {SPIN_LIMIT}")
    k(f"s_cbranch_scc1 {done}")
    for l in loads:
        k(l)
    k(f"s_branch {chk}")
    k(f"{done}:")
    k(f"s_mov_b64 exec, s[{S_M}:{S_M+1}]")
    if stampidx is not None:
        k.stamp(stampidx)
    if k.stamps and name in CNT_SLOT and not (K.opt.get("aoack") and name == "qa"):
        k(f"s_add_u32 s{S_STAMP+CNT_SLOT[name]}, s{S_CNT}, 1")


def nt(key):
    return " nt" if key in K.opt.get("nt", "") else ""


def use_fast():
    return K.opt.get("fast", "1") == "1"


def use_fast1():
    return K.opt.get("fast1", "1") == "1"


def gather_check_loop(k, name, loads, regs, stampidx=None, preissued=False):
    gather_loop(k, name, loads, lambda kk: sentinel_check(kk, regs), stampidx, preissued)


def clears_P(k):
    t = V_T + 4
    neg = vr(V_NEG1, 4)
    k(f"v_lshlrev_b32 v{t}, 4, v{V_LANE}")
    k(f"s_mul_i32 s{S_TMP+1}, s{S_H}, 5120")
    k(f"s_mul_i32 s{S_TMP+2}, s{S_J}, 1280")
    k(f"s_add_u32 s{S_TMP+1}, s{S_TMP+1}, s{S_TMP+2}")
    k(f"s_add_u32 s{S_TMP+1}, s{S_TMP+1}, {WS_SP}")
    k(f"buffer_store_dwordx4 {neg}, v{t}, {srd(R_WS)}, s{S_TMP+1} offen sc1")
    k(f"v_lshlrev_b32 v{t+1}, 4, v{V_L15}")
    k(f"buffer_store_dwordx4 {neg}, v{t+1}, {srd(R_WS)}, s{S_TMP+1} offen offset:1024 sc1")
    k(f"v_and_b32 v{t}, 1, v{V_SLAB}")
    k(f"v_lshlrev_b32 v{t}, 15, v{t}")
    k(f"v_lshl_add_u32 v{t}, v{V_L15}, 4, v{t}")
    k(f"s_lshl_b32 s{S_TMP+1}, s{S_H}, 10")
    k(f"s_lshl_b32 s{S_TMP+2}, s{S_J}, 8")
    k(f"s_add_u32 s{S_TMP+1}, s{S_TMP+1}, s{S_TMP+2}")
    k(f"s_add_u32 s{S_TMP+1}, s{S_TMP+1}, {WS_QA}")
    k(f"buffer_store_dwordx4 {neg}, v{t}, {srd(R_WS)}, s{S_TMP+1} offen sc1")
    k(f"s_lshl_b32 s{S_TMP}, s{S_H}, 2")
    k(f"s_add_u32 s{S_TMP}, s{S_TMP}, s{S_J}")
    k(f"v_and_b32 v{t}, 31, v{V_LANE}")
    k(f"v_lshlrev_b32 v{t}, 4, v{t}")
    k(f"s_lshl_b32 s{S_TMP+1}, s{S_TMP}, 9")
    k(f"s_add_u32 s{S_TMP+1}, s{S_TMP+1}, {WS_CP}")
    k(f"buffer_store_dwordx4 {neg}, v{t}, {srd(R_WS)}, s{S_TMP+1} offen sc1")
    if use_fast():
        k(f"s_add_u32 s{S_TMP+1}, s{S_TMP+1}, {WS_CF - WS_CP}")
        k(f"buffer_store_dwordx4 {neg}, v{t}, {srd(R_WS)}, s{S_TMP+1} offen sc1")
    k(f"s_lshl_b32 s{S_TMP+1}, s{S_H}, 9")
    k(f"s_add_u32 s{S_TMP+1}, s{S_TMP+1}, {WS_ST}")
    k(f"buffer_store_dwordx4 {neg}, v{t}, {srd(R_WS)}, s{S_TMP+1} offen sc1")


L_WUK = 32768


def wuk_issue(k):
    t = V_T + 4
    k(f"s_sub_u32 s{S_TMP+2}, s{S_WAVE}, 1")
    k(f"s_mul_i32 s{S_TMP+2}, s{S_TMP+2}, 11")
    k(f"s_mul_i32 s{S_TMP}, s{S_J}, {128*8192}")
    k(f"s_lshl_b32 s{S_TMP+1}, s{S_H}, 8")
    k(f"s_add_u32 s{S_TMP}, s{S_TMP}, s{S_TMP+1}")
    k(f"s_lshl_b32 s{S_TMP+1}, s{S_TMP+2}, 15")
    k(f"s_add_u32 s{S_TMP}, s{S_TMP}, s{S_TMP+1}")
    k(f"s_lshl_b32 s{S_TMP+1}, s{S_TMP+2}, 10")
    k(f"s_add_u32 s{S_TMP+1}, s{S_TMP+1}, {L_WUK}")
    k(f"v_lshlrev_b32 v{t+1}, 13, v{V_SLAB}")
    lp = k.label("wuk")
    k(f"s_add_u32 s{S_TMP+4}, s{S_TMP+2}, 11")
    k(f"{lp}:")
    k(f"s_and_b32 s{S_TMP+3}, s{S_TMP+2}, 3")
    k(f"s_lshl_b32 s{S_TMP+3}, s{S_TMP+3}, 2")
    k(f"v_add_u32 v{t}, s{S_TMP+3}, v{V_SLAB}")
    k(f"v_xor_b32 v{t}, v{t}, v{V_L15}")
    k(f"v_lshl_add_u32 v{t}, v{t}, 4, v{t+1}")
    k(f"s_mov_b32 m0, s{S_TMP+1}")
    k(f"s_add_u32 s{S_TMP+1}, s{S_TMP+1}, 1024")
    k(f"buffer_load_dwordx4 v{t}, {srd(R_A)}, s{S_TMP} offen{nt('k')} lds")
    k(f"s_add_u32 s{S_TMP}, s{S_TMP}, {4*8192}")
    k(f"s_add_u32 s{S_TMP+2}, s{S_TMP+2}, 1")
    k(f"s_cmp_lt_u32 s{S_TMP+2}, s{S_TMP+4}")
    k(f"s_cbranch_scc1 {lp}")


def wuk_preread(k):
    t = V_T + 4
    k(f"s_lshl_b32 s{S_TMP+4}, s{S_WAVE}, 2")
    k(f"v_add_u32 v{t}, s{S_TMP+4}, v{V_SLAB}")
    k(f"v_xor_b32 v{t}, v{t}, v{V_L15}")
    k(f"v_lshlrev_b32 v{t}, 4, v{t}")
    k(f"v_lshl_add_u32 v{t}, v{V_L15}, 8, v{t}")
    for i in range(8):
        k(f"ds_read_b128 {vr(VWUK+4*i,4)}, v{t} offset:{L_WUK+i*4096}")


PG = 10
PD = 28
PY = 68
PWV = 76
PWO = 108
PA = 148
PADR = 164
PM = 180
PT = 188
PKEEP = 206
S_KEEP = 16


def stage2(k):
    t = PT
    k(f"v_and_b32 v{t}, 7, v{V_L15}")
    k(f"v_lshlrev_b32 v{t}, 10, v{t}")
    k(f"v_lshrrev_b32 v{t+1}, 3, v{V_L15}")
    k(f"v_lshl_add_u32 v{t}, v{t+1}, 9, v{t}")
    k(f"v_lshl_add_u32 v{PADR}, v{V_SLAB}, 5, v{t}")
    k(f"s_lshl_b32 s{S_TMP}, s{S_H}, 13")
    k(f"s_lshl_b32 s{S_TMP+1}, s{S_WAVE}, 7")
    k(f"s_add_u32 s{S_TMP}, s{S_TMP}, s{S_TMP+1}")
    k(f"s_add_u32 s{S_TMP}, s{S_TMP}, {WS_QP}")
    k(f"v_lshrrev_b32 v{t}, 1, v{V_SLAB}")
    k(f"v_lshlrev_b32 v{t}, 15, v{t}")
    k(f"v_and_b32 v{t+1}, 1, v{V_SLAB}")
    k(f"v_lshl_add_u32 v{t}, v{t+1}, 5, v{t}")
    k(f"v_lshl_add_u32 v{PADR+1}, v{V_L15}, 1, v{t}")
    k(f"s_lshl_b32 s{S_TMP+2}, s{S_H}, 10")
    k(f"s_lshl_b32 s{S_TMP+3}, s{S_J}, 8")
    k(f"s_add_u32 s{S_TMP+2}, s{S_TMP+2}, s{S_TMP+3}")
    k(f"s_lshl_b32 s{S_TMP+3}, s{S_WAVE}, 6")
    k(f"s_add_u32 s{S_TMP+2}, s{S_TMP+2}, s{S_TMP+3}")
    k(f"s_add_u32 s{S_TMP+2}, s{S_TMP+2}, {WS_QA}")
    k(f"v_lshlrev_b32 v{PADR+2}, 2, v{V_LANE}")
    k(f"s_lshl_b32 s{S_TMP+3}, s{S_WAVE}, 10")
    k(f"s_add_u32 s{S_TMP+3}, s{S_TMP+3}, {L_RED}")
    k(f"v_add_u32 v{PADR+3}, s{S_TMP+3}, v{PADR+2}")
    k(f"s_lshl_b32 s{S_TMP+3}, s{S_WAVE}, 8")
    k(f"s_add_u32 s{S_TMP+3}, s{S_TMP+3}, {L_RED}")
    k(f"v_add_u32 v{PADR+2}, s{S_TMP+3}, v{PADR+2}")
    k(f"s_mov_b32 s{S_M+2}, 0x55555555")
    k(f"s_mov_b32 s{S_M+3}, 0x55555555")
    loads = [f"buffer_load_dwordx4 {vr(PG,4)}, v{PADR}, {srd(R_WS)}, s{S_TMP} offen sc1",
             f"buffer_load_dwordx4 {vr(PG+4,4)}, v{PADR}, {srd(R_WS)}, s{S_TMP} offen offset:16 sc1"]
    floads = [l.replace(f"s{S_TMP} offen", f"s{S_TMP+5} offen") for l in loads]
    k(f"s_add_u32 s{S_TMP+5}, s{S_TMP}, {WS_QF - WS_QP}")
    if not use_fast1():
        for l in loads:
            k(l)
    if K.opt.get("wukstamp"):
        k("s_waitcnt vmcnt(2)")
        k.stamp(12)
    k("s_waitcnt vmcnt(0)")
    k("s_barrier")
    wuk_preread(k)
    def send_qp(kk):
        sk = kk.label("qpw")
        kk(f"s_cmp_eq_u32 s{S_WAVE}, 0")
        kk(f"s_cbranch_scc0 {sk}")
        kk(f"buffer_store_dwordx4 {vr(VD1+4,4)}, v{VPUB}, {srd(R_WS)}, s{S_PUB} offen sc1")
        kk(f"{sk}:")
    gather_loop(k, "qp", loads, lambda kk: tag_check(kk, [(PG+2, PG+3), (PG+6, PG+7)]), 4, preissued=not use_fast1(),
                fast=(floads, 24) if use_fast1() else None, after_fast=send_qp if use_fast1() else None)
    k("s_waitcnt lgkmcnt(0)")
    k(f"v_mov_b32 v{PG+2}, v{PG+4}")
    k(f"v_mov_b32 v{PG+3}, v{PG+5}")
    k.nop(2)
    for i in range(8):
        k(f"v_mfma_f32_16x16x32_bf16 {vr(PD+4*i,4)}, {vr(PG,4)}, {vr(VWUK+4*i,4)}, 0")
    k.nop(1)
    for i in range(8):
        if i == 7:
            pass
        k(f"v_add_f32 v{PD+4*i}, v{PD+4*i}, v{PD+4*i+1}")
        k(f"v_add_f32 v{PD+4*i+2}, v{PD+4*i+2}, v{PD+4*i+3}")
        k(f"v_add_f32 v{PD+4*i}, v{PD+4*i}, v{PD+4*i+2}")
    k.nop(2)
    for u in range(4):
        k(f"v_permlane16_swap_b32 v{PD+8*u}, v{PD+8*u+4}")
    k.nop(1)
    for u in range(4):
        k(f"v_add_f32 v{PY+u}, v{PD+8*u}, v{PD+8*u+4}")
    k(f"ds_write2st64_b32 v{PADR+3}, v{PY}, v{PY+1} offset0:0 offset1:1")
    k(f"ds_write2st64_b32 v{PADR+3}, v{PY+2}, v{PY+3} offset0:2 offset1:3")
    k("s_waitcnt lgkmcnt(0)")
    k("s_barrier")
    k(f"ds_read2st64_b32 {vr(t,2)}, v{PADR+2} offset0:0 offset1:4")
    k(f"ds_read2st64_b32 {vr(t+2,2)}, v{PADR+2} offset0:8 offset1:12")
    k("s_waitcnt lgkmcnt(0)")
    k(f"v_add_f32 v{t}, v{t}, v{t+1}")
    k(f"v_add_f32 v{t+2}, v{t+2}, v{t+3}")
    k(f"v_add_f32 v{t}, v{t}, v{t+2}")
    k(f"v_mul_f32 v{t}, 0x3e0293ee, v{t}")
    k.nop(2)
    k(f"v_mov_b32_dpp v{t+1}, v{t} quad_perm:[1,0,3,2] row_mask:0xf bank_mask:0xf")
    k(f"v_cvt_pk_bf16_f32 v{t}, v{t}, v{t+1}")
    k(f"s_mov_b64 exec, s[{S_M+2}:{S_M+3}]")
    k(f"buffer_store_dword v{t}, v{PADR+1}, {srd(R_WS)}, s{S_TMP+2} offen sc1")
    k(f"s_mov_b64 exec, -1")
    k.stamp(5)


def p_weights_issue(k):
    t = PT
    if K.opt.get("trig", "0") == "1":
        k(f"s_and_b32 s{S_TMP}, s{S_H}, 7")
        k(f"s_lshl_b32 s{S_TMP}, s{S_TMP}, 8")
        k(f"s_add_u32 s{S_TMP}, s{S_TMP}, {WS_TR}")
        k(f"v_lshrrev_b32 v{t}, 2, v{V_L15}")
        k(f"v_lshlrev_b32 v{t}, 11, v{t}")
        k(f"v_and_b32 v{t+1}, 3, v{V_L15}")
        k(f"v_lshl_add_u32 v{t}, v{t+1}, 6, v{t}")
        sk = k.label("trw")
        k(f"s_cmp_eq_u32 s{S_WAVE}, 0")
        k(f"s_cbranch_scc0 {sk}")
        k(f"s_mov_b64 exec, 0xffff")
        gather_loop(k, "tr", [f"buffer_load_dwordx2 {vr(t+2,2)}, v{t}, {srd(R_WS)}, s{S_TMP} offen sc1"], lambda kk: tag_check(kk, [(t+2, t+3)]), 12)
        k(f"s_mov_b64 exec, -1")
        k(f"{sk}:")
        k("s_barrier")
    for par in range(2):
        k(f"v_add_u32 v{t}, {4*par}, v{V_SLAB}")
        k(f"v_lshlrev_b32 v{t}, 1, v{t}")
        k(f"v_xor_b32 v{t}, v{t}, v{V_L15}")
        k(f"v_lshlrev_b32 v{t}, 4, v{t}")
        k(f"v_lshl_add_u32 v{PADR+4+par}, v{V_SLAB}, 13, v{t}")
    k(f"s_mul_i32 s{S_TMP}, s{S_J}, {128*8192}")
    k(f"s_lshl_b32 s{S_TMP+1}, s{S_H}, 8")
    k(f"s_add_u32 s{S_TMP}, s{S_TMP}, s{S_TMP+1}")
    k(f"s_lshl_b32 s{S_TMP+1}, s{S_WAVE}, 18")
    k(f"s_add_u32 s{S_TMP}, s{S_TMP}, s{S_TMP+1}")
    k(f"s_lshl_b32 s{S_TMP+1}, s{S_WAVE}, 13")
    k(f"s_add_u32 s{S_TMP+1}, s{S_TMP+1}, {L_WUV}")
    for ii in range(8):
        k(f"s_mov_b32 m0, s{S_TMP+1}")
        k(f"s_add_u32 s{S_TMP+1}, s{S_TMP+1}, 1024")
        k(f"buffer_load_dwordx4 v{PADR+4+(ii&1)}, {srd(R_B)}, s{S_TMP} offen{nt('v')} lds")
        k(f"s_add_u32 s{S_TMP}, s{S_TMP}, {4*8192}")


def w1p_issue(k):
    t = PT
    k.srd(R_WQ, S_W1, 640 * 1728 * 2)
    k(f"v_lshrrev_b32 v{t}, 3, v{V_LANE}")
    k(f"v_mul_u32_u24 v{t}, 3456, v{t}")
    k(f"v_and_b32 v{t+1}, 7, v{V_LANE}")
    k(f"v_lshl_add_u32 v{t}, v{t+1}, 4, v{t}")
    k(f"s_mul_i32 s{S_TMP}, s{S_J}, {160*3456}")
    k(f"s_mul_i32 s{S_TMP+1}, s{S_WAVE}, {40*3456}")
    k(f"s_add_u32 s{S_TMP}, s{S_TMP}, s{S_TMP+1}")
    k(f"s_lshl_b32 s{S_TMP+1}, s{S_H}, 7")
    k(f"s_add_u32 s{S_TMP}, s{S_TMP}, s{S_TMP+1}")
    k(f"s_mul_i32 s{S_TMP+1}, s{S_WAVE}, 5120")
    k(f"s_add_u32 s{S_TMP+1}, s{S_TMP+1}, {L_W1P}")
    for i in range(5):
        k(f"s_mov_b32 m0, s{S_TMP+1}")
        k(f"s_add_u32 s{S_TMP+1}, s{S_TMP+1}, 1024")
        k(f"buffer_load_dwordx4 v{t}, {srd(R_WQ)}, s{S_TMP} offen{nt('1')} lds")
        k(f"s_add_u32 s{S_TMP}, s{S_TMP}, {8*3456}")


def ffn1p(k):
    t = PT
    X, W, D = 28, 48, 68
    k(f"v_and_b32 v{t}, 1, v{V_LANE}")
    k(f"v_mul_u32_u24 v{t}, 1280, v{t}")
    k(f"v_lshl_add_u32 v{t}, v{V_SLAB}, 3, v{t}")
    k(f"s_mul_i32 s{S_TMP}, s{S_J}, 320")
    k(f"s_add_u32 s{S_TMP}, s{S_TMP}, {L_XN}")
    k(f"v_add_u32 v{t}, s{S_TMP}, v{t}")
    for i in range(5):
        k(f"ds_read_b64 {vr(X+4*i,2)}, v{t} offset:{64*i}")
        k(f"ds_read_b64 {vr(X+4*i+2,2)}, v{t} offset:{64*i+32}")
    k(f"v_lshrrev_b32 v{t+1}, 2, v{V_L15}")
    k(f"v_lshl_add_u32 v{t+1}, v{V_SLAB}, 2, v{t+1}")
    k(f"v_lshlrev_b32 v{t+1}, 7, v{t+1}")
    k(f"v_and_b32 v{t+2}, 3, v{V_L15}")
    k(f"v_lshl_add_u32 v{t+1}, v{t+2}, 3, v{t+1}")
    k(f"s_lshl_b32 s{S_TMP}, s{S_WAVE}, 5")
    k(f"s_add_u32 s{S_TMP}, s{S_TMP}, {L_W1P}")
    k(f"v_add_u32 v{t+1}, s{S_TMP}, v{t+1}")
    k(f"v_lshlrev_b32 v{t+2}, 4, v{V_L15}")
    k(f"s_lshl_b32 s{S_TMP}, s{S_H}, 2")
    k(f"s_add_u32 s{S_TMP}, s{S_TMP}, s{S_J}")
    k(f"s_lshl_b32 s{S_TMP}, s{S_TMP}, 10")
    k(f"s_lshl_b32 s{S_TMP+1}, s{S_WAVE}, 8")
    k(f"s_add_u32 s{S_TMP}, s{S_TMP}, s{S_TMP+1}")
    k(f"s_add_u32 s{S_TMP}, s{S_TMP}, {WS_HP}")
    k("s_waitcnt vmcnt(18)")
    k("s_barrier")
    for i in range(5):
        k(f"ds_read_b64_tr_b16 {vr(W+4*i,2)}, v{t+1} offset:{i*4096}")
        k(f"ds_read_b64_tr_b16 {vr(W+4*i+2,2)}, v{t+1} offset:{i*4096+2048}")
    k("s_waitcnt lgkmcnt(0)")
    for i in range(5):
        c = "0" if i == 0 else vr(D, 4)
        k(f"v_mfma_f32_16x16x32_bf16 {vr(D,4)}, {vr(X+4*i,4)}, {vr(W+4*i,4)}, {c}")
    k.nop(8)
    k(f"v_mov_b32 v{D+2}, s{S_T0}")
    k(f"v_mov_b32 v{D+3}, s{S_T1}")
    k(f"s_mov_b64 exec, 0xffff")
    k(f"buffer_store_dwordx4 {vr(D,4)}, v{t+2}, {srd(R_WS)}, s{S_TMP} offen sc1")
    k(f"s_mov_b64 exec, -1")


def p_weights_preread(k):
    t = PT
    k(f"v_lshrrev_b32 v{t}, 2, v{V_L15}")
    k(f"v_and_b32 v{t+1}, 3, v{V_L15}")
    k(f"v_lshl_add_u32 v{t+2}, v{V_SLAB}, 2, v{t}")
    k(f"v_and_b32 v{t+3}, 7, v{t+2}")
    k(f"v_lshlrev_b32 v{t+3}, 1, v{t+3}")
    k(f"v_lshrrev_b32 v{t+4}, 1, v{t+1}")
    k(f"v_and_b32 v{t+5}, 1, v{t+1}")
    k(f"s_lshl_b32 s{S_TMP}, s{S_WAVE}, 2")
    for d in range(2):
        k(f"v_add_u32 v{t+6}, s{S_TMP}, v{t+4}")
        if d:
            k(f"v_add_u32 v{t+6}, 2, v{t+6}")
        k(f"v_xor_b32 v{t+6}, v{t+6}, v{t+3}")
        k(f"v_lshlrev_b32 v{t+6}, 4, v{t+6}")
        k(f"v_lshl_add_u32 v{t+6}, v{t+5}, 3, v{t+6}")
        k(f"v_lshl_add_u32 v{PADR+6+d}, v{t+2}, 8, v{t+6}")
    for d in range(2):
        for kk in range(4):
            r = PWV + (d * 4 + kk) * 4
            k(f"ds_read_b64_tr_b16 {vr(r,2)}, v{PADR+6+d} offset:{L_WUV+kk*8192}")
            k(f"ds_read_b64_tr_b16 {vr(r+2,2)}, v{PADR+6+d} offset:{L_WUV+kk*8192+4096}")


def wo_issue(k):
    t = PT
    k(f"s_mul_i32 s{S_TMP}, s{S_H}, {128*1280}")
    k(f"s_mul_i32 s{S_TMP+1}, s{S_J}, 320")
    k(f"s_add_u32 s{S_TMP}, s{S_TMP}, s{S_TMP+1}")
    k(f"s_mul_i32 s{S_TMP+1}, s{S_WAVE}, 640")
    k(f"v_add_u32 v{t}, s{S_TMP+1}, v{V_LANE}")
    k(f"s_mul_i32 s{S_TMP+1}, s{S_WAVE}, 10240")
    k(f"s_add_u32 s{S_TMP+1}, s{S_TMP+1}, {L_WO5}")
    k(f"s_movk_i32 s{S_TMP+2}, 3277")
    k(f"s_movk_i32 s{S_TMP+3}, 960")
    for ii in range(10):
        k(f"v_mul_u32_u24 v{t+1}, s{S_TMP+2}, v{t}")
        k(f"v_lshrrev_b32 v{t+1}, 16, v{t+1}")
        k(f"v_mul_u32_u24 v{t+1}, s{S_TMP+3}, v{t+1}")
        k(f"v_lshl_add_u32 v{t+2+(ii&1)}, v{t}, 4, v{t+1}")
        k(f"s_mov_b32 m0, s{S_TMP+1}")
        k(f"s_add_u32 s{S_TMP+1}, s{S_TMP+1}, 1024")
        k(f"buffer_load_dwordx4 v{t+2+(ii&1)}, {srd(R_C)}, s{S_TMP} offen{nt('o')} lds")
        k(f"v_add_u32 v{t}, 64, v{t}")


def wo_preread(k):
    t = PT
    k(f"v_lshrrev_b32 v{t}, 2, v{V_L15}")
    k(f"v_and_b32 v{t+1}, 3, v{V_L15}")
    k(f"v_lshl_add_u32 v{t+2}, v{V_SLAB}, 2, v{t}")
    k(f"s_lshl_b32 s{S_TMP}, s{S_WAVE}, 5")
    k(f"v_add_u32 v{t+6}, s{S_TMP}, v{t+2}")
    k(f"v_mul_u32_u24 v{t+6}, 320, v{t+6}")
    k(f"v_lshl_add_u32 v{PADR+8}, v{t+1}, 3, v{t+6}")
    k(f"v_add_u32 v{PADR+8}, {L_WO5}, v{PADR+8}")
    for ct in range(10):
        r = PWO + 4 * ct
        k(f"ds_read_b64_tr_b16 {vr(r,2)}, v{PADR+8} offset:{32*ct}")
        k(f"ds_read_b64_tr_b16 {vr(r+2,2)}, v{PADR+8} offset:{32*ct+5120}")


def reduce_bits(k, op, v, tmp):
    for mod in ("quad_perm:[1,0,3,2]", "quad_perm:[2,3,0,1]", "row_half_mirror"):
        k.nop(2)
        k(f"{op}_dpp v{v}, v{v}, v{v} {mod} row_mask:0xf bank_mask:0xf")
    for sw in ("v_permlane16_swap_b32", "v_permlane32_swap_b32"):
        k(f"v_mov_b32 v{tmp}, v{v}")
        k.nop(2)
        k(f"{sw} v{v}, v{tmp}")
        k.nop(1)
        k(f"{op} v{v}, v{v}, v{tmp}")


def stage4_setup(k):
    t = PT
    k(f"v_bfe_u32 v{t}, v{V_LANE}, 3, 1")
    k(f"v_bfe_u32 v{t+1}, v{V_LANE}, 2, 1")
    k(f"v_and_b32 v{t+2}, 3, v{V_LANE}")
    k(f"v_lshlrev_b32 v{t+1}, 4, v{t+1}")
    k(f"v_lshl_add_u32 v{t+1}, v{V_SLAB}, 2, v{t+1}")
    k(f"v_add_u32 v{t+1}, v{t+1}, v{t+2}")
    k(f"v_lshl_add_u32 v{t+1}, v{t}, 5, v{t+1}")
    k(f"v_lshlrev_b32 v{PADR+9}, 3, v{t+1}")
    k(f"v_and_b32 v{t+1}, 1, v{V_LANE}")
    k(f"v_cmp_eq_u32 vcc, 1, v{t+1}")
    k(f"v_mov_b32 v{t+2}, 0xffff")
    k(f"v_mov_b32 v{t+3}, 0xffff0000")
    k(f"v_cndmask_b32 v{t+2}, v{t+2}, v{t+3}, vcc")
    k(f"v_bfe_u32 v{t+1}, v{V_LANE}, 1, 2")
    k(f"v_lshl_add_u32 v{t+1}, v{t}, 2, v{t+1}")
    for i in range(8):
        k(f"v_cmp_eq_u32 vcc, {i}, v{t+1}")
        k.nop(2)
        k(f"v_cndmask_b32 v{PM+i}, 0, v{t+2}, vcc")
    k(f"v_lshlrev_b32 v{PADR+10}, 4, v0")
    k(f"v_lshrrev_b32 v{t}, 4, v0")
    k(f"v_and_b32 v{t+1}, 7, v{t}")
    k(f"v_lshlrev_b32 v{t+1}, 1, v{t+1}")
    k(f"v_xor_b32 v{t+1}, v{t+1}, v{V_L15}")
    k(f"v_lshlrev_b32 v{t+1}, 4, v{t+1}")
    k(f"v_lshl_add_u32 v{t+1}, v{t}, 8, v{t+1}")
    k(f"v_add_u32 v{PADR+11}, {L_AOB}, v{t+1}")
    k(f"v_lshrrev_b32 v{t}, 2, v{V_L15}")
    k(f"v_lshl_add_u32 v{t}, v{V_SLAB}, 2, v{t}")
    k(f"v_and_b32 v{t+1}, 7, v{t}")
    k(f"v_lshlrev_b32 v{t+1}, 1, v{t+1}")
    k(f"v_bfe_u32 v{t+2}, v{V_L15}, 1, 1")
    k(f"v_and_b32 v{t+3}, 1, v{V_L15}")
    k(f"s_lshl_b32 s{S_TMP}, s{S_WAVE}, 2")
    for d in range(2):
        k(f"v_add_u32 v{t+4}, s{S_TMP}, v{t+2}")
        if d:
            k(f"v_add_u32 v{t+4}, 2, v{t+4}")
        k(f"v_xor_b32 v{t+4}, v{t+4}, v{t+1}")
        k(f"v_lshlrev_b32 v{t+4}, 4, v{t+4}")
        k(f"v_lshl_add_u32 v{t+4}, v{t+3}, 3, v{t+4}")
        k(f"v_lshl_add_u32 v{t+4}, v{t}, 8, v{t+4}")
        k(f"v_add_u32 v{PADR+12+d}, {L_AOB}, v{t+4}")
    k(f"v_lshrrev_b32 v{t}, 1, v{V_SLAB}")
    k(f"v_and_b32 v{t+1}, 1, v{V_SLAB}")
    k(f"v_lshlrev_b32 v{t}, 7, v{t}")
    k(f"v_lshl_add_u32 v{t}, v{t+1}, 4, v{t}")
    k(f"v_add_u32 v{t}, v{t}, v{V_L15}")
    k(f"s_lshl_b32 s{S_TMP}, s{S_WAVE}, 5")
    k(f"v_add_u32 v{t}, s{S_TMP}, v{t}")
    k(f"v_lshlrev_b32 v{t}, 1, v{t}")
    k(f"v_add_u32 v{PADR+14}, {L_CTX}, v{t}")
    k(f"v_and_b32 v{t}, 1, v{V_LANE}")
    k(f"v_lshlrev_b32 v{t}, 8, v{t}")
    k(f"v_lshl_add_u32 v{t}, v{V_SLAB}, 4, v{t}")
    k(f"v_add_u32 v{PADR+15}, {L_CTX}, v{t}")


def stage4(k):
    t = PT
    G = PG
    ST = 26
    k(f"s_lshl_b32 s{S_TMP}, s{S_H}, 9")
    k(f"s_add_u32 s{S_TMP}, s{S_TMP}, {WS_ST}")
    k(f"s_lshl_b32 s{S_TMP+1}, s{S_H}, 2")
    k(f"s_add_u32 s{S_TMP+1}, s{S_TMP+1}, s{S_J}")
    k(f"s_lshl_b32 s{S_TMP+2}, s{S_TMP+1}, 14")
    k(f"s_add_u32 s{S_TMP+2}, s{S_TMP+2}, {WS_AO}")
    for n in range(1, 4):
        k(f"s_add_u32 s{S_TMP+2+n}, s{S_TMP+2}, {4096*n}")
    sk = k.label("stw")
    k(f"v_lshlrev_b32 v{t+12}, 3, v{V_LANE}")
    k(f"v_add_u32 v{t+12}, {L_STX}, v{t+12}")
    k(f"s_cmp_eq_u32 s{S_WAVE}, 0")
    k(f"s_cbranch_scc0 {sk}")
    gather_check_loop(k, "st", [f"buffer_load_dwordx2 {vr(ST,2)}, v{PADR+9}, {srd(R_WS)}, s{S_TMP} offen sc1"], [ST, ST + 1], None)
    k(f"ds_write_b64 v{t+12}, {vr(ST,2)}")
    k("s_waitcnt lgkmcnt(0)")
    k(f"{sk}:")
    k("s_barrier")
    k.stamp(7)
    loads = [f"buffer_load_dwordx4 {vr(G+4*n,4)}, v{PADR+10}, {srd(R_WS)}, s{S_TMP+2+n} offen sc1" for n in range(4)]
    aopos = K.opt.get("aopos", "mid")
    if aopos == "pre":
        for l in loads:
            k(l)
    k(f"ds_read_b64 {vr(ST,2)}, v{t+12}")
    k("s_waitcnt lgkmcnt(0)")
    M = t + 8
    k(f"v_mov_b32 v{M}, v{ST}")
    reduce_bits(k, "v_max_f32", M, t + 9)
    k(f"v_sub_f32 v{t}, v{ST}, v{M}")
    k(f"v_exp_f32 v{t}, v{t}")
    k.nop(1)
    k(f"v_cvt_pk_bf16_f32 v{t}, v{t}, v{t}")
    for i in range(8):
        k(f"v_and_b32 v{PA+i}, v{t}, v{PM+i}")
    k(f"v_and_b32 v{t+1}, 0xffff0000, v{t}")
    k(f"v_mul_f32 v{t+1}, v{t+1}, v{ST+1}")
    if aopos == "mid":
        for l in loads:
            k(l)
    reduce_bits(k, "v_add_f32", t + 1, t + 9)
    k(f"v_rcp_f32 v{t+1}, v{t+1}")
    k.nop(1)
    k(f"v_readlane_b32 s{S_TMP+6}, v{t+1}, 0")
    k(f"v_readlane_b32 s{S_TMP+7}, v{t+1}, 8")
    k(f"v_cmp_le_u32 vcc, 32, v{V_LANE}")
    k.nop(1)
    k(f"v_mov_b32 v{t+2}, s{S_TMP+6}")
    k(f"v_mov_b32 v{t+3}, s{S_TMP+7}")
    k(f"v_cndmask_b32 v{t+2}, v{t+2}, v{t+3}, vcc")
    if aopos == "post":
        for l in loads:
            k(l)
    gather_check_loop(k, "ao", loads, list(range(G, G + 16)), 8, preissued=True)
    for n in range(4):
        k(f"ds_write_b128 v{PADR+11}, {vr(G+4*n,4)} offset:{4096*n}")
    k("s_waitcnt lgkmcnt(0)")
    k("s_barrier")
    B = PD + 8
    for d in range(2):
        for bb in range(2):
            r = B + (d * 2 + bb) * 4
            k(f"ds_read_b64_tr_b16 {vr(r,2)}, v{PADR+12+d} offset:{bb*8192}")
            k(f"ds_read_b64_tr_b16 {vr(r+2,2)}, v{PADR+12+d} offset:{bb*8192+4096}")
    for d in range(2):
        k(f"s_waitcnt lgkmcnt({4-4*d})")
        k(f"v_mfma_f32_16x16x32_bf16 {vr(PD+4*d,4)}, {vr(PA,4)}, {vr(B+(d*2)*4,4)}, 0")
        k(f"v_mfma_f32_16x16x32_bf16 {vr(PD+4*d,4)}, {vr(PA+4,4)}, {vr(B+(d*2+1)*4,4)}, {vr(PD+4*d,4)}")
    k.nop(8)
    for d in range(2):
        k(f"v_add_f32 v{PD+4*d}, v{PD+4*d}, v{PD+4*d+1}")
        k(f"v_add_f32 v{PD+4*d+2}, v{PD+4*d+2}, v{PD+4*d+3}")
    for d in range(2):
        k(f"v_add_f32 v{PD+4*d}, v{PD+4*d}, v{PD+4*d+2}")
    k.nop(2)
    k(f"v_permlane16_swap_b32 v{PD}, v{PD+4}")
    k.nop(1)
    k(f"v_add_f32 v{PD}, v{PD}, v{PD+4}")
    k(f"v_mul_f32 v{PD}, v{PD}, v{t+2}")
    k(f"v_cvt_pk_bf16_f32 v{PD}, v{PD}, v{PD}")
    k(f"ds_write_b16 v{PADR+14}, v{PD}")
    k("s_waitcnt lgkmcnt(0)")
    k("s_barrier")
    for kk in range(4):
        k(f"ds_read_b128 {vr(PA+4*kk,4)}, v{PADR+15} offset:{64*kk}")
    k(f"v_lshrrev_b32 v{t}, 2, v{V_L15}")
    k(f"v_lshlrev_b32 v{t}, 3, v{t}")
    k(f"v_and_b32 v{t+1}, 1, v{V_SLAB}")
    k(f"v_lshl_add_u32 v{t}, v{t+1}, 2, v{t}")
    k(f"v_and_b32 v{t+1}, 2, v{V_L15}")
    k(f"v_add_u32 v{t}, v{t}, v{t+1}")
    k(f"v_lshrrev_b32 v{t+1}, 1, v{V_SLAB}")
    k(f"v_lshl_add_u32 v{t}, v{t+1}, 7, v{t}")
    k(f"v_lshlrev_b32 v{t}, 1, v{t}")
    k(f"s_lshl_b32 s{S_TMP}, s{S_H}, 2")
    k(f"s_add_u32 s{S_TMP}, s{S_TMP}, s{S_J}")
    k(f"s_lshl_b32 s{S_TMP}, s{S_TMP}, 9")
    k(f"s_lshl_b32 s{S_TMP+1}, s{S_WAVE}, 6")
    k(f"s_add_u32 s{S_TMP}, s{S_TMP}, s{S_TMP+1}")
    k(f"s_add_u32 s{S_TMP}, s{S_TMP}, {WS_CP}")
    k(f"s_add_u32 s{S_TMP+1}, s{S_TMP}, {WS_CF - WS_CP}")
    k(f"s_mov_b32 s{S_M+2}, 0xffff0000")
    k(f"s_mov_b32 s{S_M+3}, 0xffff0000")
    k(f"s_mov_b32 s{S_M+4}, 0")
    k(f"s_mov_b32 s{S_M+5}, -1")
    k(f"s_mov_b32 s{S_M+6}, 0x55555555")
    k(f"s_mov_b32 s{S_M+7}, 0x55555555")
    for kk in range(4):
        k(f"s_waitcnt lgkmcnt({3-kk})")
        for d in range(2):
            c = "0" if kk == 0 else vr(PD + 4 * d, 4)
            k(f"v_mfma_f32_16x16x32_bf16 {vr(PD+4*d,4)}, {vr(PA+4*kk,4)}, {vr(PWV+(d*4+kk)*4,4)}, {c}")
    k.nop(8)
    k(f"v_cndmask_b32 v{t+2}, v{PD}, v{PD+4}, s[{S_M+2}:{S_M+3}]")
    k(f"v_cndmask_b32 v{t+3}, v{PD+1}, v{PD+5}, s[{S_M+2}:{S_M+3}]")
    k(f"v_cndmask_b32 v{t+2}, v{t+2}, v{t+3}, s[{S_M+4}:{S_M+5}]")
    k.nop(2)
    k(f"v_mov_b32_dpp v{t+3}, v{t+2} quad_perm:[1,0,3,2] row_mask:0xf bank_mask:0xf")
    k(f"v_cvt_pk_bf16_f32 v{t+2}, v{t+2}, v{t+3}")
    if use_fast():
        k(f"v_mov_b32 v{PKEEP}, v{t+2}")
        k(f"v_mov_b32 v{PKEEP+1}, v{t}")
        k(f"s_mov_b32 s{S_KEEP}, s{S_TMP}")
    k(f"s_mov_b64 exec, s[{S_M+6}:{S_M+7}]")
    if use_fast():
        k(f"buffer_store_dword v{t+2}, v{t}, {srd(R_WS)}, s{S_TMP+1} offen")
    else:
        k(f"buffer_store_dword v{t+2}, v{t}, {srd(R_WS)}, s{S_TMP} offen sc1")
    k(f"s_mov_b64 exec, -1")
    k.stamp(9)


def stage5(k):
    t = PT
    k(f"v_and_b32 v{t}, 3, v{V_L15}")
    k(f"v_lshlrev_b32 v{t}, 9, v{t}")
    k(f"v_bfe_u32 v{t+1}, v{V_L15}, 2, 1")
    k(f"v_lshl_add_u32 v{t}, v{t+1}, 8, v{t}")
    k(f"v_lshl_add_u32 v{PADR}, v{V_SLAB}, 4, v{t}")
    k(f"s_lshl_b32 s{S_TMP}, s{S_H}, 11")
    k(f"s_lshl_b32 s{S_TMP+1}, s{S_WAVE}, 6")
    k(f"s_add_u32 s{S_TMP}, s{S_TMP}, s{S_TMP+1}")
    k(f"s_add_u32 s{S_TMP}, s{S_TMP}, {WS_CP}")
    k(f"v_lshrrev_b32 v{t}, 1, v{V_SLAB}")
    k(f"v_lshlrev_b32 v{t}, 4, v{t}")
    k(f"v_add_u32 v{t}, v{t}, v{V_L15}")
    k(f"v_lshlrev_b32 v{t}, 3, v{t}")
    k(f"v_and_b32 v{t+1}, 1, v{V_SLAB}")
    k(f"v_lshl_add_u32 v{PADR+1}, v{t+1}, 2, v{t}")
    k(f"s_mul_i32 s{S_TMP+1}, s{S_H}, 5120")
    k(f"s_mul_i32 s{S_TMP+2}, s{S_J}, 1280")
    k(f"s_add_u32 s{S_TMP+1}, s{S_TMP+1}, s{S_TMP+2}")
    k(f"s_add_u32 s{S_TMP+1}, s{S_TMP+1}, {WS_SP}")
    k(f"s_lshl_b32 s{S_TMP+2}, s{S_WAVE}, 8")
    k(f"s_add_u32 s{S_TMP+2}, s{S_TMP+2}, s{S_TMP+1}")
    k(f"s_add_u32 s{S_TMP+1}, s{S_TMP+1}, 1024")
    k(f"v_lshlrev_b32 v{t}, 2, v{V_LANE}")
    k(f"s_mul_i32 s{S_TMP+3}, s{S_WAVE}, 1280")
    k(f"s_add_u32 s{S_TMP+3}, s{S_TMP+3}, {L_RED5}")
    k(f"v_add_u32 v{PADR+3}, s{S_TMP+3}, v{t}")
    k(f"s_lshl_b32 s{S_TMP+3}, s{S_WAVE}, 8")
    k(f"s_add_u32 s{S_TMP+3}, s{S_TMP+3}, {L_RED5}")
    k(f"v_add_u32 v{PADR+2}, s{S_TMP+3}, v{t}")
    k(f"v_add_u32 v{PADR+4}, {L_RED5+1024}, v{t}")
    k(f"s_mov_b32 s{S_M+4}, 0")
    k(f"s_mov_b32 s{S_M+5}, -1")
    loads = [f"buffer_load_dwordx4 {vr(PG,4)}, v{PADR}, {srd(R_WS)}, s{S_TMP} offen sc1"]
    k(f"s_add_u32 s{S_TMP+5}, s{S_TMP}, {WS_CF - WS_CP}")
    floads = [f"buffer_load_dwordx4 {vr(PG,4)}, v{PADR}, {srd(R_WS)}, s{S_TMP+5} offen sc1"]
    def send_cp(kk):
        kk(f"s_mov_b32 exec_lo, 0x55555555")
        kk(f"s_mov_b32 exec_hi, 0x55555555")
        kk(f"buffer_store_dword v{PKEEP}, v{PKEEP+1}, {srd(R_WS)}, s{S_KEEP} offen sc1")
        kk(f"s_mov_b64 exec, -1")
    gather_loop(k, "cp", loads, lambda kk: sentinel_check(kk, [PG, PG + 1, PG + 2, PG + 3]), 10,
                fast=(floads, 16) if use_fast() else None, after_fast=send_cp if use_fast() else None)
    for ct in range(10):
        k(f"v_mfma_f32_16x16x32_bf16 {vr(PD+4*ct,4)}, {vr(PG,4)}, {vr(PWO+4*ct,4)}, 0")
    for ct in range(10):
        k(f"v_add_f32 v{PD+4*ct}, v{PD+4*ct}, v{PD+4*ct+1}")
        k(f"v_add_f32 v{PD+4*ct+2}, v{PD+4*ct+2}, v{PD+4*ct+3}")
        k(f"v_add_f32 v{PD+4*ct}, v{PD+4*ct}, v{PD+4*ct+2}")
    for u in range(5):
        k(f"v_cndmask_b32 v{PY+u}, v{PD+8*u}, v{PD+8*u+4}, s[{S_M+4}:{S_M+5}]")
    k(f"ds_write2st64_b32 v{PADR+3}, v{PY}, v{PY+1} offset0:0 offset1:1")
    k(f"ds_write2st64_b32 v{PADR+3}, v{PY+2}, v{PY+3} offset0:2 offset1:3")
    k(f"ds_write_b32 v{PADR+3}, v{PY+4} offset:1024")
    k("s_waitcnt lgkmcnt(0)")
    k("s_barrier")
    k(f"ds_read2st64_b32 {vr(t,2)}, v{PADR+2} offset0:0 offset1:5")
    k(f"ds_read2st64_b32 {vr(t+2,2)}, v{PADR+2} offset0:10 offset1:15")
    k(f"ds_read2st64_b32 {vr(t+4,2)}, v{PADR+4} offset0:0 offset1:5")
    k(f"ds_read2st64_b32 {vr(t+6,2)}, v{PADR+4} offset0:10 offset1:15")
    k("s_waitcnt lgkmcnt(2)")
    k(f"v_add_f32 v{t}, v{t}, v{t+1}")
    k(f"v_add_f32 v{t+2}, v{t+2}, v{t+3}")
    k(f"v_add_f32 v{t}, v{t}, v{t+2}")
    k(f"buffer_store_dword v{t}, v{PADR+1}, {srd(R_WS)}, s{S_TMP+2} offen sc1")
    skip = k.label("s5skip")
    k(f"s_cmp_eq_u32 s{S_WAVE}, 0")
    k(f"s_cbranch_scc0 {skip}")
    k("s_waitcnt lgkmcnt(0)")
    k(f"v_add_f32 v{t+4}, v{t+4}, v{t+5}")
    k(f"v_add_f32 v{t+6}, v{t+6}, v{t+7}")
    k(f"v_add_f32 v{t+4}, v{t+4}, v{t+6}")
    k(f"buffer_store_dword v{t+4}, v{PADR+1}, {srd(R_WS)}, s{S_TMP+1} offen sc1")
    k(f"{skip}:")
    k.stamp(11)


S_U = 73 + 7
BQ = 10
BG = 74
BD = 90
BS = 122
BP = 130
BL = 146
BADR = 150
BT = 166
BONE = 186
BAC = 190
BTR = 192
BWF = 194
BA2 = 236
BROW = 240
BWR = 196
S_WFL, S_WFO, S_WFS = 17, 22, 23
AOT_RS = 272
L_AOT = 98304
S_FLG = 14
S_AC = 14 + 2
FIRSTWAIT_AC = 1
S_B, S_G, S_UU = 66, 67, 68


def b_roles(k):
    k(f"s_sub_u32 s{S_JP}, s{S_J}, 4")
    k(f"s_and_b32 s{S_G}, s{S_JP}, 1")
    k(f"s_lshr_b32 s{S_B}, s{S_JP}, 1")
    k(f"s_lshl_b32 s{S_UU}, s{S_JP}, 5")
    k(f"s_add_u32 s{S_UU}, s{S_UU}, s{S_H}")
    k(f"s_and_b32 s{S_F}, s{S_UU}, 63")
    k(f"s_lshr_b32 s{S_TMP}, s{S_UU}, 6")
    k(f"s_add_u32 s{S_ROLE}, s{S_TMP}, 1")
    k(f"s_cmp_lt_u32 s{S_F}, {NF}")
    k(f"s_cselect_b32 s{S_ROLE}, s{S_ROLE}, 3")
    k(f"s_mul_i32 s{S_TMP}, s{S_TMP}, 10")
    k(f"s_add_u32 s{S_Z}, s{S_F}, s{S_TMP}")
    k(f"s_sub_u32 s{S_Z}, s{S_Z}, {NF}")


def clears_B(k):
    t = V_T + 4
    neg = vr(V_NEG1, 4)
    k(f"v_lshlrev_b32 v{t}, 4, v{V_LANE}")
    k(f"s_lshl_b32 s{S_TMP}, s{S_H}, 2")
    k(f"s_add_u32 s{S_TMP}, s{S_TMP}, s{S_JP}")
    k(f"s_lshl_b32 s{S_TMP}, s{S_TMP}, 14")
    k(f"s_add_u32 s{S_TMP}, s{S_TMP}, {WS_AO}")
    k(f"s_mul_i32 s{S_TMP+1}, s{S_WAVE}, 5120")
    k(f"s_add_u32 s{S_TMP}, s{S_TMP}, s{S_TMP+1}")
    k(f"s_sub_u32 s{S_TMP}, s{S_TMP}, 4096")
    for i in range(5):
        off = i * 1024
        if i == 4:
            k(f"s_add_u32 s{S_TMP}, s{S_TMP}, 4096")
            off = 0
        k(f"buffer_store_dwordx4 {neg}, v{t}, {srd(R_WS)}, s{S_TMP} offen offset:{off} sc1")
    sk = k.label("cb")
    k(f"s_cmp_eq_u32 s{S_WAVE}, 1")
    k(f"s_cbranch_scc0 {sk}_2")
    k(f"s_sub_u32 s{S_TMP}, s{S_TMP}, 5120")
    k(f"buffer_store_dwordx4 {neg}, v{t}, {srd(R_WS)}, s{S_TMP} offen sc1")
    k(f"s_branch {sk}")
    k(f"{sk}_2:")
    k(f"s_cmp_eq_u32 s{S_WAVE}, 2")
    k(f"s_cbranch_scc0 {sk}")
    k(f"s_cmp_eq_u32 s{S_ROLE}, 2")
    k(f"s_cbranch_scc0 {sk}")
    k(f"s_mul_i32 s{S_TMP}, s{S_F}, 5120")
    k(f"s_add_u32 s{S_TMP}, s{S_TMP}, {WS_FP}")
    for i in range(5):
        off = i * 1024
        if i == 4:
            k(f"s_add_u32 s{S_TMP}, s{S_TMP}, 4096")
            off = 0
        k(f"buffer_store_dwordx4 {neg}, v{t}, {srd(R_WS)}, s{S_TMP} offen offset:{off} sc1")
    k(f"{sk}:")


def tag_store(k, base, shift, treg, only_wave=None, jreg=None):
    k(f"s_lshl_b32 s{S_TMP+3}, s{S_H}, 2")
    k(f"s_add_u32 s{S_TMP+3}, s{S_TMP+3}, s{S_JP if jreg is None else jreg}")
    k(f"s_lshl_b32 s{S_TMP+3}, s{S_TMP+3}, {shift}")
    k(f"s_add_u32 s{S_TMP+3}, s{S_TMP+3}, {base}")
    if only_wave is not None:
        k(f"s_cmp_eq_u32 s{S_WAVE}, {only_wave}")
        k(f"s_cselect_b32 s{S_TMP+3}, s{S_TMP+3}, 0x7f000000")
    k(f"v_mov_b32 v{treg}, s{S_T0}")
    k(f"v_mov_b32 v{treg+1}, s{S_T1}")
    k(f"v_mov_b32 v{treg+2}, 0")
    k(f"s_mov_b64 exec, 1")
    k(f"buffer_store_dwordx2 {vr(treg,2)}, v{treg+2}, {srd(R_WS)}, s{S_TMP+3} offen sc1")
    k(f"s_mov_b64 exec, -1")


def ac_publish(k):
    sk = k.label("acp")
    k(f"s_cmp_eq_u32 s{S_WAVE}, 1")
    k(f"s_cbranch_scc0 {sk}")
    tag_store(k, WS_AC, 3, BT + 2)
    k(f"{sk}:")


S_RO, S_RL = 24, 25


def ckv_setup(k):
    k(f"s_lshl_b32 s{S_RO}, s{S_B}, 12")
    k(f"s_lshl_b32 s{S_TMP+1}, s{S_H}, 7")
    k(f"s_add_u32 s{S_RO}, s{S_RO}, s{S_TMP+1}")
    k(f"s_lshl_b32 s{S_TMP+1}, s{S_WAVE}, 5")
    k(f"s_add_u32 s{S_RO}, s{S_RO}, s{S_TMP+1}")
    k(f"s_lshl_b32 s{S_RO}, s{S_RO}, 10")
    k(f"s_mul_i32 s{S_RL}, s{S_WAVE}, {32*RS}")
    k(f"s_add_u32 s{S_RL}, s{S_RL}, {L_CKV}")
    k(f"v_lshlrev_b32 v{BROW}, 4, v{V_LANE}")
    k(f"s_mul_i32 s{S_TMP+3}, s{S_G}, {16*1024}")
    k(f"s_add_u32 s{S_RO}, s{S_RO}, s{S_TMP+3}")
    k(f"s_mul_i32 s{S_TMP+3}, s{S_G}, {16*RS}")
    k(f"s_add_u32 s{S_RL}, s{S_RL}, s{S_TMP+3}")
    if K.opt.get("g1skip"):
        k(f"s_cmp_eq_u32 s{S_G}, 1")
        k(f"s_cselect_b32 s{R_A+2}, 0, s{R_A+2}")


def flags_setup(k):
    k(f"v_lshlrev_b32 v{BADR+15}, 3, v{V_LANE}")
    k(f"s_lshl_b32 s{S_AC}, s{S_G}, 9")
    k(f"s_add_u32 s{S_FLG}, s{S_AC}, {WS_PC}")
    k(f"s_add_u32 s{S_AC}, s{S_AC}, {WS_AC}")


def ckv_rows(k, r0, r1):
    for r in range(r0, r1):
        if r == 8:
            sk = k.label("acw")
            k(f"s_cmp_eq_u32 s{S_WAVE}, 0")
            k(f"s_cbranch_scc1 {sk}")
            k("s_waitcnt vmcnt(8)")
            epoch_tags(k, VE)
            k(f"{sk}:")
            k("s_barrier")
            ac_publish(k)
            flags_setup(k)
        if r == flag_row():
            k(flag_load())
            k(ac_load())
        if r == 16 and K.opt.get("halfstamp"):
            k.stamp(15)
        if r == 24 and K.opt.get("halfstamp"):
            k.stamp(16)
        if r == 16:
            k(f"s_mul_i32 s{S_TMP+3}, s{S_G}, {32*1024}")
            k(f"s_sub_u32 s{S_RO}, s{S_RO}, s{S_TMP+3}")
            k(f"s_mul_i32 s{S_TMP+3}, s{S_G}, {32*RS}")
            k(f"s_sub_u32 s{S_RL}, s{S_RL}, s{S_TMP+3}")
        nin = int(K.opt.get("infl", 8))
        if nin and r >= nin and r != 8:
            k(f"s_waitcnt vmcnt({nin - 1 + (2 if flag_row() <= r < flag_row() + nin else 0)})")
        k(f"s_mov_b32 m0, s{S_RL}")
        k(f"s_add_u32 s{S_RL}, s{S_RL}, {RS}")
        k(f"buffer_load_dwordx4 v{BROW}, {srd(R_A)}, s{S_RO} offen{nt('c') if r < 16 else (nt('d'))} lds")
        k(f"s_add_u32 s{S_RO}, s{S_RO}, 1024")
        if K.opt.get("g1skip") and r == r0 and r0 == 0:
            pass


def early_rows():
    return int(K.opt.get("erows", 0))


def flag_row():
    return int(K.opt.get("frow", FLAG_ROW))


def ntr():
    return 1 if K.opt.get("trig", "0") == "1" else 0


def flag_load():
    return f"buffer_load_dwordx2 {vr(BG,2)}, v{BADR+15}, {srd(R_WS)}, s{S_FLG} offen sc1"


def ac_load():
    return f"buffer_load_dwordx2 {vr(BAC,2)}, v{BADR+15}, {srd(R_WS)}, s{S_AC} offen sc1"


def flags_poll(k):
    gather_loop(k, "fl", [flag_load(), ac_load()], lambda kk: tag_check(kk, [(BG, BG+1), (BAC, BAC+1)]), 14, preissued=True, firstwait=32 - flag_row() + ntr())


def nwf_early():
    return int(K.opt.get("nwfe", NWF_EARLY))


def wf_load(k, i):
    if K.opt.get("nowf"):
        return
    if i >= int(K.opt.get("wfn", 10)):
        return
    k(f"buffer_load_dwordx4 {vr(BWR+4*i,4)}, v{BWF}, {srd(R_B)}, s{S_WFO} offen{nt('2')}")
    if i < 9:
        k(f"s_add_u32 s{S_WFO}, s{S_WFO}, s{S_WFS}")


def attention_setup(k):
    t = BT
    k(f"s_lshl_b32 s{S_TMP}, s{S_WAVE}, 5")
    k(f"v_add_u32 v{t}, s{S_TMP}, v{V_L15}")
    k(f"v_mul_u32_u24 v{t}, {RS}, v{t}")
    k(f"v_lshl_add_u32 v{t}, v{V_SLAB}, 8, v{t}")
    k(f"v_and_b32 v{t+1}, 1, v{V_SLAB}")
    k(f"v_lshlrev_b32 v{t+1}, 4, v{t+1}")
    k(f"s_mul_i32 s{S_TMP}, s{S_G}, {16*RS}")
    k(f"s_sub_u32 s{S_TMP+1}, {16*RS}, s{S_TMP}")
    k(f"v_add_u32 v{BADR}, v{t}, v{t+1}")
    k(f"v_sub_u32 v{BADR+1}, v{t}, v{t+1}")
    k(f"v_add_u32 v{BA2}, s{S_TMP+1}, v{BADR}")
    k(f"v_add_u32 v{BA2+1}, s{S_TMP+1}, v{BADR+1}")
    k(f"v_add_u32 v{BADR}, s{S_TMP}, v{BADR}")
    k(f"v_add_u32 v{BADR+1}, s{S_TMP}, v{BADR+1}")
    k(f"v_mul_u32_u24 v{t}, {RS}, v{V_L15}")
    k(f"v_lshl_add_u32 v{t}, v{V_SLAB}, 8, v{t}")
    k(f"v_add_u32 v{t}, {L_QB}, v{t}")
    k(f"v_add_u32 v{BADR+2}, v{t}, v{t+1}")
    k(f"v_sub_u32 v{BADR+3}, v{t}, v{t+1}")
    k(f"v_lshrrev_b32 v{t}, 2, v{V_L15}")
    k(f"v_lshl_add_u32 v{t}, v{V_SLAB}, 2, v{t}")
    k(f"v_mul_u32_u24 v{t}, {RS}, v{t}")
    k(f"v_and_b32 v{t+1}, 3, v{V_L15}")
    k(f"v_lshl_add_u32 v{t}, v{t+1}, 3, v{t}")
    k(f"s_lshl_b32 s{S_TMP}, s{S_WAVE}, 8")
    k(f"v_add_u32 v{t}, s{S_TMP}, v{t}")
    k(f"s_mul_i32 s{S_TMP}, s{S_G}, {16*RS}")
    k(f"s_sub_u32 s{S_TMP+1}, {16*RS}, s{S_TMP}")
    k(f"v_add_u32 v{BADR+4}, s{S_TMP}, v{t}")
    k(f"v_add_u32 v{BADR+5}, {64*RS}, v{BADR+4}")
    k(f"v_add_u32 v{BA2+2}, s{S_TMP+1}, v{t}")
    k(f"v_add_u32 v{BA2+3}, {64*RS}, v{BA2+2}")
    k(f"v_lshlrev_b32 v{BADR+6}, 4, v0")
    k(f"s_mul_i32 s{S_TMP}, s{S_WAVE}, {RS}")
    k(f"s_add_u32 s{S_TMP}, s{S_TMP}, {L_QB}")
    k(f"v_lshlrev_b32 v{t}, 4, v{V_LANE}")
    k(f"v_add_u32 v{BADR+7}, s{S_TMP}, v{t}")
    k(f"v_lshlrev_b32 v{t+1}, 2, v{V_LANE}")
    k(f"s_lshl_b32 s{S_TMP}, s{S_WAVE}, 8")
    k(f"s_add_u32 s{S_TMP}, s{S_TMP}, {L_MX}")
    k(f"v_add_u32 v{BADR+8}, s{S_TMP}, v{t+1}")
    k(f"v_add_u32 v{BADR+9}, {L_MX}, v{t+1}")
    k(f"s_lshl_b32 s{S_TMP}, s{S_WAVE}, 10")
    k(f"s_add_u32 s{S_TMP}, s{S_TMP}, {L_PB}")
    k(f"v_add_u32 v{BADR+10}, s{S_TMP}, v{t}")
    k(f"v_add_u32 v{BADR+11}, {L_PB}, v{t}")
    k(f"s_mul_i32 s{S_TMP}, s{S_WAVE}, {16*AOT_RS}")
    k(f"s_add_u32 s{S_TMP}, s{S_TMP}, {L_AOT}")
    k(f"v_mul_u32_u24 v{t}, {AOT_RS}, v{V_L15}")
    k(f"v_lshl_add_u32 v{t}, v{V_SLAB}, 4, v{t}")
    k(f"v_add_u32 v{BADR+12}, s{S_TMP}, v{t}")
    k(f"v_lshrrev_b32 v{t}, 3, v{V_LANE}")
    k(f"v_mul_u32_u24 v{t}, {AOT_RS}, v{t}")
    k(f"v_and_b32 v{t+1}, 7, v{V_LANE}")
    k(f"v_lshl_add_u32 v{t}, v{t+1}, 4, v{t}")
    k(f"v_add_u32 v{BTR}, s{S_TMP}, v{t}")
    k(f"v_lshrrev_b32 v{t}, 3, v{V_LANE}")
    k(f"v_lshlrev_b32 v{t}, 16, v{t}")
    k(f"v_lshl_add_u32 v{BTR+1}, v{t+1}, 4, v{t}")
    k(f"v_lshlrev_b32 v{BADR+13}, 9, v{V_L15}")
    for i in range(4):
        k(f"v_mov_b32 v{BONE+i}, 0x3f803f80")


def attention(k):
    t = BT

    def pv_read(tt, u, half):
        r = 128 + (tt * 4 + u) * 4 + 2 * half
        base = (BADR + 4 if half == 0 else BA2 + 2) + (u >> 1)
        k(f"ds_read_b64_tr_b16 {ar(r,2)}, v{base} offset:{L_CKV + (u & 1) * 32 * RS + 32 * tt}")

    def a_read(p):
        for i in range(16):
            base = (BADR if p == 0 else BA2) + (i & 1)
            k(f"ds_read_b128 {ar((p*16+i)*4,4)}, v{base} offset:{L_CKV+i*16}")

    k(f"s_waitcnt vmcnt({18 + ntr()})")
    a_read(0)
    k("s_barrier")
    for tt in range(8):
        for u in range(4):
            pv_read(tt, u, 0)
    if K.opt.get("noflags"):
        k(f"s_waitcnt vmcnt({4 + ntr()})")
    else:
        flags_poll(k)
    k(f"s_lshl_b32 s{S_TMP}, s{S_B}, 15")
    k(f"s_lshl_b32 s{S_TMP+1}, s{S_G}, 14")
    k(f"s_add_u32 s{S_TMP}, s{S_TMP}, s{S_TMP+1}")
    k(f"s_add_u32 s{S_TMP}, s{S_TMP}, {WS_QA}")
    for n in range(1, 4):
        k(f"s_add_u32 s{S_TMP+n}, s{S_TMP}, {4096*n}")
    loads = [f"buffer_load_dwordx4 {vr(BG+4*n,4)}, v{BADR+6}, {srd(R_WS)}, s{S_TMP+n} offen sc1" for n in range(4)]
    for l in loads:
        k(l)
    k(f"s_waitcnt vmcnt({4 + ntr()})")
    k.stamp(4)
    if K.opt.get("bstop"):
        k("s_branch L_done")
    a_read(1)
    gather_check_loop(k, "qa", loads, list(range(BG, BG + 16)), 5, preissued=True)
    for n in range(4):
        k(f"ds_write_b128 v{BADR+7}, {vr(BG+4*n,4)} offset:{4*n*RS}")
    k("s_waitcnt lgkmcnt(0)")
    k("s_barrier")
    for i in range(16):
        k(f"ds_read_b128 {vr(BQ+4*i,4)}, v{BADR+2+(i&1)} offset:{i*16}")
    for i in range(16):
        if i < 8:
            k(f"s_waitcnt lgkmcnt({15-i})")
        elif i == 8:
            k("s_waitcnt lgkmcnt(0)")
        for p in range(2):
            c = "0" if i == 0 else vr(BS + 4 * p, 4)
            k(f"v_mfma_f32_16x16x32_bf16 {vr(BS+4*p,4)}, {ar((p*16+i)*4,4)}, {vr(BQ+4*i,4)}, {c}")
        if i >= 8:
            for u in range(4):
                pv_read(i - 8, u, 1)
        if (i & 1) and (i >> 1) < nwf_early():
            wf_load(k, i >> 1)
    k.nop(8)
    k.stamp(6)
    k(f"v_max3_f32 v{t}, v{BS}, v{BS+1}, v{BS+2}")
    k(f"v_max3_f32 v{t+1}, v{BS+3}, v{BS+4}, v{BS+5}")
    k(f"v_max3_f32 v{t}, v{t}, v{BS+6}, v{BS+7}")
    k(f"v_max_f32 v{t}, v{t}, v{t+1}")
    for sw in ("v_permlane16_swap_b32", "v_permlane32_swap_b32"):
        k(f"v_mov_b32 v{t+1}, v{t}")
        k.nop(2)
        k(f"{sw} v{t}, v{t+1}")
        k.nop(1)
        k(f"v_max_f32 v{t}, v{t}, v{t+1}")
    k(f"ds_write_b32 v{BADR+8}, v{t}")
    k("s_waitcnt lgkmcnt(0)")
    k("s_barrier")
    k(f"ds_read2st64_b32 {vr(t,2)}, v{BADR+9} offset0:0 offset1:1")
    k(f"ds_read2st64_b32 {vr(t+2,2)}, v{BADR+9} offset0:2 offset1:3")
    k("s_waitcnt lgkmcnt(0)")
    k(f"v_max3_f32 v{t}, v{t}, v{t+1}, v{t+2}")
    k(f"v_max_f32 v{t+4}, v{t}, v{t+3}")
    for i in range(8):
        k(f"v_sub_f32 v{BS+i}, v{BS+i}, v{t+4}")
    for i in range(8):
        k(f"v_exp_f32 v{BS+i}, v{BS+i}")
    k.nop(1)
    for i in range(4):
        k(f"v_cvt_pk_bf16_f32 v{t+i}, v{BS+2*i}, v{BS+2*i+1}")
    k(f"ds_write_b128 v{BADR+10}, {vr(t,4)}")
    k("s_waitcnt lgkmcnt(0)")
    k("s_barrier")
    k.stamp(7)
    for u in range(4):
        k(f"ds_read_b128 {vr(BP+4*u,4)}, v{BADR+11} offset:{1024*u}")
    k(f"s_lshl_b32 s{S_TMP}, s{S_G}, 20")
    k(f"s_lshl_b32 s{S_TMP+1}, s{S_WAVE}, 14")
    k(f"s_add_u32 s{S_TMP}, s{S_TMP}, s{S_TMP+1}")
    k(f"s_lshl_b32 s{S_TMP+1}, s{S_B}, 5")
    k(f"s_add_u32 s{S_TMP+1}, s{S_TMP+1}, s{S_H}")
    k(f"s_lshl_b32 s{S_TMP+2}, s{S_TMP+1}, 8")
    k(f"s_add_u32 s{S_TMP}, s{S_TMP}, s{S_TMP+2}")
    k(f"s_add_u32 s{S_TMP}, s{S_TMP}, {WS_AO}")
    k(f"s_lshl_b32 s{S_TMP+1}, s{S_TMP+1}, 3")
    k(f"s_lshl_b32 s{S_TMP+2}, s{S_G}, 13")
    k(f"s_add_u32 s{S_TMP+1}, s{S_TMP+1}, s{S_TMP+2}")
    k(f"s_add_u32 s{S_TMP+1}, s{S_TMP+1}, {WS_ST}")
    def conv(up):
        r = BQ + 4 * up
        return [f"v_cvt_pk_bf16_f32 v{r}, v{BD+8*up}, v{BD+8*up+1}",
                f"v_cvt_pk_bf16_f32 v{r+1}, v{BD+8*up+2}, v{BD+8*up+3}",
                f"v_cvt_pk_bf16_f32 v{r+2}, v{BD+8*up+4}, v{BD+8*up+5}",
                f"v_cvt_pk_bf16_f32 v{r+3}, v{BD+8*up+6}, v{BD+8*up+7}",
                f"ds_write_b128 v{BADR+12}, {vr(r,4)} offset:{64*up}"]

    def half_read(y):
        return [f"ds_read_b128 {vr(BQ+16+8*y+4*x,4)}, v{BTR} offset:{x*8*AOT_RS + y*128}" for x in range(2)]

    def half_store(y, x):
        return f"buffer_store_dwordx4 {vr(BQ+16+8*y+4*x,4)}, v{BTR+1}, {srd(R_WS)}, s{S_TMP+2*x} offen offset:{y*128} sc1"

    k(f"s_add_u32 s{S_TMP+2}, s{S_TMP}, {8*65536}")
    k(f"s_cmp_eq_u32 s{S_WAVE}, 0")
    k(f"s_cselect_b32 s{S_TMP+1}, s{S_TMP+1}, 0x7f000000")
    for u in range(4):
        k(f"s_waitcnt lgkmcnt({3-u})")
        c = "0" if u == 0 else vr(BL, 4)
        k(f"v_mfma_f32_16x16x32_bf16 {vr(BL,4)}, {vr(BONE,4)}, {vr(BP+4*u,4)}, {c}")
    for up in range(4):
        extra = conv(up - 2) if up >= 2 else []
        if up == 1:
            extra = [f"v_mov_b32 v{t+5}, v{BL}",
                     f"s_mov_b64 exec, 0xffff\nbuffer_store_dwordx2 {vr(t+4,2)}, v{BADR+13}, {srd(R_WS)}, s{S_TMP+1} offen sc1\ns_mov_b64 exec, -1\ns_nop 3"]
        for u in range(4):
            for tt in (2 * up, 2 * up + 1):
                c = "0" if u == 0 else vr(BD + 4 * tt, 4)
                k(f"v_mfma_f32_16x16x32_bf16 {vr(BD+4*tt,4)}, {ar(128+(tt*4+u)*4,4)}, {vr(BP+4*u,4)}, {c}")
                if extra:
                    k(extra.pop(0))
    k("s_waitcnt lgkmcnt(0)")
    for l in half_read(0):
        k(l)
    for l in conv(2):
        k(l)
    k.nop(1)
    for l in conv(3):
        k(l)
    k("s_waitcnt lgkmcnt(3)")
    k(half_store(0, 0))
    k("s_waitcnt lgkmcnt(2)")
    k(half_store(0, 1))
    k("s_waitcnt lgkmcnt(0)")
    for l in half_read(1):
        k(l)
    k("s_waitcnt lgkmcnt(1)")
    k(half_store(1, 0))
    k("s_waitcnt lgkmcnt(0)")
    k(half_store(1, 1))
    for i in range(nwf_early(), 10):
        wf_load(k, i)
    k.stamp(8)
    if K.opt.get("aoack"):
        k("s_waitcnt vmcnt(0)")
        k.stamp(17)


def silu(k, v, t):
    k(f"v_mul_f32 v{t}, 0xbfb8aa3b, v{v}")
    k(f"v_exp_f32 v{t}, v{t}")
    k.nop(1)
    k(f"v_add_f32 v{t}, 1.0, v{t}")
    k(f"v_rcp_f32 v{t}, v{t}")
    k.nop(1)
    k(f"v_mul_f32 v{v}, v{v}, v{t}")


def round_bf16(k, v):
    k(f"v_cvt_pk_bf16_f32 v{v}, v{v}, v{v}")
    k(f"v_and_b32 v{v}, 0xffff0000, v{v}")


FW1 = 10
FW2 = 50
FX = 90
FD = 110
FH = 150
FADR = 176
FT = 166


def wf_setup(k):
    k(f"s_mul_i32 s{S_WFL}, s{S_WAVE}, 10240")
    k(f"s_add_u32 s{S_WFL}, s{S_WFL}, {L_WF}")
    k.srd(R_B, S_W2, 1728 * 640 * 2)
    k(f"s_cmp_eq_u32 s{S_ROLE}, 2")
    k(f"s_cselect_b32 s{R_B+2}, {1728 * 640 * 2}, 0")
    k(f"v_lshlrev_b32 v{BWF}, 4, v{V_LANE}")
    k(f"s_mul_i32 s{S_WFO}, s{S_F}, 40960")
    k(f"s_mul_i32 s{S_TMP}, s{S_WAVE}, 10240")
    k(f"s_add_u32 s{S_WFO}, s{S_WFO}, s{S_TMP}")
    k(f"s_mov_b32 s{S_WFS}, 1024")


def ffn1(k):
    t = FT
    k(f"v_and_b32 v{t}, 1, v{V_LANE}")
    k(f"v_mul_u32_u24 v{t}, 1280, v{t}")
    k(f"v_lshl_add_u32 v{t}, v{V_SLAB}, 3, v{t}")
    k(f"s_mul_i32 s{S_TMP}, s{S_WAVE}, 320")
    k(f"s_add_u32 s{S_TMP}, s{S_TMP}, {L_XN}")
    k(f"v_add_u32 v{FADR}, s{S_TMP}, v{t}")
    for i in range(5):
        k(f"ds_read_b64 {vr(FX+4*i,2)}, v{FADR} offset:{64*i}")
        k(f"ds_read_b64 {vr(FX+4*i+2,2)}, v{FADR} offset:{64*i+32}")
    k(f"v_lshrrev_b32 v{t}, 2, v{V_L15}")
    k(f"v_lshl_add_u32 v{t}, v{V_SLAB}, 2, v{t}")
    k(f"v_and_b32 v{t+1}, 3, v{V_L15}")
    k(f"v_lshlrev_b32 v{t+2}, 6, v{t}")
    k(f"v_lshl_add_u32 v{t+2}, v{t+1}, 3, v{t+2}")
    k(f"s_mul_i32 s{S_TMP}, s{S_WAVE}, 10240")
    k(f"s_add_u32 s{S_TMP}, s{S_TMP}, {L_WF}")
    k(f"v_add_u32 v{FADR+1}, s{S_TMP}, v{t+2}")
    k(f"v_lshlrev_b32 v{t+2}, 2, v{V_LANE}")
    k(f"s_lshl_b32 s{S_TMP}, s{S_WAVE}, 8")
    k(f"s_add_u32 s{S_TMP}, s{S_TMP}, {L_FRED}")
    k(f"v_add_u32 v{FADR+3}, s{S_TMP}, v{t+2}")
    k(f"v_add_u32 v{FADR+4}, {L_FRED}, v{t+2}")
    k(f"v_lshrrev_b32 v{t+2}, 2, v{V_L15}")
    k(f"v_lshlrev_b32 v{t+2}, 1, v{t+2}")
    k(f"v_lshrrev_b32 v{t+3}, 1, v{V_SLAB}")
    k(f"v_add_u32 v{t+2}, v{t+2}, v{t+3}")
    k(f"v_and_b32 v{t+3}, 1, v{V_SLAB}")
    k(f"v_lshl_add_u32 v{t+2}, v{t+3}, 3, v{t+2}")
    k(f"v_lshlrev_b32 v{FADR+5}, 4, v{t+2}")
    k(f"s_lshl_b32 s{S_TMP+2}, s{S_F}, 8")
    k(f"s_add_u32 s{S_TMP+2}, s{S_TMP+2}, {WS_HO}")
    k(f"s_mov_b32 s{S_M+2}, 0xffff0000")
    k(f"s_mov_b32 s{S_M+3}, 0xffff0000")
    k(f"s_mov_b32 s{S_M+4}, 0")
    k(f"s_mov_b32 s{S_M+5}, -1")
    k("s_waitcnt vmcnt(5)")
    k(f"v_lshlrev_b32 v{t+9}, 4, v{V_LANE}")
    k(f"v_add_u32 v{t+9}, s{S_WFL}, v{t+9}")
    for i in range(10):
        k(f"ds_write_b128 v{t+9}, {vr(BWR+4*i,4)} offset:{1024*i}")
    k("s_waitcnt lgkmcnt(0)")
    k.stamp(9)
    for i in range(5):
        for ct in range(2):
            r = FW1 + (i * 2 + ct) * 4
            k(f"ds_read_b64_tr_b16 {vr(r,2)}, v{FADR+1} offset:{i*2048+32*ct}")
            k(f"ds_read_b64_tr_b16 {vr(r+2,2)}, v{FADR+1} offset:{i*2048+32*ct+1024}")
    k("s_waitcnt lgkmcnt(0)")
    for i in range(5):
        for ct in range(2):
            c = "0" if i == 0 else vr(FD + 4 * ct, 4)
            k(f"v_mfma_f32_16x16x32_bf16 {vr(FD+4*ct,4)}, {vr(FX+4*i,4)}, {vr(FW1+(i*2+ct)*4,4)}, {c}")
    k.nop(8)
    k(f"v_cndmask_b32 v{t}, v{FD}, v{FD+1}, s[{S_M+2}:{S_M+3}]")
    k(f"v_cndmask_b32 v{t+1}, v{FD+4}, v{FD+5}, s[{S_M+2}:{S_M+3}]")
    k(f"v_cndmask_b32 v{t}, v{t}, v{t+1}, s[{S_M+4}:{S_M+5}]")
    k(f"ds_write_b32 v{FADR+3}, v{t}")
    k("s_waitcnt lgkmcnt(0)")
    k("s_barrier")
    sk = k.label("f1")
    k(f"s_cmp_eq_u32 s{S_WAVE}, 0")
    k(f"s_cbranch_scc0 {sk}")
    k(f"ds_read2st64_b32 {vr(t,2)}, v{FADR+4} offset0:0 offset1:1")
    k(f"ds_read2st64_b32 {vr(t+2,2)}, v{FADR+4} offset0:2 offset1:3")
    k("s_waitcnt lgkmcnt(0)")
    k(f"v_add_f32 v{t}, v{t}, v{t+1}")
    k(f"v_add_f32 v{t+2}, v{t+2}, v{t+3}")
    k(f"v_add_f32 v{t}, v{t}, v{t+2}")
    round_bf16(k, t)
    silu(k, t, t + 1)
    k(f"v_cvt_pk_bf16_f32 v{t}, v{t}, v{t}")
    k(f"v_and_b32 v{t}, 0xffff, v{t}")
    k.nop(2)
    k(f"v_mov_b32_dpp v{t+1}, v{t} quad_perm:[1,0,3,2] row_mask:0xf bank_mask:0xf")
    k(f"v_lshl_or_b32 v{t+2}, v{t+1}, 16, v{t}")
    k.nop(2)
    k(f"v_mov_b32_dpp v{t+3}, v{t+2} quad_perm:[2,3,0,1] row_mask:0xf bank_mask:0xf")
    k(f"v_mov_b32 v{t+4}, s{S_T0}")
    k(f"v_mov_b32 v{t+5}, s{S_T1}")
    k(f"s_mov_b32 exec_lo, 0x11111111")
    k(f"s_mov_b32 exec_hi, 0x11111111")
    k(f"buffer_store_dwordx4 {vr(t+2,4)}, v{FADR+5}, {srd(R_WS)}, s{S_TMP+2} offen sc1")
    k(f"s_mov_b64 exec, -1")
    k(f"{sk}:")
    k.stamp(10)


def ffn2(k):
    t = FT
    k(f"v_lshrrev_b32 v{t}, 2, v{V_L15}")
    k(f"v_lshl_add_u32 v{t}, v{V_SLAB}, 2, v{t}")
    k(f"v_and_b32 v{t+1}, 3, v{V_L15}")
    k(f"v_mul_u32_u24 v{t+2}, {W2RS}, v{t}")
    k(f"v_lshl_add_u32 v{t+2}, v{t+1}, 3, v{t+2}")
    k(f"s_mul_i32 s{S_TMP}, s{S_WAVE}, 320")
    k(f"s_add_u32 s{S_TMP}, s{S_TMP}, {L_WF}")
    k(f"v_add_u32 v{FADR+2}, s{S_TMP}, v{t+2}")
    k(f"v_lshrrev_b32 v{t+2}, 5, v{V_LANE}")
    k(f"v_lshlrev_b32 v{t+2}, 10, v{t+2}")
    k(f"v_and_b32 v{t+3}, 31, v{V_LANE}")
    k(f"v_lshl_add_u32 v{FADR+6}, v{t+3}, 4, v{t+2}")
    k(f"s_lshr_b32 s{S_TMP+3}, s{S_F}, 1")
    k(f"s_lshl_b32 s{S_TMP+3}, s{S_TMP+3}, 12")
    k(f"s_and_b32 s{S_TMP+4}, s{S_F}, 1")
    k(f"s_lshl_b32 s{S_TMP+4}, s{S_TMP+4}, 9")
    k(f"s_add_u32 s{S_TMP+3}, s{S_TMP+3}, s{S_TMP+4}")
    k(f"s_add_u32 s{S_TMP+3}, s{S_TMP+3}, {WS_HP}")
    k(f"v_bfe_u32 v{t+2}, v{V_LANE}, 2, 2")
    k(f"v_lshlrev_b32 v{t+2}, 3, v{t+2}")
    k(f"v_bfe_u32 v{t+3}, v{V_LANE}, 4, 1")
    k(f"v_lshl_add_u32 v{t+2}, v{t+3}, 2, v{t+2}")
    k(f"v_and_b32 v{t+3}, 3, v{V_LANE}")
    k(f"v_add_u32 v{t+2}, v{t+2}, v{t+3}")
    k(f"v_lshrrev_b32 v{t+3}, 5, v{V_LANE}")
    k(f"v_lshl_add_u32 v{t+2}, v{t+3}, 5, v{t+2}")
    k(f"v_lshlrev_b32 v{t+2}, 1, v{t+2}")
    k(f"s_lshl_b32 s{S_TMP+4}, s{S_WAVE}, 7")
    k(f"s_add_u32 s{S_TMP+4}, s{S_TMP+4}, {L_FRED}")
    k(f"v_add_u32 v{FADR+3}, s{S_TMP+4}, v{t+2}")
    k(f"v_and_b32 v{t+2}, 1, v{V_LANE}")
    k(f"v_lshlrev_b32 v{t+2}, 6, v{t+2}")
    k(f"v_lshl_add_u32 v{t+2}, v{V_SLAB}, 4, v{t+2}")
    k(f"v_add_u32 v{FADR+4}, s{S_TMP+4}, v{t+2}")
    k(f"v_lshlrev_b32 v{FADR+7}, 3, v{V_LANE}")
    k(f"s_mul_i32 s{S_TMP+2}, s{S_F}, 5120")
    k(f"s_mul_i32 s{S_TMP+1}, s{S_WAVE}, 1280")
    k(f"s_add_u32 s{S_TMP+2}, s{S_TMP+2}, s{S_TMP+1}")
    k(f"s_add_u32 s{S_TMP+2}, s{S_TMP+2}, {WS_FP}")
    k(f"s_mov_b32 s{S_M+2}, 0xffff0000")
    k(f"s_mov_b32 s{S_M+3}, 0xffff0000")
    k(f"s_mov_b32 s{S_M+4}, 0")
    k(f"s_mov_b32 s{S_M+5}, -1")
    H = FH + 2
    loads = [f"buffer_load_dwordx4 {vr(H,4)}, v{FADR+6}, {srd(R_WS)}, s{S_TMP+3} offen sc1",
             f"buffer_load_dwordx4 {vr(H+4,4)}, v{FADR+6}, {srd(R_WS)}, s{S_TMP+3} offen offset:2048 sc1"]
    for l in loads:
        k(l)
    k(f"s_mul_i32 s{S_TMP+4}, s{S_WAVE}, {8*W2RS}")
    k(f"s_add_u32 s{S_TMP+4}, s{S_TMP+4}, {L_WF}")
    k(f"s_movk_i32 s{S_TMP+1}, 205")
    for i in range(10):
        k(f"v_add_u32 v{t+8}, {64*i}, v{V_LANE}")
        k(f"v_mul_u32_u24 v{t+9}, s{S_TMP+1}, v{t+8}")
        k(f"v_lshrrev_b32 v{t+9}, 14, v{t+9}")
        k(f"v_lshlrev_b32 v{t+9}, 5, v{t+9}")
        k(f"v_lshl_add_u32 v{t+9}, v{t+8}, 4, v{t+9}")
        k(f"v_add_u32 v{FX+i}, s{S_TMP+4}, v{t+9}")
    k(f"s_waitcnt vmcnt({5 + 10 - nwf_early() + 2})")
    for i in range(nwf_early()):
        k(f"ds_write_b128 v{FX+i}, {vr(BWR+4*i,4)}")
    k("s_waitcnt vmcnt(2)")
    for i in range(nwf_early(), 10):
        k(f"ds_write_b128 v{FX+i}, {vr(BWR+4*i,4)}")
    gather_loop(k, "ho", loads, lambda kk: tag_check(kk, [(H+2, H+3), (H+6, H+7)]), 10, preissued=True)
    k(f"v_add_f32 v{H}, v{H}, v{H+4}")
    k(f"v_add_f32 v{H+1}, v{H+1}, v{H+5}")
    k.nop(2)
    k(f"v_permlane32_swap_b32 v{H}, v{H+1}")
    k.nop(1)
    k(f"v_add_f32 v{H}, v{H}, v{H+1}")
    round_bf16(k, H)
    silu(k, H, H + 1)
    k(f"v_cvt_pk_bf16_f32 v{H}, v{H}, v{H}")
    k(f"ds_write_b16 v{FADR+3}, v{H}")
    k("s_waitcnt lgkmcnt(0)")
    k("s_barrier")
    k.stamp(9)
    k(f"ds_read_b128 {vr(H,4)}, v{FADR+4}")
    for ct in range(10):
        r = FW2 + 4 * ct
        k(f"ds_read_b64_tr_b16 {vr(r,2)}, v{FADR+2} offset:{32*ct}")
        k(f"ds_read_b64_tr_b16 {vr(r+2,2)}, v{FADR+2} offset:{32*ct+16*W2RS}")
    k("s_waitcnt lgkmcnt(0)")
    for ct in range(10):
        k(f"v_mfma_f32_16x16x32_bf16 {vr(FD+4*ct,4)}, {vr(H,4)}, {vr(FW2+4*ct,4)}, 0")
    k.nop(8)
    for q in range(3):
        for bb in range(2):
            a0, a1 = FD + 16 * q + bb, FD + 16 * q + 4 + bb
            k(f"v_cndmask_b32 v{t+2*q+bb}, v{a0}, v{a1}, s[{S_M+2}:{S_M+3}]")
            if q < 2:
                a2, a3 = FD + 16 * q + 8 + bb, FD + 16 * q + 12 + bb
                k(f"v_cndmask_b32 v{t+8}, v{a2}, v{a3}, s[{S_M+2}:{S_M+3}]")
                k(f"v_cndmask_b32 v{t+2*q+bb}, v{t+2*q+bb}, v{t+8}, s[{S_M+4}:{S_M+5}]")
    k(f"buffer_store_dwordx2 {vr(t,2)}, v{FADR+7}, {srd(R_WS)}, s{S_TMP+2} offen sc1")
    k(f"buffer_store_dwordx2 {vr(t+2,2)}, v{FADR+7}, {srd(R_WS)}, s{S_TMP+2} offen offset:512 sc1")
    k(f"s_mov_b32 exec_hi, 0")
    k(f"buffer_store_dwordx2 {vr(t+4,2)}, v{FADR+7}, {srd(R_WS)}, s{S_TMP+2} offen offset:1024 sc1")
    k(f"s_mov_b64 exec, -1")
    k.stamp(11)


ZG = 10
ZT = 44


def tree_reduce4(k, g, t):
    k.nop(2)
    k(f"v_permlane32_swap_b32 v{g}, v{g+2}")
    k(f"v_permlane32_swap_b32 v{g+1}, v{g+3}")
    k.nop(1)
    k(f"v_add_f32 v{g}, v{g}, v{g+2}")
    k(f"v_add_f32 v{g+1}, v{g+1}, v{g+3}")
    k.nop(2)
    k(f"v_permlane16_swap_b32 v{g}, v{g+1}")
    k.nop(1)
    k(f"v_add_f32 v{t}, v{g}, v{g+1}")
    k.nop(2)
    k(f"v_add_f32_dpp v{t}, v{t}, v{t} row_ror:8 row_mask:0xf bank_mask:0xf")


def final(k):
    t = ZT
    k(f"s_lshl_b32 s{S_TMP}, s{S_Z}, 1")
    k(f"s_and_b32 s{S_TMP+1}, s{S_WAVE}, 1")
    k(f"s_add_u32 s{S_TMP}, s{S_TMP}, s{S_TMP+1}")
    k(f"s_lshl_b32 s{S_TMP+1}, s{S_TMP+1}, 8")
    k(f"s_add_u32 s{S_TMP+1}, s{S_TMP+1}, {L_FRED}")
    k(f"v_lshlrev_b32 v{t+11}, 2, v{V_LANE}")
    k(f"v_add_u32 v{t+11}, s{S_TMP+1}, v{t+11}")
    k(f"v_and_b32 v{t}, 7, v{V_LANE}")
    k(f"v_lshrrev_b32 v{t+1}, 1, v{V_SLAB}")
    k(f"v_lshl_add_u32 v{t}, v{t}, 1, v{t+1}")
    k(f"v_and_b32 v{t+1}, 1, v{V_SLAB}")
    k(f"v_mul_u32_u24 v{t+1}, 640, v{t+1}")
    k(f"v_add_u32 v{t}, v{t}, v{t+1}")
    k(f"v_lshlrev_b32 v{t}, 1, v{t}")
    k(f"s_lshl_b32 s{S_TMP+1}, s{S_TMP}, 5")
    k(f"buffer_load_ushort v{t+2}, v{t}, {srd(R_X)}, s{S_TMP+1} offen")
    k(f"v_and_b32 v{t+3}, 7, v{V_LANE}")
    k(f"v_lshlrev_b32 v{t+3}, 2, v{t+3}")
    k(f"v_and_b32 v{t+4}, 1, v{V_SLAB}")
    k(f"v_mul_u32_u24 v{t+4}, 1280, v{t+4}")
    k(f"v_add_u32 v{t+3}, v{t+3}, v{t+4}")
    if K.opt.get("outtouch", "1") == "1":
        k(f"buffer_load_dword v252, v{t+3}, {srd(R_OUT)}, s{S_TMP+1} offen")
    k(f"v_lshrrev_b32 v{t+4}, 3, v{V_LANE}")
    k(f"v_mul_u32_u24 v{t+4}, 5120, v{t+4}")
    k(f"v_and_b32 v{t+5}, 7, v{V_LANE}")
    k(f"v_lshl_add_u32 v{t+4}, v{t+5}, 4, v{t+4}")
    k(f"s_lshl_b32 s{S_TMP+2}, s{S_TMP}, 7")
    k(f"v_lshlrev_b32 v{t+5}, 3, v{V_LANE}")
    loads = []
    for i in range(2):
        k(f"s_mov_b32 s{4+i}, {WS_PC + i*512}")
        loads.append(f"buffer_load_dwordx2 {vr(ZG+2*i,2)}, v{t+5}, {srd(R_WS)}, s{4+i} offen sc1")
    gather_loop(k, "zf", loads, lambda kk: tag_check(kk, [(ZG+2*i, ZG+2*i+1) for i in range(2)]))
    k(f"s_cmp_ge_u32 s{S_WAVE}, 2")
    k(f"s_cbranch_scc1 L_Z_s")
    k(f"v_cmp_gt_u32 vcc, {NF}, v{V_LANE}")
    k.nop(2)
    k(f"v_cndmask_b32 v{t+5}, 0, v{V_LANE}, vcc")
    k(f"v_bfe_u32 v{t+6}, v{t+5}, 5, 1")
    k(f"v_lshlrev_b32 v{t+6}, 13, v{t+6}")
    k(f"v_and_b32 v{t+5}, 31, v{t+5}")
    k(f"v_lshl_add_u32 v{t+5}, v{t+5}, 3, v{t+6}")
    k(f"s_mov_b32 s4, {WS_ST + 256}")
    gather_check_loop(k, "zs", [f"buffer_load_dwordx2 {vr(ZG,2)}, v{t+5}, {srd(R_WS)}, s4 offen sc1"], [ZG, ZG + 1])
    k(f"s_add_u32 s{S_TMP+3}, s{S_TMP+2}, {WS_FP}")
    k(f"v_add_u32 v{t+5}, s{S_TMP+3}, v{t+4}")
    k(f"v_add_u32 v{t+6}, {48*5120}, v{t+5}")
    k(f"v_cmp_gt_u32 vcc, 48, v{V_LANE}")
    k(f"s_mov_b64 s[{S_M+2}:{S_M+3}], vcc")
    k.nop(2)
    k(f"v_cndmask_b32 v{t+6}, v{t+5}, v{t+6}, vcc")
    loads = []
    for i in range(6):
        k(f"s_mov_b32 s{4+i}, {i*8*5120}")
        loads.append(f"buffer_load_dwordx4 {vr(ZG+4*i,4)}, v{t+5}, {srd(R_WS)}, s{4+i} offen sc1")
    last = f"buffer_load_dwordx4 {vr(ZG+24,4)}, v{t+6}, {srd(R_WS)}, 0 offen sc1"
    gather_check_loop(k, "fp", loads + [last], list(range(ZG, ZG + 28)), 14)
    for c in range(4):
        k(f"v_cndmask_b32 v{ZG+24+c}, 0, v{ZG+24+c}, s[{S_M+2}:{S_M+3}]")
    for c in range(4):
        k(f"v_add_f32 v{ZG+c}, v{ZG+c}, v{ZG+4+c}")
        k(f"v_add_f32 v{ZG+8+c}, v{ZG+8+c}, v{ZG+12+c}")
        k(f"v_add_f32 v{ZG+16+c}, v{ZG+16+c}, v{ZG+20+c}")
    for c in range(4):
        k(f"v_add_f32 v{ZG+c}, v{ZG+c}, v{ZG+8+c}")
        k(f"v_add_f32 v{ZG+16+c}, v{ZG+16+c}, v{ZG+24+c}")
    for c in range(4):
        k(f"v_add_f32 v{ZG+c}, v{ZG+c}, v{ZG+16+c}")
    tree_reduce4(k, ZG, t + 8)
    round_bf16(k, t + 8)
    silu(k, t + 8, t + 9)
    round_bf16(k, t + 8)
    k(f"ds_write_b32 v{t+11}, v{t+8}")
    k("s_waitcnt lgkmcnt(0)")
    k("s_barrier")
    k("s_branch L_done")
    k("L_Z_s:")
    k(f"v_lshlrev_b32 v{t+2}, 16, v{t+2}")
    k(f"s_add_u32 s{S_TMP+3}, s{S_TMP+2}, {WS_SP}")
    k(f"v_add_u32 v{t+5}, s{S_TMP+3}, v{t+4}")
    loads = []
    for i in range(4):
        k(f"s_mov_b32 s{4+i}, {i*8*5120}")
        loads.append(f"buffer_load_dwordx4 {vr(ZG+4*i,4)}, v{t+5}, {srd(R_WS)}, s{4+i} offen sc1")
    gather_check_loop(k, "sp", loads, list(range(ZG, ZG + 16)), 15)
    skip = k.label("ep")
    k(f"s_cmp_eq_u32 s{S_TMP}, 0")
    k(f"s_cbranch_scc0 {skip}")
    k(f"v_mov_b32 v{t}, 0")
    k(f"v_mov_b32 v{t+1}, s{S_T0}")
    k(f"s_mov_b64 exec, 1")
    k(f"buffer_store_dword v{t+1}, v{t}, {srd(R_WS)}, 0 offen offset:{WS_EPOCH}")
    k(f"s_mov_b64 exec, -1")
    k(f"{skip}:")
    for c in range(4):
        k(f"v_add_f32 v{ZG+c}, v{ZG+c}, v{ZG+4+c}")
        k(f"v_add_f32 v{ZG+8+c}, v{ZG+8+c}, v{ZG+12+c}")
    for c in range(4):
        k(f"v_add_f32 v{ZG+c}, v{ZG+c}, v{ZG+8+c}")
    tree_reduce4(k, ZG, t + 9)
    round_bf16(k, t + 9)
    k("s_barrier")
    k(f"ds_read_b32 v{t+8}, v{t+11}")
    k("s_waitcnt lgkmcnt(0)")
    k(f"v_mul_f32 v{t+9}, v{t+9}, v{t+8}")
    round_bf16(k, t + 9)
    k(f"v_add_f32 v{t+9}, v{t+9}, v{t+2}")
    k(f"v_cvt_pk_bf16_f32 v{t+9}, v{t+9}, v{t+9}")
    k(f"v_mov_b32 v{t+10}, v{t+9}")
    k.nop(2)
    k(f"v_permlane32_swap_b32 v{t+9}, v{t+10}")
    k.nop(1)
    k(f"v_and_b32 v{t+9}, 0xffff, v{t+9}")
    k(f"v_lshl_or_b32 v{t+9}, v{t+10}, 16, v{t+9}")
    k(f"s_mov_b32 exec_lo, 0x00ff00ff")
    k(f"s_mov_b32 exec_hi, 0")
    k(f"s_lshl_b32 s{S_TMP+1}, s{S_TMP}, 5")
    k(f"buffer_store_dword v{t+9}, v{t+3}, {srd(R_OUT)}, s{S_TMP+1} offen")
    k(f"s_mov_b64 exec, -1")
    k.stamp(16)
    if K.opt.get("diag"):
        sk = k.label("dg")
        k(f"s_cmp_eq_u32 s{S_TMP}, 0")
        k(f"s_cbranch_scc0 {sk}")
        k(f"v_mov_b32 v{t}, 0")
        k(f"buffer_load_dword v{t+1}, v{t}, s[92:95], 0 offen sc1")
        k("s_waitcnt vmcnt(0)")
        k(f"v_readfirstlane_b32 s96, v{t+1}")
        k("s_memrealtime s[98:99]")
        k("s_waitcnt lgkmcnt(0)")
        k("s_not_b32 s96, s96")
        k("s_sub_u32 s97, s98, s96")
        mode = K.opt["diag"]
        if mode == "k0":
            k("s_mov_b32 s97, 0")
        elif mode == "k1":
            pass
        elif mode == "t1000":
            k("s_mov_b32 s97, 1000")
        if mode.startswith("cyc"):
            n = int(mode[3:])
            k(f"s_mov_b32 s97, {n}")
            lp = k.label("cy")
            k(f"{lp}:")
            k("s_nop 15")
            k("s_nop 15")
            k("s_sub_u32 s97, s97, 1")
            k("s_cmp_lg_u32 s97, 0")
            k(f"s_cbranch_scc1 {lp}")
        else:
            k("s_min_u32 s97, s97, 20000")
            k("s_add_u32 s97, s97, s98")
            lp = k.label("sp")
            k(f"{lp}:")
            k("s_memrealtime s[98:99]")
            k("s_waitcnt lgkmcnt(0)")
            k("s_sub_u32 s96, s97, s98")
            k("s_cmp_gt_i32 s96, 0")
            k(f"s_cbranch_scc1 {lp}")
        k(f"{sk}:")


def dump_stamps(k):
    if not k.stamps:
        return
    k("s_waitcnt vmcnt(0) lgkmcnt(0)")
    k.stamp(19)
    k(f"s_lshl_b32 s{S_TMP}, s2, 2")
    k(f"s_add_u32 s{S_TMP}, s{S_TMP}, s{S_WAVE}")
    k(f"s_lshl_b32 s{S_TMP}, s{S_TMP}, 7")
    k(f"s_add_u32 s{S_TMP}, s{S_TMP}, {WS_STAMP}")
    for i in range(20):
        k(f"v_mov_b32 v{10+i}, s{S_STAMP+i}")
    k(f"s_getreg_b32 s{S_TMP+1}, hwreg(HW_REG_XCC_ID)")
    k(f"v_mov_b32 v30, s{S_TMP+1}")
    k(f"v_mov_b32 v31, s{S_CNT}")
    k(f"v_mov_b32 v4, 0")
    k(f"s_mov_b64 exec, 1")
    for i in range(6):
        k(f"buffer_store_dwordx4 {vr(10+4*i,4)}, v4, {srd(R_WS)}, s{S_TMP} offen offset:{16*i}")
    k(f"s_mov_b64 exec, -1")


def build(stamps=False):
    k = K(stamps)
    hdr = open("recurrent_scan__compressed_kv_cla__dense_activation_silu__decode.s.ref").read()
    comments = [l for l in hdr.split("\n") if l.startswith(";") and "@launch" not in l and "Override" not in l and "grid=ceil" not in l]
    out = "\n".join(comments) + "\n"
    out += f"; @launch grid=(256,1,1) block=(256,1,1) lds={LDS_BYTES}\n"
    out += f""".amdgcn_target "amdgcn-amd-amdhsa--gfx950"
.text
.globl {NAME}
.p2align 8
.type {NAME},@function
{NAME}:
"""
    if stamps:
        for i in range(20):
            k(f"s_mov_b32 s{S_STAMP+i}, 0")
    if K.opt.get("diag"):
        k("s_memrealtime s[100:101]")
    prologue(k)
    if K.opt.get("diag"):
        k.srd(92, S_DBG, 256)
        k("s_cmp_lt_u32 s2, 8")
        k("s_cbranch_scc0 L_nodiag")
        k("s_not_b32 s100, s100")
        k("v_mov_b32 v8, s100")
        k("v_mov_b32 v9, 0")
        k("s_mov_b64 exec, 1")
        k("buffer_atomic_umax v8, v9, s[92:95], 0 offen")
        k("s_mov_b64 exec, -1")
        k("L_nodiag:")
    if K.opt.get("bdirect"):
        k(f"s_cmp_ge_u32 s{S_J}, 4")
        k(f"s_cbranch_scc0 L_done")
        k(f"s_mov_b32 s{S_T0}, 0")
        k(f"s_mov_b32 s{S_T1}, 0")
        k(f"v_mov_b32 v{VE}, 0")
        k("s_branch L_B")
    if K.opt.get("pnone"):
        k(f"s_cmp_lt_u32 s{S_J}, 4")
        k(f"s_cbranch_scc1 L_done")
    k(f"s_cmp_eq_u32 s{S_WAVE}, 0")
    k(f"s_cbranch_scc0 L_w123")
    stage1_issue(k)
    k("s_barrier")
    k("s_branch L_w0")
    k("L_w123:")
    k(f"v_mov_b32 v{V_T}, 0")
    k(f"buffer_load_dword v{VE}, v{V_T}, {srd(R_WS)}, 0 offen offset:{WS_EPOCH} sc1")
    if K.opt.get("tlb", "1") == "1":
        sk = k.label("tlb")
        k(f"s_cmp_eq_u32 s{S_WAVE}, 2")
        k(f"s_cbranch_scc0 {sk}")
        k(f"v_lshlrev_b32 v{V_T+1}, 20, v{V_LANE}")
        for ptr, size in ((S_CKV, 2*4096*512*2), (S_WUV, 512*4096*2), (S_WO, 4096*640*2), (S_W1, 640*1728*2), (S_W2, 1728*640*2)):
            k.srd(R_B, ptr, size)
            k(f"buffer_load_dword v252, v{V_T+1}, {srd(R_B)}, 0 offen")
        if K.opt.get("wstouch", "1") == "1":
            k(f"v_lshlrev_b32 v{V_T+1}, 16, v{V_LANE}")
            k(f"buffer_load_dword v252, v{V_T+1}, {srd(R_WS)}, 0 offen")
        k(f"{sk}:")
    k(f"s_cmp_ge_u32 s{S_J}, 4")
    k(f"s_cbranch_scc1 L_Bw123")
    k(f"v_mov_b32 v{VPUB}, 0")
    for i in range(4):
        k(f"v_mov_b32 v{VD1+4+i}, 0")
    k(f"s_mov_b32 s{S_PUB}, 0x7f000000")
    k.srd(R_A, S_WUK, 512 * 4096 * 2)
    skc = k.label("pcl")
    k(f"s_cmp_eq_u32 s{S_WAVE}, 3")
    k(f"s_cbranch_scc0 {skc}")
    clears_P(k)
    k(f"{skc}:")
    k("s_barrier")
    wuk_issue(k)
    if K.opt.get("wukstamp"):
        k.stamp(2)
    k("s_waitcnt vmcnt(11)")
    epoch_tags(k, VE)
    skp = k.label("pcf")
    k(f"s_cmp_eq_u32 s{S_WAVE}, 3")
    k(f"s_cbranch_scc0 {skp}")
    tag_store(k, WS_PC, 3, PT + 2, jreg=S_J)
    k(f"{skp}:")
    k("s_branch L_P_join")
    k("L_Bw123:")
    b_roles(k)
    k.srd(R_A, S_CKV, 2 * 4096 * 512 * 2)
    ckv_setup(k)
    k("s_barrier")
    if not K.opt.get("noclr"):
        clears_B(k)
    ne = early_rows()
    if ne:
        k(f"s_cmp_ge_u32 s{S_WAVE}, 2")
        k(f"s_cbranch_scc0 L_Bw1")
        ckv_rows(k, 0, ne)
        k("s_barrier")
        k("s_branch L_B_rowsE")
        k("L_Bw1:")
    k("s_barrier")
    k("s_branch L_B_rows0")
    k("L_w0:")
    stage1_selectors(k)
    layernorm(k, 1 + 20)
    k(f"s_waitcnt vmcnt(20)")
    epoch_tags(k, VE)
    stage1_publish_addr(k)
    k.stamp(2)
    stage1_mfma(k, 0)
    skb = k.label("nb")
    k(f"s_cmp_ge_u32 s{S_J}, 4")
    k(f"s_cbranch_scc0 {skb}")
    k("s_barrier")
    k(f"{skb}:")
    stage1_publish(k, 0)
    k(f"s_cmp_ge_u32 s{S_J}, 4")
    k(f"s_cbranch_scc1 L_B")
    k("L_P_join:")
    k.srd(R_B, S_WUV, 512 * 4096 * 2)
    k.srd(R_C, S_WO, 4096 * 640 * 2)
    stage2(k)
    if K.opt.get("pexit"):
        k("s_branch L_done")
    k(f"s_cmp_lt_u32 s{S_H}, 27")
    k(f"s_cbranch_scc0 L_P_nof1")
    w1p_issue(k)
    k("L_P_nof1:")
    p_weights_issue(k)
    wo_issue(k)
    stage4_setup(k)
    k(f"s_cmp_lt_u32 s{S_H}, 27")
    k(f"s_cbranch_scc0 L_P_nof2")
    ffn1p(k)
    k("s_waitcnt vmcnt(1)")
    k("s_branch L_P_wl")
    k("L_P_nof2:")
    k("s_waitcnt vmcnt(0)")
    k("L_P_wl:")
    k("s_barrier")
    k.stamp(6)
    p_weights_preread(k)
    wo_preread(k)
    stage4(k)
    stage5(k)
    k("s_branch L_done")
    k("L_B:")
    b_roles(k)
    k.srd(R_A, S_CKV, 2 * 4096 * 512 * 2)
    ckv_setup(k)
    k("L_B_rows0:")
    k.stamp(12)
    ckv_rows(k, 0, early_rows())
    k("L_B_rowsE:")
    ckv_rows(k, early_rows(), 32)
    if K.opt.get("trig", "0") == "1":
        tag_store(k, WS_TR, 6, BT + 2, only_wave=3)
    k.stamp(13)
    if K.opt.get("bdirect"):
        k("s_waitcnt vmcnt(0)")
        k.stamp(4)
        k("s_branch L_done")
    k.srd(R_OUT, S_OUT, 2560)
    wf_setup(k)
    attention_setup(k)
    attention(k)
    k("L_B_r2:")
    k(f"s_cmp_eq_u32 s{S_ROLE}, 2")
    k(f"s_cbranch_scc0 L_B_r3")
    ffn2(k)
    k("s_branch L_done")
    k("L_B_r3:")
    k(f"s_cmp_eq_u32 s{S_ROLE}, 3")
    k(f"s_cbranch_scc0 L_done")
    final(k)
    k("L_done:")
    dump_stamps(k)
    k("L_exit:")
    k("s_endpgm")
    out += k.text()
    out += f""".section .rodata,"a"
.p2align 6
.amdhsa_kernel {NAME}
  .amdhsa_next_free_vgpr 512
  .amdhsa_next_free_sgpr 102
  .amdhsa_accum_offset 256
  .amdhsa_group_segment_fixed_size 0
  .amdhsa_kernarg_size 96
  .amdhsa_user_sgpr_count 2
  .amdhsa_user_sgpr_kernarg_segment_ptr 1
  .amdhsa_system_sgpr_workgroup_id_x 1
.end_amdhsa_kernel
"""
    return out


if __name__ == "__main__":
    for a in sys.argv[1:]:
        if a.startswith("--spin="):
            SPIN_LIMIT = int(a[7:])
    stamps = "--stamps" in sys.argv
    for a in sys.argv[1:]:
        if a.startswith("--") and "=" in a:
            kk, vv = a[2:].split("=")
            K.opt[kk] = vv
    outp = [a for a in sys.argv[1:] if not a.startswith("--")]
    open(outp[0] if outp else "k.s", "w").write(build(stamps))
```

```python
import sys

NAME = "recurrent_scan__compressed_kv_cla__dense_activation_silu__decode_kernel"

WS_EPOCH = 0
WS_QP = 0x1000
WS_QA = 0x41000
WS_ST = 0x51000
WS_CP = 0x55000
WS_SP = 0x65000
WS_FP = 0x8D000
WS_AC = 0xE0000
WS_PC = 0xE2000
WS_HO = 0xE4000
WS_TR = 0xF0000
WS_CF = 0xE8000
WS_QF = 0x340000
WS_HP = 0x300000
WS_AO = 0x100000
WS_SIZE = 0x380000
WS_STAMP = 0x380000
NF = 54
S_JP = 10
S_F = 11
S_Z = 12
S_ROLE = 13

L_WUV = 0
L_WO = 32768
L_AOB = 107520
L_RED = 123904
L_CTX = 129024
L_STX = 129536
L_W1P = 130560
L_XNP = 95744
L_CKV = 0
RS = 1056
L_QB = 128 * RS
L_XN = L_QB + 16 * RS
L_MX = L_XN + 2560
L_PB = L_MX + 1024
L_END = L_PB + 4096
L_WF = 0
L_WO5 = 66560
L_FRED = 81920
L_RED5 = 123904
LDS_BYTES = 163840

SPIN_LIMIT = 100000
FLAG_ROW = 28
NWF_EARLY = 6
W2RS = 1312
QWAIT = [15 - i if i <= 8 else min(15, 15 - i) for i in range(16)]

S_X, S_CKV, S_WQ, S_WUK, S_WUV, S_WO, S_W1, S_W2, S_OUT, S_DBG, S_WSP = 4, 6, 8, 10, 12, 14, 18, 20, 22, 24, 26
R_X, R_WQ, R_WS, R_A, R_B, R_C, R_OUT = 28, 32, 36, 40, 44, 48, 52
S_WAVE, S_H, S_J, S_T0, S_T1 = 56, 57, 58, 59, 60
S_TMP = 61
S_PUB = 69
S_OFF = 70
S_CNT = 71
S_M = 72
S_STAMP = 80


CNT_SLOT = {'qp': 13, 'tr': 14, 'st': 15, 'ao': 16, 'qa': 17, 'cp': 18, 'fl': 18}


class K:
    opt = {}
    def __init__(self, stamps=False):
        self.lines = []
        self.nl = 0
        self.stamps = stamps
        self.nstamp = 0

    def __call__(self, s):
        for l in s.split("\n"):
            self.lines.append("    " + l.strip() if l.strip() and not l.strip().endswith(":") else l.strip())

    def label(self, stem):
        self.nl += 1
        return f"L_{stem}_{self.nl}"

    def nop(self, n):
        while n > 0:
            k = min(n, 16)
            self(f"s_nop {k-1}")
            n -= k

    def stamp(self, idx):
        if self.stamps:
            self(f"s_memrealtime s[100:101]")
            self("s_waitcnt lgkmcnt(0)")
            self(f"s_mov_b32 s{S_STAMP+idx}, s100")

    def srd(self, d, base, nbytes):
        self(f"s_mov_b32 s{d}, s{base}")
        self(f"s_and_b32 s{d+1}, s{base+1}, 0xffff")
        self(f"s_mov_b32 s{d+2}, {nbytes}")
        self(f"s_mov_b32 s{d+3}, 0x00020000")

    def text(self):
        return "\n".join(self.lines) + "\n"


def srd(d):
    return f"s[{d}:{d+3}]"


def vr(a, n=1):
    return f"v{a}" if n == 1 else f"v[{a}:{a+n-1}]"


def ar(a, n=1):
    return f"a{a}" if n == 1 else f"a[{a}:{a+n-1}]"


V_TID, V_LANE, V_L15, V_SLAB = 0, 1, 2, 3
V_T = 4
V_ONES = 242
V_NEG1 = 244


def spin_begin(k, cnt=S_CNT):
    k(f"s_mov_b32 s{cnt}, 0")


def spin_retry(k, top, cnt=S_CNT):
    k(f"s_add_u32 s{cnt}, s{cnt}, 1")
    k(f"s_cmp_lt_u32 s{cnt}, {SPIN_LIMIT}")
    k(f"s_cbranch_scc1 {top}")


NCH = 28


def prologue(k):
    k(f"s_cmp_ge_u32 s2, 256")
    k(f"s_cbranch_scc1 L_exit")
    if K.opt.get("perm"):
        k("s_and_b32 s3, s2, 7")
        k("s_lshl_b32 s3, s3, 5")
        k("s_lshr_b32 s2, s2, 3")
        k("s_or_b32 s2, s2, s3")
    k(f"s_load_dwordx16 s[4:19], s[0:1], 0")
    k(f"s_load_dwordx8 s[20:27], s[0:1], 64")
    k(f"v_lshrrev_b32 v{V_T}, 6, v0")
    k(f"v_and_b32 v{V_LANE}, 63, v0")
    k(f"v_readfirstlane_b32 s{S_WAVE}, v{V_T}")
    if K.opt.get("pf", "1") == "1":
        k(f"s_getpc_b64 s[{S_TMP+1}:{S_TMP+2}]")
        k(f"L_pc:")
        k(f"s_lshr_b32 s{S_TMP}, s2, 3")
        k(f"s_lshl_b32 s{S_TMP}, s{S_TMP}, 2")
        k(f"s_add_u32 s{S_TMP}, s{S_TMP}, s{S_WAVE}")
        k(f"s_cmp_lt_u32 s{S_TMP}, (L_exit-L_pc+1023)/1024")
        k(f"s_cbranch_scc0 L_nopf")
        k(f"s_lshl_b32 s{S_TMP}, s{S_TMP}, 10")
        k(f"s_min_u32 s{S_TMP}, s{S_TMP}, L_exit-L_pc-1024")
        k(f"v_lshl_add_u32 v{V_T+1}, v{V_LANE}, 4, s{S_TMP}")
        k(f"global_load_dwordx4 v[248:251], v{V_T+1}, s[{S_TMP+1}:{S_TMP+2}]")
        k(f"L_nopf:")
    k(f"v_and_b32 v{V_L15}, 15, v0")
    k(f"v_bfe_u32 v{V_SLAB}, v0, 4, 2")
    k(f"s_and_b32 s{S_H}, s2, 31")
    k(f"s_lshr_b32 s{S_J}, s2, 5")
    for i in range(4):
        k(f"v_mov_b32 v{V_NEG1+i}, -1")
    k.stamp(0)
    k(f"s_waitcnt lgkmcnt(0)")
    k.srd(R_X, S_X, 2560)
    k.srd(R_WS, S_WSP, WS_SIZE + (0x100000 if k.stamps else 0))
    k.srd(R_WQ, S_WQ, 640 * 4096 * 2)


VX = 10
VW = 20
VA = 100
VSEL = 180
VD1 = 188
VXR = 192
VE = 202
VS1 = 204
VWUK = 210


def stage1_issue(k):
    k(f"v_lshrrev_b32 v{V_T}, 5, v{V_LANE}")
    k(f"v_and_b32 v{V_T+1}, 31, v{V_LANE}")
    k(f"v_mul_u32_u24 v{V_T}, 1280, v{V_T}")
    k(f"v_mul_u32_u24 v{V_T+1}, 40, v{V_T+1}")
    k(f"v_add_u32 v{V_T}, v{V_T}, v{V_T+1}")
    k(f"v_mov_b32 v{V_T+2}, 0")
    k(f"buffer_load_dwordx4 {vr(VX,4)}, v{V_T}, {srd(R_X)}, 0 offen")
    k(f"buffer_load_dwordx4 {vr(VX+4,4)}, v{V_T}, {srd(R_X)}, 0 offen offset:16")
    k(f"buffer_load_dwordx2 {vr(VX+8,2)}, v{V_T}, {srd(R_X)}, 0 offen offset:32")
    k(f"buffer_load_dword v{VE}, v{V_T+2}, {srd(R_WS)}, 0 offen offset:{WS_EPOCH} sc1")
    k(f"s_mul_i32 s{S_TMP}, s{S_J}, {80*8192}")
    k(f"s_lshl_b32 s{S_TMP+1}, s{S_H}, 8")
    k(f"s_add_u32 s{S_TMP}, s{S_TMP}, s{S_TMP+1}")
    k(f"v_mul_u32_u24 v{V_T+3}, {20*8192}, v{V_SLAB}")
    k(f"v_lshl_add_u32 v{V_T+3}, v{V_L15}, 4, v{V_T+3}")
    k(f"v_add_u32 v{V_T+3}, s{S_TMP}, v{V_T+3}")
    k(f"s_mov_b32 s{S_OFF}, 0")
    k(f"s_movk_i32 s{S_TMP}, 0x2000")
    for t in range(20):
        k(f"buffer_load_dwordx4 {vr(VW+4*t,4)}, v{V_T+3}, {srd(R_WQ)}, s{S_OFF} offen{nt('q')}")
        if t < 19:
            k(f"s_add_u32 s{S_OFF}, s{S_OFF}, s{S_TMP}")


def epoch_tags(k, ve):
    k(f"v_readfirstlane_b32 s{S_T0}, v{ve}")
    k.nop(4)
    k(f"s_add_u32 s{S_T0}, s{S_T0}, 1")
    k(f"s_mul_i32 s{S_T1}, s{S_T0}, 0x9e3779b1")
    k(f"s_xor_b32 s{S_T1}, s{S_T1}, 0x5bd1e995")


def stage1_selectors(k):
    t = VS1
    k(f"v_and_b32 v{t}, 1, v{V_LANE}")
    k(f"v_bfe_u32 v{t+1}, v{V_LANE}, 1, 2")
    k(f"v_cmp_eq_u32 vcc, 1, v{t}")
    k(f"v_mov_b32 v{t+2}, 0x0c0c0504")
    k(f"v_mov_b32 v{t+3}, 0x05040c0c")
    k(f"v_cndmask_b32 v{t+4}, v{t+2}, v{t+3}, vcc")
    k(f"v_mov_b32 v{t+2}, 0x0c0c0706")
    k(f"v_mov_b32 v{t+3}, 0x07060c0c")
    k(f"v_cndmask_b32 v{t+5}, v{t+2}, v{t+3}, vcc")
    k(f"v_mov_b32 v{t+2}, 0x0c0c0c0c")
    for r in range(4):
        k(f"v_cmp_eq_u32 vcc, {r}, v{t+1}")
        k.nop(2)
        k(f"v_cndmask_b32 v{VSEL+2*r}, v{t+2}, v{t+4}, vcc")
        k(f"v_cndmask_b32 v{VSEL+2*r+1}, v{t+2}, v{t+5}, vcc")


def layernorm(k, nafter):
    t = VS1
    k(f"s_mov_b32 s{S_TMP}, 0x3f803f80")
    k(f"v_mov_b32 v{t}, 0")
    k(f"v_mov_b32 v{t+1}, 0")
    k(f"v_mov_b32 v{t+2}, 0")
    k(f"v_mov_b32 v{t+3}, 0")
    k(f"s_waitcnt vmcnt({nafter})")
    k.stamp(1)
    for i in range(10):
        a = t + (i & 1)
        q = t + 2 + (i & 1)
        k(f"v_dot2_f32_bf16 v{a}, v{VX+i}, s{S_TMP}, v{a}")
        k(f"v_dot2_f32_bf16 v{q}, v{VX+i}, v{VX+i}, v{q}")
    k.nop(3)
    k(f"v_add_f32 v{t}, v{t}, v{t+1}")
    k(f"v_add_f32 v{t+2}, v{t+2}, v{t+3}")
    k.nop(1)
    for rot in (8, 4, 2, 1):
        k(f"v_add_f32_dpp v{t}, v{t}, v{t} row_ror:{rot} row_mask:0xf bank_mask:0xf")
        k(f"v_add_f32_dpp v{t+2}, v{t+2}, v{t+2} row_ror:{rot} row_mask:0xf bank_mask:0xf")
        k.nop(1)
    k.nop(1)
    k(f"v_permlane16_swap_b32 v{t}, v{t+2}")
    k.nop(1)
    k(f"v_add_f32 v{t}, v{t}, v{t+2}")
    k.nop(1)
    k(f"v_mov_b32 v{t+2}, v{t}")
    k.nop(2)
    k(f"v_permlane16_swap_b32 v{t}, v{t+2}")
    k.nop(1)
    k(f"v_mul_f32 v{t}, 0x3acccccd, v{t}")
    k(f"v_mul_f32 v{t+2}, 0x3acccccd, v{t+2}")
    k(f"v_fma_f32 v{t+2}, -v{t}, v{t}, v{t+2}")
    k(f"v_max_f32 v{t+2}, 0, v{t+2}")
    k(f"v_cvt_pk_bf16_f32 v{t+1}, v{t}, v{t+2}")
    k(f"v_lshlrev_b32 v{t}, 16, v{t+1}")
    k(f"v_and_b32 v{t+2}, 0xffff0000, v{t+1}")
    k(f"v_add_f32 v{t+2}, 0x3727c5ac, v{t+2}")
    k(f"v_cvt_pk_bf16_f32 v{t+2}, v{t+2}, v{t+2}")
    k(f"v_and_b32 v{t+2}, 0xffff0000, v{t+2}")
    k(f"v_sqrt_f32 v{t+2}, v{t+2}")
    k.nop(1)
    k(f"v_cvt_pk_bf16_f32 v{t+2}, v{t+2}, v{t+2}")
    k(f"v_and_b32 v{t+2}, 0xffff0000, v{t+2}")
    k(f"v_rcp_f32 v{t+2}, v{t+2}")
    k.nop(1)
    k(f"v_mul_f32 v{t}, v{t}, v{t+2}")
    k(f"v_sub_f32 v{t}, 0, v{t}")
    for i in range(10):
        k(f"v_lshlrev_b32 v{t+3}, 16, v{VX+i}")
        k(f"v_and_b32 v{t+4}, 0xffff0000, v{VX+i}")
        k(f"v_fma_f32 v{t+3}, v{t+3}, v{t+2}, v{t}")
        k(f"v_fma_f32 v{t+4}, v{t+4}, v{t+2}, v{t}")
        k(f"v_cvt_pk_bf16_f32 v{VX+i}, v{t+3}, v{t+4}")
    k(f"v_add_u32 v{t+3}, {L_XN}, v{V_T}")
    for i in range(5):
        k(f"ds_write_b64 v{t+3}, {vr(VX+2*i,2)} offset:{8*i}")
    k(f"v_bfe_u32 v{t}, v{V_LANE}, 3, 1")
    k(f"v_mul_u32_u24 v{t}, 1280, v{t}")
    k(f"v_mul_u32_u24 v{t+1}, 40, v{V_SLAB}")
    k(f"s_mul_i32 s{S_TMP}, s{S_J}, 160")
    k(f"s_add_u32 s{S_TMP}, s{S_TMP}, {L_XN}")
    k(f"v_add3_u32 v{t}, v{t}, v{t+1}, s{S_TMP}")
    k(f"s_waitcnt lgkmcnt(0)")
    for i in range(5):
        k(f"ds_read_b64 {vr(VXR+2*i,2)}, v{t} offset:{8*i}")
    k(f"s_waitcnt lgkmcnt(0)")
    for st in range(20):
        for r in range(4):
            k(f"v_perm_b32 v{VA+4*st+r}, v{VXR+(st>>1)}, v{VXR+(st>>1)}, v{VSEL+2*r+(st&1)}")


def stage1_mfma(k, nafter):
    for st in range(20):
        k(f"s_waitcnt vmcnt({19-st+nafter})")
        c = "0" if st == 0 else vr(VD1, 4)
        k(f"v_mfma_f32_16x16x32_bf16 {vr(VD1,4)}, {vr(VA+4*st,4)}, {vr(VW+4*st,4)}, {c}")


VPUB = 206


def stage1_publish_addr(k):
    t = VS1 + 4
    k(f"v_lshrrev_b32 v{t}, 1, v{V_SLAB}")
    k(f"v_and_b32 v{t+1}, 1, v{V_SLAB}")
    k(f"v_lshlrev_b32 v{t}, 5, v{t}")
    k(f"v_lshl_add_u32 v{t}, v{V_L15}, 1, v{t}")
    k(f"v_add_u32 v{t}, v{t}, v{t+1}")
    k(f"v_lshlrev_b32 v{VPUB}, 4, v{t}")
    k(f"s_lshl_b32 s{S_PUB}, s{S_H}, 3")
    k(f"s_add_u32 s{S_PUB}, s{S_PUB}, s{S_J}")
    k(f"s_lshl_b32 s{S_PUB}, s{S_PUB}, 10")
    k(f"s_add_u32 s{S_PUB}, s{S_PUB}, {WS_QP}")
    k(f"v_mov_b32 v{VD1+6}, s{S_T0}")
    k(f"v_mov_b32 v{VD1+7}, s{S_T1}")


def stage1_publish(k, nkeep):
    k.nop(8)
    k(f"v_cvt_pk_bf16_f32 v{VD1+4}, v{VD1}, v{VD1+1}")
    k(f"v_cvt_pk_bf16_f32 v{VD1+5}, v{VD1+2}, v{VD1+3}")
    k(f"s_waitcnt vmcnt({nkeep})")
    if use_fast1():
        sk = k.label("qps")
        k(f"s_add_u32 s{S_TMP}, s{S_PUB}, {WS_QF - WS_QP}")
        k(f"buffer_store_dwordx4 {vr(VD1+4,4)}, v{VPUB}, {srd(R_WS)}, s{S_TMP} offen")
        k(f"s_cmp_ge_u32 s{S_J}, 4")
        k(f"s_cbranch_scc0 {sk}")
        k(f"buffer_store_dwordx4 {vr(VD1+4,4)}, v{VPUB}, {srd(R_WS)}, s{S_PUB} offen sc1")
        k(f"{sk}:")
    else:
        k(f"buffer_store_dwordx4 {vr(VD1+4,4)}, v{VPUB}, {srd(R_WS)}, s{S_PUB} offen sc1")
    k.stamp(3)


def sentinel_check(k, regs):
    t = V_T
    rs = list(regs)
    if len(rs) == 1:
        k(f"v_cmp_eq_u32 vcc, -1, v{rs[0]}")
        return
    if len(rs) == 2:
        k(f"v_max_u32 v{t}, v{rs[0]}, v{rs[1]}")
        rs = []
    else:
        k(f"v_max3_u32 v{t}, v{rs[0]}, v{rs[1]}, v{rs[2]}")
        rs = rs[3:]
    while len(rs) >= 2:
        k(f"v_max3_u32 v{t}, v{t}, v{rs[0]}, v{rs[1]}")
        rs = rs[2:]
    if rs:
        k(f"v_max_u32 v{t}, v{t}, v{rs[0]}")
    k(f"v_cmp_eq_u32 vcc, -1, v{t}")


def tag_check(k, pairs):
    t = V_T
    first = True
    for a, b in pairs:
        k(f"v_xor_b32 v{t+1}, s{S_T0}, v{a}")
        k(f"v_xor_b32 v{t+2}, s{S_T1}, v{b}")
        if first:
            k(f"v_or_b32 v{t}, v{t+1}, v{t+2}")
        else:
            k(f"v_or3_b32 v{t}, v{t}, v{t+1}, v{t+2}")
        first = False
    k(f"v_cmp_ne_u32 vcc, 0, v{t}")


def gather_loop(k, name, loads, check, stampidx=None, preissued=False, firstwait=0, fast=None, after_fast=None):
    chk = k.label(name)
    done = k.label(name + "d")
    spin_begin(k)
    k(f"s_mov_b64 s[{S_M}:{S_M+1}], exec")
    if fast is not None:
        floads, nfast = fast
        fchk = k.label(name + "f")
        if not preissued:
            for l in floads:
                k(l)
        k(f"{fchk}:")
        k("s_waitcnt vmcnt(0)")
        check(k)
        k(f"s_and_b64 exec, exec, vcc")
        k(f"s_cbranch_execz {done}_fast")
        k(f"s_add_u32 s{S_CNT}, s{S_CNT}, 1")
        k(f"s_cmp_ge_u32 s{S_CNT}, {nfast}")
        k(f"s_cbranch_scc1 {chk}_slow")
        for l in floads:
            k(l)
        k(f"s_branch {fchk}")
        k(f"{done}_fast:")
        k(f"s_mov_b64 exec, s[{S_M}:{S_M+1}]")
        if after_fast:
            after_fast(k)
        k(f"s_branch {done}")
        k(f"{chk}_slow:")
        if after_fast:
            k(f"s_mov_b64 s[4:5], exec")
            k(f"s_mov_b64 exec, s[{S_M}:{S_M+1}]")
            after_fast(k)
            k(f"s_mov_b64 exec, s[4:5]")
        for l in loads:
            k(l)
    elif not preissued:
        for l in loads:
            k(l)
    if firstwait:
        k(f"s_waitcnt vmcnt({firstwait})")
        k(f"s_branch {chk}_c")
    k(f"{chk}:")
    k("s_waitcnt vmcnt(0)")
    if firstwait:
        k(f"{chk}_c:")
    check(k)
    k(f"s_and_b64 exec, exec, vcc")
    k(f"s_cbranch_execz {done}")
    k(f"s_add_u32 s{S_CNT}, s{S_CNT}, 1")
    k(f"s_cmp_ge_u32 s{S_CNT}, {SPIN_LIMIT}")
    k(f"s_cbranch_scc1 {done}")
    for l in loads:
        k(l)
    k(f"s_branch {chk}")
    k(f"{done}:")
    k(f"s_mov_b64 exec, s[{S_M}:{S_M+1}]")
    if stampidx is not None:
        k.stamp(stampidx)
    if k.stamps and name in CNT_SLOT and not (K.opt.get("aoack") and name == "qa"):
        k(f"s_add_u32 s{S_STAMP+CNT_SLOT[name]}, s{S_CNT}, 1")


def nt(key):
    return " nt" if key in K.opt.get("nt", "") else ""


def use_fast():
    return K.opt.get("fast", "1") == "1"


def use_fast1():
    return K.opt.get("fast1", "1") == "1"


def gather_check_loop(k, name, loads, regs, stampidx=None, preissued=False):
    gather_loop(k, name, loads, lambda kk: sentinel_check(kk, regs), stampidx, preissued)


def clears_P(k):
    t = V_T + 4
    neg = vr(V_NEG1, 4)
    k(f"v_lshlrev_b32 v{t}, 4, v{V_LANE}")
    k(f"s_mul_i32 s{S_TMP+1}, s{S_H}, 5120")
    k(f"s_mul_i32 s{S_TMP+2}, s{S_J}, 1280")
    k(f"s_add_u32 s{S_TMP+1}, s{S_TMP+1}, s{S_TMP+2}")
    k(f"s_add_u32 s{S_TMP+1}, s{S_TMP+1}, {WS_SP}")
    k(f"buffer_store_dwordx4 {neg}, v{t}, {srd(R_WS)}, s{S_TMP+1} offen sc1")
    k(f"v_lshlrev_b32 v{t+1}, 4, v{V_L15}")
    k(f"buffer_store_dwordx4 {neg}, v{t+1}, {srd(R_WS)}, s{S_TMP+1} offen offset:1024 sc1")
    k(f"v_and_b32 v{t}, 1, v{V_SLAB}")
    k(f"v_lshlrev_b32 v{t}, 15, v{t}")
    k(f"v_lshl_add_u32 v{t}, v{V_L15}, 4, v{t}")
    k(f"s_lshl_b32 s{S_TMP+1}, s{S_H}, 10")
    k(f"s_lshl_b32 s{S_TMP+2}, s{S_J}, 8")
    k(f"s_add_u32 s{S_TMP+1}, s{S_TMP+1}, s{S_TMP+2}")
    k(f"s_add_u32 s{S_TMP+1}, s{S_TMP+1}, {WS_QA}")
    k(f"buffer_store_dwordx4 {neg}, v{t}, {srd(R_WS)}, s{S_TMP+1} offen sc1")
    k(f"s_lshl_b32 s{S_TMP}, s{S_H}, 2")
    k(f"s_add_u32 s{S_TMP}, s{S_TMP}, s{S_J}")
    k(f"v_and_b32 v{t}, 31, v{V_LANE}")
    k(f"v_lshlrev_b32 v{t}, 4, v{t}")
    k(f"s_lshl_b32 s{S_TMP+1}, s{S_TMP}, 9")
    k(f"s_add_u32 s{S_TMP+1}, s{S_TMP+1}, {WS_CP}")
    k(f"buffer_store_dwordx4 {neg}, v{t}, {srd(R_WS)}, s{S_TMP+1} offen sc1")
    if use_fast():
        k(f"s_add_u32 s{S_TMP+1}, s{S_TMP+1}, {WS_CF - WS_CP}")
        k(f"buffer_store_dwordx4 {neg}, v{t}, {srd(R_WS)}, s{S_TMP+1} offen sc1")
    k(f"s_lshl_b32 s{S_TMP+1}, s{S_H}, 9")
    k(f"s_add_u32 s{S_TMP+1}, s{S_TMP+1}, {WS_ST}")
    k(f"buffer_store_dwordx4 {neg}, v{t}, {srd(R_WS)}, s{S_TMP+1} offen sc1")


L_WUK = 32768


def wuk_issue(k):
    t = V_T + 4
    k(f"s_sub_u32 s{S_TMP+2}, s{S_WAVE}, 1")
    k(f"s_mul_i32 s{S_TMP+2}, s{S_TMP+2}, 11")
    k(f"s_mul_i32 s{S_TMP}, s{S_J}, {128*8192}")
    k(f"s_lshl_b32 s{S_TMP+1}, s{S_H}, 8")
    k(f"s_add_u32 s{S_TMP}, s{S_TMP}, s{S_TMP+1}")
    k(f"s_lshl_b32 s{S_TMP+1}, s{S_TMP+2}, 15")
    k(f"s_add_u32 s{S_TMP}, s{S_TMP}, s{S_TMP+1}")
    k(f"s_lshl_b32 s{S_TMP+1}, s{S_TMP+2}, 10")
    k(f"s_add_u32 s{S_TMP+1}, s{S_TMP+1}, {L_WUK}")
    k(f"v_lshlrev_b32 v{t+1}, 13, v{V_SLAB}")
    lp = k.label("wuk")
    k(f"s_add_u32 s{S_TMP+4}, s{S_TMP+2}, 11")
    k(f"{lp}:")
    k(f"s_and_b32 s{S_TMP+3}, s{S_TMP+2}, 3")
    k(f"s_lshl_b32 s{S_TMP+3}, s{S_TMP+3}, 2")
    k(f"v_add_u32 v{t}, s{S_TMP+3}, v{V_SLAB}")
    k(f"v_xor_b32 v{t}, v{t}, v{V_L15}")
    k(f"v_lshl_add_u32 v{t}, v{t}, 4, v{t+1}")
    k(f"s_mov_b32 m0, s{S_TMP+1}")
    k(f"s_add_u32 s{S_TMP+1}, s{S_TMP+1}, 1024")
    k(f"buffer_load_dwordx4 v{t}, {srd(R_A)}, s{S_TMP} offen{nt('k')} lds")
    k(f"s_add_u32 s{S_TMP}, s{S_TMP}, {4*8192}")
    k(f"s_add_u32 s{S_TMP+2}, s{S_TMP+2}, 1")
    k(f"s_cmp_lt_u32 s{S_TMP+2}, s{S_TMP+4}")
    k(f"s_cbranch_scc1 {lp}")


def wuk_preread(k):
    t = V_T + 4
    k(f"s_lshl_b32 s{S_TMP+4}, s{S_WAVE}, 2")
    k(f"v_add_u32 v{t}, s{S_TMP+4}, v{V_SLAB}")
    k(f"v_xor_b32 v{t}, v{t}, v{V_L15}")
    k(f"v_lshlrev_b32 v{t}, 4, v{t}")
    k(f"v_lshl_add_u32 v{t}, v{V_L15}, 8, v{t}")
    for i in range(8):
        k(f"ds_read_b128 {vr(VWUK+4*i,4)}, v{t} offset:{L_WUK+i*4096}")


PG = 10
PD = 28
PY = 68
PWV = 76
PWO = 108
PA = 148
PADR = 164
PM = 180
PT = 188
PKEEP = 206
S_KEEP = 16


def stage2(k):
    t = PT
    k(f"v_and_b32 v{t}, 7, v{V_L15}")
    k(f"v_lshlrev_b32 v{t}, 10, v{t}")
    k(f"v_lshrrev_b32 v{t+1}, 3, v{V_L15}")
    k(f"v_lshl_add_u32 v{t}, v{t+1}, 9, v{t}")
    k(f"v_lshl_add_u32 v{PADR}, v{V_SLAB}, 5, v{t}")
    k(f"s_lshl_b32 s{S_TMP}, s{S_H}, 13")
    k(f"s_lshl_b32 s{S_TMP+1}, s{S_WAVE}, 7")
    k(f"s_add_u32 s{S_TMP}, s{S_TMP}, s{S_TMP+1}")
    k(f"s_add_u32 s{S_TMP}, s{S_TMP}, {WS_QP}")
    k(f"v_lshrrev_b32 v{t}, 1, v{V_SLAB}")
    k(f"v_lshlrev_b32 v{t}, 15, v{t}")
    k(f"v_and_b32 v{t+1}, 1, v{V_SLAB}")
    k(f"v_lshl_add_u32 v{t}, v{t+1}, 5, v{t}")
    k(f"v_lshl_add_u32 v{PADR+1}, v{V_L15}, 1, v{t}")
    k(f"s_lshl_b32 s{S_TMP+2}, s{S_H}, 10")
    k(f"s_lshl_b32 s{S_TMP+3}, s{S_J}, 8")
    k(f"s_add_u32 s{S_TMP+2}, s{S_TMP+2}, s{S_TMP+3}")
    k(f"s_lshl_b32 s{S_TMP+3}, s{S_WAVE}, 6")
    k(f"s_add_u32 s{S_TMP+2}, s{S_TMP+2}, s{S_TMP+3}")
    k(f"s_add_u32 s{S_TMP+2}, s{S_TMP+2}, {WS_QA}")
    k(f"v_lshlrev_b32 v{PADR+2}, 2, v{V_LANE}")
    k(f"s_lshl_b32 s{S_TMP+3}, s{S_WAVE}, 10")
    k(f"s_add_u32 s{S_TMP+3}, s{S_TMP+3}, {L_RED}")
    k(f"v_add_u32 v{PADR+3}, s{S_TMP+3}, v{PADR+2}")
    k(f"s_lshl_b32 s{S_TMP+3}, s{S_WAVE}, 8")
    k(f"s_add_u32 s{S_TMP+3}, s{S_TMP+3}, {L_RED}")
    k(f"v_add_u32 v{PADR+2}, s{S_TMP+3}, v{PADR+2}")
    k(f"s_mov_b32 s{S_M+2}, 0x55555555")
    k(f"s_mov_b32 s{S_M+3}, 0x55555555")
    loads = [f"buffer_load_dwordx4 {vr(PG,4)}, v{PADR}, {srd(R_WS)}, s{S_TMP} offen sc1",
             f"buffer_load_dwordx4 {vr(PG+4,4)}, v{PADR}, {srd(R_WS)}, s{S_TMP} offen offset:16 sc1"]
    floads = [l.replace(f"s{S_TMP} offen", f"s{S_TMP+5} offen") for l in loads]
    k(f"s_add_u32 s{S_TMP+5}, s{S_TMP}, {WS_QF - WS_QP}")
    if not use_fast1():
        for l in loads:
            k(l)
    if K.opt.get("wukstamp"):
        k("s_waitcnt vmcnt(2)")
        k.stamp(12)
    k("s_waitcnt vmcnt(0)")
    k("s_barrier")
    wuk_preread(k)
    def send_qp(kk):
        sk = kk.label("qpw")
        kk(f"s_cmp_eq_u32 s{S_WAVE}, 0")
        kk(f"s_cbranch_scc0 {sk}")
        kk(f"buffer_store_dwordx4 {vr(VD1+4,4)}, v{VPUB}, {srd(R_WS)}, s{S_PUB} offen sc1")
        kk(f"{sk}:")
    gather_loop(k, "qp", loads, lambda kk: tag_check(kk, [(PG+2, PG+3), (PG+6, PG+7)]), 4, preissued=not use_fast1(),
                fast=(floads, 24) if use_fast1() else None, after_fast=send_qp if use_fast1() else None)
    k("s_waitcnt lgkmcnt(0)")
    k(f"v_mov_b32 v{PG+2}, v{PG+4}")
    k(f"v_mov_b32 v{PG+3}, v{PG+5}")
    k.nop(2)
    for i in range(8):
        k(f"v_mfma_f32_16x16x32_bf16 {vr(PD+4*i,4)}, {vr(PG,4)}, {vr(VWUK+4*i,4)}, 0")
    k.nop(1)
    for i in range(8):
        if i == 7:
            pass
        k(f"v_add_f32 v{PD+4*i}, v{PD+4*i}, v{PD+4*i+1}")
        k(f"v_add_f32 v{PD+4*i+2}, v{PD+4*i+2}, v{PD+4*i+3}")
        k(f"v_add_f32 v{PD+4*i}, v{PD+4*i}, v{PD+4*i+2}")
    k.nop(2)
    for u in range(4):
        k(f"v_permlane16_swap_b32 v{PD+8*u}, v{PD+8*u+4}")
    k.nop(1)
    for u in range(4):
        k(f"v_add_f32 v{PY+u}, v{PD+8*u}, v{PD+8*u+4}")
    k(f"ds_write2st64_b32 v{PADR+3}, v{PY}, v{PY+1} offset0:0 offset1:1")
    k(f"ds_write2st64_b32 v{PADR+3}, v{PY+2}, v{PY+3} offset0:2 offset1:3")
    k("s_waitcnt lgkmcnt(0)")
    k("s_barrier")
    k(f"ds_read2st64_b32 {vr(t,2)}, v{PADR+2} offset0:0 offset1:4")
    k(f"ds_read2st64_b32 {vr(t+2,2)}, v{PADR+2} offset0:8 offset1:12")
    k("s_waitcnt lgkmcnt(0)")
    k(f"v_add_f32 v{t}, v{t}, v{t+1}")
    k(f"v_add_f32 v{t+2}, v{t+2}, v{t+3}")
    k(f"v_add_f32 v{t}, v{t}, v{t+2}")
    k(f"v_mul_f32 v{t}, 0x3e0293ee, v{t}")
    k.nop(2)
    k(f"v_mov_b32_dpp v{t+1}, v{t} quad_perm:[1,0,3,2] row_mask:0xf bank_mask:0xf")
    k(f"v_cvt_pk_bf16_f32 v{t}, v{t}, v{t+1}")
    k(f"s_mov_b64 exec, s[{S_M+2}:{S_M+3}]")
    k(f"buffer_store_dword v{t}, v{PADR+1}, {srd(R_WS)}, s{S_TMP+2} offen sc1")
    k(f"s_mov_b64 exec, -1")
    k.stamp(5)


def p_weights_issue(k):
    t = PT
    if K.opt.get("trig", "0") == "1":
        k(f"s_and_b32 s{S_TMP}, s{S_H}, 7")
        k(f"s_lshl_b32 s{S_TMP}, s{S_TMP}, 8")
        k(f"s_add_u32 s{S_TMP}, s{S_TMP}, {WS_TR}")
        k(f"v_lshrrev_b32 v{t}, 2, v{V_L15}")
        k(f"v_lshlrev_b32 v{t}, 11, v{t}")
        k(f"v_and_b32 v{t+1}, 3, v{V_L15}")
        k(f"v_lshl_add_u32 v{t}, v{t+1}, 6, v{t}")
        sk = k.label("trw")
        k(f"s_cmp_eq_u32 s{S_WAVE}, 0")
        k(f"s_cbranch_scc0 {sk}")
        k(f"s_mov_b64 exec, 0xffff")
        gather_loop(k, "tr", [f"buffer_load_dwordx2 {vr(t+2,2)}, v{t}, {srd(R_WS)}, s{S_TMP} offen sc1"], lambda kk: tag_check(kk, [(t+2, t+3)]), 12)
        k(f"s_mov_b64 exec, -1")
        k(f"{sk}:")
        k("s_barrier")
    for par in range(2):
        k(f"v_add_u32 v{t}, {4*par}, v{V_SLAB}")
        k(f"v_lshlrev_b32 v{t}, 1, v{t}")
        k(f"v_xor_b32 v{t}, v{t}, v{V_L15}")
        k(f"v_lshlrev_b32 v{t}, 4, v{t}")
        k(f"v_lshl_add_u32 v{PADR+4+par}, v{V_SLAB}, 13, v{t}")
    k(f"s_mul_i32 s{S_TMP}, s{S_J}, {128*8192}")
    k(f"s_lshl_b32 s{S_TMP+1}, s{S_H}, 8")
    k(f"s_add_u32 s{S_TMP}, s{S_TMP}, s{S_TMP+1}")
    k(f"s_lshl_b32 s{S_TMP+1}, s{S_WAVE}, 18")
    k(f"s_add_u32 s{S_TMP}, s{S_TMP}, s{S_TMP+1}")
    k(f"s_lshl_b32 s{S_TMP+1}, s{S_WAVE}, 13")
    k(f"s_add_u32 s{S_TMP+1}, s{S_TMP+1}, {L_WUV}")
    for ii in range(8):
        k(f"s_mov_b32 m0, s{S_TMP+1}")
        k(f"s_add_u32 s{S_TMP+1}, s{S_TMP+1}, 1024")
        k(f"buffer_load_dwordx4 v{PADR+4+(ii&1)}, {srd(R_B)}, s{S_TMP} offen{nt('v')} lds")
        k(f"s_add_u32 s{S_TMP}, s{S_TMP}, {4*8192}")


def w1p_issue(k):
    t = PT
    k.srd(R_WQ, S_W1, 640 * 1728 * 2)
    k(f"v_lshrrev_b32 v{t}, 3, v{V_LANE}")
    k(f"v_mul_u32_u24 v{t}, 3456, v{t}")
    k(f"v_and_b32 v{t+1}, 7, v{V_LANE}")
    k(f"v_lshl_add_u32 v{t}, v{t+1}, 4, v{t}")
    k(f"s_mul_i32 s{S_TMP}, s{S_J}, {160*3456}")
    k(f"s_mul_i32 s{S_TMP+1}, s{S_WAVE}, {40*3456}")
    k(f"s_add_u32 s{S_TMP}, s{S_TMP}, s{S_TMP+1}")
    k(f"s_lshl_b32 s{S_TMP+1}, s{S_H}, 7")
    k(f"s_add_u32 s{S_TMP}, s{S_TMP}, s{S_TMP+1}")
    k(f"s_mul_i32 s{S_TMP+1}, s{S_WAVE}, 5120")
    k(f"s_add_u32 s{S_TMP+1}, s{S_TMP+1}, {L_W1P}")
    for i in range(5):
        k(f"s_mov_b32 m0, s{S_TMP+1}")
        k(f"s_add_u32 s{S_TMP+1}, s{S_TMP+1}, 1024")
        k(f"buffer_load_dwordx4 v{t}, {srd(R_WQ)}, s{S_TMP} offen{nt('1')} lds")
        k(f"s_add_u32 s{S_TMP}, s{S_TMP}, {8*3456}")


def ffn1p(k):
    t = PT
    X, W, D = 28, 48, 68
    k(f"v_and_b32 v{t}, 1, v{V_LANE}")
    k(f"v_mul_u32_u24 v{t}, 1280, v{t}")
    k(f"v_lshl_add_u32 v{t}, v{V_SLAB}, 3, v{t}")
    k(f"s_mul_i32 s{S_TMP}, s{S_J}, 320")
    k(f"s_add_u32 s{S_TMP}, s{S_TMP}, {L_XN}")
    k(f"v_add_u32 v{t}, s{S_TMP}, v{t}")
    for i in range(5):
        k(f"ds_read_b64 {vr(X+4*i,2)}, v{t} offset:{64*i}")
        k(f"ds_read_b64 {vr(X+4*i+2,2)}, v{t} offset:{64*i+32}")
    k(f"v_lshrrev_b32 v{t+1}, 2, v{V_L15}")
    k(f"v_lshl_add_u32 v{t+1}, v{V_SLAB}, 2, v{t+1}")
    k(f"v_lshlrev_b32 v{t+1}, 7, v{t+1}")
    k(f"v_and_b32 v{t+2}, 3, v{V_L15}")
    k(f"v_lshl_add_u32 v{t+1}, v{t+2}, 3, v{t+1}")
    k(f"s_lshl_b32 s{S_TMP}, s{S_WAVE}, 5")
    k(f"s_add_u32 s{S_TMP}, s{S_TMP}, {L_W1P}")
    k(f"v_add_u32 v{t+1}, s{S_TMP}, v{t+1}")
    k(f"v_lshlrev_b32 v{t+2}, 4, v{V_L15}")
    k(f"s_lshl_b32 s{S_TMP}, s{S_H}, 2")
    k(f"s_add_u32 s{S_TMP}, s{S_TMP}, s{S_J}")
    k(f"s_lshl_b32 s{S_TMP}, s{S_TMP}, 10")
    k(f"s_lshl_b32 s{S_TMP+1}, s{S_WAVE}, 8")
    k(f"s_add_u32 s{S_TMP}, s{S_TMP}, s{S_TMP+1}")
    k(f"s_add_u32 s{S_TMP}, s{S_TMP}, {WS_HP}")
    k("s_waitcnt vmcnt(18)")
    k("s_barrier")
    for i in range(5):
        k(f"ds_read_b64_tr_b16 {vr(W+4*i,2)}, v{t+1} offset:{i*4096}")
        k(f"ds_read_b64_tr_b16 {vr(W+4*i+2,2)}, v{t+1} offset:{i*4096+2048}")
    k("s_waitcnt lgkmcnt(0)")
    for i in range(5):
        c = "0" if i == 0 else vr(D, 4)
        k(f"v_mfma_f32_16x16x32_bf16 {vr(D,4)}, {vr(X+4*i,4)}, {vr(W+4*i,4)}, {c}")
    k.nop(8)
    k(f"v_mov_b32 v{D+2}, s{S_T0}")
    k(f"v_mov_b32 v{D+3}, s{S_T1}")
    k(f"s_mov_b64 exec, 0xffff")
    k(f"buffer_store_dwordx4 {vr(D,4)}, v{t+2}, {srd(R_WS)}, s{S_TMP} offen sc1")
    k(f"s_mov_b64 exec, -1")


def p_weights_preread(k):
    t = PT
    k(f"v_lshrrev_b32 v{t}, 2, v{V_L15}")
    k(f"v_and_b32 v{t+1}, 3, v{V_L15}")
    k(f"v_lshl_add_u32 v{t+2}, v{V_SLAB}, 2, v{t}")
    k(f"v_and_b32 v{t+3}, 7, v{t+2}")
    k(f"v_lshlrev_b32 v{t+3}, 1, v{t+3}")
    k(f"v_lshrrev_b32 v{t+4}, 1, v{t+1}")
    k(f"v_and_b32 v{t+5}, 1, v{t+1}")
    k(f"s_lshl_b32 s{S_TMP}, s{S_WAVE}, 2")
    for d in range(2):
        k(f"v_add_u32 v{t+6}, s{S_TMP}, v{t+4}")
        if d:
            k(f"v_add_u32 v{t+6}, 2, v{t+6}")
        k(f"v_xor_b32 v{t+6}, v{t+6}, v{t+3}")
        k(f"v_lshlrev_b32 v{t+6}, 4, v{t+6}")
        k(f"v_lshl_add_u32 v{t+6}, v{t+5}, 3, v{t+6}")
        k(f"v_lshl_add_u32 v{PADR+6+d}, v{t+2}, 8, v{t+6}")
    for d in range(2):
        for kk in range(4):
            r = PWV + (d * 4 + kk) * 4
            k(f"ds_read_b64_tr_b16 {vr(r,2)}, v{PADR+6+d} offset:{L_WUV+kk*8192}")
            k(f"ds_read_b64_tr_b16 {vr(r+2,2)}, v{PADR+6+d} offset:{L_WUV+kk*8192+4096}")


def wo_issue(k):
    t = PT
    k(f"s_mul_i32 s{S_TMP}, s{S_H}, {128*1280}")
    k(f"s_mul_i32 s{S_TMP+1}, s{S_J}, 320")
    k(f"s_add_u32 s{S_TMP}, s{S_TMP}, s{S_TMP+1}")
    k(f"s_mul_i32 s{S_TMP+1}, s{S_WAVE}, 640")
    k(f"v_add_u32 v{t}, s{S_TMP+1}, v{V_LANE}")
    k(f"s_mul_i32 s{S_TMP+1}, s{S_WAVE}, 10240")
    k(f"s_add_u32 s{S_TMP+1}, s{S_TMP+1}, {L_WO5}")
    k(f"s_movk_i32 s{S_TMP+2}, 3277")
    k(f"s_movk_i32 s{S_TMP+3}, 960")
    for ii in range(10):
        k(f"v_mul_u32_u24 v{t+1}, s{S_TMP+2}, v{t}")
        k(f"v_lshrrev_b32 v{t+1}, 16, v{t+1}")
        k(f"v_mul_u32_u24 v{t+1}, s{S_TMP+3}, v{t+1}")
        k(f"v_lshl_add_u32 v{t+2+(ii&1)}, v{t}, 4, v{t+1}")
        k(f"s_mov_b32 m0, s{S_TMP+1}")
        k(f"s_add_u32 s{S_TMP+1}, s{S_TMP+1}, 1024")
        k(f"buffer_load_dwordx4 v{t+2+(ii&1)}, {srd(R_C)}, s{S_TMP} offen{nt('o')} lds")
        k(f"v_add_u32 v{t}, 64, v{t}")


def wo_preread(k):
    t = PT
    k(f"v_lshrrev_b32 v{t}, 2, v{V_L15}")
    k(f"v_and_b32 v{t+1}, 3, v{V_L15}")
    k(f"v_lshl_add_u32 v{t+2}, v{V_SLAB}, 2, v{t}")
    k(f"s_lshl_b32 s{S_TMP}, s{S_WAVE}, 5")
    k(f"v_add_u32 v{t+6}, s{S_TMP}, v{t+2}")
    k(f"v_mul_u32_u24 v{t+6}, 320, v{t+6}")
    k(f"v_lshl_add_u32 v{PADR+8}, v{t+1}, 3, v{t+6}")
    k(f"v_add_u32 v{PADR+8}, {L_WO5}, v{PADR+8}")
    for ct in range(10):
        r = PWO + 4 * ct
        k(f"ds_read_b64_tr_b16 {vr(r,2)}, v{PADR+8} offset:{32*ct}")
        k(f"ds_read_b64_tr_b16 {vr(r+2,2)}, v{PADR+8} offset:{32*ct+5120}")


def reduce_bits(k, op, v, tmp):
    for mod in ("quad_perm:[1,0,3,2]", "quad_perm:[2,3,0,1]", "row_half_mirror"):
        k.nop(2)
        k(f"{op}_dpp v{v}, v{v}, v{v} {mod} row_mask:0xf bank_mask:0xf")
    for sw in ("v_permlane16_swap_b32", "v_permlane32_swap_b32"):
        k(f"v_mov_b32 v{tmp}, v{v}")
        k.nop(2)
        k(f"{sw} v{v}, v{tmp}")
        k.nop(1)
        k(f"{op} v{v}, v{v}, v{tmp}")


def stage4_setup(k):
    t = PT
    k(f"v_bfe_u32 v{t}, v{V_LANE}, 3, 1")
    k(f"v_bfe_u32 v{t+1}, v{V_LANE}, 2, 1")
    k(f"v_and_b32 v{t+2}, 3, v{V_LANE}")
    k(f"v_lshlrev_b32 v{t+1}, 4, v{t+1}")
    k(f"v_lshl_add_u32 v{t+1}, v{V_SLAB}, 2, v{t+1}")
    k(f"v_add_u32 v{t+1}, v{t+1}, v{t+2}")
    k(f"v_lshl_add_u32 v{t+1}, v{t}, 5, v{t+1}")
    k(f"v_lshlrev_b32 v{PADR+9}, 3, v{t+1}")
    k(f"v_and_b32 v{t+1}, 1, v{V_LANE}")
    k(f"v_cmp_eq_u32 vcc, 1, v{t+1}")
    k(f"v_mov_b32 v{t+2}, 0xffff")
    k(f"v_mov_b32 v{t+3}, 0xffff0000")
    k(f"v_cndmask_b32 v{t+2}, v{t+2}, v{t+3}, vcc")
    k(f"v_bfe_u32 v{t+1}, v{V_LANE}, 1, 2")
    k(f"v_lshl_add_u32 v{t+1}, v{t}, 2, v{t+1}")
    for i in range(8):
        k(f"v_cmp_eq_u32 vcc, {i}, v{t+1}")
        k.nop(2)
        k(f"v_cndmask_b32 v{PM+i}, 0, v{t+2}, vcc")
    k(f"v_lshlrev_b32 v{PADR+10}, 4, v0")
    k(f"v_lshrrev_b32 v{t}, 4, v0")
    k(f"v_and_b32 v{t+1}, 7, v{t}")
    k(f"v_lshlrev_b32 v{t+1}, 1, v{t+1}")
    k(f"v_xor_b32 v{t+1}, v{t+1}, v{V_L15}")
    k(f"v_lshlrev_b32 v{t+1}, 4, v{t+1}")
    k(f"v_lshl_add_u32 v{t+1}, v{t}, 8, v{t+1}")
    k(f"v_add_u32 v{PADR+11}, {L_AOB}, v{t+1}")
    k(f"v_lshrrev_b32 v{t}, 2, v{V_L15}")
    k(f"v_lshl_add_u32 v{t}, v{V_SLAB}, 2, v{t}")
    k(f"v_and_b32 v{t+1}, 7, v{t}")
    k(f"v_lshlrev_b32 v{t+1}, 1, v{t+1}")
    k(f"v_bfe_u32 v{t+2}, v{V_L15}, 1, 1")
    k(f"v_and_b32 v{t+3}, 1, v{V_L15}")
    k(f"s_lshl_b32 s{S_TMP}, s{S_WAVE}, 2")
    for d in range(2):
        k(f"v_add_u32 v{t+4}, s{S_TMP}, v{t+2}")
        if d:
            k(f"v_add_u32 v{t+4}, 2, v{t+4}")
        k(f"v_xor_b32 v{t+4}, v{t+4}, v{t+1}")
        k(f"v_lshlrev_b32 v{t+4}, 4, v{t+4}")
        k(f"v_lshl_add_u32 v{t+4}, v{t+3}, 3, v{t+4}")
        k(f"v_lshl_add_u32 v{t+4}, v{t}, 8, v{t+4}")
        k(f"v_add_u32 v{PADR+12+d}, {L_AOB}, v{t+4}")
    k(f"v_lshrrev_b32 v{t}, 1, v{V_SLAB}")
    k(f"v_and_b32 v{t+1}, 1, v{V_SLAB}")
    k(f"v_lshlrev_b32 v{t}, 7, v{t}")
    k(f"v_lshl_add_u32 v{t}, v{t+1}, 4, v{t}")
    k(f"v_add_u32 v{t}, v{t}, v{V_L15}")
    k(f"s_lshl_b32 s{S_TMP}, s{S_WAVE}, 5")
    k(f"v_add_u32 v{t}, s{S_TMP}, v{t}")
    k(f"v_lshlrev_b32 v{t}, 1, v{t}")
    k(f"v_add_u32 v{PADR+14}, {L_CTX}, v{t}")
    k(f"v_and_b32 v{t}, 1, v{V_LANE}")
    k(f"v_lshlrev_b32 v{t}, 8, v{t}")
    k(f"v_lshl_add_u32 v{t}, v{V_SLAB}, 4, v{t}")
    k(f"v_add_u32 v{PADR+15}, {L_CTX}, v{t}")


def stage4(k):
    t = PT
    G = PG
    ST = 26
    k(f"s_lshl_b32 s{S_TMP}, s{S_H}, 9")
    k(f"s_add_u32 s{S_TMP}, s{S_TMP}, {WS_ST}")
    k(f"s_lshl_b32 s{S_TMP+1}, s{S_H}, 2")
    k(f"s_add_u32 s{S_TMP+1}, s{S_TMP+1}, s{S_J}")
    k(f"s_lshl_b32 s{S_TMP+2}, s{S_TMP+1}, 14")
    k(f"s_add_u32 s{S_TMP+2}, s{S_TMP+2}, {WS_AO}")
    for n in range(1, 4):
        k(f"s_add_u32 s{S_TMP+2+n}, s{S_TMP+2}, {4096*n}")
    sk = k.label("stw")
    k(f"v_lshlrev_b32 v{t+12}, 3, v{V_LANE}")
    k(f"v_add_u32 v{t+12}, {L_STX}, v{t+12}")
    k(f"s_cmp_eq_u32 s{S_WAVE}, 0")
    k(f"s_cbranch_scc0 {sk}")
    gather_check_loop(k, "st", [f"buffer_load_dwordx2 {vr(ST,2)}, v{PADR+9}, {srd(R_WS)}, s{S_TMP} offen sc1"], [ST, ST + 1], None)
    k(f"ds_write_b64 v{t+12}, {vr(ST,2)}")
    k("s_waitcnt lgkmcnt(0)")
    k(f"{sk}:")
    k("s_barrier")
    k.stamp(7)
    loads = [f"buffer_load_dwordx4 {vr(G+4*n,4)}, v{PADR+10}, {srd(R_WS)}, s{S_TMP+2+n} offen sc1" for n in range(4)]
    aopos = K.opt.get("aopos", "mid")
    if aopos == "pre":
        for l in loads:
            k(l)
    k(f"ds_read_b64 {vr(ST,2)}, v{t+12}")
    k("s_waitcnt lgkmcnt(0)")
    M = t + 8
    k(f"v_mov_b32 v{M}, v{ST}")
    reduce_bits(k, "v_max_f32", M, t + 9)
    k(f"v_sub_f32 v{t}, v{ST}, v{M}")
    k(f"v_exp_f32 v{t}, v{t}")
    k.nop(1)
    k(f"v_cvt_pk_bf16_f32 v{t}, v{t}, v{t}")
    for i in range(8):
        k(f"v_and_b32 v{PA+i}, v{t}, v{PM+i}")
    k(f"v_and_b32 v{t+1}, 0xffff0000, v{t}")
    k(f"v_mul_f32 v{t+1}, v{t+1}, v{ST+1}")
    if aopos == "mid":
        for l in loads:
            k(l)
    reduce_bits(k, "v_add_f32", t + 1, t + 9)
    k(f"v_rcp_f32 v{t+1}, v{t+1}")
    k.nop(1)
    k(f"v_readlane_b32 s{S_TMP+6}, v{t+1}, 0")
    k(f"v_readlane_b32 s{S_TMP+7}, v{t+1}, 8")
    k(f"v_cmp_le_u32 vcc, 32, v{V_LANE}")
    k.nop(1)
    k(f"v_mov_b32 v{t+2}, s{S_TMP+6}")
    k(f"v_mov_b32 v{t+3}, s{S_TMP+7}")
    k(f"v_cndmask_b32 v{t+2}, v{t+2}, v{t+3}, vcc")
    if aopos == "post":
        for l in loads:
            k(l)
    gather_check_loop(k, "ao", loads, list(range(G, G + 16)), 8, preissued=True)
    for n in range(4):
        k(f"ds_write_b128 v{PADR+11}, {vr(G+4*n,4)} offset:{4096*n}")
    k("s_waitcnt lgkmcnt(0)")
    k("s_barrier")
    B = PD + 8
    for d in range(2):
        for bb in range(2):
            r = B + (d * 2 + bb) * 4
            k(f"ds_read_b64_tr_b16 {vr(r,2)}, v{PADR+12+d} offset:{bb*8192}")
            k(f"ds_read_b64_tr_b16 {vr(r+2,2)}, v{PADR+12+d} offset:{bb*8192+4096}")
    for d in range(2):
        k(f"s_waitcnt lgkmcnt({4-4*d})")
        k(f"v_mfma_f32_16x16x32_bf16 {vr(PD+4*d,4)}, {vr(PA,4)}, {vr(B+(d*2)*4,4)}, 0")
        k(f"v_mfma_f32_16x16x32_bf16 {vr(PD+4*d,4)}, {vr(PA+4,4)}, {vr(B+(d*2+1)*4,4)}, {vr(PD+4*d,4)}")
    k.nop(8)
    for d in range(2):
        k(f"v_add_f32 v{PD+4*d}, v{PD+4*d}, v{PD+4*d+1}")
        k(f"v_add_f32 v{PD+4*d+2}, v{PD+4*d+2}, v{PD+4*d+3}")
    for d in range(2):
        k(f"v_add_f32 v{PD+4*d}, v{PD+4*d}, v{PD+4*d+2}")
    k.nop(2)
    k(f"v_permlane16_swap_b32 v{PD}, v{PD+4}")
    k.nop(1)
    k(f"v_add_f32 v{PD}, v{PD}, v{PD+4}")
    k(f"v_mul_f32 v{PD}, v{PD}, v{t+2}")
    k(f"v_cvt_pk_bf16_f32 v{PD}, v{PD}, v{PD}")
    k(f"ds_write_b16 v{PADR+14}, v{PD}")
    k("s_waitcnt lgkmcnt(0)")
    k("s_barrier")
    for kk in range(4):
        k(f"ds_read_b128 {vr(PA+4*kk,4)}, v{PADR+15} offset:{64*kk}")
    k(f"v_lshrrev_b32 v{t}, 2, v{V_L15}")
    k(f"v_lshlrev_b32 v{t}, 3, v{t}")
    k(f"v_and_b32 v{t+1}, 1, v{V_SLAB}")
    k(f"v_lshl_add_u32 v{t}, v{t+1}, 2, v{t}")
    k(f"v_and_b32 v{t+1}, 2, v{V_L15}")
    k(f"v_add_u32 v{t}, v{t}, v{t+1}")
    k(f"v_lshrrev_b32 v{t+1}, 1, v{V_SLAB}")
    k(f"v_lshl_add_u32 v{t}, v{t+1}, 7, v{t}")
    k(f"v_lshlrev_b32 v{t}, 1, v{t}")
    k(f"s_lshl_b32 s{S_TMP}, s{S_H}, 2")
    k(f"s_add_u32 s{S_TMP}, s{S_TMP}, s{S_J}")
    k(f"s_lshl_b32 s{S_TMP}, s{S_TMP}, 9")
    k(f"s_lshl_b32 s{S_TMP+1}, s{S_WAVE}, 6")
    k(f"s_add_u32 s{S_TMP}, s{S_TMP}, s{S_TMP+1}")
    k(f"s_add_u32 s{S_TMP}, s{S_TMP}, {WS_CP}")
    k(f"s_add_u32 s{S_TMP+1}, s{S_TMP}, {WS_CF - WS_CP}")
    k(f"s_mov_b32 s{S_M+2}, 0xffff0000")
    k(f"s_mov_b32 s{S_M+3}, 0xffff0000")
    k(f"s_mov_b32 s{S_M+4}, 0")
    k(f"s_mov_b32 s{S_M+5}, -1")
    k(f"s_mov_b32 s{S_M+6}, 0x55555555")
    k(f"s_mov_b32 s{S_M+7}, 0x55555555")
    for kk in range(4):
        k(f"s_waitcnt lgkmcnt({3-kk})")
        for d in range(2):
            c = "0" if kk == 0 else vr(PD + 4 * d, 4)
            k(f"v_mfma_f32_16x16x32_bf16 {vr(PD+4*d,4)}, {vr(PA+4*kk,4)}, {vr(PWV+(d*4+kk)*4,4)}, {c}")
    k.nop(8)
    k(f"v_cndmask_b32 v{t+2}, v{PD}, v{PD+4}, s[{S_M+2}:{S_M+3}]")
    k(f"v_cndmask_b32 v{t+3}, v{PD+1}, v{PD+5}, s[{S_M+2}:{S_M+3}]")
    k(f"v_cndmask_b32 v{t+2}, v{t+2}, v{t+3}, s[{S_M+4}:{S_M+5}]")
    k.nop(2)
    k(f"v_mov_b32_dpp v{t+3}, v{t+2} quad_perm:[1,0,3,2] row_mask:0xf bank_mask:0xf")
    k(f"v_cvt_pk_bf16_f32 v{t+2}, v{t+2}, v{t+3}")
    if use_fast():
        k(f"v_mov_b32 v{PKEEP}, v{t+2}")
        k(f"v_mov_b32 v{PKEEP+1}, v{t}")
        k(f"s_mov_b32 s{S_KEEP}, s{S_TMP}")
    k(f"s_mov_b64 exec, s[{S_M+6}:{S_M+7}]")
    if use_fast():
        k(f"buffer_store_dword v{t+2}, v{t}, {srd(R_WS)}, s{S_TMP+1} offen")
    else:
        k(f"buffer_store_dword v{t+2}, v{t}, {srd(R_WS)}, s{S_TMP} offen sc1")
    k(f"s_mov_b64 exec, -1")
    k.stamp(9)


def stage5(k):
    t = PT
    k(f"v_and_b32 v{t}, 3, v{V_L15}")
    k(f"v_lshlrev_b32 v{t}, 9, v{t}")
    k(f"v_bfe_u32 v{t+1}, v{V_L15}, 2, 1")
    k(f"v_lshl_add_u32 v{t}, v{t+1}, 8, v{t}")
    k(f"v_lshl_add_u32 v{PADR}, v{V_SLAB}, 4, v{t}")
    k(f"s_lshl_b32 s{S_TMP}, s{S_H}, 11")
    k(f"s_lshl_b32 s{S_TMP+1}, s{S_WAVE}, 6")
    k(f"s_add_u32 s{S_TMP}, s{S_TMP}, s{S_TMP+1}")
    k(f"s_add_u32 s{S_TMP}, s{S_TMP}, {WS_CP}")
    k(f"v_lshrrev_b32 v{t}, 1, v{V_SLAB}")
    k(f"v_lshlrev_b32 v{t}, 4, v{t}")
    k(f"v_add_u32 v{t}, v{t}, v{V_L15}")
    k(f"v_lshlrev_b32 v{t}, 3, v{t}")
    k(f"v_and_b32 v{t+1}, 1, v{V_SLAB}")
    k(f"v_lshl_add_u32 v{PADR+1}, v{t+1}, 2, v{t}")
    k(f"s_mul_i32 s{S_TMP+1}, s{S_H}, 5120")
    k(f"s_mul_i32 s{S_TMP+2}, s{S_J}, 1280")
    k(f"s_add_u32 s{S_TMP+1}, s{S_TMP+1}, s{S_TMP+2}")
    k(f"s_add_u32 s{S_TMP+1}, s{S_TMP+1}, {WS_SP}")
    k(f"s_lshl_b32 s{S_TMP+2}, s{S_WAVE}, 8")
    k(f"s_add_u32 s{S_TMP+2}, s{S_TMP+2}, s{S_TMP+1}")
    k(f"s_add_u32 s{S_TMP+1}, s{S_TMP+1}, 1024")
    k(f"v_lshlrev_b32 v{t}, 2, v{V_LANE}")
    k(f"s_mul_i32 s{S_TMP+3}, s{S_WAVE}, 1280")
    k(f"s_add_u32 s{S_TMP+3}, s{S_TMP+3}, {L_RED5}")
    k(f"v_add_u32 v{PADR+3}, s{S_TMP+3}, v{t}")
    k(f"s_lshl_b32 s{S_TMP+3}, s{S_WAVE}, 8")
    k(f"s_add_u32 s{S_TMP+3}, s{S_TMP+3}, {L_RED5}")
    k(f"v_add_u32 v{PADR+2}, s{S_TMP+3}, v{t}")
    k(f"v_add_u32 v{PADR+4}, {L_RED5+1024}, v{t}")
    k(f"s_mov_b32 s{S_M+4}, 0")
    k(f"s_mov_b32 s{S_M+5}, -1")
    loads = [f"buffer_load_dwordx4 {vr(PG,4)}, v{PADR}, {srd(R_WS)}, s{S_TMP} offen sc1"]
    k(f"s_add_u32 s{S_TMP+5}, s{S_TMP}, {WS_CF - WS_CP}")
    floads = [f"buffer_load_dwordx4 {vr(PG,4)}, v{PADR}, {srd(R_WS)}, s{S_TMP+5} offen sc1"]
    def send_cp(kk):
        kk(f"s_mov_b32 exec_lo, 0x55555555")
        kk(f"s_mov_b32 exec_hi, 0x55555555")
        kk(f"buffer_store_dword v{PKEEP}, v{PKEEP+1}, {srd(R_WS)}, s{S_KEEP} offen sc1")
        kk(f"s_mov_b64 exec, -1")
    gather_loop(k, "cp", loads, lambda kk: sentinel_check(kk, [PG, PG + 1, PG + 2, PG + 3]), 10,
                fast=(floads, 16) if use_fast() else None, after_fast=send_cp if use_fast() else None)
    for ct in range(10):
        k(f"v_mfma_f32_16x16x32_bf16 {vr(PD+4*ct,4)}, {vr(PG,4)}, {vr(PWO+4*ct,4)}, 0")
    for ct in range(10):
        k(f"v_add_f32 v{PD+4*ct}, v{PD+4*ct}, v{PD+4*ct+1}")
        k(f"v_add_f32 v{PD+4*ct+2}, v{PD+4*ct+2}, v{PD+4*ct+3}")
        k(f"v_add_f32 v{PD+4*ct}, v{PD+4*ct}, v{PD+4*ct+2}")
    for u in range(5):
        k(f"v_cndmask_b32 v{PY+u}, v{PD+8*u}, v{PD+8*u+4}, s[{S_M+4}:{S_M+5}]")
    k(f"ds_write2st64_b32 v{PADR+3}, v{PY}, v{PY+1} offset0:0 offset1:1")
    k(f"ds_write2st64_b32 v{PADR+3}, v{PY+2}, v{PY+3} offset0:2 offset1:3")
    k(f"ds_write_b32 v{PADR+3}, v{PY+4} offset:1024")
    k("s_waitcnt lgkmcnt(0)")
    k("s_barrier")
    k(f"ds_read2st64_b32 {vr(t,2)}, v{PADR+2} offset0:0 offset1:5")
    k(f"ds_read2st64_b32 {vr(t+2,2)}, v{PADR+2} offset0:10 offset1:15")
    k(f"ds_read2st64_b32 {vr(t+4,2)}, v{PADR+4} offset0:0 offset1:5")
    k(f"ds_read2st64_b32 {vr(t+6,2)}, v{PADR+4} offset0:10 offset1:15")
    k("s_waitcnt lgkmcnt(2)")
    k(f"v_add_f32 v{t}, v{t}, v{t+1}")
    k(f"v_add_f32 v{t+2}, v{t+2}, v{t+3}")
    k(f"v_add_f32 v{t}, v{t}, v{t+2}")
    k(f"buffer_store_dword v{t}, v{PADR+1}, {srd(R_WS)}, s{S_TMP+2} offen sc1")
    skip = k.label("s5skip")
    k(f"s_cmp_eq_u32 s{S_WAVE}, 0")
    k(f"s_cbranch_scc0 {skip}")
    k("s_waitcnt lgkmcnt(0)")
    k(f"v_add_f32 v{t+4}, v{t+4}, v{t+5}")
    k(f"v_add_f32 v{t+6}, v{t+6}, v{t+7}")
    k(f"v_add_f32 v{t+4}, v{t+4}, v{t+6}")
    k(f"buffer_store_dword v{t+4}, v{PADR+1}, {srd(R_WS)}, s{S_TMP+1} offen sc1")
    k(f"{skip}:")
    k.stamp(11)


S_U = 73 + 7
BQ = 10
BG = 74
BD = 90
BS = 122
BP = 130
BL = 146
BADR = 150
BT = 166
BONE = 186
BAC = 190
BTR = 192
BWF = 194
BA2 = 236
BROW = 240
BWR = 196
S_WFL, S_WFO, S_WFS = 17, 22, 23
AOT_RS = 272
L_AOT = 98304
S_FLG = 14
S_AC = 14 + 2
FIRSTWAIT_AC = 1
S_B, S_G, S_UU = 66, 67, 68


def b_roles(k):
    k(f"s_sub_u32 s{S_JP}, s{S_J}, 4")
    k(f"s_and_b32 s{S_G}, s{S_JP}, 1")
    k(f"s_lshr_b32 s{S_B}, s{S_JP}, 1")
    k(f"s_lshl_b32 s{S_UU}, s{S_JP}, 5")
    k(f"s_add_u32 s{S_UU}, s{S_UU}, s{S_H}")
    k(f"s_and_b32 s{S_F}, s{S_UU}, 63")
    k(f"s_lshr_b32 s{S_TMP}, s{S_UU}, 6")
    k(f"s_add_u32 s{S_ROLE}, s{S_TMP}, 1")
    k(f"s_cmp_lt_u32 s{S_F}, {NF}")
    k(f"s_cselect_b32 s{S_ROLE}, s{S_ROLE}, 3")
    k(f"s_mul_i32 s{S_TMP}, s{S_TMP}, 10")
    k(f"s_add_u32 s{S_Z}, s{S_F}, s{S_TMP}")
    k(f"s_sub_u32 s{S_Z}, s{S_Z}, {NF}")


def clears_B(k):
    t = V_T + 4
    neg = vr(V_NEG1, 4)
    k(f"v_lshlrev_b32 v{t}, 4, v{V_LANE}")
    k(f"s_lshl_b32 s{S_TMP}, s{S_H}, 2")
    k(f"s_add_u32 s{S_TMP}, s{S_TMP}, s{S_JP}")
    k(f"s_lshl_b32 s{S_TMP}, s{S_TMP}, 14")
    k(f"s_add_u32 s{S_TMP}, s{S_TMP}, {WS_AO}")
    k(f"s_mul_i32 s{S_TMP+1}, s{S_WAVE}, 5120")
    k(f"s_add_u32 s{S_TMP}, s{S_TMP}, s{S_TMP+1}")
    k(f"s_sub_u32 s{S_TMP}, s{S_TMP}, 4096")
    for i in range(5):
        off = i * 1024
        if i == 4:
            k(f"s_add_u32 s{S_TMP}, s{S_TMP}, 4096")
            off = 0
        k(f"buffer_store_dwordx4 {neg}, v{t}, {srd(R_WS)}, s{S_TMP} offen offset:{off} sc1")
    sk = k.label("cb")
    k(f"s_cmp_eq_u32 s{S_WAVE}, 1")
    k(f"s_cbranch_scc0 {sk}_2")
    k(f"s_sub_u32 s{S_TMP}, s{S_TMP}, 5120")
    k(f"buffer_store_dwordx4 {neg}, v{t}, {srd(R_WS)}, s{S_TMP} offen sc1")
    k(f"s_branch {sk}")
    k(f"{sk}_2:")
    k(f"s_cmp_eq_u32 s{S_WAVE}, 2")
    k(f"s_cbranch_scc0 {sk}")
    k(f"s_cmp_eq_u32 s{S_ROLE}, 2")
    k(f"s_cbranch_scc0 {sk}")
    k(f"s_mul_i32 s{S_TMP}, s{S_F}, 5120")
    k(f"s_add_u32 s{S_TMP}, s{S_TMP}, {WS_FP}")
    for i in range(5):
        off = i * 1024
        if i == 4:
            k(f"s_add_u32 s{S_TMP}, s{S_TMP}, 4096")
            off = 0
        k(f"buffer_store_dwordx4 {neg}, v{t}, {srd(R_WS)}, s{S_TMP} offen offset:{off} sc1")
    k(f"{sk}:")


def tag_store(k, base, shift, treg, only_wave=None, jreg=None):
    k(f"s_lshl_b32 s{S_TMP+3}, s{S_H}, 2")
    k(f"s_add_u32 s{S_TMP+3}, s{S_TMP+3}, s{S_JP if jreg is None else jreg}")
    k(f"s_lshl_b32 s{S_TMP+3}, s{S_TMP+3}, {shift}")
    k(f"s_add_u32 s{S_TMP+3}, s{S_TMP+3}, {base}")
    if only_wave is not None:
        k(f"s_cmp_eq_u32 s{S_WAVE}, {only_wave}")
        k(f"s_cselect_b32 s{S_TMP+3}, s{S_TMP+3}, 0x7f000000")
    k(f"v_mov_b32 v{treg}, s{S_T0}")
    k(f"v_mov_b32 v{treg+1}, s{S_T1}")
    k(f"v_mov_b32 v{treg+2}, 0")
    k(f"s_mov_b64 exec, 1")
    k(f"buffer_store_dwordx2 {vr(treg,2)}, v{treg+2}, {srd(R_WS)}, s{S_TMP+3} offen sc1")
    k(f"s_mov_b64 exec, -1")


def ac_publish(k):
    sk = k.label("acp")
    k(f"s_cmp_eq_u32 s{S_WAVE}, 1")
    k(f"s_cbranch_scc0 {sk}")
    tag_store(k, WS_AC, 3, BT + 2)
    k(f"{sk}:")


S_RO, S_RL = 24, 25


def ckv_setup(k):
    k(f"s_lshl_b32 s{S_RO}, s{S_B}, 12")
    k(f"s_lshl_b32 s{S_TMP+1}, s{S_H}, 7")
    k(f"s_add_u32 s{S_RO}, s{S_RO}, s{S_TMP+1}")
    k(f"s_lshl_b32 s{S_TMP+1}, s{S_WAVE}, 5")
    k(f"s_add_u32 s{S_RO}, s{S_RO}, s{S_TMP+1}")
    k(f"s_lshl_b32 s{S_RO}, s{S_RO}, 10")
    k(f"s_mul_i32 s{S_RL}, s{S_WAVE}, {32*RS}")
    k(f"s_add_u32 s{S_RL}, s{S_RL}, {L_CKV}")
    k(f"v_lshlrev_b32 v{BROW}, 4, v{V_LANE}")
    k(f"s_mul_i32 s{S_TMP+3}, s{S_G}, {16*1024}")
    k(f"s_add_u32 s{S_RO}, s{S_RO}, s{S_TMP+3}")
    k(f"s_mul_i32 s{S_TMP+3}, s{S_G}, {16*RS}")
    k(f"s_add_u32 s{S_RL}, s{S_RL}, s{S_TMP+3}")
    if K.opt.get("g1skip"):
        k(f"s_cmp_eq_u32 s{S_G}, 1")
        k(f"s_cselect_b32 s{R_A+2}, 0, s{R_A+2}")


def flags_setup(k):
    k(f"v_lshlrev_b32 v{BADR+15}, 3, v{V_LANE}")
    k(f"s_lshl_b32 s{S_AC}, s{S_G}, 9")
    k(f"s_add_u32 s{S_FLG}, s{S_AC}, {WS_PC}")
    k(f"s_add_u32 s{S_AC}, s{S_AC}, {WS_AC}")


def ckv_rows(k, r0, r1):
    for r in range(r0, r1):
        if r == 8:
            sk = k.label("acw")
            k(f"s_cmp_eq_u32 s{S_WAVE}, 0")
            k(f"s_cbranch_scc1 {sk}")
            k("s_waitcnt vmcnt(8)")
            epoch_tags(k, VE)
            k(f"{sk}:")
            k("s_barrier")
            ac_publish(k)
            flags_setup(k)
        if r == flag_row():
            k(flag_load())
            k(ac_load())
        if r == 16 and K.opt.get("halfstamp"):
            k.stamp(15)
        if r == 24 and K.opt.get("halfstamp"):
            k.stamp(16)
        if r == 16:
            k(f"s_mul_i32 s{S_TMP+3}, s{S_G}, {32*1024}")
            k(f"s_sub_u32 s{S_RO}, s{S_RO}, s{S_TMP+3}")
            k(f"s_mul_i32 s{S_TMP+3}, s{S_G}, {32*RS}")
            k(f"s_sub_u32 s{S_RL}, s{S_RL}, s{S_TMP+3}")
        nin = int(K.opt.get("infl", 8))
        if nin and r >= nin and r != 8:
            k(f"s_waitcnt vmcnt({nin - 1 + (2 if flag_row() <= r < flag_row() + nin else 0)})")
        k(f"s_mov_b32 m0, s{S_RL}")
        k(f"s_add_u32 s{S_RL}, s{S_RL}, {RS}")
        k(f"buffer_load_dwordx4 v{BROW}, {srd(R_A)}, s{S_RO} offen{nt('c') if r < 16 else (nt('d'))} lds")
        k(f"s_add_u32 s{S_RO}, s{S_RO}, 1024")
        if K.opt.get("g1skip") and r == r0 and r0 == 0:
            pass


def early_rows():
    return int(K.opt.get("erows", 0))


def flag_row():
    return int(K.opt.get("frow", FLAG_ROW))


def ntr():
    return 1 if K.opt.get("trig", "0") == "1" else 0


def flag_load():
    return f"buffer_load_dwordx2 {vr(BG,2)}, v{BADR+15}, {srd(R_WS)}, s{S_FLG} offen sc1"


def ac_load():
    return f"buffer_load_dwordx2 {vr(BAC,2)}, v{BADR+15}, {srd(R_WS)}, s{S_AC} offen sc1"


def flags_poll(k):
    gather_loop(k, "fl", [flag_load(), ac_load()], lambda kk: tag_check(kk, [(BG, BG+1), (BAC, BAC+1)]), 14, preissued=True, firstwait=32 - flag_row() + ntr())


def nwf_early():
    return int(K.opt.get("nwfe", NWF_EARLY))


def wf_load(k, i):
    if K.opt.get("nowf"):
        return
    if i >= int(K.opt.get("wfn", 10)):
        return
    k(f"buffer_load_dwordx4 {vr(BWR+4*i,4)}, v{BWF}, {srd(R_B)}, s{S_WFO} offen{nt('2')}")
    if i < 9:
        k(f"s_add_u32 s{S_WFO}, s{S_WFO}, s{S_WFS}")


def attention_setup(k):
    t = BT
    k(f"s_lshl_b32 s{S_TMP}, s{S_WAVE}, 5")
    k(f"v_add_u32 v{t}, s{S_TMP}, v{V_L15}")
    k(f"v_mul_u32_u24 v{t}, {RS}, v{t}")
    k(f"v_lshl_add_u32 v{t}, v{V_SLAB}, 8, v{t}")
    k(f"v_and_b32 v{t+1}, 1, v{V_SLAB}")
    k(f"v_lshlrev_b32 v{t+1}, 4, v{t+1}")
    k(f"s_mul_i32 s{S_TMP}, s{S_G}, {16*RS}")
    k(f"s_sub_u32 s{S_TMP+1}, {16*RS}, s{S_TMP}")
    k(f"v_add_u32 v{BADR}, v{t}, v{t+1}")
    k(f"v_sub_u32 v{BADR+1}, v{t}, v{t+1}")
    k(f"v_add_u32 v{BA2}, s{S_TMP+1}, v{BADR}")
    k(f"v_add_u32 v{BA2+1}, s{S_TMP+1}, v{BADR+1}")
    k(f"v_add_u32 v{BADR}, s{S_TMP}, v{BADR}")
    k(f"v_add_u32 v{BADR+1}, s{S_TMP}, v{BADR+1}")
    k(f"v_mul_u32_u24 v{t}, {RS}, v{V_L15}")
    k(f"v_lshl_add_u32 v{t}, v{V_SLAB}, 8, v{t}")
    k(f"v_add_u32 v{t}, {L_QB}, v{t}")
    k(f"v_add_u32 v{BADR+2}, v{t}, v{t+1}")
    k(f"v_sub_u32 v{BADR+3}, v{t}, v{t+1}")
    k(f"v_lshrrev_b32 v{t}, 2, v{V_L15}")
    k(f"v_lshl_add_u32 v{t}, v{V_SLAB}, 2, v{t}")
    k(f"v_mul_u32_u24 v{t}, {RS}, v{t}")
    k(f"v_and_b32 v{t+1}, 3, v{V_L15}")
    k(f"v_lshl_add_u32 v{t}, v{t+1}, 3, v{t}")
    k(f"s_lshl_b32 s{S_TMP}, s{S_WAVE}, 8")
    k(f"v_add_u32 v{t}, s{S_TMP}, v{t}")
    k(f"s_mul_i32 s{S_TMP}, s{S_G}, {16*RS}")
    k(f"s_sub_u32 s{S_TMP+1}, {16*RS}, s{S_TMP}")
    k(f"v_add_u32 v{BADR+4}, s{S_TMP}, v{t}")
    k(f"v_add_u32 v{BADR+5}, {64*RS}, v{BADR+4}")
    k(f"v_add_u32 v{BA2+2}, s{S_TMP+1}, v{t}")
    k(f"v_add_u32 v{BA2+3}, {64*RS}, v{BA2+2}")
    k(f"v_lshlrev_b32 v{BADR+6}, 4, v0")
    k(f"s_mul_i32 s{S_TMP}, s{S_WAVE}, {RS}")
    k(f"s_add_u32 s{S_TMP}, s{S_TMP}, {L_QB}")
    k(f"v_lshlrev_b32 v{t}, 4, v{V_LANE}")
    k(f"v_add_u32 v{BADR+7}, s{S_TMP}, v{t}")
    k(f"v_lshlrev_b32 v{t+1}, 2, v{V_LANE}")
    k(f"s_lshl_b32 s{S_TMP}, s{S_WAVE}, 8")
    k(f"s_add_u32 s{S_TMP}, s{S_TMP}, {L_MX}")
    k(f"v_add_u32 v{BADR+8}, s{S_TMP}, v{t+1}")
    k(f"v_add_u32 v{BADR+9}, {L_MX}, v{t+1}")
    k(f"s_lshl_b32 s{S_TMP}, s{S_WAVE}, 10")
    k(f"s_add_u32 s{S_TMP}, s{S_TMP}, {L_PB}")
    k(f"v_add_u32 v{BADR+10}, s{S_TMP}, v{t}")
    k(f"v_add_u32 v{BADR+11}, {L_PB}, v{t}")
    k(f"s_mul_i32 s{S_TMP}, s{S_WAVE}, {16*AOT_RS}")
    k(f"s_add_u32 s{S_TMP}, s{S_TMP}, {L_AOT}")
    k(f"v_mul_u32_u24 v{t}, {AOT_RS}, v{V_L15}")
    k(f"v_lshl_add_u32 v{t}, v{V_SLAB}, 4, v{t}")
    k(f"v_add_u32 v{BADR+12}, s{S_TMP}, v{t}")
    k(f"v_lshrrev_b32 v{t}, 3, v{V_LANE}")
    k(f"v_mul_u32_u24 v{t}, {AOT_RS}, v{t}")
    k(f"v_and_b32 v{t+1}, 7, v{V_LANE}")
    k(f"v_lshl_add_u32 v{t}, v{t+1}, 4, v{t}")
    k(f"v_add_u32 v{BTR}, s{S_TMP}, v{t}")
    k(f"v_lshrrev_b32 v{t}, 3, v{V_LANE}")
    k(f"v_lshlrev_b32 v{t}, 16, v{t}")
    k(f"v_lshl_add_u32 v{BTR+1}, v{t+1}, 4, v{t}")
    k(f"v_lshlrev_b32 v{BADR+13}, 9, v{V_L15}")
    for i in range(4):
        k(f"v_mov_b32 v{BONE+i}, 0x3f803f80")


def attention(k):
    t = BT

    def pv_read(tt, u, half):
        r = 128 + (tt * 4 + u) * 4 + 2 * half
        base = (BADR + 4 if half == 0 else BA2 + 2) + (u >> 1)
        k(f"ds_read_b64_tr_b16 {ar(r,2)}, v{base} offset:{L_CKV + (u & 1) * 32 * RS + 32 * tt}")

    def a_read(p):
        for i in range(16):
            base = (BADR if p == 0 else BA2) + (i & 1)
            k(f"ds_read_b128 {ar((p*16+i)*4,4)}, v{base} offset:{L_CKV+i*16}")

    k(f"s_waitcnt vmcnt({18 + ntr()})")
    a_read(0)
    k("s_barrier")
    for tt in range(8):
        for u in range(4):
            pv_read(tt, u, 0)
    if K.opt.get("noflags"):
        k(f"s_waitcnt vmcnt({4 + ntr()})")
    else:
        flags_poll(k)
    k(f"s_lshl_b32 s{S_TMP}, s{S_B}, 15")
    k(f"s_lshl_b32 s{S_TMP+1}, s{S_G}, 14")
    k(f"s_add_u32 s{S_TMP}, s{S_TMP}, s{S_TMP+1}")
    k(f"s_add_u32 s{S_TMP}, s{S_TMP}, {WS_QA}")
    for n in range(1, 4):
        k(f"s_add_u32 s{S_TMP+n}, s{S_TMP}, {4096*n}")
    loads = [f"buffer_load_dwordx4 {vr(BG+4*n,4)}, v{BADR+6}, {srd(R_WS)}, s{S_TMP+n} offen sc1" for n in range(4)]
    for l in loads:
        k(l)
    k(f"s_waitcnt vmcnt({4 + ntr()})")
    k.stamp(4)
    if K.opt.get("bstop"):
        k("s_branch L_done")
    a_read(1)
    gather_check_loop(k, "qa", loads, list(range(BG, BG + 16)), 5, preissued=True)
    for n in range(4):
        k(f"ds_write_b128 v{BADR+7}, {vr(BG+4*n,4)} offset:{4*n*RS}")
    k("s_waitcnt lgkmcnt(0)")
    k("s_barrier")
    for i in range(16):
        k(f"ds_read_b128 {vr(BQ+4*i,4)}, v{BADR+2+(i&1)} offset:{i*16}")
    for i in range(16):
        if i < 8:
            k(f"s_waitcnt lgkmcnt({15-i})")
        elif i == 8:
            k("s_waitcnt lgkmcnt(0)")
        for p in range(2):
            c = "0" if i == 0 else vr(BS + 4 * p, 4)
            k(f"v_mfma_f32_16x16x32_bf16 {vr(BS+4*p,4)}, {ar((p*16+i)*4,4)}, {vr(BQ+4*i,4)}, {c}")
        if i >= 8:
            for u in range(4):
                pv_read(i - 8, u, 1)
        if (i & 1) and (i >> 1) < nwf_early():
            wf_load(k, i >> 1)
    k.nop(8)
    k.stamp(6)
    k(f"v_max3_f32 v{t}, v{BS}, v{BS+1}, v{BS+2}")
    k(f"v_max3_f32 v{t+1}, v{BS+3}, v{BS+4}, v{BS+5}")
    k(f"v_max3_f32 v{t}, v{t}, v{BS+6}, v{BS+7}")
    k(f"v_max_f32 v{t}, v{t}, v{t+1}")
    for sw in ("v_permlane16_swap_b32", "v_permlane32_swap_b32"):
        k(f"v_mov_b32 v{t+1}, v{t}")
        k.nop(2)
        k(f"{sw} v{t}, v{t+1}")
        k.nop(1)
        k(f"v_max_f32 v{t}, v{t}, v{t+1}")
    k(f"ds_write_b32 v{BADR+8}, v{t}")
    k("s_waitcnt lgkmcnt(0)")
    k("s_barrier")
    k(f"ds_read2st64_b32 {vr(t,2)}, v{BADR+9} offset0:0 offset1:1")
    k(f"ds_read2st64_b32 {vr(t+2,2)}, v{BADR+9} offset0:2 offset1:3")
    k("s_waitcnt lgkmcnt(0)")
    k(f"v_max3_f32 v{t}, v{t}, v{t+1}, v{t+2}")
    k(f"v_max_f32 v{t+4}, v{t}, v{t+3}")
    for i in range(8):
        k(f"v_sub_f32 v{BS+i}, v{BS+i}, v{t+4}")
    for i in range(8):
        k(f"v_exp_f32 v{BS+i}, v{BS+i}")
    k.nop(1)
    for i in range(4):
        k(f"v_cvt_pk_bf16_f32 v{t+i}, v{BS+2*i}, v{BS+2*i+1}")
    k(f"ds_write_b128 v{BADR+10}, {vr(t,4)}")
    k("s_waitcnt lgkmcnt(0)")
    k("s_barrier")
    k.stamp(7)
    for u in range(4):
        k(f"ds_read_b128 {vr(BP+4*u,4)}, v{BADR+11} offset:{1024*u}")
    k(f"s_lshl_b32 s{S_TMP}, s{S_G}, 20")
    k(f"s_lshl_b32 s{S_TMP+1}, s{S_WAVE}, 14")
    k(f"s_add_u32 s{S_TMP}, s{S_TMP}, s{S_TMP+1}")
    k(f"s_lshl_b32 s{S_TMP+1}, s{S_B}, 5")
    k(f"s_add_u32 s{S_TMP+1}, s{S_TMP+1}, s{S_H}")
    k(f"s_lshl_b32 s{S_TMP+2}, s{S_TMP+1}, 8")
    k(f"s_add_u32 s{S_TMP}, s{S_TMP}, s{S_TMP+2}")
    k(f"s_add_u32 s{S_TMP}, s{S_TMP}, {WS_AO}")
    k(f"s_lshl_b32 s{S_TMP+1}, s{S_TMP+1}, 3")
    k(f"s_lshl_b32 s{S_TMP+2}, s{S_G}, 13")
    k(f"s_add_u32 s{S_TMP+1}, s{S_TMP+1}, s{S_TMP+2}")
    k(f"s_add_u32 s{S_TMP+1}, s{S_TMP+1}, {WS_ST}")
    def conv(up):
        r = BQ + 4 * up
        return [f"v_cvt_pk_bf16_f32 v{r}, v{BD+8*up}, v{BD+8*up+1}",
                f"v_cvt_pk_bf16_f32 v{r+1}, v{BD+8*up+2}, v{BD+8*up+3}",
                f"v_cvt_pk_bf16_f32 v{r+2}, v{BD+8*up+4}, v{BD+8*up+5}",
                f"v_cvt_pk_bf16_f32 v{r+3}, v{BD+8*up+6}, v{BD+8*up+7}",
                f"ds_write_b128 v{BADR+12}, {vr(r,4)} offset:{64*up}"]

    def half_read(y):
        return [f"ds_read_b128 {vr(BQ+16+8*y+4*x,4)}, v{BTR} offset:{x*8*AOT_RS + y*128}" for x in range(2)]

    def half_store(y, x):
        return f"buffer_store_dwordx4 {vr(BQ+16+8*y+4*x,4)}, v{BTR+1}, {srd(R_WS)}, s{S_TMP+2*x} offen offset:{y*128} sc1"

    k(f"s_add_u32 s{S_TMP+2}, s{S_TMP}, {8*65536}")
    k(f"s_cmp_eq_u32 s{S_WAVE}, 0")
    k(f"s_cselect_b32 s{S_TMP+1}, s{S_TMP+1}, 0x7f000000")
    for u in range(4):
        k(f"s_waitcnt lgkmcnt({3-u})")
        c = "0" if u == 0 else vr(BL, 4)
        k(f"v_mfma_f32_16x16x32_bf16 {vr(BL,4)}, {vr(BONE,4)}, {vr(BP+4*u,4)}, {c}")
    for up in range(4):
        extra = conv(up - 2) if up >= 2 else []
        if up == 1:
            extra = [f"v_mov_b32 v{t+5}, v{BL}",
                     f"s_mov_b64 exec, 0xffff\nbuffer_store_dwordx2 {vr(t+4,2)}, v{BADR+13}, {srd(R_WS)}, s{S_TMP+1} offen sc1\ns_mov_b64 exec, -1\ns_nop 3"]
        for u in range(4):
            for tt in (2 * up, 2 * up + 1):
                c = "0" if u == 0 else vr(BD + 4 * tt, 4)
                k(f"v_mfma_f32_16x16x32_bf16 {vr(BD+4*tt,4)}, {ar(128+(tt*4+u)*4,4)}, {vr(BP+4*u,4)}, {c}")
                if extra:
                    k(extra.pop(0))
    k("s_waitcnt lgkmcnt(0)")
    for l in half_read(0):
        k(l)
    for l in conv(2):
        k(l)
    k.nop(1)
    for l in conv(3):
        k(l)
    k("s_waitcnt lgkmcnt(3)")
    k(half_store(0, 0))
    k("s_waitcnt lgkmcnt(2)")
    k(half_store(0, 1))
    k("s_waitcnt lgkmcnt(0)")
    for l in half_read(1):
        k(l)
    k("s_waitcnt lgkmcnt(1)")
    k(half_store(1, 0))
    k("s_waitcnt lgkmcnt(0)")
    k(half_store(1, 1))
    for i in range(nwf_early(), 10):
        wf_load(k, i)
    k.stamp(8)
    if K.opt.get("aoack"):
        k("s_waitcnt vmcnt(0)")
        k.stamp(17)


def silu(k, v, t):
    k(f"v_mul_f32 v{t}, 0xbfb8aa3b, v{v}")
    k(f"v_exp_f32 v{t}, v{t}")
    k.nop(1)
    k(f"v_add_f32 v{t}, 1.0, v{t}")
    k(f"v_rcp_f32 v{t}, v{t}")
    k.nop(1)
    k(f"v_mul_f32 v{v}, v{v}, v{t}")


def round_bf16(k, v):
    k(f"v_cvt_pk_bf16_f32 v{v}, v{v}, v{v}")
    k(f"v_and_b32 v{v}, 0xffff0000, v{v}")


FW1 = 10
FW2 = 50
FX = 90
FD = 110
FH = 150
FADR = 176
FT = 166


def wf_setup(k):
    k(f"s_mul_i32 s{S_WFL}, s{S_WAVE}, 10240")
    k(f"s_add_u32 s{S_WFL}, s{S_WFL}, {L_WF}")
    k.srd(R_B, S_W2, 1728 * 640 * 2)
    k(f"s_cmp_eq_u32 s{S_ROLE}, 2")
    k(f"s_cselect_b32 s{R_B+2}, {1728 * 640 * 2}, 0")
    k(f"v_lshlrev_b32 v{BWF}, 4, v{V_LANE}")
    k(f"s_mul_i32 s{S_WFO}, s{S_F}, 40960")
    k(f"s_mul_i32 s{S_TMP}, s{S_WAVE}, 10240")
    k(f"s_add_u32 s{S_WFO}, s{S_WFO}, s{S_TMP}")
    k(f"s_mov_b32 s{S_WFS}, 1024")


def ffn1(k):
    t = FT
    k(f"v_and_b32 v{t}, 1, v{V_LANE}")
    k(f"v_mul_u32_u24 v{t}, 1280, v{t}")
    k(f"v_lshl_add_u32 v{t}, v{V_SLAB}, 3, v{t}")
    k(f"s_mul_i32 s{S_TMP}, s{S_WAVE}, 320")
    k(f"s_add_u32 s{S_TMP}, s{S_TMP}, {L_XN}")
    k(f"v_add_u32 v{FADR}, s{S_TMP}, v{t}")
    for i in range(5):
        k(f"ds_read_b64 {vr(FX+4*i,2)}, v{FADR} offset:{64*i}")
        k(f"ds_read_b64 {vr(FX+4*i+2,2)}, v{FADR} offset:{64*i+32}")
    k(f"v_lshrrev_b32 v{t}, 2, v{V_L15}")
    k(f"v_lshl_add_u32 v{t}, v{V_SLAB}, 2, v{t}")
    k(f"v_and_b32 v{t+1}, 3, v{V_L15}")
    k(f"v_lshlrev_b32 v{t+2}, 6, v{t}")
    k(f"v_lshl_add_u32 v{t+2}, v{t+1}, 3, v{t+2}")
    k(f"s_mul_i32 s{S_TMP}, s{S_WAVE}, 10240")
    k(f"s_add_u32 s{S_TMP}, s{S_TMP}, {L_WF}")
    k(f"v_add_u32 v{FADR+1}, s{S_TMP}, v{t+2}")
    k(f"v_lshlrev_b32 v{t+2}, 2, v{V_LANE}")
    k(f"s_lshl_b32 s{S_TMP}, s{S_WAVE}, 8")
    k(f"s_add_u32 s{S_TMP}, s{S_TMP}, {L_FRED}")
    k(f"v_add_u32 v{FADR+3}, s{S_TMP}, v{t+2}")
    k(f"v_add_u32 v{FADR+4}, {L_FRED}, v{t+2}")
    k(f"v_lshrrev_b32 v{t+2}, 2, v{V_L15}")
    k(f"v_lshlrev_b32 v{t+2}, 1, v{t+2}")
    k(f"v_lshrrev_b32 v{t+3}, 1, v{V_SLAB}")
    k(f"v_add_u32 v{t+2}, v{t+2}, v{t+3}")
    k(f"v_and_b32 v{t+3}, 1, v{V_SLAB}")
    k(f"v_lshl_add_u32 v{t+2}, v{t+3}, 3, v{t+2}")
    k(f"v_lshlrev_b32 v{FADR+5}, 4, v{t+2}")
    k(f"s_lshl_b32 s{S_TMP+2}, s{S_F}, 8")
    k(f"s_add_u32 s{S_TMP+2}, s{S_TMP+2}, {WS_HO}")
    k(f"s_mov_b32 s{S_M+2}, 0xffff0000")
    k(f"s_mov_b32 s{S_M+3}, 0xffff0000")
    k(f"s_mov_b32 s{S_M+4}, 0")
    k(f"s_mov_b32 s{S_M+5}, -1")
    k("s_waitcnt vmcnt(5)")
    k(f"v_lshlrev_b32 v{t+9}, 4, v{V_LANE}")
    k(f"v_add_u32 v{t+9}, s{S_WFL}, v{t+9}")
    for i in range(10):
        k(f"ds_write_b128 v{t+9}, {vr(BWR+4*i,4)} offset:{1024*i}")
    k("s_waitcnt lgkmcnt(0)")
    k.stamp(9)
    for i in range(5):
        for ct in range(2):
            r = FW1 + (i * 2 + ct) * 4
            k(f"ds_read_b64_tr_b16 {vr(r,2)}, v{FADR+1} offset:{i*2048+32*ct}")
            k(f"ds_read_b64_tr_b16 {vr(r+2,2)}, v{FADR+1} offset:{i*2048+32*ct+1024}")
    k("s_waitcnt lgkmcnt(0)")
    for i in range(5):
        for ct in range(2):
            c = "0" if i == 0 else vr(FD + 4 * ct, 4)
            k(f"v_mfma_f32_16x16x32_bf16 {vr(FD+4*ct,4)}, {vr(FX+4*i,4)}, {vr(FW1+(i*2+ct)*4,4)}, {c}")
    k.nop(8)
    k(f"v_cndmask_b32 v{t}, v{FD}, v{FD+1}, s[{S_M+2}:{S_M+3}]")
    k(f"v_cndmask_b32 v{t+1}, v{FD+4}, v{FD+5}, s[{S_M+2}:{S_M+3}]")
    k(f"v_cndmask_b32 v{t}, v{t}, v{t+1}, s[{S_M+4}:{S_M+5}]")
    k(f"ds_write_b32 v{FADR+3}, v{t}")
    k("s_waitcnt lgkmcnt(0)")
    k("s_barrier")
    sk = k.label("f1")
    k(f"s_cmp_eq_u32 s{S_WAVE}, 0")
    k(f"s_cbranch_scc0 {sk}")
    k(f"ds_read2st64_b32 {vr(t,2)}, v{FADR+4} offset0:0 offset1:1")
    k(f"ds_read2st64_b32 {vr(t+2,2)}, v{FADR+4} offset0:2 offset1:3")
    k("s_waitcnt lgkmcnt(0)")
    k(f"v_add_f32 v{t}, v{t}, v{t+1}")
    k(f"v_add_f32 v{t+2}, v{t+2}, v{t+3}")
    k(f"v_add_f32 v{t}, v{t}, v{t+2}")
    round_bf16(k, t)
    silu(k, t, t + 1)
    k(f"v_cvt_pk_bf16_f32 v{t}, v{t}, v{t}")
    k(f"v_and_b32 v{t}, 0xffff, v{t}")
    k.nop(2)
    k(f"v_mov_b32_dpp v{t+1}, v{t} quad_perm:[1,0,3,2] row_mask:0xf bank_mask:0xf")
    k(f"v_lshl_or_b32 v{t+2}, v{t+1}, 16, v{t}")
    k.nop(2)
    k(f"v_mov_b32_dpp v{t+3}, v{t+2} quad_perm:[2,3,0,1] row_mask:0xf bank_mask:0xf")
    k(f"v_mov_b32 v{t+4}, s{S_T0}")
    k(f"v_mov_b32 v{t+5}, s{S_T1}")
    k(f"s_mov_b32 exec_lo, 0x11111111")
    k(f"s_mov_b32 exec_hi, 0x11111111")
    k(f"buffer_store_dwordx4 {vr(t+2,4)}, v{FADR+5}, {srd(R_WS)}, s{S_TMP+2} offen sc1")
    k(f"s_mov_b64 exec, -1")
    k(f"{sk}:")
    k.stamp(10)


def ffn2(k):
    t = FT
    k(f"v_lshrrev_b32 v{t}, 2, v{V_L15}")
    k(f"v_lshl_add_u32 v{t}, v{V_SLAB}, 2, v{t}")
    k(f"v_and_b32 v{t+1}, 3, v{V_L15}")
    k(f"v_mul_u32_u24 v{t+2}, {W2RS}, v{t}")
    k(f"v_lshl_add_u32 v{t+2}, v{t+1}, 3, v{t+2}")
    k(f"s_mul_i32 s{S_TMP}, s{S_WAVE}, 320")
    k(f"s_add_u32 s{S_TMP}, s{S_TMP}, {L_WF}")
    k(f"v_add_u32 v{FADR+2}, s{S_TMP}, v{t+2}")
    k(f"v_lshrrev_b32 v{t+2}, 5, v{V_LANE}")
    k(f"v_lshlrev_b32 v{t+2}, 10, v{t+2}")
    k(f"v_and_b32 v{t+3}, 31, v{V_LANE}")
    k(f"v_lshl_add_u32 v{FADR+6}, v{t+3}, 4, v{t+2}")
    k(f"s_lshr_b32 s{S_TMP+3}, s{S_F}, 1")
    k(f"s_lshl_b32 s{S_TMP+3}, s{S_TMP+3}, 12")
    k(f"s_and_b32 s{S_TMP+4}, s{S_F}, 1")
    k(f"s_lshl_b32 s{S_TMP+4}, s{S_TMP+4}, 9")
    k(f"s_add_u32 s{S_TMP+3}, s{S_TMP+3}, s{S_TMP+4}")
    k(f"s_add_u32 s{S_TMP+3}, s{S_TMP+3}, {WS_HP}")
    k(f"v_bfe_u32 v{t+2}, v{V_LANE}, 2, 2")
    k(f"v_lshlrev_b32 v{t+2}, 3, v{t+2}")
    k(f"v_bfe_u32 v{t+3}, v{V_LANE}, 4, 1")
    k(f"v_lshl_add_u32 v{t+2}, v{t+3}, 2, v{t+2}")
    k(f"v_and_b32 v{t+3}, 3, v{V_LANE}")
    k(f"v_add_u32 v{t+2}, v{t+2}, v{t+3}")
    k(f"v_lshrrev_b32 v{t+3}, 5, v{V_LANE}")
    k(f"v_lshl_add_u32 v{t+2}, v{t+3}, 5, v{t+2}")
    k(f"v_lshlrev_b32 v{t+2}, 1, v{t+2}")
    k(f"s_lshl_b32 s{S_TMP+4}, s{S_WAVE}, 7")
    k(f"s_add_u32 s{S_TMP+4}, s{S_TMP+4}, {L_FRED}")
    k(f"v_add_u32 v{FADR+3}, s{S_TMP+4}, v{t+2}")
    k(f"v_and_b32 v{t+2}, 1, v{V_LANE}")
    k(f"v_lshlrev_b32 v{t+2}, 6, v{t+2}")
    k(f"v_lshl_add_u32 v{t+2}, v{V_SLAB}, 4, v{t+2}")
    k(f"v_add_u32 v{FADR+4}, s{S_TMP+4}, v{t+2}")
    k(f"v_lshlrev_b32 v{FADR+7}, 3, v{V_LANE}")
    k(f"s_mul_i32 s{S_TMP+2}, s{S_F}, 5120")
    k(f"s_mul_i32 s{S_TMP+1}, s{S_WAVE}, 1280")
    k(f"s_add_u32 s{S_TMP+2}, s{S_TMP+2}, s{S_TMP+1}")
    k(f"s_add_u32 s{S_TMP+2}, s{S_TMP+2}, {WS_FP}")
    k(f"s_mov_b32 s{S_M+2}, 0xffff0000")
    k(f"s_mov_b32 s{S_M+3}, 0xffff0000")
    k(f"s_mov_b32 s{S_M+4}, 0")
    k(f"s_mov_b32 s{S_M+5}, -1")
    H = FH + 2
    loads = [f"buffer_load_dwordx4 {vr(H,4)}, v{FADR+6}, {srd(R_WS)}, s{S_TMP+3} offen sc1",
             f"buffer_load_dwordx4 {vr(H+4,4)}, v{FADR+6}, {srd(R_WS)}, s{S_TMP+3} offen offset:2048 sc1"]
    for l in loads:
        k(l)
    k(f"s_mul_i32 s{S_TMP+4}, s{S_WAVE}, {8*W2RS}")
    k(f"s_add_u32 s{S_TMP+4}, s{S_TMP+4}, {L_WF}")
    k(f"s_movk_i32 s{S_TMP+1}, 205")
    for i in range(10):
        k(f"v_add_u32 v{t+8}, {64*i}, v{V_LANE}")
        k(f"v_mul_u32_u24 v{t+9}, s{S_TMP+1}, v{t+8}")
        k(f"v_lshrrev_b32 v{t+9}, 14, v{t+9}")
        k(f"v_lshlrev_b32 v{t+9}, 5, v{t+9}")
        k(f"v_lshl_add_u32 v{t+9}, v{t+8}, 4, v{t+9}")
        k(f"v_add_u32 v{FX+i}, s{S_TMP+4}, v{t+9}")
    k(f"s_waitcnt vmcnt({5 + 10 - nwf_early() + 2})")
    for i in range(nwf_early()):
        k(f"ds_write_b128 v{FX+i}, {vr(BWR+4*i,4)}")
    k("s_waitcnt vmcnt(2)")
    for i in range(nwf_early(), 10):
        k(f"ds_write_b128 v{FX+i}, {vr(BWR+4*i,4)}")
    gather_loop(k, "ho", loads, lambda kk: tag_check(kk, [(H+2, H+3), (H+6, H+7)]), 10, preissued=True)
    k(f"v_add_f32 v{H}, v{H}, v{H+4}")
    k(f"v_add_f32 v{H+1}, v{H+1}, v{H+5}")
    k.nop(2)
    k(f"v_permlane32_swap_b32 v{H}, v{H+1}")
    k.nop(1)
    k(f"v_add_f32 v{H}, v{H}, v{H+1}")
    round_bf16(k, H)
    silu(k, H, H + 1)
    k(f"v_cvt_pk_bf16_f32 v{H}, v{H}, v{H}")
    k(f"ds_write_b16 v{FADR+3}, v{H}")
    k("s_waitcnt lgkmcnt(0)")
    k("s_barrier")
    k.stamp(9)
    k(f"ds_read_b128 {vr(H,4)}, v{FADR+4}")
    for ct in range(10):
        r = FW2 + 4 * ct
        k(f"ds_read_b64_tr_b16 {vr(r,2)}, v{FADR+2} offset:{32*ct}")
        k(f"ds_read_b64_tr_b16 {vr(r+2,2)}, v{FADR+2} offset:{32*ct+16*W2RS}")
    k("s_waitcnt lgkmcnt(0)")
    for ct in range(10):
        k(f"v_mfma_f32_16x16x32_bf16 {vr(FD+4*ct,4)}, {vr(H,4)}, {vr(FW2+4*ct,4)}, 0")
    k.nop(8)
    for q in range(3):
        for bb in range(2):
            a0, a1 = FD + 16 * q + bb, FD + 16 * q + 4 + bb
            k(f"v_cndmask_b32 v{t+2*q+bb}, v{a0}, v{a1}, s[{S_M+2}:{S_M+3}]")
            if q < 2:
                a2, a3 = FD + 16 * q + 8 + bb, FD + 16 * q + 12 + bb
                k(f"v_cndmask_b32 v{t+8}, v{a2}, v{a3}, s[{S_M+2}:{S_M+3}]")
                k(f"v_cndmask_b32 v{t+2*q+bb}, v{t+2*q+bb}, v{t+8}, s[{S_M+4}:{S_M+5}]")
    k(f"buffer_store_dwordx2 {vr(t,2)}, v{FADR+7}, {srd(R_WS)}, s{S_TMP+2} offen sc1")
    k(f"buffer_store_dwordx2 {vr(t+2,2)}, v{FADR+7}, {srd(R_WS)}, s{S_TMP+2} offen offset:512 sc1")
    k(f"s_mov_b32 exec_hi, 0")
    k(f"buffer_store_dwordx2 {vr(t+4,2)}, v{FADR+7}, {srd(R_WS)}, s{S_TMP+2} offen offset:1024 sc1")
    k(f"s_mov_b64 exec, -1")
    k.stamp(11)


ZG = 10
ZT = 44


def tree_reduce4(k, g, t):
    k.nop(2)
    k(f"v_permlane32_swap_b32 v{g}, v{g+2}")
    k(f"v_permlane32_swap_b32 v{g+1}, v{g+3}")
    k.nop(1)
    k(f"v_add_f32 v{g}, v{g}, v{g+2}")
    k(f"v_add_f32 v{g+1}, v{g+1}, v{g+3}")
    k.nop(2)
    k(f"v_permlane16_swap_b32 v{g}, v{g+1}")
    k.nop(1)
    k(f"v_add_f32 v{t}, v{g}, v{g+1}")
    k.nop(2)
    k(f"v_add_f32_dpp v{t}, v{t}, v{t} row_ror:8 row_mask:0xf bank_mask:0xf")


def final(k):
    t = ZT
    k(f"s_lshl_b32 s{S_TMP}, s{S_Z}, 1")
    k(f"s_and_b32 s{S_TMP+1}, s{S_WAVE}, 1")
    k(f"s_add_u32 s{S_TMP}, s{S_TMP}, s{S_TMP+1}")
    k(f"s_lshl_b32 s{S_TMP+1}, s{S_TMP+1}, 8")
    k(f"s_add_u32 s{S_TMP+1}, s{S_TMP+1}, {L_FRED}")
    k(f"v_lshlrev_b32 v{t+11}, 2, v{V_LANE}")
    k(f"v_add_u32 v{t+11}, s{S_TMP+1}, v{t+11}")
    k(f"v_and_b32 v{t}, 7, v{V_LANE}")
    k(f"v_lshrrev_b32 v{t+1}, 1, v{V_SLAB}")
    k(f"v_lshl_add_u32 v{t}, v{t}, 1, v{t+1}")
    k(f"v_and_b32 v{t+1}, 1, v{V_SLAB}")
    k(f"v_mul_u32_u24 v{t+1}, 640, v{t+1}")
    k(f"v_add_u32 v{t}, v{t}, v{t+1}")
    k(f"v_lshlrev_b32 v{t}, 1, v{t}")
    k(f"s_lshl_b32 s{S_TMP+1}, s{S_TMP}, 5")
    k(f"buffer_load_ushort v{t+2}, v{t}, {srd(R_X)}, s{S_TMP+1} offen")
    k(f"v_and_b32 v{t+3}, 7, v{V_LANE}")
    k(f"v_lshlrev_b32 v{t+3}, 2, v{t+3}")
    k(f"v_and_b32 v{t+4}, 1, v{V_SLAB}")
    k(f"v_mul_u32_u24 v{t+4}, 1280, v{t+4}")
    k(f"v_add_u32 v{t+3}, v{t+3}, v{t+4}")
    if K.opt.get("outtouch", "1") == "1":
        k(f"buffer_load_dword v252, v{t+3}, {srd(R_OUT)}, s{S_TMP+1} offen")
    k(f"v_lshrrev_b32 v{t+4}, 3, v{V_LANE}")
    k(f"v_mul_u32_u24 v{t+4}, 5120, v{t+4}")
    k(f"v_and_b32 v{t+5}, 7, v{V_LANE}")
    k(f"v_lshl_add_u32 v{t+4}, v{t+5}, 4, v{t+4}")
    k(f"s_lshl_b32 s{S_TMP+2}, s{S_TMP}, 7")
    k(f"v_lshlrev_b32 v{t+5}, 3, v{V_LANE}")
    loads = []
    for i in range(2):
        k(f"s_mov_b32 s{4+i}, {WS_PC + i*512}")
        loads.append(f"buffer_load_dwordx2 {vr(ZG+2*i,2)}, v{t+5}, {srd(R_WS)}, s{4+i} offen sc1")
    gather_loop(k, "zf", loads, lambda kk: tag_check(kk, [(ZG+2*i, ZG+2*i+1) for i in range(2)]))
    k(f"s_cmp_ge_u32 s{S_WAVE}, 2")
    k(f"s_cbranch_scc1 L_Z_s")
    k(f"v_cmp_gt_u32 vcc, {NF}, v{V_LANE}")
    k.nop(2)
    k(f"v_cndmask_b32 v{t+5}, 0, v{V_LANE}, vcc")
    k(f"v_bfe_u32 v{t+6}, v{t+5}, 5, 1")
    k(f"v_lshlrev_b32 v{t+6}, 13, v{t+6}")
    k(f"v_and_b32 v{t+5}, 31, v{t+5}")
    k(f"v_lshl_add_u32 v{t+5}, v{t+5}, 3, v{t+6}")
    k(f"s_mov_b32 s4, {WS_ST + 256}")
    gather_check_loop(k, "zs", [f"buffer_load_dwordx2 {vr(ZG,2)}, v{t+5}, {srd(R_WS)}, s4 offen sc1"], [ZG, ZG + 1])
    k(f"s_add_u32 s{S_TMP+3}, s{S_TMP+2}, {WS_FP}")
    k(f"v_add_u32 v{t+5}, s{S_TMP+3}, v{t+4}")
    k(f"v_add_u32 v{t+6}, {48*5120}, v{t+5}")
    k(f"v_cmp_gt_u32 vcc, 48, v{V_LANE}")
    k(f"s_mov_b64 s[{S_M+2}:{S_M+3}], vcc")
    k.nop(2)
    k(f"v_cndmask_b32 v{t+6}, v{t+5}, v{t+6}, vcc")
    loads = []
    for i in range(6):
        k(f"s_mov_b32 s{4+i}, {i*8*5120}")
        loads.append(f"buffer_load_dwordx4 {vr(ZG+4*i,4)}, v{t+5}, {srd(R_WS)}, s{4+i} offen sc1")
    last = f"buffer_load_dwordx4 {vr(ZG+24,4)}, v{t+6}, {srd(R_WS)}, 0 offen sc1"
    gather_check_loop(k, "fp", loads + [last], list(range(ZG, ZG + 28)), 14)
    for c in range(4):
        k(f"v_cndmask_b32 v{ZG+24+c}, 0, v{ZG+24+c}, s[{S_M+2}:{S_M+3}]")
    for c in range(4):
        k(f"v_add_f32 v{ZG+c}, v{ZG+c}, v{ZG+4+c}")
        k(f"v_add_f32 v{ZG+8+c}, v{ZG+8+c}, v{ZG+12+c}")
        k(f"v_add_f32 v{ZG+16+c}, v{ZG+16+c}, v{ZG+20+c}")
    for c in range(4):
        k(f"v_add_f32 v{ZG+c}, v{ZG+c}, v{ZG+8+c}")
        k(f"v_add_f32 v{ZG+16+c}, v{ZG+16+c}, v{ZG+24+c}")
    for c in range(4):
        k(f"v_add_f32 v{ZG+c}, v{ZG+c}, v{ZG+16+c}")
    tree_reduce4(k, ZG, t + 8)
    round_bf16(k, t + 8)
    silu(k, t + 8, t + 9)
    round_bf16(k, t + 8)
    k(f"ds_write_b32 v{t+11}, v{t+8}")
    k("s_waitcnt lgkmcnt(0)")
    k("s_barrier")
    k("s_branch L_done")
    k("L_Z_s:")
    k(f"v_lshlrev_b32 v{t+2}, 16, v{t+2}")
    k(f"s_add_u32 s{S_TMP+3}, s{S_TMP+2}, {WS_SP}")
    k(f"v_add_u32 v{t+5}, s{S_TMP+3}, v{t+4}")
    loads = []
    for i in range(4):
        k(f"s_mov_b32 s{4+i}, {i*8*5120}")
        loads.append(f"buffer_load_dwordx4 {vr(ZG+4*i,4)}, v{t+5}, {srd(R_WS)}, s{4+i} offen sc1")
    gather_check_loop(k, "sp", loads, list(range(ZG, ZG + 16)), 15)
    skip = k.label("ep")
    k(f"s_cmp_eq_u32 s{S_TMP}, 0")
    k(f"s_cbranch_scc0 {skip}")
    k(f"v_mov_b32 v{t}, 0")
    k(f"v_mov_b32 v{t+1}, s{S_T0}")
    k(f"s_mov_b64 exec, 1")
    k(f"buffer_store_dword v{t+1}, v{t}, {srd(R_WS)}, 0 offen offset:{WS_EPOCH}")
    k(f"s_mov_b64 exec, -1")
    k(f"{skip}:")
    for c in range(4):
        k(f"v_add_f32 v{ZG+c}, v{ZG+c}, v{ZG+4+c}")
        k(f"v_add_f32 v{ZG+8+c}, v{ZG+8+c}, v{ZG+12+c}")
    for c in range(4):
        k(f"v_add_f32 v{ZG+c}, v{ZG+c}, v{ZG+8+c}")
    tree_reduce4(k, ZG, t + 9)
    round_bf16(k, t + 9)
    k("s_barrier")
    k(f"ds_read_b32 v{t+8}, v{t+11}")
    k("s_waitcnt lgkmcnt(0)")
    k(f"v_mul_f32 v{t+9}, v{t+9}, v{t+8}")
    round_bf16(k, t + 9)
    k(f"v_add_f32 v{t+9}, v{t+9}, v{t+2}")
    k(f"v_cvt_pk_bf16_f32 v{t+9}, v{t+9}, v{t+9}")
    k(f"v_mov_b32 v{t+10}, v{t+9}")
    k.nop(2)
    k(f"v_permlane32_swap_b32 v{t+9}, v{t+10}")
    k.nop(1)
    k(f"v_and_b32 v{t+9}, 0xffff, v{t+9}")
    k(f"v_lshl_or_b32 v{t+9}, v{t+10}, 16, v{t+9}")
    k(f"s_mov_b32 exec_lo, 0x00ff00ff")
    k(f"s_mov_b32 exec_hi, 0")
    k(f"s_lshl_b32 s{S_TMP+1}, s{S_TMP}, 5")
    k(f"buffer_store_dword v{t+9}, v{t+3}, {srd(R_OUT)}, s{S_TMP+1} offen")
    k(f"s_mov_b64 exec, -1")
    k.stamp(16)
    if K.opt.get("diag"):
        sk = k.label("dg")
        k(f"s_cmp_eq_u32 s{S_TMP}, 0")
        k(f"s_cbranch_scc0 {sk}")
        k(f"v_mov_b32 v{t}, 0")
        k(f"buffer_load_dword v{t+1}, v{t}, s[92:95], 0 offen sc1")
        k("s_waitcnt vmcnt(0)")
        k(f"v_readfirstlane_b32 s96, v{t+1}")
        k("s_memrealtime s[98:99]")
        k("s_waitcnt lgkmcnt(0)")
        k("s_not_b32 s96, s96")
        k("s_sub_u32 s97, s98, s96")
        mode = K.opt["diag"]
        if mode == "k0":
            k("s_mov_b32 s97, 0")
        elif mode == "k1":
            pass
        elif mode == "t1000":
            k("s_mov_b32 s97, 1000")
        if mode.startswith("cyc"):
            n = int(mode[3:])
            k(f"s_mov_b32 s97, {n}")
            lp = k.label("cy")
            k(f"{lp}:")
            k("s_nop 15")
            k("s_nop 15")
            k("s_sub_u32 s97, s97, 1")
            k("s_cmp_lg_u32 s97, 0")
            k(f"s_cbranch_scc1 {lp}")
        else:
            k("s_min_u32 s97, s97, 20000")
            k("s_add_u32 s97, s97, s98")
            lp = k.label("sp")
            k(f"{lp}:")
            k("s_memrealtime s[98:99]")
            k("s_waitcnt lgkmcnt(0)")
            k("s_sub_u32 s96, s97, s98")
            k("s_cmp_gt_i32 s96, 0")
            k(f"s_cbranch_scc1 {lp}")
        k(f"{sk}:")


def dump_stamps(k):
    if not k.stamps:
        return
    k("s_waitcnt vmcnt(0) lgkmcnt(0)")
    k.stamp(19)
    k(f"s_lshl_b32 s{S_TMP}, s2, 2")
    k(f"s_add_u32 s{S_TMP}, s{S_TMP}, s{S_WAVE}")
    k(f"s_lshl_b32 s{S_TMP}, s{S_TMP}, 7")
    k(f"s_add_u32 s{S_TMP}, s{S_TMP}, {WS_STAMP}")
    for i in range(20):
        k(f"v_mov_b32 v{10+i}, s{S_STAMP+i}")
    k(f"s_getreg_b32 s{S_TMP+1}, hwreg(HW_REG_XCC_ID)")
    k(f"v_mov_b32 v30, s{S_TMP+1}")
    k(f"v_mov_b32 v31, s{S_CNT}")
    k(f"v_mov_b32 v4, 0")
    k(f"s_mov_b64 exec, 1")
    for i in range(6):
        k(f"buffer_store_dwordx4 {vr(10+4*i,4)}, v4, {srd(R_WS)}, s{S_TMP} offen offset:{16*i}")
    k(f"s_mov_b64 exec, -1")


DOC = """;
; One persistent launch, 256 workgroups (one per CU), 4 waves each; generated by the author's own script.
; Absorbed form of the attention:  q = LN(x) Wq ; qa = q Wuk^T (scaled) ; s = qa c_kv^T ; split soft-max ;
;   P   : qa slice -> QA ; W1 piece -> HP ; combine splits + Wuv -> CP/CF ; Wo slice -> SP
; only tried a bounded number of times before the write-through copy is polled, so any placement gives the same result.
"""


def build(stamps=False):
    k = K(stamps)
    hdr = open("recurrent_scan__compressed_kv_cla__dense_activation_silu__decode.s.ref").read()
    comments = [l for l in hdr.split("\n") if l.startswith(";") and "@launch" not in l and "Override" not in l and "grid=ceil" not in l]
    out = "\n".join(comments) + "\n"
    out += f"; @launch grid=(256,1,1) block=(256,1,1) lds={LDS_BYTES}\n"
    out += DOC
    out += f""".amdgcn_target "amdgcn-amd-amdhsa--gfx950"
.text
.globl {NAME}
.p2align 8
.type {NAME},@function
{NAME}:
"""
    if stamps:
        for i in range(20):
            k(f"s_mov_b32 s{S_STAMP+i}, 0")
    if K.opt.get("diag"):
        k("s_memrealtime s[100:101]")
    prologue(k)
    if K.opt.get("diag"):
        k.srd(92, S_DBG, 256)
        k("s_cmp_lt_u32 s2, 8")
        k("s_cbranch_scc0 L_nodiag")
        k("s_not_b32 s100, s100")
        k("v_mov_b32 v8, s100")
        k("v_mov_b32 v9, 0")
        k("s_mov_b64 exec, 1")
        k("buffer_atomic_umax v8, v9, s[92:95], 0 offen")
        k("s_mov_b64 exec, -1")
        k("L_nodiag:")
    if K.opt.get("bdirect"):
        k(f"s_cmp_ge_u32 s{S_J}, 4")
        k(f"s_cbranch_scc0 L_done")
        k(f"s_mov_b32 s{S_T0}, 0")
        k(f"s_mov_b32 s{S_T1}, 0")
        k(f"v_mov_b32 v{VE}, 0")
        k("s_branch L_B")
    if K.opt.get("pnone"):
        k(f"s_cmp_lt_u32 s{S_J}, 4")
        k(f"s_cbranch_scc1 L_done")
    k(f"s_cmp_eq_u32 s{S_WAVE}, 0")
    k(f"s_cbranch_scc0 L_w123")
    stage1_issue(k)
    k("s_barrier")
    k("s_branch L_w0")
    k("L_w123:")
    k(f"v_mov_b32 v{V_T}, 0")
    k(f"buffer_load_dword v{VE}, v{V_T}, {srd(R_WS)}, 0 offen offset:{WS_EPOCH} sc1")
    if K.opt.get("tlb", "1") == "1":
        sk = k.label("tlb")
        k(f"s_cmp_eq_u32 s{S_WAVE}, 2")
        k(f"s_cbranch_scc0 {sk}")
        k(f"v_lshlrev_b32 v{V_T+1}, 20, v{V_LANE}")
        for ptr, size in ((S_CKV, 2*4096*512*2), (S_WUV, 512*4096*2), (S_WO, 4096*640*2), (S_W1, 640*1728*2), (S_W2, 1728*640*2)):
            k.srd(R_B, ptr, size)
            k(f"buffer_load_dword v252, v{V_T+1}, {srd(R_B)}, 0 offen")
        k(f"{sk}:")
    k(f"s_cmp_ge_u32 s{S_J}, 4")
    k(f"s_cbranch_scc1 L_Bw123")
    k(f"v_mov_b32 v{VPUB}, 0")
    for i in range(4):
        k(f"v_mov_b32 v{VD1+4+i}, 0")
    k(f"s_mov_b32 s{S_PUB}, 0x7f000000")
    k.srd(R_A, S_WUK, 512 * 4096 * 2)
    skc = k.label("pcl")
    k(f"s_cmp_eq_u32 s{S_WAVE}, 3")
    k(f"s_cbranch_scc0 {skc}")
    clears_P(k)
    k(f"{skc}:")
    k("s_barrier")
    wuk_issue(k)
    if K.opt.get("wukstamp"):
        k.stamp(2)
    k("s_waitcnt vmcnt(11)")
    epoch_tags(k, VE)
    skp = k.label("pcf")
    k(f"s_cmp_eq_u32 s{S_WAVE}, 3")
    k(f"s_cbranch_scc0 {skp}")
    tag_store(k, WS_PC, 3, PT + 2, jreg=S_J)
    k(f"{skp}:")
    k("s_branch L_P_join")
    k("L_Bw123:")
    b_roles(k)
    k.srd(R_A, S_CKV, 2 * 4096 * 512 * 2)
    ckv_setup(k)
    k("s_barrier")
    if not K.opt.get("noclr"):
        clears_B(k)
    ne = early_rows()
    if ne:
        k(f"s_cmp_ge_u32 s{S_WAVE}, 2")
        k(f"s_cbranch_scc0 L_Bw1")
        ckv_rows(k, 0, ne)
        k("s_barrier")
        k("s_branch L_B_rowsE")
        k("L_Bw1:")
    k("s_barrier")
    k("s_branch L_B_rows0")
    k("L_w0:")
    stage1_selectors(k)
    layernorm(k, 1 + 20)
    k(f"s_waitcnt vmcnt(20)")
    epoch_tags(k, VE)
    stage1_publish_addr(k)
    k.stamp(2)
    stage1_mfma(k, 0)
    skb = k.label("nb")
    k(f"s_cmp_ge_u32 s{S_J}, 4")
    k(f"s_cbranch_scc0 {skb}")
    k("s_barrier")
    k(f"{skb}:")
    stage1_publish(k, 0)
    k(f"s_cmp_ge_u32 s{S_J}, 4")
    k(f"s_cbranch_scc1 L_B")
    k("L_P_join:")
    k.srd(R_B, S_WUV, 512 * 4096 * 2)
    k.srd(R_C, S_WO, 4096 * 640 * 2)
    stage2(k)
    if K.opt.get("pexit"):
        k("s_branch L_done")
    k(f"s_cmp_lt_u32 s{S_H}, 27")
    k(f"s_cbranch_scc0 L_P_nof1")
    w1p_issue(k)
    k("L_P_nof1:")
    p_weights_issue(k)
    wo_issue(k)
    stage4_setup(k)
    k(f"s_cmp_lt_u32 s{S_H}, 27")
    k(f"s_cbranch_scc0 L_P_nof2")
    ffn1p(k)
    k("s_waitcnt vmcnt(1)")
    k("s_branch L_P_wl")
    k("L_P_nof2:")
    k("s_waitcnt vmcnt(0)")
    k("L_P_wl:")
    k("s_barrier")
    k.stamp(6)
    p_weights_preread(k)
    wo_preread(k)
    stage4(k)
    stage5(k)
    k("s_branch L_done")
    k("L_B:")
    b_roles(k)
    k.srd(R_A, S_CKV, 2 * 4096 * 512 * 2)
    ckv_setup(k)
    k("L_B_rows0:")
    k.stamp(12)
    ckv_rows(k, 0, early_rows())
    k("L_B_rowsE:")
    ckv_rows(k, early_rows(), 32)
    if K.opt.get("trig", "0") == "1":
        tag_store(k, WS_TR, 6, BT + 2, only_wave=3)
    k.stamp(13)
    if K.opt.get("bdirect"):
        k("s_waitcnt vmcnt(0)")
        k.stamp(4)
        k("s_branch L_done")
    k.srd(R_OUT, S_OUT, 2560)
    wf_setup(k)
    attention_setup(k)
    attention(k)
    k("L_B_r2:")
    k(f"s_cmp_eq_u32 s{S_ROLE}, 2")
    k(f"s_cbranch_scc0 L_B_r3")
    ffn2(k)
    k("s_branch L_done")
    k("L_B_r3:")
    k(f"s_cmp_eq_u32 s{S_ROLE}, 3")
    k(f"s_cbranch_scc0 L_done")
    final(k)
    k("L_done:")
    dump_stamps(k)
    k("L_exit:")
    k("s_endpgm")
    out += k.text()
    out += f""".section .rodata,"a"
.p2align 6
.amdhsa_kernel {NAME}
  .amdhsa_next_free_vgpr 512
  .amdhsa_next_free_sgpr 102
  .amdhsa_accum_offset 256
  .amdhsa_group_segment_fixed_size 0
  .amdhsa_kernarg_size 96
  .amdhsa_user_sgpr_count 2
  .amdhsa_user_sgpr_kernarg_segment_ptr 1
  .amdhsa_system_sgpr_workgroup_id_x 1
.end_amdhsa_kernel
"""
    return out


if __name__ == "__main__":
    for a in sys.argv[1:]:
        if a.startswith("--spin="):
            SPIN_LIMIT = int(a[7:])
    stamps = "--stamps" in sys.argv
    for a in sys.argv[1:]:
        if a.startswith("--") and "=" in a:
            kk, vv = a[2:].split("=")
            K.opt[kk] = vv
    outp = [a for a in sys.argv[1:] if not a.startswith("--")]
    open(outp[0] if outp else "k.s", "w").write(build(stamps))
```
